```python
import torch

def _softmax(x, axis=-1):
    return torch.softmax(x, dim=axis)
def _gelu(x):
    return torch.nn.functional.gelu(x, approximate="tanh")
def _silu(x):
    return torch.nn.functional.silu(x)
def _sigmoid(x):
    return torch.sigmoid(x)
def _layernorm(x, axis=-1, eps=1e-5):
    m = x.mean(dim=axis, keepdim=True)
    v = x.var(dim=axis, keepdim=True, unbiased=False)
    return (x - m) / torch.sqrt(v + eps)
def _scatter_add(tgt, idx, src, axis=0):
    return tgt.clone().index_add_(axis, idx, src)
def _segment_sum(src, seg, n):
    out = torch.zeros((n,) + src.shape[1:], dtype=src.dtype)
    return out.index_add_(0, seg, src)
def _pad(x, pw):
    flat = tuple(v for pair in reversed(pw) for v in pair)
    return torch.nn.functional.pad(x, flat)

kernel_name = 'concat_heads__softmax_full_mha__ssm_conv_h3__prompt'

def setup_inputs():

    _w = (lambda a: (lambda t: t.to(torch.bfloat16) if t.is_floating_point() else t)(torch.as_tensor(a)))
    def _A_setup():
        B, S, D = 1, 2048, 448
        return {
            "x": _w((lambda *s: torch.randn(*s, dtype=torch.bfloat16) * 0.2)(B, S, D)),
            "wqkv": _w((lambda *s: torch.randn(*s, dtype=torch.bfloat16) * 0.2)(D, 3 * D)),
            "wo": _w((lambda *s: torch.randn(*s, dtype=torch.bfloat16) * 0.05)(D, D)),
        }
    _A_in = _A_setup()

    def _B_setup():
        B, S, D = 1, 2048, 448
        ks = 4
        return {
            "q": _w((lambda *s: torch.randn(*s, dtype=torch.bfloat16) * 0.05)(B, S, D)),
            "k": _w((lambda *s: torch.randn(*s, dtype=torch.bfloat16) * 0.4)(B, S, D)),
            "v": _w((lambda *s: torch.randn(*s, dtype=torch.bfloat16) * 0.4)(B, S, D)),
            "shift_k": _w((lambda *s: torch.randn(*s, dtype=torch.bfloat16) * 0.4)(D, ks) * 0.5),
            "ssm_k": _w((lambda *s: torch.randn(*s, dtype=torch.bfloat16) * 0.8)(D, S) * (1.0 / S ** 0.5)),
            "ssm_D": _w((lambda *s: torch.randn(*s, dtype=torch.bfloat16) * 0.4)(D)),
        }
    _B_in = _B_setup()

    return {
        "A_x": _A_in["x"],
        "A_wqkv": _A_in["wqkv"],
        "A_wo": _A_in["wo"],
        "B_q": _B_in["q"],
        "B_k": _B_in["k"],
        "B_v": _B_in["v"],
        "B_shift_k": _B_in["shift_k"],
        "B_ssm_k": _B_in["ssm_k"],
        "B_ssm_D": _B_in["ssm_D"],
    }

def reference(A_x, A_wqkv, A_wo, B_q, B_k, B_v, B_shift_k, B_ssm_k, B_ssm_D):
    def _A_ref(x, wqkv, wo):
        B, S, D = x.shape
        H = 16; Dh = D // H
        qkv = (lambda x, *d: x.permute(*d))((x @ wqkv).reshape(B, S, 3, H, Dh), 2, 0, 3, 1, 4)
        q, k, v = qkv[0], qkv[1], qkv[2]
        scale = Dh ** -0.5
        scores = torch.einsum("bhqd,bhkd->bhqk", q, k) * scale
        p = _softmax(scores, axis=-1)
        o = torch.einsum("bhqk,bhkd->bhqd", p, v)
        return (lambda x, *d: x.permute(*d))(o, 0, 2, 1, 3).reshape(B, S, D) @ wo

    def _B_ref(q, k, v, shift_k, ssm_k, ssm_D):
        B, S, D = q.shape
        ks = shift_k.shape[-1]
        k_pad = _pad(k, ((0, 0), (ks - 1, 0), (0, 0)))
        k_shift = torch.zeros_like(k)
        for t in range(ks):
            k_shift = k_shift + k_pad[:, t:t + S, :] * shift_k[:, ks - 1 - t][None, None, :]
        kv = k_shift * v
        L = 2 * S
        kv_pad = _pad(kv, ((0, 0), (0, S), (0, 0)))
        kf_pad = _pad(ssm_k, ((0, 0), (0, S)))
        kv_f = (lambda x, axes=(-2,-1): torch.fft.rfft2(x.float(), dim=axes))(kv_pad[:, None, :, :], axes=(1, 2))
        kf_f = (lambda x, axes=(-2,-1): torch.fft.rfft2(x.float(), dim=axes))(kf_pad[:, None, :], axes=(1, 2))
        kf_f = (lambda x, *d: x.permute(*d))(kf_f, 1, 2, 0)
        y_f = kv_f * kf_f[None, :, :, :]
        y = (lambda x, s, axes=(-2,-1): torch.fft.irfft2(x, s=s, dim=axes).to(torch.bfloat16))(y_f, (1, L), axes=(1, 2))[:, 0, :S, :]
        y = y + kv * ssm_D[None, None, :]
        return q * y

    a = _A_ref(A_x, A_wqkv, A_wo)
    b = _B_ref(B_q, B_k, B_v, B_shift_k, B_ssm_k, B_ssm_D)
    return torch.concatenate([a, b], axis=-1)
```

```python
import re

def v(i, n=1): return f"v{i}" if n == 1 else f"v[{i}:{i+n-1}]"
def s(i, n=1): return f"s{i}" if n == 1 else f"s[{i}:{i+n-1}]"

_REG = re.compile(r"^(-|abs\()?([vsa])(?:(\d+)|\[(\d+):(\d+)\])\)?$")
def regs(tok):
    tok = tok.strip()
    if tok in ("vcc", "vcc_lo", "vcc_hi"): return {("s", "vcc")}
    if tok in ("exec", "exec_lo", "exec_hi"): return {("s", "exec")}
    if tok == "m0": return {("s", "m0")}
    m = _REG.match(tok)
    if not m: return set()
    k = m.group(2)
    if m.group(3) is not None: return {(k, int(m.group(3)))}
    return {(k, i) for i in range(int(m.group(4)), int(m.group(5)) + 1)}

TRANS = ("v_exp_", "v_log_", "v_rcp_", "v_rsq_", "v_sqrt_", "v_sin_", "v_cos_")
class Ins:
    def __init__(self, text):
        self.text = text
        t = text.split(";")[0].strip()
        self.label = None; self.mn = None
        if t.endswith(":"):
            self.label = t[:-1]; return
        if not t or t.startswith("."): return
        p = t.split(None, 1)
        self.mn = mn = p[0]
        ops = [o.strip() for o in p[1].split(",")] if len(p) > 1 else []
        mods = ""
        if ops:
            q = ops[-1].split(None, 1)
            ops[-1] = q[0]; mods = q[1] if len(q) > 1 else ""
        self.ops = ops; self.mods = mods
        R = [regs(o) for o in ops]
        self.rd = set(); self.wr = set()
        self.mfma = mn.startswith("v_mfma")
        self.valu = mn.startswith("v_") and not self.mfma
        self.salu = mn.startswith("s_")
        self.vmem = mn.startswith(("buffer_", "global_"))
        self.ds = mn.startswith("ds_")
        self.trans = mn.startswith(TRANS)
        self.states = 1
        self.passes = 0
        self.dma = self.vmem and (" lds" in (" " + mods) or "_lds_" in mn)
        self.wide_store = False
        if mn == "s_nop": self.states = int(ops[0], 0) + 1
        if self.mfma:
            self.passes = 8 if "32x32" in mn else 4
            self.wr = R[0]; self.A = R[1]; self.B = R[2]; self.C = R[3]
            self.rd = R[1] | R[2] | R[3]
        elif self.valu:
            nd = 1
            if re.match(r"v_(add|sub|subrev|addc|subb)_co_", mn): nd = 2
            if "permlane" in mn and "swap" in mn:
                self.wr = R[0] | R[1]; self.rd = R[0] | R[1]
            else:
                for r in R[:nd]: self.wr |= r
                for r in R[nd:]: self.rd |= r
                if mn.startswith(("v_fmac", "v_pk_fmac", "v_writelane", "v_dot2c")) or "sdwa" in mn or "dpp" in mn or "quad_perm" in mods or "row_" in mods:
                    self.rd |= R[0]
            self.dpp = "dpp" in mn or "quad_perm" in mods or "row_" in mods
        elif self.ds:
            if mn.startswith(("ds_read", "ds_bpermute", "ds_permute", "ds_swizzle")):
                self.wr = R[0]
                for r in R[1:]: self.rd |= r
            else:
                for r in R: self.rd |= r
        elif self.vmem:
            if "load" in mn and not self.dma:
                self.wr = R[0]
                for r in R[1:]: self.rd |= r
            else:
                for r in R: self.rd |= r
                if "store" in mn and mn.endswith(("x3", "x4")):
                    self.wide_store = True
                    self.sdata = R[0] if mn.startswith("buffer_") else R[1]
            if self.dma: self.rd |= {("s", "m0")}
        elif self.salu:
            nowr = mn.startswith(("s_cmp", "s_cbranch", "s_branch", "s_waitcnt", "s_barrier", "s_nop", "s_endpgm", "s_setprio", "s_sleep", "s_bitcmp"))
            if not nowr and R:
                self.wr = R[0]
                for r in R[1:]: self.rd |= r
                if "saveexec" in mn: self.wr = self.wr | {("s", "exec")}
            else:
                for r in R: self.rd |= r

def vset(x): return {r for r in x if r[0] in "va"}
def sset(x): return {r for r in x if r[0] == "s"}

def need(p, c):
    n = 0
    if p.valu:
        w = vset(p.wr)
        if c.mfma and w & c.rd: n = max(n, 2)
        if c.valu:
            if w & c.rd:
                if p.trans and not c.trans: n = max(n, 1)
                if "permlane" in c.mn or c.dpp: n = max(n, 2)
                if c.mn.startswith(("v_readlane", "v_readfirstlane")): n = max(n, 1)
                if "sdwa" in p.mn or "op_sel" in p.mods and not p.mn.startswith("v_pk"): n = max(n, 1)
        if p.trans and (c.vmem or c.ds) and w & c.rd: n = max(n, 1)
        ws = sset(p.wr)
        if ws & c.rd:
            if c.valu: n = max(n, 4 if c.mn.startswith(("v_readlane", "v_writelane")) else 2)
            if c.vmem: n = max(n, 5)
            if c.salu: n = max(n, 1)
        if ("s", "vcc") in ws and c.mn and c.mn.startswith("s_cbranch_vcc"): n = max(n, 1)
    if p.mfma:
        big = 12 if p.passes == 8 else 8
        if c.mfma:
            if p.wr & (c.A | c.B): n = max(n, big)
            if p.wr & c.C and not (p.wr == c.C and p.passes == c.passes): n = max(n, big - 2)
            elif p.wr & c.wr and not (p.wr == c.wr and p.passes == c.passes): n = max(n, big - 2)
        elif c.valu or c.vmem or c.ds:
            if p.wr & (c.rd | c.wr): n = max(n, big)
            if c.valu and vset(p.C) & c.wr: n = max(n, p.passes - 1)
    if p.salu and ("s", "m0") in p.wr and c.dma: n = max(n, 1)
    if p.wide_store and p.sdata & c.wr: n = max(n, 2 if c.valu else 1)
    return n

MAXW = 12
def pad(lines, verbose=False):
    ins = [Ins(l) for l in lines]
    total = 0
    while True:
        lab = {x.label: i for i, x in enumerate(ins) if x.label}
        br = {}
        for i, x in enumerate(ins):
            if x.mn and (x.mn.startswith("s_cbranch") or x.mn == "s_branch"):
                br.setdefault(lab[x.ops[0]], []).append(i)
        def preds(i):
            out = []
            if i > 0 and not (ins[i-1].mn in ("s_branch", "s_endpgm", "s_setpc_b64")): out.append(i - 1)
            out += br.get(i, [])
            return out
        fix = None
        for i, c in enumerate(ins):
            if not c.mn or c.mn == "s_nop": continue
            worst = 0; who = None
            stack = [(j, 0) for j in preds(i)]; seen = {}
            while stack:
                j, d = stack.pop()
                if seen.get(j, 99) <= d: continue
                seen[j] = d
                p = ins[j]
                if p.mn:
                    n = need(p, c)
                    if n - d > worst: worst = n - d; who = p
                    d += p.states
                if d < MAXW:
                    stack += [(k, d) for k in preds(j)]
            if worst > 0:
                fix = (i, worst, who); break
        if not fix: break
        i, w, who = fix
        if verbose: print(f"pad {w}: [{who.text.strip()}] -> [{ins[i].text.strip()}]")
        ins.insert(i, Ins(f"    s_nop {w-1}")); total += w
    return [x.text for x in ins]

class Asm:
    def __init__(self): self.l = []
    def __call__(self, txt):
        for t in txt.strip("\n").split("\n"):
            t = t.strip()
            if not t: continue
            self.l.append(t if t.endswith(":") or t.startswith(";") else "    " + t)
    def c(self, txt): self.l.append("    ; " + txt)
    def label(self, n): self.l.append(n + ":")
```

```python
import sys, struct, math
from asmlib import *

NAME = "concat_heads__softmax_full_mha__ssm_conv_h3__prompt"
DIAG = "diag" in sys.argv
OPT = {k: int(x) for k, x in (a.split("=") for a in sys.argv[2:] if "=" in a)}
SPIN = 1 << 16

FA, FB, FC = 0x1000, 0x2000, 0x3000
QF, KV, UU, ZZ, OF, WSEND = 0x100000, 0x300000, 0x700000, 0x900000, 0xB00000, 0xD00000
DG = 0x10000
LX, LA, LB, LP, LR = 0, 32768, 65536, 98304, 131072
HP, UOFF = 4160, 16640
MERGE, BADF = LP + 4096, LP + 3072
ONES = 0x3f803f80
def fbits(x): return struct.unpack("<I", struct.pack("<f", x))[0]
QSCALE = fbits(28 ** -0.5 * math.log2(math.e))

X_, WQ, WO, Q_, K_, V_, SK, HK, OUT, WS = 4, 8, 12, 16, 20, 24, 28, 32, 36, 40
sDP, sNON, sW = 44, 46, 47
sJ, sTT, sRT, sCG, sC, sH, sQT, sG = 48, 49, 50, 51, 52, 53, 54, 55
sED, sT0, sT1, sT2, sT3, sT4, sT5, sT6, sT7 = 56, 57, 58, 59, 60, 61, 62, 63, 64
sI, sSO, sSO2, sLW, sLX, sTRY, sSP, sCB = 65, 66, 67, 68, 69, 70, 71, 72
sDV, sM1, sM2 = 73, 74, 76
sKVB, sWM = 78, 79
sFL, sE0, sE1, sE2, sKP, sZO, sOO, sKL, sUO, sQO, sUT, sKS = 20, 21, 22, 23, 24, 26, 27, 28, 29, 30, 31, 32
sQS = 34
sST = 80
def srd(b): return s(b, 4)

a = Asm()
def stamp(k):
    if not DIAG: return
    a(f"{'s_memtime' if OPT.get('cyc') else 's_memrealtime'} s[96:97]\ns_waitcnt lgkmcnt(0)\ns_mov_b32 s{sST+k}, s96")

npoll = [0]
def poll(vaddr, vtmp):
    n = npoll[0]; npoll[0] += 1
    a(f"""
s_mov_b32 s{sSP}, {SPIN}
L_poll{n}:
buffer_load_dword v{vtmp}, v{vaddr}, {srd(WS)}, 0 offen sc1
s_waitcnt vmcnt(0)
v_cmp_ne_u32 vcc, s{sNON}, v{vtmp}
s_cbranch_vccz L_pollok{n}
s_sub_u32 s{sSP}, s{sSP}, 1
s_cbranch_scc0 L_poll{n}
L_pollok{n}:
""")
vNON = 15
def signal(soff):
    a(f"s_mov_b64 exec, 1\nbuffer_store_dword v{vNON}, v1, {srd(WS)}, {soff} offen sc1\ns_mov_b64 exec, -1")

def mfma32(d, A, B, C): return f"v_mfma_f32_32x32x16_bf16 {v(d,16)}, {v(A,4)}, {v(B,4)}, {C if isinstance(C,str) else v(C,16)}"
def mfma16(d, A, B, C): return f"v_mfma_f32_16x16x32_bf16 {v(d,4)}, {v(A,4)}, {v(B,4)}, {C if isinstance(C,str) else v(C,4)}"

class LQ:
    def __init__(self): self.q = []
    def __call__(self, txt):
        for t in txt.strip("\n").split("\n"):
            i = Ins(t)
            if not i.mn: a(t); continue
            last = max([k for k, w in enumerate(self.q) if w & (i.rd | (i.wr if not i.ds else set()))], default=-1)
            if last >= 0:
                n = min(15, len(self.q) - 1 - last)
                a(f"s_waitcnt lgkmcnt({n})"); self.q = self.q[len(self.q) - n:]
            a(t)
            if i.ds: self.q.append(vset(i.wr))
    def drain(self, n=0):
        if len(self.q) > n:
            a(f"s_waitcnt lgkmcnt({n})"); self.q = self.q[len(self.q) - n:]

a.label(NAME + "_kernel")
if DIAG: a(f"{'s_memtime' if OPT.get('cyc') else 's_memrealtime'} s[98:99]")
a(f"""
s_cmp_ge_u32 s2, 256
s_cbranch_scc1 L_end
s_load_dwordx2 s[{K_}:{K_+1}], s[0:1], 32
s_load_dwordx2 s[{WS}:{WS+1}], s[0:1], 88
s_getpc_b64 s[{sT5}:{sT6}]
L_pc:
v_mul_u32_u24 v2, @@PFS@@, v0
s_sub_u32 s{sT5}, s{sT5}, L_pc-{NAME}_kernel
s_subb_u32 s{sT6}, s{sT6}, 0
v_mov_b32 v3, s{sT6}
v_add_co_u32 v2, vcc, s{sT5}, v2
v_lshrrev_b32 v1, 6, v0
v_and_b32 v0, 63, v0
v_addc_co_u32 v3, vcc, 0, v3, vcc
v_readfirstlane_b32 s{sW}, v1
""")
a.c("pull the kernel's own code towards L2 (a load only)")
a(f"""
global_load_dword v255, v[2:3], off
s_load_dwordx2 s[{V_}:{V_+1}], s[0:1], 40
s_load_dwordx2 s[{SK}:{SK+1}], s[0:1], 48
s_load_dwordx2 s[{HK}:{HK+1}], s[0:1], 56
s_load_dwordx2 s[{X_}:{X_+1}], s[0:1], 0
s_load_dwordx2 s[{WQ}:{WQ+1}], s[0:1], 8
s_load_dwordx2 s[{WO}:{WO+1}], s[0:1], 16
s_load_dwordx2 s[{Q_}:{Q_+1}], s[0:1], 24
s_load_dwordx2 s[{sDP}:{sDP+1}], s[0:1], 64
s_load_dwordx2 s[{OUT}:{OUT+1}], s[0:1], 72
v_lshlrev_b32 v1, 4, v0
""")
def srdconst(lst):
    for b, n in lst: a(f"s_mov_b32 s{b+2}, {n}\ns_mov_b32 s{b+3}, 0x20000")
a.c("work ids: grouped by wg&7 for L2 locality only")
a(f"""
s_and_b32 s{sH}, s2, 7
s_lshr_b32 s{sQT}, s2, 3
s_and_b32 s{sG}, s{sW}, 3
s_lshl_b32 s{sT2}, s{sH}, 3
s_lshr_b32 s{sT3}, s{sQT}, 2
s_add_u32 s{sRT}, s{sT2}, s{sT3}
s_and_b32 s{sCG}, s{sQT}, 3
s_sub_u32 s{sT2}, s2, 32
s_cmp_lt_u32 s2, 224
s_cselect_b32 s{sC}, s2, s{sT2}
v_lshrrev_b32 v130, 4, v0
v_mov_b32 v9, v1
s_cmp_lt_u32 s{sW}, 4
s_cbranch_scc1 L_xw
""")
vGA, vHO, vCP = 9, 10, 11
KR, VR, SR = 16, 28, 36
KF, VF, WF, UA, UP = 40, 64, 80, 88, 104
H0 = 112
QR = 240
a("s_setprio 3")
srdconst(((K_, 1835008), (V_, 1835008), (SK, 3584), (HK, 1835008)))
a(f"""
v_and_b32 v{vCP}, 15, v0
v_min_u32 v{vCP}, 13, v{vCP}
s_lshl_b32 s{sT0}, s{sCG}, 2
s_add_u32 s{sT0}, s{sT0}, s{sG}
s_mul_i32 s{sT1}, s{sT0}, 56
s_mul_i32 s{sT2}, s{sRT}, {32*896}
s_add_u32 s{sT2}, s{sT2}, s{sT1}
v_mul_u32_u24 v132, {8*896}, v130
v_lshl_add_u32 v132, v{vCP}, 2, v132
v_add_u32 v{vGA}, s{sT2}, v132
v_subrev_u32 v135, 2688, v{vGA}
s_lshl_b32 s{sT1}, s{sT1}, 2
v_lshl_add_u32 v137, v{vCP}, 4, s{sT1}
s_lshl_b32 s{sT3}, s{sC}, 13
s_lshl_b32 s{sT4}, s{sG}, 10
s_add_u32 s{sT3}, s{sT3}, s{sT4}
v_add_u32 v133, s{sT3}, v1
v_add_u32 v{vHO}, s{sT4}, v1
v_subrev_u32 v134, 8, v133
v_cmp_eq_u32 vcc, 0, v{vHO}
v_mov_b32 v136, 0xffffe000
s_movk_i32 s{sT5}, 3584
s_movk_i32 s{sT7}, 4096
v_cndmask_b32 v134, v134, v136, vcc
s_waitcnt lgkmcnt(0)
""")
stamp(0)
a(f"buffer_load_dwordx4 {v(SR,4)}, v137, {srd(SK)}, 0 offen")
for i in range(3): a(f"buffer_load_dword v{KR+i}, v135, {srd(K_)}, 0 offen offset:{896*i}")
for i in range(8): a(f"buffer_load_dword v{KR+3+i}, v{vGA}, {srd(K_)}, {'0' if i<4 else s(sT5)} offen offset:{896*(i&3)}")
for i in range(8): a(f"buffer_load_dword v{VR+i}, v{vGA}, {srd(V_)}, {'0' if i<4 else s(sT5)} offen offset:{896*(i&3)}")
for p in range(2):
    so = "0" if p == 0 else s(sT7)
    a(f"buffer_load_dwordx2 {v(H0+8*p,2)}, v134, {srd(HK)}, {so} offen\nbuffer_load_dwordx4 {v(H0+8*p+2,4)}, v133, {srd(HK)}, {so} offen")

vXD, vWD, vXR, vWR, vXB = 2, 6, 9, 13, 14
ACC, RS = 16, 64
a.label("L_xw")
srdconst(((X_, 1835008), (WQ, 1204224)))
a(f"""
s_and_b32 s{sT2}, s{sH}, 1
s_lshl_b32 s{sT2}, s{sT2}, 3
s_and_b32 s{sJ}, s{sQT}, 7
s_add_u32 s{sJ}, s{sJ}, s{sT2}
s_lshr_b32 s{sT2}, s{sH}, 1
s_lshl_b32 s{sT2}, s{sT2}, 2
s_lshr_b32 s{sT3}, s{sQT}, 3
s_add_u32 s{sT2}, s{sT2}, s{sT3}
s_lshl_b32 s{sT2}, s{sT2}, 2
s_add_u32 s{sTT}, s{sT2}, s{sG}
v_lshrrev_b32 v128, 3, v0
s_lshl_b32 s{sT0}, s{sTT}, 5
v_add_u32 v128, s{sT0}, v128
v_mul_u32_u24 v128, 896, v128
v_and_b32 v129, 7, v0
v_xor_b32 v129, v129, v130
v_lshl_add_u32 v{vXD}, v129, 4, v128
v_xor_b32 v129, 4, v129
v_lshl_add_u32 v{vXD+1}, v129, 4, v128
v_add_u32 v{vXD+1}, {7168-1024}, v{vXD+1}
v_add_u32 v{vXD+2}, {14336-2048}, v{vXD}
v_add_u32 v{vXD+3}, {14336-2048}, v{vXD+1}
s_mul_i32 s{sT0}, s{sJ}, 168
s_and_b32 s{sT6}, s{sJ}, 1
s_lshl_b32 s{sT6}, s{sT6}, 3
s_sub_u32 s{sT0}, s{sT0}, s{sT6}
s_mul_i32 s{sT2}, s{sG}, {16*2688}
s_add_u32 s{sT0}, s{sT0}, s{sT2}
""")
for q in range(3):
    a(f"""
v_add_u32 v128, {64*q}, v0
v_mul_u32_u24 v129, 43691, v128
v_lshrrev_b32 v129, 19, v129
v_mul_u32_u24 v131, 12, v129
v_sub_u32 v128, v128, v131
v_min_u32 v128, 10, v128
v_mul_u32_u24 v129, 2688, v129
v_lshl_add_u32 v128, v128, 4, v129
v_add_u32 v{vWD+q}, s{sT0}, v128
""")
    if q < 2: a(f"s_sub_u32 s{sT0}, s{sT0}, 1024")
a(f"""
s_and_b32 s{sT2}, s{sG}, 1
s_lshl_b32 s{sT2}, s{sT2}, 14
s_cmp_ge_u32 s{sG}, 2
s_mov_b32 s{sLX}, {LB}
s_cselect_b32 s{sLX}, {LR}, s{sLX}
s_add_u32 s{sLX}, s{sLX}, s{sT2}
s_mul_i32 s{sLW}, s{sG}, 3072
s_cmp_ge_u32 s{sW}, 4
s_cbranch_scc1 L_common
s_waitcnt lgkmcnt(0)
""")
stamp(0)
def wbase(st): return LP + 12288 * st if st < 2 else 12288 * (st - 2)
def dma_x(st):
    a(f"s_add_u32 m0, s{sLX}, {4096*(st&3)}\ns_movk_i32 s{sSO}, {128*st}")
    for i in range(4): a(f"buffer_load_dwordx4 v{vXD+i}, {srd(X_)}, s{sSO} offen offset:{1024*i} lds")
def dma_w(st):
    a(f"s_add_u32 m0, s{sLW}, {wbase(st)}\ns_mov_b32 s{sSO2}, {64*2688*st}")
    for q in range(3): a(f"buffer_load_dwordx4 v{vWD+q}, {srd(WQ)}, s{sSO2} offen offset:{1024*q} lds")
for st in range(4): dma_x(st); dma_w(st)
stamp(2)

vCA, vCB, vCW, vCR, vCU, vZ, vD = 192, 193, 194, 195, 196, 197, 198
vB0, vB1, vQA, vWOA, vMG, vBW, vBR = 199, 200, 201, 202, 203, 204, 205
vPA, vUD, vPB, vZL, vGO, vOW = 206, 207, 208, 209, 210, 211
a.label("L_common")
a(f"""
s_load_dword s{sED}, s[{WS}:{WS+1}], 0
s_lshl_b32 s{sT0}, s{sC}, 2
s_load_dword s{sDV}, s[{sDP}:{sDP+1}], s{sT0}
""")
srdconst(((WO, 401408), (Q_, 1835008), (OUT, 3670016), (WS, WSEND)))
a(f"""
s_lshl_b32 s{sT2}, s{sH}, 1
s_lshr_b32 s{sT3}, s{sQT}, 4
s_add_u32 s{sH}, s{sT2}, s{sT3}
s_and_b32 s{sQT}, s{sQT}, 15
s_mov_b32 s{sTRY}, 0
s_lshr_b32 s{sT7}, s{sW}, 2
s_mul_i32 s{sCB}, s{sT7}, {LP}
v_and_b32 v132, 3, v0
v_sub_u32 v133, 3, v132
v_mul_u32_u24 v133, {HP}, v133
v_and_b32 v134, 12, v0
v_lshl_add_u32 v133, v134, 1, v133
v_and_b32 v134, 0x30, v0
v_sub_u32 v133, v133, v134
s_lshl_b32 s{sT0}, s{sG}, 7
s_add_u32 s{sT1}, s{sT0}, s{sCB}
s_add_u32 s{sT1}, s{sT1}, 56
v_add_u32 v{vCA}, s{sT1}, v133
v_and_b32 v139, 15, v0
v_lshl_add_u32 v133, v139, 5, v134
s_sub_u32 s{sT1}, s{sCB}, s{sT0}
s_add_u32 s{sT1}, s{sT1}, {UOFF+512-96}
v_add_u32 v{vCB}, s{sT1}, v133
v_lshrrev_b32 v131, 5, v0
v_lshlrev_b32 v133, 7, v131
v_xor_b32 v133, v133, v1
s_lshl_b32 s{sT0}, s{sG}, 13
s_add_u32 s{sT0}, s{sT0}, s{sCB}
v_add_u32 v{vCW}, s{sT0}, v133
v_bfe_u32 v135, v0, 2, 1
v_mul_u32_u24 v136, {LP}, v135
v_lshrrev_b32 v137, 3, v0
v_lshl_add_u32 v138, v137, 2, v132
v_lshrrev_b32 v133, 1, v138
v_and_b32 v134, 1, v0
v_mul_u32_u24 v134, 40, v134
v_xor_b32 v133, v133, v134
v_lshl_add_u32 v133, v133, 4, v136
s_lshl_b32 s{sT0}, s{sW}, 10
v_add_u32 v{vCR}, s{sT0}, v133
v_lshl_add_u32 v133, v138, 4, v136
s_lshl_b32 s{sT0}, s{sW}, 9
s_add_u32 s{sT0}, s{sT0}, {UOFF+512}
v_add_u32 v{vCU}, s{sT0}, v133
v_mul_u32_u24 v133, 28672, v137
v_and_b32 v134, 7, v0
v_lshl_add_u32 v{vZ}, v134, 4, v133
v_lshlrev_b32 v134, 2, v134
v_add_u32 v{vBR}, {BADF}, v134
s_mul_i32 s{sT0}, s{sW}, {8*28672}
s_lshl_b32 s{sT1}, s{sC}, 7
s_add_u32 s{sT0}, s{sT0}, s{sT1}
s_add_u32 s{sZO}, s{sT0}, {ZZ}
s_lshl_b32 s{sKVB}, s{sH}, 18
s_add_u32 s{sKVB}, s{sKVB}, {KV}
s_lshl_b32 s{sKL}, s{sW}, 12
s_add_u32 s{sKS}, s{sKVB}, s{sKL}
s_min_u32 s{sT0}, s{sW}, 6
s_lshl_b32 s{sWM}, s{sT0}, 10
s_lshl_b32 s{sT1}, s{sT0}, 6
v_add_u32 v133, s{sT1}, v0
v_mul_u32_u24 v134, 4682, v133
v_lshrrev_b32 v134, 16, v134
v_mul_u32_u24 v136, 14, v134
v_sub_u32 v133, v133, v136
v_mul_u32_u24 v134, 896, v134
v_lshl_add_u32 v133, v133, 4, v134
s_mul_i32 s{sT1}, s{sCG}, 224
v_add_u32 v{vWOA}, s{sT1}, v133
s_lshl_b32 s{sT0}, s{sT7}, 14
s_add_u32 s{sT0}, s{sT0}, {LA}
v_add_u32 v{vB0}, s{sT0}, v1
v_add_u32 v{vB1}, 0x10000, v{vB0}
s_lshl_b32 s{sT0}, s{sG}, 11
s_add_u32 s{sT0}, s{sT0}, {LR}
v_add_u32 v{vQA}, s{sT0}, v1
s_lshl_b32 s{sT0}, s{sG}, 12
s_add_u32 s{sT0}, s{sT0}, {MERGE}
v_add_u32 v{vMG}, s{sT0}, v1
s_lshl_b32 s{sT1}, s{sW}, 2
s_add_u32 s{sT1}, s{sT1}, {BADF}
v_mov_b32 v{vBW}, s{sT1}
s_lshl_b32 s{sT3}, s{sQT}, 2
s_add_u32 s{sT3}, s{sT3}, s{sG}
s_lshl_b32 s{sT0}, s{sT3}, 4
s_add_u32 s{sT0}, s{sT0}, s{sH}
s_lshl_b32 s{sT0}, s{sT0}, 1
s_add_u32 s{sT0}, s{sT0}, s{sT7}
s_lshl_b32 s{sT0}, s{sT0}, 10
s_add_u32 s{sOO}, s{sT0}, {OF}
v_cmp_eq_u32 vcc, 0, v135
s_waitcnt lgkmcnt(0)
s_mul_i32 s{sNON}, s{sED}, 1664525
s_add_u32 s{sNON}, s{sNON}, 1013904223
s_lshl_b32 s{sT0}, s{sDV}, 16
s_and_b32 s{sT1}, s{sDV}, 0xffff0000
v_mov_b32 v133, s{sT0}
v_mov_b32 v134, s{sT1}
v_cndmask_b32 v{vD}, v134, v133, vcc
v_mov_b32 v{vNON}, s{sNON}
s_cmp_ge_u32 s{sW}, 4
s_cbranch_scc1 L_helper
""")
def flagpos(dst, tt, j):
    a(f"""
s_bfe_u32 s{sT0}, s{tt}, 0x20001
s_lshl_b32 s{sT0}, s{sT0}, 4
s_lshr_b32 s{sT1}, s{tt}, 3
s_lshl_b32 s{sT1}, s{sT1}, 1
s_and_b32 s{sT2}, s{tt}, 1
s_add_u32 s{sT0}, s{sT0}, s{sT1}
s_add_u32 s{sT0}, s{sT0}, s{sT2}
s_lshl_b32 s{sT1}, s{j}, 6
s_add_u32 s{sT0}, s{sT0}, s{sT1}
s_lshl_b32 s{sT0}, s{sT0}, 2
s_add_u32 s{dst}, s{sT0}, {FB}
""")

a.c("---- QKV projection: 32 tokens x 3 head blocks per wave")
a(f"""
v_and_b32 v128, 31, v0
v_bfe_u32 v129, v0, 1, 3
v_xor_b32 v129, v129, v131
v_lshlrev_b32 v128, 7, v128
v_lshl_add_u32 v128, v129, 4, v128
v_add_u32 v{vXB}, s{sLX}, v128
v_bfe_u32 v128, v0, 2, 2
v_lshl_add_u32 v128, v131, 3, v128
v_mul_u32_u24 v128, 192, v128
v_and_b32 v129, 1, v130
v_lshl_add_u32 v128, v129, 5, v128
v_lshl_add_u32 v128, v132, 3, v128
s_add_u32 s{sT6}, s{sT6}, {LP}
v_add_u32 v{vWR}, s{sT6}, v128
v_mov_b32 v{vXR}, v{vXB}
v_mov_b64 {v(vPB,2)}, 0
v_mov_b32 v{vGO}, 0
v_xor_b32 v{vXR+1}, 32, v{vXB}
v_xor_b32 v{vXR+2}, 64, v{vXB}
v_xor_b32 v{vXR+3}, 0x60, v{vXB}
""")
flagpos(sFL, sTT, sJ)
a(f"s_mul_i32 s{sT7}, s{sJ}, 3")
for b in range(3):
    a(f"""
s_add_u32 s{sT3}, s{sT7}, {b}
s_and_b32 s{sT0}, s{sT3}, 15
s_lshl_b32 s{sT0}, s{sT0}, 6
s_add_u32 s{sT0}, s{sT0}, s{sTT}
s_cmp_lt_u32 s{sT3}, 16
s_cselect_b32 s{sT1}, 11, 12
s_mov_b32 s{sT2}, {KV}
s_cselect_b32 s{sT2}, {QF}, s{sT2}
s_lshl_b32 s{sT0}, s{sT0}, s{sT1}
s_add_u32 s{sE0+b}, s{sT0}, s{sT2}
""")
a(f"""
s_mov_b32 s{sKP}, {ONES}
s_movk_i32 s{sKP+1}, 0x3f80
s_mov_b32 s{sQS}, {QSCALE:#x}
s_mov_b32 s{sQS+1}, {QSCALE:#x}
s_mov_b32 s{sM1}, 0xf0000000
s_mov_b32 s{sM1+1}, 0xf0000000
s_mov_b32 s{sM2}, {ONES}
s_mov_b32 s{sM2+1}, {ONES}
""")
for r in list(range(ACC, ACC + 48, 2)) + list(range(RS + 16, RS + 64, 2)): a(f"v_mov_b64 {v(r,2)}, 0")
a(f"""
s_mov_b32 s{sI}, 0
s_waitcnt vmcnt(21)
""")
stamp(3)
a(f"""
s_cmp_eq_u32 s{sJ}, 10
s_cbranch_scc1 L_gemm1
s_cmp_gt_u32 s{sJ}, 10
s_cbranch_scc1 L_gemm2
""")
def g_reads(ks):
    r = RS + 16 * ks
    out = [f"ds_read_b128 {v(r,4)}, v{vXR+ks}"]
    for b in range(3):
        for t in range(2):
            out.append(f"ds_read_b64_tr_b16 {v(r+4+4*b+2*t,2)}, v{vWR} offset:{(16*ks+4*t)*192+56*b}")
    return out
def g_mfma(ks, isv):
    r = RS + 16 * ks
    return [mfma32(ACC+16*b, r, r+4+4*b, ACC+16*b) if isv[b] else mfma32(ACC+16*b, r+4+4*b, r, ACC+16*b) for b in range(3)]
for var, isv in enumerate(((0,0,0), (0,0,1), (1,1,1))):
    m = [g_mfma(k, isv) for k in range(4)]
    rd = g_reads(0) + g_reads(1) + g_reads(2) + g_reads(3)
    a(f"L_gemm{var}:\n{m[1][2]}\ns_barrier")
    seq = m[2] + m[3] + m[0] + m[1][:1]
    for k, x in enumerate(seq):
        if k == 6: a("s_waitcnt lgkmcnt(11)")
        if k == 9: a("s_waitcnt lgkmcnt(13)")
        a("\n".join([x] + rd[3*k:3*k+3]))
    a(f"""
s_cmp_eq_u32 s{sI}, 1
s_movk_i32 s{sT1}, 12288
s_cselect_b32 s{sT1}, {(-LP-12288) & 0xffffffff}, s{sT1}
s_add_u32 s{sI}, s{sI}, 1
s_and_b32 s{sT0}, s{sI}, 3
s_lshl_b32 s{sT0}, s{sT0}, 12
{m[1][1]}
v_add_u32 v{vWR}, s{sT1}, v{vWR}
v_xor_b32 v{vXR}, s{sT0}, v{vXB}
v_xor_b32 v{vXR+1}, 32, v{vXR}
v_xor_b32 v{vXR+2}, 64, v{vXR}
v_xor_b32 v{vXR+3}, 0x60, v{vXR}
s_cmp_eq_u32 s{sI}, 1
s_waitcnt vmcnt(14) lgkmcnt(0)
s_cbranch_scc1 L_gemm{var}
s_cmp_eq_u32 s{sI}, 2
s_waitcnt vmcnt(7)
s_cbranch_scc1 L_gemm{var}
s_cmp_lt_u32 s{sI}, 7
s_waitcnt vmcnt(0)
s_cbranch_scc1 L_gemm{var}
""")
    a("\n".join([m[2][0], m[1][2], m[3][0], m[2][1], m[2][2], m[3][1], m[3][2]]))
    stamp(1)
    a.c("epilogue: scale Q, pack to bf16 fragments, patch the pad slots, publish")
    for b in range(3):
        pk = 128 + 8 * b
        padp = sKP
        if var == 0:
            padp = sM1
            a(f"s_cmp_lt_u32 s{sT7}, {16-b}\ns_cselect_b64 {s(sM1,2)}, 0, {s(sKP,2)}\ns_cbranch_scc0 L_nosc{b}")
            for r in range(0, 16, 2): a(f"v_pk_mul_f32 {v(ACC+16*b+r,2)}, {v(ACC+16*b+r,2)}, {s(sQS,2)}")
            a.label(f"L_nosc{b}")
        for r in range(8): a(f"v_cvt_pk_bf16_f32 v{pk+r}, v{ACC+16*b+2*r}, v{ACC+16*b+2*r+1}")
        if isv[b]:
            a(f"s_mov_b64 exec, {s(sM1,2)}")
            for r in range(0, 8, 2): a(f"v_mov_b64 {v(pk+r,2)}, {s(sM2,2)}")
        else: a(f"s_mov_b32 exec_lo, 0\nv_mov_b64 {v(pk+6,2)}, {s(padp,2)}")
        o = 2048 * isv[b]
        a(f"""
s_mov_b64 exec, -1
buffer_store_dwordx4 {v(pk,4)}, v1, {srd(WS)}, s{sE0+b} offen offset:{o} sc1
buffer_store_dwordx4 {v(pk+4,4)}, v1, {srd(WS)}, s{sE0+b} offen offset:{o+1024} sc1
""")
    a("s_branch L_conv")

a.label("L_helper")
a(f"""
s_lshl_b32 s{sT4}, s{sH}, 6
s_add_u32 s{sT4}, s{sT4}, s{sT3}
s_lshl_b32 s{sT4}, s{sT4}, 11
s_add_u32 s{sQO}, s{sT4}, {QF}
s_mul_i32 s{sT4}, s{sH}, 21846
s_lshr_b32 s{sT4}, s{sT4}, 16
""")
flagpos(sT5, sT3, sT4)
a(f"""
s_add_u32 s{sT0}, s{sH}, 16
s_mul_i32 s{sT0}, s{sT0}, 21846
s_lshr_b32 s{sT0}, s{sT0}, 16
s_add_u32 s{sT1}, s{sH}, 32
s_mul_i32 s{sT1}, s{sT1}, 21846
s_lshr_b32 s{sT1}, s{sT1}, 16
s_sub_u32 s{sT1}, s{sT1}, s{sT0}
s_lshl_b32 s{sT1}, s{sT1}, 8
s_lshl_b32 s{sT0}, s{sT0}, 8
s_lshl_b32 s{sT2}, s{sG}, 6
s_add_u32 s{sT0}, s{sT0}, s{sT2}
s_add_u32 s{sT0}, s{sT0}, {FB}
v_lshl_add_u32 v133, v139, 2, s{sT0}
v_and_b32 v134, 1, v130
v_mad_u32_u24 v{vPB}, v134, s{sT1}, v133
s_mov_b32 exec_lo, 0
v_mov_b32 v{vPB}, s{sT5}
s_mov_b32 exec_lo, -1
s_mul_i32 s{sT0}, s{sC}, 4682
s_lshr_b32 s{sT0}, s{sT0}, 16
s_lshl_b32 s{sT0}, s{sT0}, 8
s_add_u32 s{sT0}, s{sT0}, s{sT2}
s_add_u32 s{sT0}, s{sT0}, {FA}
v_lshl_add_u32 v{vPA}, v139, 2, s{sT0}
v_lshrrev_b32 v133, 2, v0
v_mul_u32_u24 v133, 28672, v133
v_lshl_add_u32 v{vUD}, v132, 4, v133
s_mul_i32 s{sT0}, s{sG}, {16*28672}
s_lshl_b32 s{sT1}, s{sC}, 7
s_add_u32 s{sT0}, s{sT0}, s{sT1}
s_add_u32 s{sUO}, s{sT0}, {UU}
v_mul_u32_u24 v133, {8*896}, v130
v_add_u32 v{vGO}, v133, v{vGA}
s_lshl_b32 s{sT4}, s{sG}, 11
s_add_u32 s{sT4}, s{sT4}, {LP+24576}
v_lshlrev_b32 v133, 7, v{vCP}
v_lshl_add_u32 v{vZL}, v130, 4, v133
v_add_u32 v132, s{sT4}, v{vZL}
v_add_u32 v137, s{sT4}, v1
s_lshl_b32 s{sT2}, s{sCG}, 2
s_add_u32 s{sT2}, s{sT2}, s{sG}
s_mul_i32 s{sT1}, s{sT2}, 1792
s_mul_i32 s{sT3}, s{sRT}, 28672
s_add_u32 s{sUT}, s{sT1}, s{sT3}
s_add_u32 s{sT7}, s{sUT}, {UU}
s_add_u32 s{sUT}, s{sUT}, {ZZ}
s_lshl_b32 s{sT2}, s{sT2}, 8
s_lshl_b32 s{sT3}, s{sRT}, 2
s_add_u32 s{sT2}, s{sT2}, s{sT3}
s_add_u32 s{sFL}, s{sT2}, {FA}
v_bfe_u32 v138, v0, 1, 2
v_mul_u32_u24 v138, {HP}, v138
v_and_b32 v139, 1, v0
v_lshl_add_u32 v138, v139, 4, v138
v_add_u32 v139, {UOFF}, v1
v_cmp_gt_u32 vcc, 32, v0
v_mov_b64 v[140:141], 0
v_mov_b64 v[142:143], 0
v_cndmask_b32 v138, v138, v139, vcc
v_add_u32 v139, {LP}, v138
s_waitcnt vmcnt(12)
""")
stamp(1)
for j in range(4):
    for p in range(2):
        src = SR + 2 * p + (j >> 1)
        a(f"v_lshlrev_b32 v{WF+2*j+p}, 16, v{src}" if j % 2 == 0 else f"v_and_b32 v{WF+2*j+p}, 0xffff0000, v{src}")
for i in range(11): a(f"v_lshlrev_b32 v{KF+2*i}, 16, v{KR+i}\nv_and_b32 v{KF+2*i+1}, 0xffff0000, v{KR+i}")
for t in range(8): a(f"v_pk_mul_f32 {v(UA+2*t,2)}, {v(KF+2*t,2)}, {v(WF+6,2)}")
for j in (2, 1, 0):
    for t in range(8): a(f"v_pk_fma_f32 {v(UA+2*t,2)}, {v(KF+2*(t+3-j),2)}, {v(WF+2*j,2)}, {v(UA+2*t,2)}")
a("s_waitcnt vmcnt(4)")
for i in range(8): a(f"v_lshlrev_b32 v{VF+2*i}, 16, v{VR+i}\nv_and_b32 v{VF+2*i+1}, 0xffff0000, v{VR+i}")
for t in range(8): a(f"v_pk_mul_f32 {v(UA+2*t,2)}, {v(UA+2*t,2)}, {v(VF+2*t,2)}")
for p in range(2):
    for m in range(4): a(f"v_cvt_pk_bf16_f32 v{UP+4*p+m}, v{UA+2*(7-2*m)+p}, v{UA+2*(6-2*m)+p}")
    a(f"ds_write_b128 v132, {v(UP+4*p,4)} offset:{64*p}")
a(f"""
s_waitcnt lgkmcnt(0)
ds_read_b128 {v(UP,4)}, v137
ds_read_b128 {v(UP+4,4)}, v137 offset:1024
s_waitcnt lgkmcnt(1)
buffer_store_dwordx4 {v(UP,4)}, v1, {srd(WS)}, s{sT7} offen sc1
s_mov_b32 exec_hi, 0xffff
s_waitcnt lgkmcnt(0)
buffer_store_dwordx4 {v(UP+4,4)}, v1, {srd(WS)}, s{sT7} offen offset:1024 sc1
s_mov_b32 exec_hi, -1
""")
stamp(2)
def hprep(p):
    R = H0 + 8 * p; T = 40 + 12 * p
    a(f"v_add_u32 v{134+p}, {(LP if p else LX)+32}, v{vHO}")
    for i in range(4): a(f"v_alignbit_b32 v{T+i}, v{R+2+i}, v{R+1+i}, 16")
    for i in range(4): a(f"v_mov_b32 v{T+4+i}, v{R+1+i}")
    for i in range(4): a(f"v_alignbit_b32 v{T+8+i}, v{R+1+i}, v{R+i}, 16")
def hwrite(p):
    R = H0 + 8 * p; T = 40 + 12 * p
    a(f"ds_write_b128 v{134+p}, {v(R+2,4)}")
    for c in range(1, 4): a(f"ds_write_b128 v{134+p}, {v(T+4*(c-1),4)} offset:{HP*c}")
    a.c("zero pads: lanes 0-31 the u pad, lanes 32-39 the h pads")
    a(f"ds_write_b128 v{138+p}, {v(140,4)}")
def u_dma():
    a(f"""
s_lshl_b32 s{sT2}, s{sG}, 10
s_add_u32 m0, s{sT2}, {LX+UOFF+512}
s_add_u32 s{sT1}, s{sUO}, 64
buffer_load_dwordx4 v{vUD}, {srd(WS)}, s{sUO} offen sc1 lds
s_add_u32 m0, s{sT2}, {LP+UOFF+512}
s_nop 0
buffer_load_dwordx4 v{vUD}, {srd(WS)}, s{sT1} offen sc1 lds
""")
a("s_barrier\ns_setprio 0")
dma_w(4); dma_w(5)
a("s_barrier")
dma_x(4); dma_w(6)
a("s_waitcnt vmcnt(13)")
signal(f"s{sFL}")
stamp(3)
hprep(1)
a("s_barrier")
dma_x(5)
hwrite(1)
hprep(0)
a("s_barrier")
dma_x(6)
a("s_waitcnt vmcnt(12)\ns_barrier")
a(f"buffer_load_dword v141, v{vPA}, {srd(WS)}, 0 offen sc1".replace("v141", "v144"))
hwrite(0)
a(f"""
s_waitcnt vmcnt(5)
s_barrier
s_waitcnt vmcnt(0)
v_cmp_ne_u32 vcc, s{sNON}, v144
s_cbranch_vccnz L_ulate
""")
u_dma()
a("s_barrier\ns_branch L_uok\nL_ulate:\ns_barrier")
poll(vPA, 144)
u_dma()
a("L_uok:")
stamp(4)
a(f"s_movk_i32 s{sT5}, 3584")
for i in range(8): a(f"buffer_load_dword v{QR+i}, v{vGA}, {srd(Q_)}, {'0' if i<4 else s(sT5)} offen offset:{896*(i&3)}")
a("s_setprio 1\ns_waitcnt vmcnt(8) lgkmcnt(0)")

a.label("L_conv")
CAC, CU, FA_, FB_ = 16, 48, 64, 128
a.c("---- long causal conv as block-Toeplitz MFMA: channel = wave>>2, lag phases split over wave&3")
a("s_barrier")
stamp(5)
def c_readA(i, r): return [f"ds_read_b64 {v(FA_+32*i+4*r+2*t,2)}, v{vCA} offset:{512*r+64*i+8*t}" for t in range(2)]
def c_readB(i, x): return [f"ds_read_b128 {v(FB_+32*i+4*x,4)}, v{vCB} offset:{512*x+64*(1-i)}"]
def c_m(i, nt, r, first=False): return mfma16(CAC+4*nt, FA_+32*i+4*r, FB_+32*i+4*(nt-r), "0" if first else CAC+4*nt)
lq = LQ()
rds = [x for i in range(2) for k in range(8) for x in c_readA(i, k) + c_readB(i, k)] + [f"ds_read_b128 {v(CU,4)}, v{vCU}"]
for x in rds[:15]: lq(x)
rds = rds[15:]
a(f"""
s_cmp_ge_u32 s{sW}, 4
s_cbranch_scc1 L_cm
s_waitcnt vmcnt(0)
""")
signal(f"s{sFL}")
stamp(4)
a.label("L_cm")
seen = set(); prev = -1
for k in range(8):
    grp = [(r, x) for r in range(k + 1) for x in range(k + 1) if max(r, x) == k and r + x <= 7]
    while grp:
        r, x = next((p for p in grp if p[0] + p[1] != prev), grp[0]); grp.remove((r, x))
        lq(c_m(0, r + x, r, first=(r + x) not in seen)); seen.add(r + x); prev = r + x
        if rds: lq(rds.pop(0))
assert not rds
lq.drain()
a("s_barrier")
pend = []
for n0 in range(0, 8, 2):
    ms = []
    for r in range(n0 + 2):
        ms.append(c_m(1, n0 + 1, r))
        if r <= n0: ms.append(c_m(1, n0, r))
    for m_ in ms:
        a(m_)
        pend = [(w, n + 1) for w, n in pend]
        if pend and pend[0][1] >= 8: a(pend.pop(0)[0])
    for nt in (n0, n0 + 1): pend.append((f"ds_write_b128 v{vCW}, {v(CAC+4*nt,4)} offset:{1024*nt}", 0))
for t in range(8):
    m = (7 - t) // 2
    a(f"v_lshlrev_b32 v{56+t}, 16, v{CU+m}" if t % 2 else f"v_and_b32 v{56+t}, 0xffff0000, v{CU+m}")
for w, n in pend: a(w)
stamp(6)
a(f"""
s_cmp_lt_u32 s{sW}, 4
s_cbranch_scc1 L_cred
""")
poll(vPB, 144)
stamp(7)
a(f"""
s_lshl_b32 s{sT5}, s{sG}, 11
s_add_u32 m0, s{sT5}, {LR}
s_nop 0
buffer_load_dwordx4 v1, {srd(WS)}, s{sQO} offen sc1 lds
buffer_load_dwordx4 v1, {srd(WS)}, s{sQO} offen offset:1024 sc1 lds
""")
def kv_first(stages=(0, 1)):
    a(f"s_lshl_b32 s{sT5}, s{sG}, 13\ns_add_u32 s{sT4}, s{sT5}, s{sKVB}")
    for n in stages:
        for p in range(2):
            o = 32768 * n + 4096 * p
            a(f"s_add_u32 m0, s{sT5}, {LA+o}\ns_add_u32 s{sT3}, s{sT4}, {o}")
            for i in range(4): a(f"buffer_load_dwordx4 v1, {srd(WS)}, s{sT3} offen offset:{1024*i} sc1 lds")
kv_first((0,))
a.label("L_cred")
a("s_waitcnt lgkmcnt(0)\ns_barrier")
for q in range(4):
    for i in range(2): a(f"ds_read_b128 {v(64+8*q+4*i,4)}, v{vCR} offset:{8192*q+256*i}")
a("s_waitcnt lgkmcnt(4)")
for t in range(8): a(f"v_fma_f32 v{56+t}, v{56+t}, v{vD}, v{64+t}")
for t in range(0, 8, 2): a(f"v_pk_add_f32 {v(56+t,2)}, {v(56+t,2)}, {v(72+t,2)}")
a("s_waitcnt lgkmcnt(0)")
for t in range(0, 8, 2): a(f"v_pk_add_f32 {v(80+t,2)}, {v(80+t,2)}, {v(88+t,2)}")
for t in range(0, 8, 2): a(f"v_pk_add_f32 {v(56+t,2)}, {v(56+t,2)}, {v(80+t,2)}")
for m in range(4): a(f"v_cvt_pk_bf16_f32 v{104+m}, v{56+2*m}, v{57+2*m}")
a.c("publish z; mark this workgroup's attention-output slots as not yet written")
a(f"""
v_mov_b64 v[108:109], -1
v_mov_b64 v[110:111], -1
buffer_store_dwordx4 {v(104,4)}, v{vZ}, {srd(WS)}, s{sZO} offen sc1
buffer_store_dwordx4 {v(108,4)}, v1, {srd(WS)}, s{sOO} offen sc1
s_cmp_ge_u32 s{sW}, 4
s_cbranch_scc1 L_cw
""")
a.c("behind that barrier every wave knows the QKV flags matched: waves 0-3 fetch the second key stage")
kv_first((1,))
a("s_branch L_att\nL_cw:\ns_waitcnt vmcnt(2)")

vQ, vK, vV, vP, vSa, vSb, vO, vM, vKC, vZR, vFC = 16, 24, 32, 40, 48, 64, 80, 14, 96, 112, 120
a.c("---- attention: S^T = K Q^T - m (m rides in the pad slots), P = exp2, O^T += V^T P^T (row 28 = sum)")
a(f"""
L_att:
s_cmp_lg_u32 s{sTRY}, 0
s_barrier
""")
stamp(8)
def kvaddr(T, f):
    o = 32768 * ((T >> 2) & 3) + 4096 * (T & 3) + 1024 * f
    return f"v{vB0 if o < 65536 else vB1} offset:{o & 65535}"
def rdK(T, f): return f"ds_read_b128 {v(vK+4*f,4)}, {kvaddr(T, f)}"
def rdV(T, f): return f"ds_read_b128 {v(vV+4*f,4)}, {kvaddr(T, 2+f)}"
def wo_piece(g): return [f"s_add_u32 m0, s{sWM}, {7168*g}", f"s_mov_b32 s{sSO2}, {28672*g}", f"buffer_load_dwordx4 v{vWOA}, {srd(WO)}, s{sSO2} offen lds"]
def pieces(n):
    out = []
    if n < 4: out.append(wo_piece(n))
    if n < 6:
        for i in range(4):
            p = [f"buffer_load_dwordx4 v1, {srd(WS)}, s{sSO} offen offset:{1024*i} sc1 lds"]
            if i == 0: p = [f"s_add_u32 m0, s{sKL}, {LA+32768*((n+2)&3)}", f"s_add_u32 s{sSO}, s{sKS}, {32768*(n+2)}"] + p
            out.append(p)
    elif n < 8: out = [wo_piece(4 + 5 * (n - 6) + i) for i in range(5)]
    return out
def maxtree(S, dst, have):
    a(f"v_max3_f32 v{dst}, v{S}, v{S+1}, v{dst}" if have else f"v_max_f32 v{dst}, v{S}, v{S+1}")
    for i in range(2, 16, 2): a(f"v_max3_f32 v{dst}, v{S+i}, v{S+i+1}, v{dst}")
p0 = pieces(0)
a(f"""
{rdK(0,0)}
{rdK(0,1)}
{rdV(0,0)}
s_cbranch_scc1 L_havem
ds_read_b128 {v(vQ,4)}, v{vQA}
ds_read_b128 {v(vKC,4)}, v1 offset:{LA}
ds_read_b128 {v(vQ+4,4)}, v{vQA} offset:1024
ds_read_b128 {v(vKC+4,4)}, v1 offset:{LA+1024}
s_waitcnt lgkmcnt(2)
{mfma32(vSb, vKC, vQ, "0")}
s_waitcnt lgkmcnt(0)
{mfma32(vSb, vKC+4, vQ+4, vSb)}
L_havem:
s_waitcnt lgkmcnt(0)
{mfma32(vSa, vK, vQ, "0")}
""")
lq = LQ()
lq(rdK(1, 0))
a("\n".join(p0[0] + p0[1]))
a(f"s_cmp_lg_u32 s{sTRY}, 0\ns_cbranch_scc1 L_havem2")
maxtree(vSb, vM, False)
a(f"""
L_havem2:
v_mov_b32 v96, v{vM}
v_permlane32_swap_b32 v96, v{vM}
v_max_f32 v{vM}, v96, v{vM}
v_sub_f32 v96, 0, v{vM}
v_and_b32 v97, 0xffff0000, v96
v_sub_f32 v96, v96, v97
v_and_b32 v98, 0xffff0000, v96
v_sub_f32 v96, v96, v98
s_mov_b32 exec_lo, 0
v_alignbit_b32 v{vQ+6}, v98, v97, 16
v_lshrrev_b32 v{vQ+7}, 16, v96
v_and_b32 v{vQ+6}, 0xffff, v{vQ+6}
v_or_b32 v{vQ+6}, v{vQ+6}, v98
s_mov_b32 exec_lo, -1
{mfma32(vSa, vK+4, vQ+4, vSa)}
""".replace(f"v_alignbit_b32 v{vQ+6}, v98, v97, 16", f"v_lshrrev_b32 v{vQ+6}, 16, v97").replace(f"v_and_b32 v{vQ+6}, 0xffff, v{vQ+6}\n", ""))
lq(rdK(1, 1))
a("\n".join(p0[2]))
stamp(9)
PRIO = {0: 3, 7: 2, 12: 1, 15: 0} if OPT.get("prio", 1) else {}
DSL = (0, 3, 6, 9, 12)
todo = {9: p0[3], 12: p0[4]}
firstO = True
for T in range(32):
    S, Sn = (vSa, vSb) if T % 2 == 0 else (vSb, vSa)
    n = (T + 2) >> 2
    if T & 3 == 2:
        if n < 8: a(f"s_waitcnt vmcnt({len(pieces(n-1))})")
        a("s_barrier")
        pc = pieces(n)
        todo = dict(zip(DSL[5 - len(pc):], pc))
    for k in range(4):
        sl = (4 * T + k + 8) & 15
        if sl in PRIO and n < 8 or (T, k) == (0, 0): a(f"s_setprio {PRIO.get(sl, 2 if PRIO else 0)}")
        if k < 2:
            if T < 31: lq(mfma32(Sn, vK+4*k, vQ+4*k, Sn if k else "0"))
            if T < 30: lq(rdK(T + 2, k))
        elif k == 2:
            if T > 0: lq(mfma32(vO, vV+4, vP+4, vO))
            lq(rdV(T, 1))
        else:
            lq(mfma32(vO, vV, vP, "0" if T == 0 else vO))
            if T < 31: lq(rdV(T + 1, 0))
        ex = [f"v_exp_f32 v{S+r}, v{S+r}" for r in range(4 * k, 4 * k + 4)]
        cv = [f"v_cvt_pk_bf16_f32 v{vP+r}, v{S+2*r}, v{S+2*r+1}" for r in range(2 * k, 2 * k + 2)]
        p = todo.pop(sl, [])
        body = []
        for e in range(4):
            body.append(ex[e])
            if e < len(p): body.append(p[e])
        a("\n".join(body + cv))
        if sl == 1 and n == 2:
            a(f"s_cmp_eq_u32 s{sW}, 7\ns_cbranch_scc1 L_sigc\nL_sigc_r:")
        if sl == 15 and n == 5:
            a.c("flags of all workgroups' z and slot marks (one word each)")
            a(f"s_movk_i32 s{sT0}, {FC}\nbuffer_load_dwordx4 {v(vFC,4)}, v1, {srd(WS)}, s{sT0} offen sc1")
        if sl == 1 and n == 7:
            a(f"s_cmp_ge_u32 s{sW}, 4\ns_cbranch_scc1 L_chkc\nL_chkc_r:")
lq(mfma32(vO, vV+4, vP+4, vO))
a("s_setprio 0")
stamp(10)
a(f"""
s_mov_b32 s{sT2}, 0x5f800000
v_mov_b64 v[100:101], 0
v_mov_b64 v[102:103], 0
v_add_u32 v99, {448*224}, v1
s_cmp_lt_u32 s{sW}, 4
s_cbranch_scc1 L_mA
ds_write_b128 v99, {v(100,4)}
""")
for i in range(4): a(f"ds_write_b128 v{vMG}, {v(vO+4*i,4)} offset:{1024*i}")
a(f"""
L_mA:
v_cmp_nle_f32 vcc, v{vO+12}, s{sT2}
v_mov_b32 v98, vcc_hi
ds_write_b32 v{vBW}, v98
s_waitcnt vmcnt(0) lgkmcnt(0)
s_barrier
ds_read_b32 v98, v{vBR}
s_cbranch_scc0 L_mB
""")
for i in range(4): a(f"ds_read_b128 {v(vSa+4*i,4)}, v{vMG} offset:{1024*i}")
a(f"""
L_mB:
s_waitcnt lgkmcnt(0)
v_cmp_lt_u32 vcc, s{sTRY}, v98
s_cbranch_vccnz L_fallback
s_cbranch_scc0 L_gate
""")
a(f"""
v_add_f32 v96, v{vO+12}, v{vSa+12}
v_add_f32 v97, v{vO+12}, v{vSa+12}
""")
for r in range(0, 4, 2): a(f"v_pk_add_f32 {v(vO+r,2)}, {v(vO+r,2)}, {v(vSa+r,2)}")
a(f"v_permlane32_swap_b32 v96, v97\nv_rcp_f32 v96, v97")
for r in range(4, 16, 2): a(f"v_pk_add_f32 {v(vO+r,2)}, {v(vO+r,2)}, {v(vSa+r,2)}")
for hf in range(2):
    for r in range(8*hf, 8*hf+8, 2): a(f"v_pk_mul_f32 {v(vO+r,2)}, {v(vO+r,2)}, v[96:97] op_sel_hi:[1,0]")
    for r in range(4*hf, 4*hf+4): a(f"v_cvt_pk_bf16_f32 v{vP+r}, v{vO+2*r}, v{vO+2*r+1}")
    if hf: a(f"s_mov_b32 exec_lo, 0\nv_mov_b64 {v(vP+6,2)}, 0\ns_mov_b32 exec_lo, -1")
    a(f"buffer_store_dwordx4 {v(vP+4*hf,4)}, v1, {srd(WS)}, s{sOO} offen offset:{1024*hf} sc1")
stamp(11)
WFR, OB, OA = 112, 16, 48
a(f"""
v_bfe_u32 v96, v0, 2, 2
v_lshrrev_b32 v97, 5, v0
v_lshl_add_u32 v96, v97, 2, v96
v_mul_u32_u24 v96, 224, v96
v_bfe_u32 v98, v0, 4, 1
v_lshl_add_u32 v96, v98, 5, v96
v_and_b32 v98, 3, v0
v_lshl_add_u32 v96, v98, 3, v96
s_lshl_b32 s{sT2}, s{sG}, 6
v_add_u32 v2, s{sT2}, v96
v_add_u32 v3, {8*28*224}, v2
""")
for h in range(16):
    for s_ in range(2):
        for t in range(2):
            a(f"ds_read_b64_tr_b16 {v(WFR+8*h+4*s_+2*t,2)}, v{2+(h>>3)} offset:{(28*(h&7)+16*s_+8*t)*224}")
a(f"""
v_add_u32 v5, {LR}, v1
v_and_b32 v99, 31, v0
v_mul_u32_u24 v99, 80, v99
v_lshl_add_u32 v99, v97, 3, v99
s_mul_i32 s{sT0}, s{sG}, 4096
s_add_u32 s{sT0}, s{sT0}, {MERGE}
v_add_u32 v6, s{sT0}, v99
v_lshrrev_b32 v99, 2, v0
v_mul_u32_u24 v100, 80, v99
v_lshl_add_u32 v100, v98, 4, v100
v_add_u32 v7, s{sT0}, v100
v_mul_u32_u24 v100, 1792, v99
v_lshl_add_u32 v8, v98, 4, v100
s_mul_i32 s{sT0}, s{sRT}, {32*1792}
s_mul_i32 s{sT1}, s{sCG}, 224
s_add_u32 s{sT0}, s{sT0}, s{sT1}
s_add_u32 s{sT0}, s{sT0}, s{sT2}
s_add_u32 s{sT1}, s{sT0}, {16*1792}
s_cmp_eq_u32 s{sG}, 3
s_cselect_b32 s{sM1}, 0x33333333, -1
s_mov_b32 s{sM1+1}, s{sM1}
s_waitcnt lgkmcnt(0)
""")
stamp(12)
lq = LQ()
held = []
for k in range(4):
    ob = OB if k % 2 == 0 else 64
    a("s_barrier")
    if k == 0: stamp(13)
    for f in range(8):
        lq(f"ds_read_b128 {v(ob+4*f,4)}, v5 offset:{8192*k+1024*f}")
        if f % 3 == 0 and held: lq(held.pop(0))
    ms = [mfma32(OA, WFR+32*k+4*f, ob+4*f, "0" if k == 0 and f == 0 else OA) for f in range(8)]
    cut = 5 if k < 3 else 8
    for m_ in ms[:cut]: lq(m_)
    held = ms[cut:]
for r in range(8): a(f"v_cvt_pk_bf16_f32 v{16+r}, v{OA+2*r}, v{OA+2*r+1}")
for m in range(4): a(f"ds_write_b64 v6, {v(16+2*m,2)} offset:{16*m}")
a(f"""
s_waitcnt lgkmcnt(0)
ds_read_b128 {v(24,4)}, v7
ds_read_b128 {v(28,4)}, v7 offset:{16*80}
s_mov_b64 exec, s[{sM1}:{sM1+1}]
s_waitcnt lgkmcnt(1)
buffer_store_dwordx4 {v(24,4)}, v8, {srd(OUT)}, s{sT0} offen
s_waitcnt lgkmcnt(0)
buffer_store_dwordx4 {v(28,4)}, v8, {srd(OUT)}, s{sT1} offen
""")
stamp(14)
a("s_branch L_fin" if DIAG else "s_endpgm")

a.label("L_gate")
a(f"""
s_mul_i32 s{sT3}, s{sRT}, {32*896}
s_add_u32 s{sT3}, s{sT3}, 896
""")
for i in range(8): a(f"v_lshlrev_b32 v{16+2*i}, 16, v{QR+i}\nv_and_b32 v{17+2*i}, 0xffff0000, v{QR+i}")
for t in range(8):
    for p in range(2):
        src = vZR + 4 * p + t // 2
        a(f"v_lshlrev_b32 v{32+2*t+p}, 16, v{src}" if t % 2 == 0 else f"v_and_b32 v{32+2*t+p}, 0xffff0000, v{src}")
for t in range(8): a(f"v_pk_mul_f32 {v(32+2*t,2)}, {v(32+2*t,2)}, {v(16+2*t,2)}")
for t in range(8): a(f"v_cvt_pk_bf16_f32 v{56+t}, v{32+2*t}, v{33+2*t}")
for t in range(8):
    a(f"buffer_store_dword v{56+t}, v{vGO}, {srd(OUT)}, s{sT3} offen offset:{1792*(t&1)}")
    if t & 1 and t < 7: a(f"s_add_u32 s{sT3}, s{sT3}, 3584")
stamp(11)
a.c("O fragments: every word differs from the all-ones mark once its producer's store has landed")
OL = 64
a(f"""
s_lshl_b32 s{sT0}, s{sRT}, 15
s_lshl_b32 s{sT1}, s{sG}, 11
s_add_u32 s{sT0}, s{sT0}, s{sT1}
s_add_u32 s{sT0}, s{sT0}, {OF}
s_add_u32 s{sT1}, s{sT0}, 8192
s_add_u32 s{sT2}, s{sT0}, 16384
s_add_u32 s{sT3}, s{sT0}, 24576
s_mov_b32 s{sSP}, {SPIN}
""")
def o_issue(k0):
    for k in range(k0, 4):
        for i in range(2): a(f"buffer_load_dwordx4 {v(OL+8*k+4*i,4)}, v1, {srd(WS)}, s{sT0+k} offen offset:{1024*i} sc1")
o_issue(0)
for k in range(4):
    r = OL + 8 * k
    a(f"""
L_ochk{k}:
s_waitcnt vmcnt({6-2*k})
v_max3_u32 v96, v{r}, v{r+1}, v{r+2}
v_max3_u32 v97, v{r+3}, v{r+4}, v{r+5}
v_max3_u32 v96, v{r+6}, v{r+7}, v96
v_max_u32 v96, v96, v97
v_cmp_eq_u32 vcc, -1, v96
s_cbranch_vccnz L_oretry{k}
L_ogo{k}:
ds_write_b128 v{vQA}, {v(r,4)} offset:{8192*k}
ds_write_b128 v{vQA}, {v(r+4,4)} offset:{8192*k+1024}
s_waitcnt lgkmcnt(0)
s_barrier
""")
    if k == 0: stamp(12)
stamp(13)
a.label("L_fin")
if DIAG:
    a(f"s_mov_b64 exec, -1\ns_mov_b32 s{sST+15}, s98")
    a(f"s_lshl_b32 s{sT0}, s2, 3\ns_add_u32 s{sT0}, s{sT0}, s{sW}\ns_lshl_b32 s{sT0}, s{sT0}, 6\ns_add_u32 s{sT0}, s{sT0}, {DG}\nv_lshlrev_b32 v96, 2, v0")
    for k in range(16): a(f"v_writelane_b32 v97, s{sST+k}, {k}")
    a(f"s_mov_b64 exec, 0xffff\nbuffer_store_dword v97, v96, {srd(WS)}, s{sT0} offen")
a.label("L_end")
a("s_endpgm")
for k in range(4):
    a(f"L_oretry{k}:\ns_sub_u32 s{sSP}, s{sSP}, 1\ns_cbranch_scc1 L_ogo{k}".replace(f"s_cbranch_scc1 L_ogo{k}", f"s_cselect_b32 s{sSP}, 0, s{sSP}\ns_cbranch_scc1 L_ogo{k}"))
    o_issue(k)
    a(f"s_branch L_ochk{k}")

a(f"""
L_sigc:
s_lshl_b32 s{sT0}, s2, 2
s_add_u32 s{sT0}, s{sT0}, {FC}
""")
signal(f"s{sT0}")
a(f"""
s_branch L_sigc_r
L_chkc:
s_mov_b32 s{sSP}, {SPIN}
L_chkc1:
v_xor_b32 v{vFC}, s{sNON}, v{vFC}
v_xor_b32 v{vFC+1}, s{sNON}, v{vFC+1}
v_xor_b32 v{vFC+2}, s{sNON}, v{vFC+2}
v_or3_b32 v{vFC}, v{vFC}, v{vFC+1}, v{vFC+2}
v_xor_b32 v{vFC+3}, s{sNON}, v{vFC+3}
v_or_b32 v{vFC}, v{vFC}, v{vFC+3}
v_cmp_ne_u32 vcc, 0, v{vFC}
s_cbranch_vccnz L_chkc3
L_chkc2:
buffer_load_dwordx4 {v(vZR,4)}, v{vZL}, {srd(WS)}, s{sUT} offen sc1
buffer_load_dwordx4 {v(vZR+4,4)}, v{vZL}, {srd(WS)}, s{sUT} offen offset:64 sc1
s_add_u32 s{sT1}, s2, s{sG}
s_cmp_lg_u32 s{sT1}, 0
s_cbranch_scc1 L_chkc_r
""")
a.c("workgroup 0 advances the epoch word: every workgroup is known to have read it")
signal("0")
a(f"""
s_branch L_chkc_r
L_chkc3:
s_sub_u32 s{sSP}, s{sSP}, 1
s_cbranch_scc1 L_chkc2
buffer_load_dwordx4 {v(vFC,4)}, v1, {srd(WS)}, s{sT0} offen sc1
s_waitcnt vmcnt(0)
s_branch L_chkc1
""")

a.label("L_fallback")
a(f"""
s_mov_b32 s{sTRY}, -1
s_barrier
s_cbranch_scc1 L_fb0
""")
kv_first()
a(f"""
L_fb0:
s_mov_b32 exec_lo, 0
v_mov_b32 v{vQ+6}, 0
v_mov_b32 v{vQ+7}, 0
s_mov_b32 exec_lo, -1
v_mov_b32 v{vM}, 0xff800000
s_mov_b32 s{sT3}, s{sKVB}
s_mov_b32 s{sI}, 0
L_fb1:
buffer_load_dwordx4 {v(vK,4)}, v1, {srd(WS)}, s{sT3} offen sc1
buffer_load_dwordx4 {v(vK+4,4)}, v1, {srd(WS)}, s{sT3} offen offset:1024 sc1
s_waitcnt vmcnt(0)
{mfma32(vSb, vK, vQ, "0")}
{mfma32(vSb, vK+4, vQ+4, vSb)}
s_add_u32 s{sT3}, s{sT3}, 4096
s_add_u32 s{sI}, s{sI}, 1
""")
maxtree(vSb, vM, True)
a(f"""
s_cmp_lt_u32 s{sI}, 64
s_cbranch_scc1 L_fb1
s_branch L_att
L_codeend:
""")

import subprocess
body0 = pad(a.l, verbose="v" in sys.argv)
def emit(pfs, fill):
    body = [l.replace("@@PFS@@", str(pfs)) for l in body0]
    hdr = open("cdna_kernels/" + NAME + ".s.ref").read().split("; Override launch")[0]
    return hdr + f"""; One persistent launch, one workgroup per CU; phases hand data over through d_ws with tagged flags.
; @launch grid=(256,1,1) block=(512,1,1) lds=163840
.amdgcn_target "amdgcn-amd-amdhsa--gfx950"
.text
.globl {NAME}_kernel
.p2align 8
.type {NAME}_kernel,@function
""" + "\n".join(body) + f"""
    .fill {fill}, 4, 0xbf810000
.section .rodata,"a"
.p2align 6
.amdhsa_kernel {NAME}_kernel
  .amdhsa_next_free_vgpr 256
  .amdhsa_next_free_sgpr 102
  .amdhsa_accum_offset 256
  .amdhsa_group_segment_fixed_size 0
  .amdhsa_kernarg_size 96
  .amdhsa_user_sgpr_count 2
  .amdhsa_user_sgpr_kernarg_segment_ptr 1
  .amdhsa_system_sgpr_workgroup_id_x 1
.end_amdhsa_kernel
"""
def size_of(txt):
    open("_sz.s", "w").write(txt)
    subprocess.run(["clang", "-x", "assembler", "-target", "amdgcn-amd-amdhsa", "-mcpu=gfx950", "-c", "_sz.s", "-o", "_sz.o"], check=True)
    o = subprocess.run(["llvm-objdump", "-t", "_sz.o"], capture_output=True, text=True).stdout
    return [int(l.split()[0], 16) for l in o.splitlines() if l.endswith("L_codeend")][0]
sz = size_of(emit(40, 1))
pfs = OPT.get("pfs", (sz + 2047) // 2048 * 4)
assert pfs <= 64
print("code bytes", sz, "prefetch stride", pfs)
open(sys.argv[1], "w").write(emit(pfs, max(1, (pfs * 512 - sz + 3) // 4)))
```

```python
import sys, struct, math
from asmlib import *

NAME = "concat_heads__softmax_full_mha__ssm_conv_h3__prompt"
DIAG = "diag" in sys.argv
OPT = {k: int(x) for k, x in (a.split("=") for a in sys.argv[2:] if "=" in a)}
SPIN = 1 << 16

FA, FB, FC = 0x1000, 0x2000, 0x3000
QF, KV, UU, ZZ, OF, WSEND = 0x100000, 0x300000, 0x700000, 0x900000, 0xB00000, 0xD00000
DG = 0x10000
LX, LA, LB, LP, LR = 0, 32768, 65536, 98304, 131072
HP, UOFF = 4160, 16640
MERGE, BADF = LP + 4096, LP + 3072
ONES = 0x3f803f80
def fbits(x): return struct.unpack("<I", struct.pack("<f", x))[0]
QSCALE = fbits(28 ** -0.5 * math.log2(math.e))

X_, WQ, WO, Q_, K_, V_, SK, HK, OUT, WS = 4, 8, 12, 16, 20, 24, 28, 32, 36, 40
sDP, sNON, sW = 44, 46, 47
sJ, sTT, sRT, sCG, sC, sH, sQT, sG = 48, 49, 50, 51, 52, 53, 54, 55
sED, sT0, sT1, sT2, sT3, sT4, sT5, sT6, sT7 = 56, 57, 58, 59, 60, 61, 62, 63, 64
sI, sSO, sSO2, sLW, sLX, sTRY, sSP, sCB = 65, 66, 67, 68, 69, 70, 71, 72
sDV, sM1, sM2 = 73, 74, 76
sKVB, sWM = 78, 79
sFL, sE0, sE1, sE2, sKP, sZO, sOO, sKL, sUO, sQO, sUT, sKS = 20, 21, 22, 23, 24, 26, 27, 28, 29, 30, 31, 32
sQS = 34
sST = 80
def srd(b): return s(b, 4)

a = Asm()
def stamp(k):
    if not DIAG: return
    a(f"{'s_memtime' if OPT.get('cyc') else 's_memrealtime'} s[96:97]\ns_waitcnt lgkmcnt(0)\ns_mov_b32 s{sST+k}, s96")

npoll = [0]
def poll(vaddr, vtmp):
    n = npoll[0]; npoll[0] += 1
    a(f"""
s_mov_b32 s{sSP}, {SPIN}
L_poll{n}:
buffer_load_dword v{vtmp}, v{vaddr}, {srd(WS)}, 0 offen sc1
s_waitcnt vmcnt(0)
v_cmp_ne_u32 vcc, s{sNON}, v{vtmp}
s_cbranch_vccz L_pollok{n}
s_sub_u32 s{sSP}, s{sSP}, 1
s_cbranch_scc0 L_poll{n}
L_pollok{n}:
""")
vNON = 15
def signal(soff):
    a(f"s_mov_b64 exec, 1\nbuffer_store_dword v{vNON}, v1, {srd(WS)}, {soff} offen sc1\ns_mov_b64 exec, -1")

def mfma32(d, A, B, C): return f"v_mfma_f32_32x32x16_bf16 {v(d,16)}, {v(A,4)}, {v(B,4)}, {C if isinstance(C,str) else v(C,16)}"
def mfma16(d, A, B, C): return f"v_mfma_f32_16x16x32_bf16 {v(d,4)}, {v(A,4)}, {v(B,4)}, {C if isinstance(C,str) else v(C,4)}"

class LQ:
    def __init__(self): self.q = []
    def __call__(self, txt):
        for t in txt.strip("\n").split("\n"):
            i = Ins(t)
            if not i.mn: a(t); continue
            last = max([k for k, w in enumerate(self.q) if w & (i.rd | (i.wr if not i.ds else set()))], default=-1)
            if last >= 0:
                n = min(15, len(self.q) - 1 - last)
                a(f"s_waitcnt lgkmcnt({n})"); self.q = self.q[len(self.q) - n:]
            a(t)
            if i.ds: self.q.append(vset(i.wr))
    def drain(self, n=0):
        if len(self.q) > n:
            a(f"s_waitcnt lgkmcnt({n})"); self.q = self.q[len(self.q) - n:]

a.label(NAME + "_kernel")
if DIAG: a(f"{'s_memtime' if OPT.get('cyc') else 's_memrealtime'} s[98:99]")
a(f"""
s_cmp_ge_u32 s2, 256
s_cbranch_scc1 L_end
s_load_dwordx2 s[{K_}:{K_+1}], s[0:1], 32
s_load_dwordx2 s[{WS}:{WS+1}], s[0:1], 88
s_getpc_b64 s[{sT5}:{sT6}]
L_pc:
v_mul_u32_u24 v2, @@PFS@@, v0
s_sub_u32 s{sT5}, s{sT5}, L_pc-{NAME}_kernel
s_subb_u32 s{sT6}, s{sT6}, 0
v_mov_b32 v3, s{sT6}
v_add_co_u32 v2, vcc, s{sT5}, v2
v_lshrrev_b32 v1, 6, v0
v_and_b32 v0, 63, v0
v_addc_co_u32 v3, vcc, 0, v3, vcc
v_readfirstlane_b32 s{sW}, v1
""")
a.c("pull the kernel's own code towards L2 (a load only)")
a(f"""
global_load_dword v255, v[2:3], off
s_load_dwordx2 s[{V_}:{V_+1}], s[0:1], 40
s_load_dwordx2 s[{SK}:{SK+1}], s[0:1], 48
s_load_dwordx2 s[{HK}:{HK+1}], s[0:1], 56
s_load_dwordx2 s[{X_}:{X_+1}], s[0:1], 0
s_load_dwordx2 s[{WQ}:{WQ+1}], s[0:1], 8
s_load_dwordx2 s[{WO}:{WO+1}], s[0:1], 16
s_load_dwordx2 s[{Q_}:{Q_+1}], s[0:1], 24
s_load_dwordx2 s[{sDP}:{sDP+1}], s[0:1], 64
s_load_dwordx2 s[{OUT}:{OUT+1}], s[0:1], 72
v_lshlrev_b32 v1, 4, v0
""")
def srdconst(lst):
    for b, n in lst: a(f"s_mov_b32 s{b+2}, {n}\ns_mov_b32 s{b+3}, 0x20000")
a.c("work ids: grouped by wg&7 for L2 locality only")
a(f"""
s_and_b32 s{sH}, s2, 7
s_lshr_b32 s{sQT}, s2, 3
s_and_b32 s{sG}, s{sW}, 3
s_lshl_b32 s{sT2}, s{sH}, 3
s_lshr_b32 s{sT3}, s{sQT}, 2
s_add_u32 s{sRT}, s{sT2}, s{sT3}
s_and_b32 s{sCG}, s{sQT}, 3
s_sub_u32 s{sT2}, s2, 32
s_cmp_lt_u32 s2, 224
s_cselect_b32 s{sC}, s2, s{sT2}
v_lshrrev_b32 v130, 4, v0
v_mov_b32 v9, v1
s_cmp_lt_u32 s{sW}, 4
s_cbranch_scc1 L_xw
""")
vGA, vHO, vCP = 9, 10, 11
KR, VR, SR = 16, 28, 36
KF, VF, WF, UA, UP = 40, 64, 80, 88, 104
H0 = 112
QR = 240
a("s_setprio 3")
srdconst(((K_, 1835008), (V_, 1835008), (SK, 3584), (HK, 1835008)))
a(f"""
v_and_b32 v{vCP}, 15, v0
v_min_u32 v{vCP}, 13, v{vCP}
s_lshl_b32 s{sT0}, s{sCG}, 2
s_add_u32 s{sT0}, s{sT0}, s{sG}
s_mul_i32 s{sT1}, s{sT0}, 56
s_mul_i32 s{sT2}, s{sRT}, {32*896}
s_add_u32 s{sT2}, s{sT2}, s{sT1}
v_mul_u32_u24 v132, {8*896}, v130
v_lshl_add_u32 v132, v{vCP}, 2, v132
v_add_u32 v{vGA}, s{sT2}, v132
v_subrev_u32 v135, 2688, v{vGA}
s_lshl_b32 s{sT1}, s{sT1}, 2
v_lshl_add_u32 v137, v{vCP}, 4, s{sT1}
s_lshl_b32 s{sT3}, s{sC}, 13
s_lshl_b32 s{sT4}, s{sG}, 10
s_add_u32 s{sT3}, s{sT3}, s{sT4}
v_add_u32 v133, s{sT3}, v1
v_add_u32 v{vHO}, s{sT4}, v1
v_subrev_u32 v134, 8, v133
v_cmp_eq_u32 vcc, 0, v{vHO}
v_mov_b32 v136, 0xffffe000
s_movk_i32 s{sT5}, 3584
s_movk_i32 s{sT7}, 4096
v_cndmask_b32 v134, v134, v136, vcc
s_waitcnt lgkmcnt(0)
""")
stamp(0)
a(f"buffer_load_dwordx4 {v(SR,4)}, v137, {srd(SK)}, 0 offen")
for i in range(3): a(f"buffer_load_dword v{KR+i}, v135, {srd(K_)}, 0 offen offset:{896*i}")
for i in range(8): a(f"buffer_load_dword v{KR+3+i}, v{vGA}, {srd(K_)}, {'0' if i<4 else s(sT5)} offen offset:{896*(i&3)}")
for i in range(8): a(f"buffer_load_dword v{VR+i}, v{vGA}, {srd(V_)}, {'0' if i<4 else s(sT5)} offen offset:{896*(i&3)}")
for p in range(2):
    so = "0" if p == 0 else s(sT7)
    a(f"buffer_load_dwordx2 {v(H0+8*p,2)}, v134, {srd(HK)}, {so} offen\nbuffer_load_dwordx4 {v(H0+8*p+2,4)}, v133, {srd(HK)}, {so} offen")

vXD, vWD, vXR, vWR, vXB = 2, 6, 9, 13, 14
ACC, RS = 16, 64
a.label("L_xw")
srdconst(((X_, 1835008), (WQ, 1204224)))
a(f"""
s_and_b32 s{sT2}, s{sH}, 1
s_lshl_b32 s{sT2}, s{sT2}, 3
s_and_b32 s{sJ}, s{sQT}, 7
s_add_u32 s{sJ}, s{sJ}, s{sT2}
s_lshr_b32 s{sT2}, s{sH}, 1
s_lshl_b32 s{sT2}, s{sT2}, 2
s_lshr_b32 s{sT3}, s{sQT}, 3
s_add_u32 s{sT2}, s{sT2}, s{sT3}
s_lshl_b32 s{sT2}, s{sT2}, 2
s_add_u32 s{sTT}, s{sT2}, s{sG}
v_lshrrev_b32 v128, 3, v0
s_lshl_b32 s{sT0}, s{sTT}, 5
v_add_u32 v128, s{sT0}, v128
v_mul_u32_u24 v128, 896, v128
v_and_b32 v129, 7, v0
v_xor_b32 v129, v129, v130
v_lshl_add_u32 v{vXD}, v129, 4, v128
v_xor_b32 v129, 4, v129
v_lshl_add_u32 v{vXD+1}, v129, 4, v128
v_add_u32 v{vXD+1}, {7168-1024}, v{vXD+1}
v_add_u32 v{vXD+2}, {14336-2048}, v{vXD}
v_add_u32 v{vXD+3}, {14336-2048}, v{vXD+1}
s_mul_i32 s{sT0}, s{sJ}, 168
s_and_b32 s{sT6}, s{sJ}, 1
s_lshl_b32 s{sT6}, s{sT6}, 3
s_sub_u32 s{sT0}, s{sT0}, s{sT6}
s_mul_i32 s{sT2}, s{sG}, {16*2688}
s_add_u32 s{sT0}, s{sT0}, s{sT2}
""")
for q in range(3):
    a(f"""
v_add_u32 v128, {64*q}, v0
v_mul_u32_u24 v129, 43691, v128
v_lshrrev_b32 v129, 19, v129
v_mul_u32_u24 v131, 12, v129
v_sub_u32 v128, v128, v131
v_min_u32 v128, 10, v128
v_mul_u32_u24 v129, 2688, v129
v_lshl_add_u32 v128, v128, 4, v129
v_add_u32 v{vWD+q}, s{sT0}, v128
""")
    if q < 2: a(f"s_sub_u32 s{sT0}, s{sT0}, 1024")
a(f"""
s_and_b32 s{sT2}, s{sG}, 1
s_lshl_b32 s{sT2}, s{sT2}, 14
s_cmp_ge_u32 s{sG}, 2
s_mov_b32 s{sLX}, {LB}
s_cselect_b32 s{sLX}, {LR}, s{sLX}
s_add_u32 s{sLX}, s{sLX}, s{sT2}
s_mul_i32 s{sLW}, s{sG}, 3072
s_cmp_ge_u32 s{sW}, 4
s_cbranch_scc1 L_common
s_waitcnt lgkmcnt(0)
""")
stamp(0)
def wbase(st): return LP + 12288 * st if st < 2 else 12288 * (st - 2)
def dma_x(st):
    a(f"s_add_u32 m0, s{sLX}, {4096*(st&3)}\ns_movk_i32 s{sSO}, {128*st}")
    for i in range(4): a(f"buffer_load_dwordx4 v{vXD+i}, {srd(X_)}, s{sSO} offen offset:{1024*i} lds")
def dma_w(st):
    a(f"s_add_u32 m0, s{sLW}, {wbase(st)}\ns_mov_b32 s{sSO2}, {64*2688*st}")
    for q in range(3): a(f"buffer_load_dwordx4 v{vWD+q}, {srd(WQ)}, s{sSO2} offen offset:{1024*q} lds")
for st in range(4): dma_x(st); dma_w(st)
stamp(2)

vCA, vCB, vCW, vCR, vCU, vZ, vD = 192, 193, 194, 195, 196, 197, 198
vB0, vB1, vQA, vWOA, vMG, vBW, vBR = 199, 200, 201, 202, 203, 204, 205
vPA, vUD, vPB, vZL, vGO, vOW = 206, 207, 208, 209, 210, 211
a.label("L_common")
a(f"""
s_load_dword s{sED}, s[{WS}:{WS+1}], 0
s_lshl_b32 s{sT0}, s{sC}, 2
s_load_dword s{sDV}, s[{sDP}:{sDP+1}], s{sT0}
""")
srdconst(((WO, 401408), (Q_, 1835008), (OUT, 3670016), (WS, WSEND)))
a(f"""
s_lshl_b32 s{sT2}, s{sH}, 1
s_lshr_b32 s{sT3}, s{sQT}, 4
s_add_u32 s{sH}, s{sT2}, s{sT3}
s_and_b32 s{sQT}, s{sQT}, 15
s_mov_b32 s{sTRY}, 0
s_lshr_b32 s{sT7}, s{sW}, 2
s_mul_i32 s{sCB}, s{sT7}, {LP}
v_and_b32 v132, 3, v0
v_sub_u32 v133, 3, v132
v_mul_u32_u24 v133, {HP}, v133
v_and_b32 v134, 12, v0
v_lshl_add_u32 v133, v134, 1, v133
v_and_b32 v134, 0x30, v0
v_sub_u32 v133, v133, v134
s_lshl_b32 s{sT0}, s{sG}, 7
s_add_u32 s{sT1}, s{sT0}, s{sCB}
s_add_u32 s{sT1}, s{sT1}, 56
v_add_u32 v{vCA}, s{sT1}, v133
v_and_b32 v139, 15, v0
v_lshl_add_u32 v133, v139, 5, v134
s_sub_u32 s{sT1}, s{sCB}, s{sT0}
s_add_u32 s{sT1}, s{sT1}, {UOFF+512-96}
v_add_u32 v{vCB}, s{sT1}, v133
v_lshrrev_b32 v131, 5, v0
v_lshlrev_b32 v133, 7, v131
v_xor_b32 v133, v133, v1
s_lshl_b32 s{sT0}, s{sG}, 13
s_add_u32 s{sT0}, s{sT0}, s{sCB}
v_add_u32 v{vCW}, s{sT0}, v133
v_bfe_u32 v135, v0, 2, 1
v_mul_u32_u24 v136, {LP}, v135
v_lshrrev_b32 v137, 3, v0
v_lshl_add_u32 v138, v137, 2, v132
v_lshrrev_b32 v133, 1, v138
v_and_b32 v134, 1, v0
v_mul_u32_u24 v134, 40, v134
v_xor_b32 v133, v133, v134
v_lshl_add_u32 v133, v133, 4, v136
s_lshl_b32 s{sT0}, s{sW}, 10
v_add_u32 v{vCR}, s{sT0}, v133
v_lshl_add_u32 v133, v138, 4, v136
s_lshl_b32 s{sT0}, s{sW}, 9
s_add_u32 s{sT0}, s{sT0}, {UOFF+512}
v_add_u32 v{vCU}, s{sT0}, v133
v_mul_u32_u24 v133, 28672, v137
v_and_b32 v134, 7, v0
v_lshl_add_u32 v{vZ}, v134, 4, v133
v_lshlrev_b32 v134, 2, v134
v_add_u32 v{vBR}, {BADF}, v134
s_mul_i32 s{sT0}, s{sW}, {8*28672}
s_lshl_b32 s{sT1}, s{sC}, 7
s_add_u32 s{sT0}, s{sT0}, s{sT1}
s_add_u32 s{sZO}, s{sT0}, {ZZ}
s_lshl_b32 s{sKVB}, s{sH}, 18
s_add_u32 s{sKVB}, s{sKVB}, {KV}
s_lshl_b32 s{sKL}, s{sW}, 12
s_add_u32 s{sKS}, s{sKVB}, s{sKL}
s_min_u32 s{sT0}, s{sW}, 6
s_lshl_b32 s{sWM}, s{sT0}, 10
s_lshl_b32 s{sT1}, s{sT0}, 6
v_add_u32 v133, s{sT1}, v0
v_mul_u32_u24 v134, 4682, v133
v_lshrrev_b32 v134, 16, v134
v_mul_u32_u24 v136, 14, v134
v_sub_u32 v133, v133, v136
v_mul_u32_u24 v134, 896, v134
v_lshl_add_u32 v133, v133, 4, v134
s_mul_i32 s{sT1}, s{sCG}, 224
v_add_u32 v{vWOA}, s{sT1}, v133
s_lshl_b32 s{sT0}, s{sT7}, 14
s_add_u32 s{sT0}, s{sT0}, {LA}
v_add_u32 v{vB0}, s{sT0}, v1
v_add_u32 v{vB1}, 0x10000, v{vB0}
s_lshl_b32 s{sT0}, s{sG}, 11
s_add_u32 s{sT0}, s{sT0}, {LR}
v_add_u32 v{vQA}, s{sT0}, v1
s_lshl_b32 s{sT0}, s{sG}, 12
s_add_u32 s{sT0}, s{sT0}, {MERGE}
v_add_u32 v{vMG}, s{sT0}, v1
s_lshl_b32 s{sT1}, s{sW}, 2
s_add_u32 s{sT1}, s{sT1}, {BADF}
v_mov_b32 v{vBW}, s{sT1}
s_lshl_b32 s{sT3}, s{sQT}, 2
s_add_u32 s{sT3}, s{sT3}, s{sG}
s_lshl_b32 s{sT0}, s{sT3}, 4
s_add_u32 s{sT0}, s{sT0}, s{sH}
s_lshl_b32 s{sT0}, s{sT0}, 1
s_add_u32 s{sT0}, s{sT0}, s{sT7}
s_lshl_b32 s{sT0}, s{sT0}, 10
s_add_u32 s{sOO}, s{sT0}, {OF}
v_cmp_eq_u32 vcc, 0, v135
s_waitcnt lgkmcnt(0)
s_mul_i32 s{sNON}, s{sED}, 1664525
s_add_u32 s{sNON}, s{sNON}, 1013904223
s_lshl_b32 s{sT0}, s{sDV}, 16
s_and_b32 s{sT1}, s{sDV}, 0xffff0000
v_mov_b32 v133, s{sT0}
v_mov_b32 v134, s{sT1}
v_cndmask_b32 v{vD}, v134, v133, vcc
v_mov_b32 v{vNON}, s{sNON}
s_cmp_ge_u32 s{sW}, 4
s_cbranch_scc1 L_helper
""")
def flagpos(dst, tt, j):
    a(f"""
s_bfe_u32 s{sT0}, s{tt}, 0x20001
s_lshl_b32 s{sT0}, s{sT0}, 4
s_lshr_b32 s{sT1}, s{tt}, 3
s_lshl_b32 s{sT1}, s{sT1}, 1
s_and_b32 s{sT2}, s{tt}, 1
s_add_u32 s{sT0}, s{sT0}, s{sT1}
s_add_u32 s{sT0}, s{sT0}, s{sT2}
s_lshl_b32 s{sT1}, s{j}, 6
s_add_u32 s{sT0}, s{sT0}, s{sT1}
s_lshl_b32 s{sT0}, s{sT0}, 2
s_add_u32 s{dst}, s{sT0}, {FB}
""")

a.c("---- QKV projection: 32 tokens x 3 head blocks per wave")
a(f"""
v_and_b32 v128, 31, v0
v_bfe_u32 v129, v0, 1, 3
v_xor_b32 v129, v129, v131
v_lshlrev_b32 v128, 7, v128
v_lshl_add_u32 v128, v129, 4, v128
v_add_u32 v{vXB}, s{sLX}, v128
v_bfe_u32 v128, v0, 2, 2
v_lshl_add_u32 v128, v131, 3, v128
v_mul_u32_u24 v128, 192, v128
v_and_b32 v129, 1, v130
v_lshl_add_u32 v128, v129, 5, v128
v_lshl_add_u32 v128, v132, 3, v128
s_add_u32 s{sT6}, s{sT6}, {LP}
v_add_u32 v{vWR}, s{sT6}, v128
v_mov_b32 v{vXR}, v{vXB}
v_mov_b64 {v(vPB,2)}, 0
v_mov_b32 v{vGO}, 0
v_xor_b32 v{vXR+1}, 32, v{vXB}
v_xor_b32 v{vXR+2}, 64, v{vXB}
v_xor_b32 v{vXR+3}, 0x60, v{vXB}
""")
flagpos(sFL, sTT, sJ)
a(f"s_mul_i32 s{sT7}, s{sJ}, 3")
for b in range(3):
    a(f"""
s_add_u32 s{sT3}, s{sT7}, {b}
s_and_b32 s{sT0}, s{sT3}, 15
s_lshl_b32 s{sT0}, s{sT0}, 6
s_add_u32 s{sT0}, s{sT0}, s{sTT}
s_cmp_lt_u32 s{sT3}, 16
s_cselect_b32 s{sT1}, 11, 12
s_mov_b32 s{sT2}, {KV}
s_cselect_b32 s{sT2}, {QF}, s{sT2}
s_lshl_b32 s{sT0}, s{sT0}, s{sT1}
s_add_u32 s{sE0+b}, s{sT0}, s{sT2}
""")
a(f"""
s_mov_b32 s{sKP}, {ONES}
s_movk_i32 s{sKP+1}, 0x3f80
s_mov_b32 s{sQS}, {QSCALE:#x}
s_mov_b32 s{sQS+1}, {QSCALE:#x}
s_mov_b32 s{sM1}, 0xf0000000
s_mov_b32 s{sM1+1}, 0xf0000000
s_mov_b32 s{sM2}, {ONES}
s_mov_b32 s{sM2+1}, {ONES}
""")
for r in list(range(ACC, ACC + 48, 2)) + list(range(RS + 16, RS + 64, 2)): a(f"v_mov_b64 {v(r,2)}, 0")
a(f"""
s_mov_b32 s{sI}, 0
s_waitcnt vmcnt(21)
""")
stamp(3)
a(f"""
s_cmp_eq_u32 s{sJ}, 10
s_cbranch_scc1 L_gemm1
s_cmp_gt_u32 s{sJ}, 10
s_cbranch_scc1 L_gemm2
""")
def g_reads(ks):
    r = RS + 16 * ks
    out = [f"ds_read_b128 {v(r,4)}, v{vXR+ks}"]
    for b in range(3):
        for t in range(2):
            out.append(f"ds_read_b64_tr_b16 {v(r+4+4*b+2*t,2)}, v{vWR} offset:{(16*ks+4*t)*192+56*b}")
    return out
def g_mfma(ks, isv):
    r = RS + 16 * ks
    return [mfma32(ACC+16*b, r, r+4+4*b, ACC+16*b) if isv[b] else mfma32(ACC+16*b, r+4+4*b, r, ACC+16*b) for b in range(3)]
for var, isv in enumerate(((0,0,0), (0,0,1), (1,1,1))):
    m = [g_mfma(k, isv) for k in range(4)]
    rd = g_reads(0) + g_reads(1) + g_reads(2) + g_reads(3)
    a(f"L_gemm{var}:\n{m[1][2]}\ns_barrier")
    seq = m[2] + m[3] + m[0] + m[1][:1]
    for k, x in enumerate(seq):
        if k == 6: a("s_waitcnt lgkmcnt(11)")
        if k == 9: a("s_waitcnt lgkmcnt(13)")
        a("\n".join([x] + rd[3*k:3*k+3]))
    a(f"""
s_cmp_eq_u32 s{sI}, 1
s_movk_i32 s{sT1}, 12288
s_cselect_b32 s{sT1}, {(-LP-12288) & 0xffffffff}, s{sT1}
s_add_u32 s{sI}, s{sI}, 1
s_and_b32 s{sT0}, s{sI}, 3
s_lshl_b32 s{sT0}, s{sT0}, 12
{m[1][1]}
v_add_u32 v{vWR}, s{sT1}, v{vWR}
v_xor_b32 v{vXR}, s{sT0}, v{vXB}
v_xor_b32 v{vXR+1}, 32, v{vXR}
v_xor_b32 v{vXR+2}, 64, v{vXR}
v_xor_b32 v{vXR+3}, 0x60, v{vXR}
s_cmp_eq_u32 s{sI}, 1
s_waitcnt vmcnt(14) lgkmcnt(0)
s_cbranch_scc1 L_gemm{var}
s_cmp_eq_u32 s{sI}, 2
s_waitcnt vmcnt(7)
s_cbranch_scc1 L_gemm{var}
s_cmp_lt_u32 s{sI}, 7
s_waitcnt vmcnt(0)
s_cbranch_scc1 L_gemm{var}
""")
    a("\n".join([m[2][0], m[1][2], m[3][0], m[2][1], m[2][2], m[3][1], m[3][2]]))
    stamp(1)
    a.c("epilogue: scale Q, pack to bf16 fragments, patch the pad slots, publish")
    for b in range(3):
        pk = 128 + 8 * b
        padp = sKP
        if var == 0:
            padp = sM1
            a(f"s_cmp_lt_u32 s{sT7}, {16-b}\ns_cselect_b64 {s(sM1,2)}, 0, {s(sKP,2)}\ns_cbranch_scc0 L_nosc{b}")
            for r in range(0, 16, 2): a(f"v_pk_mul_f32 {v(ACC+16*b+r,2)}, {v(ACC+16*b+r,2)}, {s(sQS,2)}")
            a.label(f"L_nosc{b}")
        for r in range(8): a(f"v_cvt_pk_bf16_f32 v{pk+r}, v{ACC+16*b+2*r}, v{ACC+16*b+2*r+1}")
        if isv[b]:
            a(f"s_mov_b64 exec, {s(sM1,2)}")
            for r in range(0, 8, 2): a(f"v_mov_b64 {v(pk+r,2)}, {s(sM2,2)}")
        else: a(f"s_mov_b32 exec_lo, 0\nv_mov_b64 {v(pk+6,2)}, {s(padp,2)}")
        o = 2048 * isv[b]
        a(f"""
s_mov_b64 exec, -1
buffer_store_dwordx4 {v(pk,4)}, v1, {srd(WS)}, s{sE0+b} offen offset:{o} sc1
buffer_store_dwordx4 {v(pk+4,4)}, v1, {srd(WS)}, s{sE0+b} offen offset:{o+1024} sc1
""")
    a("s_branch L_conv")

a.label("L_helper")
a(f"""
s_lshl_b32 s{sT4}, s{sH}, 6
s_add_u32 s{sT4}, s{sT4}, s{sT3}
s_lshl_b32 s{sT4}, s{sT4}, 11
s_add_u32 s{sQO}, s{sT4}, {QF}
s_mul_i32 s{sT4}, s{sH}, 21846
s_lshr_b32 s{sT4}, s{sT4}, 16
""")
flagpos(sT5, sT3, sT4)
a(f"""
s_add_u32 s{sT0}, s{sH}, 16
s_mul_i32 s{sT0}, s{sT0}, 21846
s_lshr_b32 s{sT0}, s{sT0}, 16
s_add_u32 s{sT1}, s{sH}, 32
s_mul_i32 s{sT1}, s{sT1}, 21846
s_lshr_b32 s{sT1}, s{sT1}, 16
s_sub_u32 s{sT1}, s{sT1}, s{sT0}
s_lshl_b32 s{sT1}, s{sT1}, 8
s_lshl_b32 s{sT0}, s{sT0}, 8
s_lshl_b32 s{sT2}, s{sG}, 6
s_add_u32 s{sT0}, s{sT0}, s{sT2}
s_add_u32 s{sT0}, s{sT0}, {FB}
v_lshl_add_u32 v133, v139, 2, s{sT0}
v_and_b32 v134, 1, v130
v_mad_u32_u24 v{vPB}, v134, s{sT1}, v133
s_mov_b32 exec_lo, 0
v_mov_b32 v{vPB}, s{sT5}
s_mov_b32 exec_lo, -1
s_mul_i32 s{sT0}, s{sC}, 4682
s_lshr_b32 s{sT0}, s{sT0}, 16
s_lshl_b32 s{sT0}, s{sT0}, 8
s_add_u32 s{sT0}, s{sT0}, s{sT2}
s_add_u32 s{sT0}, s{sT0}, {FA}
v_lshl_add_u32 v{vPA}, v139, 2, s{sT0}
v_lshrrev_b32 v133, 2, v0
v_mul_u32_u24 v133, 28672, v133
v_lshl_add_u32 v{vUD}, v132, 4, v133
s_mul_i32 s{sT0}, s{sG}, {16*28672}
s_lshl_b32 s{sT1}, s{sC}, 7
s_add_u32 s{sT0}, s{sT0}, s{sT1}
s_add_u32 s{sUO}, s{sT0}, {UU}
v_mul_u32_u24 v133, {8*896}, v130
v_add_u32 v{vGO}, v133, v{vGA}
s_lshl_b32 s{sT4}, s{sG}, 11
s_add_u32 s{sT4}, s{sT4}, {LP+24576}
v_lshlrev_b32 v133, 7, v{vCP}
v_lshl_add_u32 v{vZL}, v130, 4, v133
v_add_u32 v132, s{sT4}, v{vZL}
v_add_u32 v137, s{sT4}, v1
s_lshl_b32 s{sT2}, s{sCG}, 2
s_add_u32 s{sT2}, s{sT2}, s{sG}
s_mul_i32 s{sT1}, s{sT2}, 1792
s_mul_i32 s{sT3}, s{sRT}, 28672
s_add_u32 s{sUT}, s{sT1}, s{sT3}
s_add_u32 s{sT7}, s{sUT}, {UU}
s_add_u32 s{sUT}, s{sUT}, {ZZ}
s_lshl_b32 s{sT2}, s{sT2}, 8
s_lshl_b32 s{sT3}, s{sRT}, 2
s_add_u32 s{sT2}, s{sT2}, s{sT3}
s_add_u32 s{sFL}, s{sT2}, {FA}
v_bfe_u32 v138, v0, 1, 2
v_mul_u32_u24 v138, {HP}, v138
v_and_b32 v139, 1, v0
v_lshl_add_u32 v138, v139, 4, v138
v_add_u32 v139, {UOFF}, v1
v_cmp_gt_u32 vcc, 32, v0
v_mov_b64 v[140:141], 0
v_mov_b64 v[142:143], 0
v_cndmask_b32 v138, v138, v139, vcc
v_add_u32 v139, {LP}, v138
s_waitcnt vmcnt(12)
""")
stamp(1)
for j in range(4):
    for p in range(2):
        src = SR + 2 * p + (j >> 1)
        a(f"v_lshlrev_b32 v{WF+2*j+p}, 16, v{src}" if j % 2 == 0 else f"v_and_b32 v{WF+2*j+p}, 0xffff0000, v{src}")
for i in range(11): a(f"v_lshlrev_b32 v{KF+2*i}, 16, v{KR+i}\nv_and_b32 v{KF+2*i+1}, 0xffff0000, v{KR+i}")
for t in range(8): a(f"v_pk_mul_f32 {v(UA+2*t,2)}, {v(KF+2*t,2)}, {v(WF+6,2)}")
for j in (2, 1, 0):
    for t in range(8): a(f"v_pk_fma_f32 {v(UA+2*t,2)}, {v(KF+2*(t+3-j),2)}, {v(WF+2*j,2)}, {v(UA+2*t,2)}")
a("s_waitcnt vmcnt(4)")
for i in range(8): a(f"v_lshlrev_b32 v{VF+2*i}, 16, v{VR+i}\nv_and_b32 v{VF+2*i+1}, 0xffff0000, v{VR+i}")
for t in range(8): a(f"v_pk_mul_f32 {v(UA+2*t,2)}, {v(UA+2*t,2)}, {v(VF+2*t,2)}")
for p in range(2):
    for m in range(4): a(f"v_cvt_pk_bf16_f32 v{UP+4*p+m}, v{UA+2*(7-2*m)+p}, v{UA+2*(6-2*m)+p}")
    a(f"ds_write_b128 v132, {v(UP+4*p,4)} offset:{64*p}")
a(f"""
s_waitcnt lgkmcnt(0)
ds_read_b128 {v(UP,4)}, v137
ds_read_b128 {v(UP+4,4)}, v137 offset:1024
s_waitcnt lgkmcnt(1)
buffer_store_dwordx4 {v(UP,4)}, v1, {srd(WS)}, s{sT7} offen sc1
s_mov_b32 exec_hi, 0xffff
s_waitcnt lgkmcnt(0)
buffer_store_dwordx4 {v(UP+4,4)}, v1, {srd(WS)}, s{sT7} offen offset:1024 sc1
s_mov_b32 exec_hi, -1
""")
stamp(2)
def hprep(p):
    R = H0 + 8 * p; T = 40 + 12 * p
    a(f"v_add_u32 v{134+p}, {(LP if p else LX)+32}, v{vHO}")
    for i in range(4): a(f"v_alignbit_b32 v{T+i}, v{R+2+i}, v{R+1+i}, 16")
    for i in range(4): a(f"v_mov_b32 v{T+4+i}, v{R+1+i}")
    for i in range(4): a(f"v_alignbit_b32 v{T+8+i}, v{R+1+i}, v{R+i}, 16")
def hwrite(p):
    R = H0 + 8 * p; T = 40 + 12 * p
    a(f"ds_write_b128 v{134+p}, {v(R+2,4)}")
    for c in range(1, 4): a(f"ds_write_b128 v{134+p}, {v(T+4*(c-1),4)} offset:{HP*c}")
    a.c("zero pads: lanes 0-31 the u pad, lanes 32-39 the h pads")
    a(f"ds_write_b128 v{138+p}, {v(140,4)}")
def u_dma():
    a(f"""
s_lshl_b32 s{sT2}, s{sG}, 10
s_add_u32 m0, s{sT2}, {LX+UOFF+512}
s_add_u32 s{sT1}, s{sUO}, 64
buffer_load_dwordx4 v{vUD}, {srd(WS)}, s{sUO} offen sc1 lds
s_add_u32 m0, s{sT2}, {LP+UOFF+512}
s_nop 0
buffer_load_dwordx4 v{vUD}, {srd(WS)}, s{sT1} offen sc1 lds
""")
a("s_barrier\ns_setprio 0")
dma_w(4); dma_w(5)
a("s_barrier")
dma_x(4); dma_w(6)
a("s_waitcnt vmcnt(13)")
signal(f"s{sFL}")
stamp(3)
hprep(1)
a("s_barrier")
dma_x(5)
hwrite(1)
hprep(0)
a("s_barrier")
dma_x(6)
a("s_waitcnt vmcnt(12)\ns_barrier")
a(f"buffer_load_dword v141, v{vPA}, {srd(WS)}, 0 offen sc1".replace("v141", "v144"))
hwrite(0)
a(f"""
s_waitcnt vmcnt(5)
s_barrier
s_waitcnt vmcnt(0)
v_cmp_ne_u32 vcc, s{sNON}, v144
s_cbranch_vccnz L_ulate
""")
u_dma()
a("s_barrier\ns_branch L_uok\nL_ulate:\ns_barrier")
poll(vPA, 144)
u_dma()
a("L_uok:")
stamp(4)
a(f"s_movk_i32 s{sT5}, 3584")
for i in range(8): a(f"buffer_load_dword v{QR+i}, v{vGA}, {srd(Q_)}, {'0' if i<4 else s(sT5)} offen offset:{896*(i&3)}")
a("s_setprio 1\ns_waitcnt vmcnt(8) lgkmcnt(0)")

a.label("L_conv")
CAC, CU, FA_, FB_ = 16, 48, 64, 128
a.c("---- long causal conv as block-Toeplitz MFMA: channel = wave>>2, lag phases split over wave&3")
a("s_barrier")
stamp(5)
def c_readA(i, r): return [f"ds_read_b64 {v(FA_+32*i+4*r+2*t,2)}, v{vCA} offset:{512*r+64*i+8*t}" for t in range(2)]
def c_readB(i, x): return [f"ds_read_b128 {v(FB_+32*i+4*x,4)}, v{vCB} offset:{512*x+64*(1-i)}"]
def c_m(i, nt, r, first=False): return mfma16(CAC+4*nt, FA_+32*i+4*r, FB_+32*i+4*(nt-r), "0" if first else CAC+4*nt)
lq = LQ()
rds = [x for i in range(2) for k in range(8) for x in c_readA(i, k) + c_readB(i, k)] + [f"ds_read_b128 {v(CU,4)}, v{vCU}"]
for x in rds[:15]: lq(x)
rds = rds[15:]
a(f"""
s_cmp_ge_u32 s{sW}, 4
s_cbranch_scc1 L_cm
s_waitcnt vmcnt(0)
""")
signal(f"s{sFL}")
stamp(4)
a.label("L_cm")
seen = set(); prev = -1
for k in range(8):
    grp = [(r, x) for r in range(k + 1) for x in range(k + 1) if max(r, x) == k and r + x <= 7]
    while grp:
        r, x = next((p for p in grp if p[0] + p[1] != prev), grp[0]); grp.remove((r, x))
        lq(c_m(0, r + x, r, first=(r + x) not in seen)); seen.add(r + x); prev = r + x
        if rds: lq(rds.pop(0))
assert not rds
lq.drain()
a("s_barrier")
pend = []
for n0 in range(0, 8, 2):
    ms = []
    for r in range(n0 + 2):
        ms.append(c_m(1, n0 + 1, r))
        if r <= n0: ms.append(c_m(1, n0, r))
    for m_ in ms:
        a(m_)
        pend = [(w, n + 1) for w, n in pend]
        if pend and pend[0][1] >= 8: a(pend.pop(0)[0])
    for nt in (n0, n0 + 1): pend.append((f"ds_write_b128 v{vCW}, {v(CAC+4*nt,4)} offset:{1024*nt}", 0))
for t in range(8):
    m = (7 - t) // 2
    a(f"v_lshlrev_b32 v{56+t}, 16, v{CU+m}" if t % 2 else f"v_and_b32 v{56+t}, 0xffff0000, v{CU+m}")
for w, n in pend: a(w)
stamp(6)
a(f"""
s_cmp_lt_u32 s{sW}, 4
s_cbranch_scc1 L_cred
""")
poll(vPB, 144)
stamp(7)
a(f"""
s_lshl_b32 s{sT5}, s{sG}, 11
s_add_u32 m0, s{sT5}, {LR}
s_nop 0
buffer_load_dwordx4 v1, {srd(WS)}, s{sQO} offen sc1 lds
buffer_load_dwordx4 v1, {srd(WS)}, s{sQO} offen offset:1024 sc1 lds
""")
def kv_first(stages=(0, 1)):
    a(f"s_lshl_b32 s{sT5}, s{sG}, 13\ns_add_u32 s{sT4}, s{sT5}, s{sKVB}")
    for n in stages:
        for p in range(2):
            o = 32768 * n + 4096 * p
            a(f"s_add_u32 m0, s{sT5}, {LA+o}\ns_add_u32 s{sT3}, s{sT4}, {o}")
            for i in range(4): a(f"buffer_load_dwordx4 v1, {srd(WS)}, s{sT3} offen offset:{1024*i} sc1 lds")
kv_first((0,))
a.label("L_cred")
a("s_waitcnt lgkmcnt(0)\ns_barrier")
for q in range(4):
    for i in range(2): a(f"ds_read_b128 {v(64+8*q+4*i,4)}, v{vCR} offset:{8192*q+256*i}")
a("s_waitcnt lgkmcnt(4)")
for t in range(8): a(f"v_fma_f32 v{56+t}, v{56+t}, v{vD}, v{64+t}")
for t in range(0, 8, 2): a(f"v_pk_add_f32 {v(56+t,2)}, {v(56+t,2)}, {v(72+t,2)}")
a("s_waitcnt lgkmcnt(0)")
for t in range(0, 8, 2): a(f"v_pk_add_f32 {v(80+t,2)}, {v(80+t,2)}, {v(88+t,2)}")
for t in range(0, 8, 2): a(f"v_pk_add_f32 {v(56+t,2)}, {v(56+t,2)}, {v(80+t,2)}")
for m in range(4): a(f"v_cvt_pk_bf16_f32 v{104+m}, v{56+2*m}, v{57+2*m}")
a.c("publish z; mark this workgroup's attention-output slots as not yet written")
a(f"""
v_mov_b64 v[108:109], -1
v_mov_b64 v[110:111], -1
buffer_store_dwordx4 {v(104,4)}, v{vZ}, {srd(WS)}, s{sZO} offen sc1
buffer_store_dwordx4 {v(108,4)}, v1, {srd(WS)}, s{sOO} offen sc1
s_cmp_ge_u32 s{sW}, 4
s_cbranch_scc1 L_cw
""")
a.c("behind that barrier every wave knows the QKV flags matched: waves 0-3 fetch the second key stage")
kv_first((1,))
a("s_branch L_att\nL_cw:\ns_waitcnt vmcnt(2)")

vQ, vK, vV, vP, vSa, vSb, vO, vM, vKC, vZR, vFC = 16, 24, 32, 40, 48, 64, 80, 14, 96, 112, 120
a.c("---- attention: S^T = K Q^T - m (m rides in the pad slots), P = exp2, O^T += V^T P^T (row 28 = sum)")
a(f"""
L_att:
s_cmp_lg_u32 s{sTRY}, 0
s_barrier
""")
stamp(8)
def kvaddr(T, f):
    o = 32768 * ((T >> 2) & 3) + 4096 * (T & 3) + 1024 * f
    return f"v{vB0 if o < 65536 else vB1} offset:{o & 65535}"
def rdK(T, f): return f"ds_read_b128 {v(vK+4*f,4)}, {kvaddr(T, f)}"
def rdV(T, f): return f"ds_read_b128 {v(vV+4*f,4)}, {kvaddr(T, 2+f)}"
def wo_piece(g): return [f"s_add_u32 m0, s{sWM}, {7168*g}", f"s_mov_b32 s{sSO2}, {28672*g}", f"buffer_load_dwordx4 v{vWOA}, {srd(WO)}, s{sSO2} offen lds"]
def pieces(n):
    out = []
    if n < 4: out.append(wo_piece(n))
    if n < 6:
        for i in range(4):
            p = [f"buffer_load_dwordx4 v1, {srd(WS)}, s{sSO} offen offset:{1024*i} sc1 lds"]
            if i == 0: p = [f"s_add_u32 m0, s{sKL}, {LA+32768*((n+2)&3)}", f"s_add_u32 s{sSO}, s{sKS}, {32768*(n+2)}"] + p
            out.append(p)
    elif n < 8: out = [wo_piece(4 + 5 * (n - 6) + i) for i in range(5)]
    return out
def maxtree(S, dst, have):
    a(f"v_max3_f32 v{dst}, v{S}, v{S+1}, v{dst}" if have else f"v_max_f32 v{dst}, v{S}, v{S+1}")
    for i in range(2, 16, 2): a(f"v_max3_f32 v{dst}, v{S+i}, v{S+i+1}, v{dst}")
p0 = pieces(0)
a(f"""
{rdK(0,0)}
{rdK(0,1)}
{rdV(0,0)}
s_cbranch_scc1 L_havem
ds_read_b128 {v(vQ,4)}, v{vQA}
ds_read_b128 {v(vKC,4)}, v1 offset:{LA}
ds_read_b128 {v(vQ+4,4)}, v{vQA} offset:1024
ds_read_b128 {v(vKC+4,4)}, v1 offset:{LA+1024}
s_waitcnt lgkmcnt(2)
{mfma32(vSb, vKC, vQ, "0")}
s_waitcnt lgkmcnt(0)
{mfma32(vSb, vKC+4, vQ+4, vSb)}
L_havem:
s_waitcnt lgkmcnt(0)
{mfma32(vSa, vK, vQ, "0")}
""")
lq = LQ()
lq(rdK(1, 0))
a("\n".join(p0[0] + p0[1]))
a(f"s_cmp_lg_u32 s{sTRY}, 0\ns_cbranch_scc1 L_havem2")
maxtree(vSb, vM, False)
a(f"""
L_havem2:
v_mov_b32 v96, v{vM}
v_permlane32_swap_b32 v96, v{vM}
v_max_f32 v{vM}, v96, v{vM}
v_sub_f32 v96, 0, v{vM}
v_and_b32 v97, 0xffff0000, v96
v_sub_f32 v96, v96, v97
v_and_b32 v98, 0xffff0000, v96
v_sub_f32 v96, v96, v98
s_mov_b32 exec_lo, 0
v_alignbit_b32 v{vQ+6}, v98, v97, 16
v_lshrrev_b32 v{vQ+7}, 16, v96
v_and_b32 v{vQ+6}, 0xffff, v{vQ+6}
v_or_b32 v{vQ+6}, v{vQ+6}, v98
s_mov_b32 exec_lo, -1
{mfma32(vSa, vK+4, vQ+4, vSa)}
""".replace(f"v_alignbit_b32 v{vQ+6}, v98, v97, 16", f"v_lshrrev_b32 v{vQ+6}, 16, v97").replace(f"v_and_b32 v{vQ+6}, 0xffff, v{vQ+6}\n", ""))
lq(rdK(1, 1))
a("\n".join(p0[2]))
stamp(9)
PRIO = {0: 3, 7: 2, 12: 1, 15: 0} if OPT.get("prio", 1) else {}
DSL = (0, 3, 6, 9, 12)
todo = {9: p0[3], 12: p0[4]}
firstO = True
for T in range(32):
    S, Sn = (vSa, vSb) if T % 2 == 0 else (vSb, vSa)
    n = (T + 2) >> 2
    if T & 3 == 2:
        if n < 8: a(f"s_waitcnt vmcnt({len(pieces(n-1))})")
        a("s_barrier")
        pc = pieces(n)
        todo = dict(zip(DSL[5 - len(pc):], pc))
    for k in range(4):
        sl = (4 * T + k + 8) & 15
        if sl in PRIO and n < 8 or (T, k) == (0, 0): a(f"s_setprio {PRIO.get(sl, 2 if PRIO else 0)}")
        if k < 2:
            if T < 31: lq(mfma32(Sn, vK+4*k, vQ+4*k, Sn if k else "0"))
            if T < 30: lq(rdK(T + 2, k))
        elif k == 2:
            if T > 0: lq(mfma32(vO, vV+4, vP+4, vO))
            lq(rdV(T, 1))
        else:
            lq(mfma32(vO, vV, vP, "0" if T == 0 else vO))
            if T < 31: lq(rdV(T + 1, 0))
        ex = [f"v_exp_f32 v{S+r}, v{S+r}" for r in range(4 * k, 4 * k + 4)]
        cv = [f"v_cvt_pk_bf16_f32 v{vP+r}, v{S+2*r}, v{S+2*r+1}" for r in range(2 * k, 2 * k + 2)]
        p = todo.pop(sl, [])
        body = []
        for e in range(4):
            body.append(ex[e])
            if e < len(p): body.append(p[e])
        a("\n".join(body + cv))
        if sl == 1 and n == 2:
            a(f"s_cmp_eq_u32 s{sW}, 7\ns_cbranch_scc1 L_sigc\nL_sigc_r:")
        if sl == 15 and n == 5:
            a.c("flags of all workgroups' z and slot marks (one word each)")
            a(f"s_movk_i32 s{sT0}, {FC}\nbuffer_load_dwordx4 {v(vFC,4)}, v1, {srd(WS)}, s{sT0} offen sc1")
        if sl == 1 and n == 7:
            a(f"s_cmp_ge_u32 s{sW}, 4\ns_cbranch_scc1 L_chkc\nL_chkc_r:")
lq(mfma32(vO, vV+4, vP+4, vO))
a("s_setprio 0")
stamp(10)
a(f"""
s_mov_b32 s{sT2}, 0x5f800000
v_mov_b64 v[100:101], 0
v_mov_b64 v[102:103], 0
v_add_u32 v99, {448*224}, v1
s_cmp_lt_u32 s{sW}, 4
s_cbranch_scc1 L_mA
ds_write_b128 v99, {v(100,4)}
""")
for i in range(4): a(f"ds_write_b128 v{vMG}, {v(vO+4*i,4)} offset:{1024*i}")
a(f"""
L_mA:
v_cmp_nle_f32 vcc, v{vO+12}, s{sT2}
v_mov_b32 v98, vcc_hi
ds_write_b32 v{vBW}, v98
s_waitcnt vmcnt(0) lgkmcnt(0)
s_barrier
ds_read_b32 v98, v{vBR}
s_cbranch_scc0 L_mB
""")
for i in range(4): a(f"ds_read_b128 {v(vSa+4*i,4)}, v{vMG} offset:{1024*i}")
a(f"""
L_mB:
s_waitcnt lgkmcnt(0)
v_cmp_lt_u32 vcc, s{sTRY}, v98
s_cbranch_vccnz L_fallback
s_cbranch_scc0 L_gate
""")
a(f"""
v_add_f32 v96, v{vO+12}, v{vSa+12}
v_add_f32 v97, v{vO+12}, v{vSa+12}
""")
for r in range(0, 4, 2): a(f"v_pk_add_f32 {v(vO+r,2)}, {v(vO+r,2)}, {v(vSa+r,2)}")
a(f"v_permlane32_swap_b32 v96, v97\nv_rcp_f32 v96, v97")
for r in range(4, 16, 2): a(f"v_pk_add_f32 {v(vO+r,2)}, {v(vO+r,2)}, {v(vSa+r,2)}")
for hf in range(2):
    for r in range(8*hf, 8*hf+8, 2): a(f"v_pk_mul_f32 {v(vO+r,2)}, {v(vO+r,2)}, v[96:97] op_sel_hi:[1,0]")
    for r in range(4*hf, 4*hf+4): a(f"v_cvt_pk_bf16_f32 v{vP+r}, v{vO+2*r}, v{vO+2*r+1}")
    if hf: a(f"s_mov_b32 exec_lo, 0\nv_mov_b64 {v(vP+6,2)}, 0\ns_mov_b32 exec_lo, -1")
    a(f"buffer_store_dwordx4 {v(vP+4*hf,4)}, v1, {srd(WS)}, s{sOO} offen offset:{1024*hf} sc1")
stamp(11)
WFR, OB, OA = 112, 16, 48
a(f"""
v_bfe_u32 v96, v0, 2, 2
v_lshrrev_b32 v97, 5, v0
v_lshl_add_u32 v96, v97, 2, v96
v_mul_u32_u24 v96, 224, v96
v_bfe_u32 v98, v0, 4, 1
v_lshl_add_u32 v96, v98, 5, v96
v_and_b32 v98, 3, v0
v_lshl_add_u32 v96, v98, 3, v96
s_lshl_b32 s{sT2}, s{sG}, 6
v_add_u32 v2, s{sT2}, v96
v_add_u32 v3, {8*28*224}, v2
""")
for h in range(16):
    for s_ in range(2):
        for t in range(2):
            a(f"ds_read_b64_tr_b16 {v(WFR+8*h+4*s_+2*t,2)}, v{2+(h>>3)} offset:{(28*(h&7)+16*s_+8*t)*224}")
a(f"""
v_add_u32 v5, {LR}, v1
v_and_b32 v99, 31, v0
v_mul_u32_u24 v99, 80, v99
v_lshl_add_u32 v99, v97, 3, v99
s_mul_i32 s{sT0}, s{sG}, 4096
s_add_u32 s{sT0}, s{sT0}, {MERGE}
v_add_u32 v6, s{sT0}, v99
v_lshrrev_b32 v99, 2, v0
v_mul_u32_u24 v100, 80, v99
v_lshl_add_u32 v100, v98, 4, v100
v_add_u32 v7, s{sT0}, v100
v_mul_u32_u24 v100, 1792, v99
v_lshl_add_u32 v8, v98, 4, v100
s_mul_i32 s{sT0}, s{sRT}, {32*1792}
s_mul_i32 s{sT1}, s{sCG}, 224
s_add_u32 s{sT0}, s{sT0}, s{sT1}
s_add_u32 s{sT0}, s{sT0}, s{sT2}
s_add_u32 s{sT1}, s{sT0}, {16*1792}
s_cmp_eq_u32 s{sG}, 3
s_cselect_b32 s{sM1}, 0x33333333, -1
s_mov_b32 s{sM1+1}, s{sM1}
s_waitcnt lgkmcnt(0)
""")
stamp(12)
lq = LQ()
held = []
for k in range(4):
    ob = OB if k % 2 == 0 else 64
    a("s_barrier")
    if k == 0: stamp(13)
    for f in range(8):
        lq(f"ds_read_b128 {v(ob+4*f,4)}, v5 offset:{8192*k+1024*f}")
        if f % 3 == 0 and held: lq(held.pop(0))
    ms = [mfma32(OA, WFR+32*k+4*f, ob+4*f, "0" if k == 0 and f == 0 else OA) for f in range(8)]
    cut = 5 if k < 3 else 8
    for m_ in ms[:cut]: lq(m_)
    held = ms[cut:]
for r in range(8): a(f"v_cvt_pk_bf16_f32 v{16+r}, v{OA+2*r}, v{OA+2*r+1}")
for m in range(4): a(f"ds_write_b64 v6, {v(16+2*m,2)} offset:{16*m}")
a(f"""
s_waitcnt lgkmcnt(0)
ds_read_b128 {v(24,4)}, v7
ds_read_b128 {v(28,4)}, v7 offset:{16*80}
s_mov_b64 exec, s[{sM1}:{sM1+1}]
s_waitcnt lgkmcnt(1)
buffer_store_dwordx4 {v(24,4)}, v8, {srd(OUT)}, s{sT0} offen
s_waitcnt lgkmcnt(0)
buffer_store_dwordx4 {v(28,4)}, v8, {srd(OUT)}, s{sT1} offen
""")
stamp(14)
a("s_branch L_fin" if DIAG else "s_endpgm")

a.label("L_gate")
a(f"""
s_mul_i32 s{sT3}, s{sRT}, {32*896}
s_add_u32 s{sT3}, s{sT3}, 896
""")
for i in range(8): a(f"v_lshlrev_b32 v{16+2*i}, 16, v{QR+i}\nv_and_b32 v{17+2*i}, 0xffff0000, v{QR+i}")
for t in range(8):
    for p in range(2):
        src = vZR + 4 * p + t // 2
        a(f"v_lshlrev_b32 v{32+2*t+p}, 16, v{src}" if t % 2 == 0 else f"v_and_b32 v{32+2*t+p}, 0xffff0000, v{src}")
for t in range(8): a(f"v_pk_mul_f32 {v(32+2*t,2)}, {v(32+2*t,2)}, {v(16+2*t,2)}")
for t in range(8): a(f"v_cvt_pk_bf16_f32 v{56+t}, v{32+2*t}, v{33+2*t}")
for t in range(8):
    a(f"buffer_store_dword v{56+t}, v{vGO}, {srd(OUT)}, s{sT3} offen offset:{1792*(t&1)}")
    if t & 1 and t < 7: a(f"s_add_u32 s{sT3}, s{sT3}, 3584")
stamp(11)
a.c("O fragments: every word differs from the all-ones mark once its producer's store has landed")
OL = 64
a(f"""
s_lshl_b32 s{sT0}, s{sRT}, 15
s_lshl_b32 s{sT1}, s{sG}, 11
s_add_u32 s{sT0}, s{sT0}, s{sT1}
s_add_u32 s{sT0}, s{sT0}, {OF}
s_add_u32 s{sT1}, s{sT0}, 8192
s_add_u32 s{sT2}, s{sT0}, 16384
s_add_u32 s{sT3}, s{sT0}, 24576
s_mov_b32 s{sSP}, {SPIN}
""")
def o_issue(k0):
    for k in range(k0, 4):
        for i in range(2): a(f"buffer_load_dwordx4 {v(OL+8*k+4*i,4)}, v1, {srd(WS)}, s{sT0+k} offen offset:{1024*i} sc1")
o_issue(0)
for k in range(4):
    r = OL + 8 * k
    a(f"""
L_ochk{k}:
s_waitcnt vmcnt({6-2*k})
v_max3_u32 v96, v{r}, v{r+1}, v{r+2}
v_max3_u32 v97, v{r+3}, v{r+4}, v{r+5}
v_max3_u32 v96, v{r+6}, v{r+7}, v96
v_max_u32 v96, v96, v97
v_cmp_eq_u32 vcc, -1, v96
s_cbranch_vccnz L_oretry{k}
L_ogo{k}:
ds_write_b128 v{vQA}, {v(r,4)} offset:{8192*k}
ds_write_b128 v{vQA}, {v(r+4,4)} offset:{8192*k+1024}
s_waitcnt lgkmcnt(0)
s_barrier
""")
    if k == 0: stamp(12)
stamp(13)
a.label("L_fin")
if DIAG:
    a(f"s_mov_b64 exec, -1\ns_mov_b32 s{sST+15}, s98")
    a(f"s_lshl_b32 s{sT0}, s2, 3\ns_add_u32 s{sT0}, s{sT0}, s{sW}\ns_lshl_b32 s{sT0}, s{sT0}, 6\ns_add_u32 s{sT0}, s{sT0}, {DG}\nv_lshlrev_b32 v96, 2, v0")
    for k in range(16): a(f"v_writelane_b32 v97, s{sST+k}, {k}")
    a(f"s_mov_b64 exec, 0xffff\nbuffer_store_dword v97, v96, {srd(WS)}, s{sT0} offen")
if "probe" in OPT:
    a(f"""
s_cmp_lg_u32 s2, {OPT.get("pwg", 100)}
s_cbranch_scc1 L_end
s_cmp_lg_u32 s{sW}, {OPT.get("pw", 0)}
s_cbranch_scc1 L_end
s_sub_u32 s{sT0}, s{sST+OPT["probe"]}, s98
s_lshl_b32 s{sT0}, s{sT0}, 2
s_add_u32 s{sT0}, s{sT0}, 4000
s_min_u32 s{sT0}, s{sT0}, 20000
L_probe:
s_memrealtime s[96:97]
s_waitcnt lgkmcnt(0)
s_sub_u32 s96, s96, s98
s_cmp_lt_u32 s96, s{sT0}
s_cbranch_scc1 L_probe
""")
a.label("L_end")
a("s_endpgm")
for k in range(4):
    a(f"L_oretry{k}:\ns_sub_u32 s{sSP}, s{sSP}, 1\ns_cbranch_scc1 L_ogo{k}".replace(f"s_cbranch_scc1 L_ogo{k}", f"s_cselect_b32 s{sSP}, 0, s{sSP}\ns_cbranch_scc1 L_ogo{k}"))
    o_issue(k)
    a(f"s_branch L_ochk{k}")

a(f"""
L_sigc:
s_lshl_b32 s{sT0}, s2, 2
s_add_u32 s{sT0}, s{sT0}, {FC}
""")
signal(f"s{sT0}")
a(f"""
s_branch L_sigc_r
L_chkc:
s_mov_b32 s{sSP}, {SPIN}
L_chkc1:
v_xor_b32 v{vFC}, s{sNON}, v{vFC}
v_xor_b32 v{vFC+1}, s{sNON}, v{vFC+1}
v_xor_b32 v{vFC+2}, s{sNON}, v{vFC+2}
v_or3_b32 v{vFC}, v{vFC}, v{vFC+1}, v{vFC+2}
v_xor_b32 v{vFC+3}, s{sNON}, v{vFC+3}
v_or_b32 v{vFC}, v{vFC}, v{vFC+3}
v_cmp_ne_u32 vcc, 0, v{vFC}
s_cbranch_vccnz L_chkc3
L_chkc2:
buffer_load_dwordx4 {v(vZR,4)}, v{vZL}, {srd(WS)}, s{sUT} offen sc1
buffer_load_dwordx4 {v(vZR+4,4)}, v{vZL}, {srd(WS)}, s{sUT} offen offset:64 sc1
s_add_u32 s{sT1}, s2, s{sG}
s_cmp_lg_u32 s{sT1}, 0
s_cbranch_scc1 L_chkc_r
""")
a.c("workgroup 0 advances the epoch word: every workgroup is known to have read it")
signal("0")
a(f"""
s_branch L_chkc_r
L_chkc3:
s_sub_u32 s{sSP}, s{sSP}, 1
s_cbranch_scc1 L_chkc2
buffer_load_dwordx4 {v(vFC,4)}, v1, {srd(WS)}, s{sT0} offen sc1
s_waitcnt vmcnt(0)
s_branch L_chkc1
""")

a.label("L_fallback")
a(f"""
s_mov_b32 s{sTRY}, -1
s_barrier
s_cbranch_scc1 L_fb0
""")
kv_first()
a(f"""
L_fb0:
s_mov_b32 exec_lo, 0
v_mov_b32 v{vQ+6}, 0
v_mov_b32 v{vQ+7}, 0
s_mov_b32 exec_lo, -1
v_mov_b32 v{vM}, 0xff800000
s_mov_b32 s{sT3}, s{sKVB}
s_mov_b32 s{sI}, 0
L_fb1:
buffer_load_dwordx4 {v(vK,4)}, v1, {srd(WS)}, s{sT3} offen sc1
buffer_load_dwordx4 {v(vK+4,4)}, v1, {srd(WS)}, s{sT3} offen offset:1024 sc1
s_waitcnt vmcnt(0)
{mfma32(vSb, vK, vQ, "0")}
{mfma32(vSb, vK+4, vQ+4, vSb)}
s_add_u32 s{sT3}, s{sT3}, 4096
s_add_u32 s{sI}, s{sI}, 1
""")
maxtree(vSb, vM, True)
a(f"""
s_cmp_lt_u32 s{sI}, 64
s_cbranch_scc1 L_fb1
s_branch L_att
L_codeend:
""")

import subprocess
body0 = pad(a.l, verbose="v" in sys.argv)
def emit(pfs, fill):
    body = [l.replace("@@PFS@@", str(pfs)) for l in body0]
    hdr = open("cdna_kernels/" + NAME + ".s.ref").read().split("; Override launch")[0]
    return hdr + f"""; One persistent launch, one workgroup per CU; phases hand data over through d_ws with tagged flags.
; @launch grid=(256,1,1) block=(512,1,1) lds=163840
.amdgcn_target "amdgcn-amd-amdhsa--gfx950"
.text
.globl {NAME}_kernel
.p2align 8
.type {NAME}_kernel,@function
""" + "\n".join(body) + f"""
    .fill {fill}, 4, 0xbf810000
.section .rodata,"a"
.p2align 6
.amdhsa_kernel {NAME}_kernel
  .amdhsa_next_free_vgpr 256
  .amdhsa_next_free_sgpr 102
  .amdhsa_accum_offset 256
  .amdhsa_group_segment_fixed_size 0
  .amdhsa_kernarg_size 96
  .amdhsa_user_sgpr_count 2
  .amdhsa_user_sgpr_kernarg_segment_ptr 1
  .amdhsa_system_sgpr_workgroup_id_x 1
.end_amdhsa_kernel
"""
def size_of(txt):
    open("_sz.s", "w").write(txt)
    subprocess.run(["clang", "-x", "assembler", "-target", "amdgcn-amd-amdhsa", "-mcpu=gfx950", "-c", "_sz.s", "-o", "_sz.o"], check=True)
    o = subprocess.run(["llvm-objdump", "-t", "_sz.o"], capture_output=True, text=True).stdout
    return [int(l.split()[0], 16) for l in o.splitlines() if l.endswith("L_codeend")][0]
sz = size_of(emit(40, 1))
pfs = OPT.get("pfs", (sz + 2047) // 2048 * 4)
assert pfs <= 64
print("code bytes", sz, "prefetch stride", pfs)
open(sys.argv[1], "w").write(emit(pfs, max(1, (pfs * 512 - sz + 3) // 4)))
```

```python
import sys, struct, math
from asmlib import *

NAME = "concat_heads__softmax_full_mha__ssm_conv_h3__prompt"
DIAG = "diag" in sys.argv
OPT = {k: int(x) for k, x in (a.split("=") for a in sys.argv[2:] if "=" in a)}
SPIN = 1 << 16

FA, FB, FC = 0x1000, 0x2000, 0x3000
QF, KV, UU, ZZ, OF, WSEND = 0x100000, 0x300000, 0x700000, 0x900000, 0xB00000, 0xD00000
DG = 0x10000
LX, LA, LB, LP, LR = 0, 32768, 65536, 98304, 131072
HP, UOFF = 4160, 16640
MERGE, BADF = LP + 4096, LP + 3072
ONES = 0x3f803f80
def fbits(x): return struct.unpack("<I", struct.pack("<f", x))[0]
QSCALE = fbits(28 ** -0.5 * math.log2(math.e))

X_, WQ, WO, Q_, K_, V_, SK, HK, OUT, WS = 4, 8, 12, 16, 20, 24, 28, 32, 36, 40
sDP, sNON, sW = 44, 46, 47
sJ, sTT, sRT, sCG, sC, sH, sQT, sG = 48, 49, 50, 51, 52, 53, 54, 55
sED, sT0, sT1, sT2, sT3, sT4, sT5, sT6, sT7 = 56, 57, 58, 59, 60, 61, 62, 63, 64
sI, sSO, sSO2, sLW, sLX, sTRY, sSP, sCB = 65, 66, 67, 68, 69, 70, 71, 72
sDV, sM1, sM2 = 73, 74, 76
sKVB, sWM = 78, 79
sFL, sE0, sE1, sE2, sKP, sZO, sOO, sKL, sUO, sQO, sUT, sKS = 20, 21, 22, 23, 24, 26, 27, 28, 29, 30, 31, 3
sFA, sUS = 29, 30
sQS = 34
sST = 80
def srd(b): return s(b, 4)

a = Asm()
def stamp(k, st=None):
    if not DIAG: return
    if st is None and k >= 9: st = 0
    if st is not None and st != OPT.get("set", 0): return
    a(f"{'s_memtime' if OPT.get('cyc') else 's_memrealtime'} s[96:97]\ns_waitcnt lgkmcnt(0)\ns_mov_b32 s{sST+k}, s96")

npoll = [0]
def poll(vaddr, vtmp):
    n = npoll[0]; npoll[0] += 1
    a(f"""
s_mov_b32 s{sSP}, {SPIN}
L_poll{n}:
buffer_load_dword v{vtmp}, v{vaddr}, {srd(WS)}, 0 offen sc1
s_waitcnt vmcnt(0)
v_cmp_ne_u32 vcc, s{sNON}, v{vtmp}
s_cbranch_vccz L_pollok{n}
s_sub_u32 s{sSP}, s{sSP}, 1
s_cbranch_scc0 L_poll{n}
L_pollok{n}:
""")
vNON = 15
def signal(soff):
    a(f"s_mov_b64 exec, 1\nbuffer_store_dword v{vNON}, v1, {srd(WS)}, {soff} offen sc1\ns_mov_b64 exec, -1")

def mfma32(d, A, B, C): return f"v_mfma_f32_32x32x16_bf16 {v(d,16)}, {v(A,4)}, {v(B,4)}, {C if isinstance(C,str) else v(C,16)}"
def mfma16(d, A, B, C): return f"v_mfma_f32_16x16x32_bf16 {v(d,4)}, {v(A,4)}, {v(B,4)}, {C if isinstance(C,str) else v(C,4)}"

class LQ:
    def __init__(self): self.q = []
    def __call__(self, txt):
        for t in txt.strip("\n").split("\n"):
            i = Ins(t)
            if not i.mn: a(t); continue
            last = max([k for k, w in enumerate(self.q) if w & (i.rd | (i.wr if not i.ds else set()))], default=-1)
            if last >= 0:
                n = min(15, len(self.q) - 1 - last)
                a(f"s_waitcnt lgkmcnt({n})"); self.q = self.q[len(self.q) - n:]
            a(t)
            if i.ds: self.q.append(vset(i.wr))
    def drain(self, n=0):
        if len(self.q) > n:
            a(f"s_waitcnt lgkmcnt({n})"); self.q = self.q[len(self.q) - n:]

vXD, vWD, vXR, vWR, vXB = 2, 6, 9, 13, 14
ACC, RS = 16, 64
vCA, vCB, vCW, vCR, vCU, vZ, vD = 192, 193, 194, 195, 196, 197, 198
vB0, vB1, vQA, vWOA, vMG, vBW, vBR = 199, 200, 201, 202, 203, 204, 205
vPA, vUD, vPB, vZL, vGO, vGA = 206, 207, 208, 209, 210, 211
vHO, vCP = 10, 129
KR, VR, SR, KF, WF, UA, VF, UP = 140, 152, 160, 164, 212, 220, 64, 236
H0, QR = 112, 240
def srdc(lst): return "\n".join(f"s_mov_b32 s{b+2}, {n}\ns_mov_b32 s{b+3}, 0x20000" for b, n in lst)
def karg(lst): return "\n".join(f"s_load_dwordx2 s[{b}:{b+1}], s[0:1], {o}" for b, o in lst)
a.label(NAME + "_kernel")
if DIAG: a(f"{'s_memtime' if OPT.get('cyc') else 's_memrealtime'} s[98:99]")
a(f"""
s_cmp_ge_u32 s2, 256
s_cbranch_scc1 L_end
{karg(((K_, 32), (X_, 0), (V_, 40), (SK, 48), (WQ, 8), (WS, 88), (sDP, 64)))}
s_getpc_b64 s[{sT5}:{sT6}]
L_pc:
v_mul_u32_u24 v2, @@PFS@@, v0
s_sub_u32 s{sT5}, s{sT5}, L_pc-{NAME}_kernel
s_subb_u32 s{sT6}, s{sT6}, 0
v_mov_b32 v3, s{sT6}
v_add_co_u32 v2, vcc, s{sT5}, v2
v_lshrrev_b32 v1, 6, v0
v_and_b32 v0, 63, v0
v_addc_co_u32 v3, vcc, 0, v3, vcc
v_readfirstlane_b32 s{sW}, v1
global_load_dword v255, v[2:3], off
v_lshrrev_b32 v130, 4, v0
s_and_b32 s{sG}, s{sW}, 3
s_cmp_ge_u32 s{sW}, 4
s_cbranch_scc1 L_loader
""")
IDS_U = f"""
s_and_b32 s{sT2}, s2, 7
s_lshr_b32 s{sT3}, s2, 5
s_lshl3_add_u32 s{sRT}, s{sT2}, s{sT3}
s_bfe_u32 s{sCG}, s2, 0x20003
v_and_b32 v{vCP}, 15, v0
v_min_u32 v{vCP}, 13, v{vCP}
s_lshl2_add_u32 s{sT0}, s{sCG}, s{sG}
s_mul_i32 s{sT1}, s{sT0}, 56
s_mul_i32 s{sT2}, s{sRT}, {32*896}
s_add_u32 s{sT2}, s{sT2}, s{sT1}
v_mul_u32_u24 v{vGO}, {8*896}, v130
v_lshl_add_u32 v132, v{vCP}, 2, v{vGO}
v_add_u32 v{vGA}, s{sT2}, v132
"""
IDS_G = f"""
s_and_b32 s{sT2}, s2, 1
s_bfe_u32 s{sT3}, s2, 0x30003
s_lshl3_add_u32 s{sJ}, s{sT2}, s{sT3}
s_bfe_u32 s{sT2}, s2, 0x20001
s_lshr_b32 s{sT3}, s2, 6
s_lshl2_add_u32 s{sT2}, s{sT2}, s{sT3}
s_lshl2_add_u32 s{sTT}, s{sT2}, s{sG}
s_and_b32 s{sT2}, s{sG}, 1
s_lshr_b32 s{sT3}, s{sG}, 1
s_lshl2_add_u32 s{sT2}, s{sT3}, s{sT2}
s_add_u32 s{sT2}, s{sT2}, 4
s_lshl_b32 s{sLX}, s{sT2}, 14
"""
COMMON = f"""
v_lshlrev_b32 v1, 4, v0
s_sub_u32 s{sT2}, s2, 32
s_cmp_lt_u32 s2, 224 | s_cselect_b32 s{sC}, s2, s{sT2}
s_load_dword s{sED}, s[{WS}:{WS+1}], 0
s_lshl_b32 s{sT0}, s{sC}, 2
s_load_dword s{sDV}, s[{sDP}:{sDP+1}], s{sT0}
{karg(((HK, 56), (WO, 16), (Q_, 24), (OUT, 72)))}
{srdc(((WO, 401408), (Q_, 1835008), (OUT, 3670016), (WS, WSEND)))}
v_add_u32 v{vGO}, v{vGO}, v{vGA}
v_lshlrev_b32 v133, 7, v{vCP}
v_lshl_add_u32 v{vZL}, v130, 4, v133
s_lshl2_add_u32 s{sT4}, s{sCG}, s{sG}
s_mul_i32 s{sT1}, s{sT4}, 1792
s_mul_i32 s{sT3}, s{sRT}, 28672
s_add_u32 s{sUT}, s{sT1}, s{sT3}
s_add_u32 s{sUT}, s{sUT}, {ZZ}
s_and_b32 s{sT2}, s2, 7
s_lshr_b32 s{sT3}, s2, 7
s_lshl1_add_u32 s{sH}, s{sT2}, s{sT3}
s_bfe_u32 s{sQT}, s2, 0x40003
s_mov_b32 s{sTRY}, 0
s_lshr_b32 s{sT7}, s{sW}, 2
s_mul_i32 s{sCB}, s{sT7}, {LP}
v_and_b32 v132, 3, v0
v_sub_u32 v133, 3, v132
v_mul_u32_u24 v133, {HP}, v133
v_and_b32 v134, 12, v0
v_lshl_add_u32 v133, v134, 1, v133
v_and_b32 v134, 0x30, v0
v_sub_u32 v133, v133, v134
s_lshl_b32 s{sT0}, s{sG}, 7
s_add_u32 s{sT1}, s{sT0}, s{sCB}
s_add_u32 s{sT1}, s{sT1}, 56
v_add_u32 v{vCA}, s{sT1}, v133
v_and_b32 v139, 15, v0
v_lshl_add_u32 v133, v139, 5, v134
s_sub_u32 s{sT1}, s{sCB}, s{sT0}
s_add_u32 s{sT1}, s{sT1}, {UOFF+512-96}
v_add_u32 v{vCB}, s{sT1}, v133
v_lshrrev_b32 v131, 5, v0
v_lshlrev_b32 v133, 7, v131
v_xor_b32 v133, v133, v1
s_lshl_b32 s{sT0}, s{sG}, 13
s_add_u32 s{sT0}, s{sT0}, s{sCB}
v_add_u32 v{vCW}, s{sT0}, v133
v_bfe_u32 v135, v0, 2, 1
v_mul_u32_u24 v136, {LP}, v135
v_lshrrev_b32 v137, 3, v0
v_lshl_add_u32 v138, v137, 2, v132
v_lshrrev_b32 v133, 1, v138
v_and_b32 v134, 1, v0
v_mul_u32_u24 v134, 40, v134
v_xor_b32 v133, v133, v134
v_lshl_add_u32 v133, v133, 4, v136
s_lshl_b32 s{sT0}, s{sW}, 10
v_add_u32 v{vCR}, s{sT0}, v133
v_lshl_add_u32 v133, v138, 4, v136
s_lshl_b32 s{sT0}, s{sW}, 9
s_add_u32 s{sT0}, s{sT0}, {UOFF+512}
v_add_u32 v{vCU}, s{sT0}, v133
v_mul_u32_u24 v133, 28672, v137
v_and_b32 v134, 7, v0
v_lshl_add_u32 v{vZ}, v134, 4, v133
v_lshlrev_b32 v134, 2, v134
v_add_u32 v{vBR}, {BADF}, v134
s_mul_i32 s{sT0}, s{sW}, {8*28672}
s_lshl_b32 s{sT1}, s{sC}, 7
s_add_u32 s{sT0}, s{sT0}, s{sT1}
s_add_u32 s{sZO}, s{sT0}, {ZZ}
s_lshl_b32 s{sKVB}, s{sH}, 18
s_add_u32 s{sKVB}, s{sKVB}, {KV}
s_lshl_b32 s{sKL}, s{sW}, 12
s_add_u32 s{sKS}, s{sKVB}, s{sKL}
s_min_u32 s{sT0}, s{sW}, 6
s_lshl_b32 s{sWM}, s{sT0}, 10
s_lshl_b32 s{sT1}, s{sT0}, 6
v_add_u32 v133, s{sT1}, v0
v_mul_u32_u24 v134, 4682, v133
v_lshrrev_b32 v134, 16, v134
v_mul_u32_u24 v136, 14, v134
v_sub_u32 v133, v133, v136
v_mul_u32_u24 v134, 896, v134
v_lshl_add_u32 v133, v133, 4, v134
s_mul_i32 s{sT1}, s{sCG}, 224
v_add_u32 v{vWOA}, s{sT1}, v133
s_lshl_b32 s{sT0}, s{sT7}, 14
s_add_u32 s{sT0}, s{sT0}, {LA}
v_add_u32 v{vB0}, s{sT0}, v1
v_add_u32 v{vB1}, 0x10000, v{vB0}
s_lshl_b32 s{sT0}, s{sG}, 11
s_add_u32 s{sT0}, s{sT0}, {LR}
v_add_u32 v{vQA}, s{sT0}, v1
s_lshl_b32 s{sT0}, s{sG}, 12
s_add_u32 s{sT0}, s{sT0}, {MERGE}
v_add_u32 v{vMG}, s{sT0}, v1
s_lshl_b32 s{sT1}, s{sW}, 2
s_add_u32 s{sT1}, s{sT1}, {BADF}
v_mov_b32 v{vBW}, s{sT1}
s_lshl_b32 s{sT3}, s{sQT}, 2
s_add_u32 s{sT3}, s{sT3}, s{sG}
s_lshl_b32 s{sT0}, s{sT3}, 4
s_add_u32 s{sT0}, s{sT0}, s{sH}
s_lshl_b32 s{sT0}, s{sT0}, 1
s_add_u32 s{sT0}, s{sT0}, s{sT7}
s_lshl_b32 s{sT0}, s{sT0}, 10
s_add_u32 s{sOO}, s{sT0}, {OF}
v_cmp_eq_u32 vcc, 0, v135
s_waitcnt lgkmcnt(0)
s_mul_i32 s{sNON}, s{sED}, 1664525
s_add_u32 s{sNON}, s{sNON}, 1013904223
s_lshl_b32 s{sT0}, s{sDV}, 16
s_and_b32 s{sT1}, s{sDV}, 0xffff0000
v_mov_b32 v133, s{sT0}
v_mov_b32 v134, s{sT1}
v_cndmask_b32 v{vD}, v134, v133, vcc
v_mov_b32 v{vNON}, s{sNON}
"""
def flagpos(dst, tt, j):
    return f"""
s_bfe_u32 s{sT0}, s{tt}, 0x20001
s_lshl_b32 s{sT0}, s{sT0}, 4
s_lshr_b32 s{sT1}, s{tt}, 3
s_lshl_b32 s{sT1}, s{sT1}, 1
s_and_b32 s{sT2}, s{tt}, 1
s_add_u32 s{sT0}, s{sT0}, s{sT1}
s_add_u32 s{sT0}, s{sT0}, s{sT2}
s_lshl_b32 s{sT1}, s{j}, 6
s_add_u32 s{sT0}, s{sT0}, s{sT1}
s_lshl_b32 s{sT0}, s{sT0}, 2
s_add_u32 s{dst}, s{sT0}, {FB}
"""


a("s_setprio 3\n" + IDS_U + srdc(((K_, 1835008), (V_, 1835008), (SK, 3584))) + f"""
v_subrev_u32 v135, 2688, v{vGA}
s_lshl_b32 s{sT1}, s{sT1}, 2
v_lshl_add_u32 v137, v{vCP}, 4, s{sT1}
s_movk_i32 s{sT5}, 3584
s_waitcnt lgkmcnt(0)
""")
stamp(0)
a(f"buffer_load_dwordx4 {v(SR,4)}, v137, {srd(SK)}, 0 offen")
for i in range(3): a(f"buffer_load_dword v{KR+i}, v135, {srd(K_)}, 0 offen offset:{896*i}")
for i in range(8): a(f"buffer_load_dword v{KR+3+i}, v{vGA}, {srd(K_)}, {'0' if i<4 else s(sT5)} offen offset:{896*(i&3)}")
for i in range(8): a(f"buffer_load_dword v{VR+i}, v{vGA}, {srd(V_)}, {'0' if i<4 else s(sT5)} offen offset:{896*(i&3)}")
a("s_setprio 0\n" + IDS_G + COMMON.replace(" | ", "\n") + f"""
s_sub_u32 s{sUS}, s{sUT}, {ZZ-UU}
s_lshl_b32 s{sT4}, s{sT4}, 8
s_lshl2_add_u32 s{sT4}, s{sRT}, s{sT4}
s_add_u32 s{sFA}, s{sT4}, {FA}
s_lshl_b32 s{sT4}, s{sG}, 11
s_add_u32 s{sT4}, s{sT4}, {LP+24576}
v_add_u32 v136, s{sT4}, v{vZL}
v_add_u32 v137, s{sT4}, v1
s_and_b32 s{sT6}, s{sJ}, 1
s_lshl_b32 s{sT6}, s{sT6}, 3
""")
a.c("---- QKV projection: 32 tokens x 3 head blocks per wave")
a(f"""
v_and_b32 v128, 31, v0
v_bfe_u32 v129, v0, 1, 3
v_xor_b32 v129, v129, v131
v_lshlrev_b32 v128, 7, v128
v_lshl_add_u32 v128, v129, 4, v128
v_add_u32 v{vXB}, s{sLX}, v128
v_bfe_u32 v128, v0, 2, 2
v_lshl_add_u32 v128, v131, 3, v128
v_mul_u32_u24 v128, 192, v128
v_and_b32 v129, 1, v130
v_lshl_add_u32 v128, v129, 5, v128
v_lshl_add_u32 v128, v132, 3, v128
s_add_u32 s{sT6}, s{sT6}, {LP}
v_add_u32 v{vWR}, s{sT6}, v128
v_mov_b32 v{vXR}, v{vXB}
v_mov_b32 v{vPB}, 0
v_xor_b32 v{vXR+1}, 32, v{vXB}
v_xor_b32 v{vXR+2}, 64, v{vXB}
v_xor_b32 v{vXR+3}, 0x60, v{vXB}
""")
a(flagpos(sFL, sTT, sJ))
a(f"s_mul_i32 s{sT7}, s{sJ}, 3")
for b in range(3):
    a(f"""
s_add_u32 s{sT3}, s{sT7}, {b}
s_and_b32 s{sT0}, s{sT3}, 15
s_lshl_b32 s{sT0}, s{sT0}, 6
s_add_u32 s{sT0}, s{sT0}, s{sTT}
s_cmp_lt_u32 s{sT3}, 16
s_cselect_b32 s{sT1}, 11, 12
s_mov_b32 s{sT2}, {KV}
s_cselect_b32 s{sT2}, {QF}, s{sT2}
s_lshl_b32 s{sT0}, s{sT0}, s{sT1}
s_add_u32 s{sE0+b}, s{sT0}, s{sT2}
""")
a(f"""
s_mov_b32 s{sKP}, {ONES}
s_movk_i32 s{sKP+1}, 0x3f80
s_mov_b32 s{sQS}, {QSCALE:#x}
s_mov_b32 s{sQS+1}, {QSCALE:#x}
s_mov_b32 s{sM1}, 0xf0000000
s_mov_b32 s{sM1+1}, 0xf0000000
s_mov_b32 s{sM2}, {ONES}
s_mov_b32 s{sM2+1}, {ONES}
""")
for r in list(range(ACC, ACC + 48, 2)) + list(range(RS + 16, RS + 64, 2)): a(f"v_mov_b64 {v(r,2)}, 0")
a(f"s_mov_b32 s{sI}, 0\ns_setprio 2\ns_waitcnt vmcnt(8)")
stamp(2)
for j in range(4):
    for p in range(2):
        src = SR + 2 * p + (j >> 1)
        a(f"v_lshlrev_b32 v{WF+2*j+p}, 16, v{src}" if j % 2 == 0 else f"v_and_b32 v{WF+2*j+p}, 0xffff0000, v{src}")
for i in range(11): a(f"v_lshlrev_b32 v{KF+2*i}, 16, v{KR+i}\nv_and_b32 v{KF+2*i+1}, 0xffff0000, v{KR+i}")
for t in range(8): a(f"v_pk_mul_f32 {v(UA+2*t,2)}, {v(KF+2*t,2)}, {v(WF+6,2)}")
for j in (2, 1, 0):
    for t in range(8): a(f"v_pk_fma_f32 {v(UA+2*t,2)}, {v(KF+2*(t+3-j),2)}, {v(WF+2*j,2)}, {v(UA+2*t,2)}")
a("s_waitcnt vmcnt(0)")
for i in range(8): a(f"v_lshlrev_b32 v{VF+2*i}, 16, v{VR+i}\nv_and_b32 v{VF+2*i+1}, 0xffff0000, v{VR+i}")
for t in range(8): a(f"v_pk_mul_f32 {v(UA+2*t,2)}, {v(UA+2*t,2)}, {v(VF+2*t,2)}")
for p in range(2):
    for m in range(4): a(f"v_cvt_pk_bf16_f32 v{UP+4*p+m}, v{UA+2*(7-2*m)+p}, v{UA+2*(6-2*m)+p}")
    a(f"ds_write_b128 v136, {v(UP+4*p,4)} offset:{64*p}")
a(f"""
s_waitcnt lgkmcnt(0)
ds_read_b128 {v(UP,4)}, v137
ds_read_b128 {v(UP+4,4)}, v137 offset:1024
s_waitcnt lgkmcnt(1)
buffer_store_dwordx4 {v(UP,4)}, v1, {srd(WS)}, s{sUS} offen sc1
s_mov_b32 exec_hi, 0xffff
s_waitcnt lgkmcnt(0)
buffer_store_dwordx4 {v(UP+4,4)}, v1, {srd(WS)}, s{sUS} offen offset:1024 sc1
s_mov_b32 exec_hi, -1
""")
stamp(3)
a(f"""
s_cmp_eq_u32 s{sJ}, 10
s_cbranch_scc1 L_gemm1
s_cmp_gt_u32 s{sJ}, 10
s_cbranch_scc1 L_gemm2
""")
def g_reads(ks):
    r = RS + 16 * ks
    out = [f"ds_read_b128 {v(r,4)}, v{vXR+ks}"]
    for b in range(3):
        for t in range(2):
            out.append(f"ds_read_b64_tr_b16 {v(r+4+4*b+2*t,2)}, v{vWR} offset:{(16*ks+4*t)*192+56*b}")
    return out
def g_mfma(ks, isv):
    r = RS + 16 * ks
    return [mfma32(ACC+16*b, r, r+4+4*b, ACC+16*b) if isv[b] else mfma32(ACC+16*b, r+4+4*b, r, ACC+16*b) for b in range(3)]
for var, isv in enumerate(((0,0,0), (0,0,1), (1,1,1))):
    m = [g_mfma(k, isv) for k in range(4)]
    rd = g_reads(0) + g_reads(1) + g_reads(2) + g_reads(3)
    a(f"L_gemm{var}:\n{m[1][2]}\ns_barrier")
    seq = m[2] + m[3] + m[0] + m[1][:1]
    for k, x in enumerate(seq):
        if k == 6: a("s_waitcnt lgkmcnt(11)")
        if k == 9: a("s_waitcnt lgkmcnt(13)")
        a("\n".join([x] + rd[3*k:3*k+3]))
    a(f"""
s_cmp_eq_u32 s{sI}, 1
s_movk_i32 s{sT1}, 12288
s_cselect_b32 s{sT1}, {(-LP-12288) & 0xffffffff}, s{sT1}
s_add_u32 s{sI}, s{sI}, 1
s_and_b32 s{sT0}, s{sI}, 3
s_lshl_b32 s{sT0}, s{sT0}, 12
{m[1][1]}
v_add_u32 v{vWR}, s{sT1}, v{vWR}
v_xor_b32 v{vXR}, s{sT0}, v{vXB}
v_xor_b32 v{vXR+1}, 32, v{vXR}
v_xor_b32 v{vXR+2}, 64, v{vXR}
v_xor_b32 v{vXR+3}, 0x60, v{vXR}
s_cmp_eq_u32 s{sI}, {OPT.get("fa", 2)}
s_cbranch_scc1 L_siga{var}
s_cmp_lt_u32 s{sI}, 7
s_waitcnt lgkmcnt(0)
s_cbranch_scc1 L_gemm{var}
""")
    a("\n".join([m[2][0], m[1][2], m[3][0], m[2][1], m[2][2], m[3][1], m[3][2]]))
    stamp(1)
    a.c("epilogue: scale Q, pack to bf16 fragments, patch the pad slots, publish")
    for b in range(3):
        pk = 128 + 8 * b
        padp = sKP
        if var == 0:
            padp = sM1
            a(f"s_cmp_lt_u32 s{sT7}, {16-b}\ns_cselect_b64 {s(sM1,2)}, 0, {s(sKP,2)}\ns_cbranch_scc0 L_nosc{b}")
            for r in range(0, 16, 2): a(f"v_pk_mul_f32 {v(ACC+16*b+r,2)}, {v(ACC+16*b+r,2)}, {s(sQS,2)}")
            a.label(f"L_nosc{b}")
        for r in range(8): a(f"v_cvt_pk_bf16_f32 v{pk+r}, v{ACC+16*b+2*r}, v{ACC+16*b+2*r+1}")
        if isv[b]:
            a(f"s_mov_b64 exec, {s(sM1,2)}")
            for r in range(0, 8, 2): a(f"v_mov_b64 {v(pk+r,2)}, {s(sM2,2)}")
        else: a(f"s_mov_b32 exec_lo, 0\nv_mov_b64 {v(pk+6,2)}, {s(padp,2)}")
        o = 2048 * isv[b]
        a(f"""
s_mov_b64 exec, -1
buffer_store_dwordx4 {v(pk,4)}, v1, {srd(WS)}, s{sE0+b} offen offset:{o} sc1
buffer_store_dwordx4 {v(pk+4,4)}, v1, {srd(WS)}, s{sE0+b} offen offset:{o+1024} sc1
""")
    a(f"s_setprio 0\ns_branch L_conv\nL_siga{var}:\ns_waitcnt vmcnt(0)")
    signal(f"s{sFA}")
    a(f"s_waitcnt lgkmcnt(0)\ns_branch L_gemm{var}")

a.label("L_loader")
a(IDS_G + srdc(((X_, 1835008), (WQ, 1204224))) + f"""
v_lshrrev_b32 v128, 3, v0
s_lshl_b32 s{sT0}, s{sTT}, 5
v_add_u32 v128, s{sT0}, v128
v_mul_u32_u24 v128, 896, v128
v_and_b32 v129, 7, v0
v_xor_b32 v129, v129, v130
v_lshl_add_u32 v{vXD}, v129, 4, v128
v_xor_b32 v129, 4, v129
v_lshl_add_u32 v{vXD+1}, v129, 4, v128
v_add_u32 v{vXD+1}, {7168-1024}, v{vXD+1}
v_add_u32 v{vXD+2}, {14336-2048}, v{vXD}
v_add_u32 v{vXD+3}, {14336-2048}, v{vXD+1}
""")
if OPT.get("rt"): a(f"""
s_lshr_b32 s{sT3}, s2, 6
s_mul_i32 s{sT3}, s{sT3}, {OPT.get("rc", 1)}
s_add_u32 s{sT3}, s{sT3}, s{sJ}
s_and_b32 s{sT3}, s{sT3}, 7
s_lshl_b32 s{sT3}, s{sT3}, 2
s_lshr_b32 s{sI}, {int(str(OPT["rt"]), 16):#x}, s{sT3}
s_and_b32 s{sI}, s{sI}, 7
""")
a("s_waitcnt lgkmcnt(0)")
stamp(0)
def wbase(st): return LP + 12288 * st if st < 2 else 12288 * (st - 2)
RT = OPT.get("rt", 0)
def rot(dst, st, mul):
    if not RT: return f"s_mov_b32 s{dst}, {st*mul}\n"
    return f"s_add_u32 s{dst}, s{sI}, {st}\ns_cmp_ge_u32 s{dst}, 7\ns_cselect_b32 s{sSP}, 7, 0\ns_sub_u32 s{dst}, s{dst}, s{sSP}\ns_mul_i32 s{dst}, s{dst}, {mul}\n"
def dma_x(st):
    p = [f"buffer_load_dwordx4 v{vXD+i}, {srd(X_)}, s{sSO} offen offset:{1024*i} lds" for i in range(4)]
    p[0] = f"s_add_u32 m0, s{sLX}, {4096*(st&3)}\n" + rot(sSO, st, 128) + p[0]
    return p
def dma_w(st):
    p = [f"buffer_load_dwordx4 v{vWD+q}, {srd(WQ)}, s{sSO2} offen offset:{1024*q} lds" for q in range(3)]
    p[0] = f"s_add_u32 m0, s{sLW}, {wbase(st)}\n" + rot(sSO2, st, 64*2688) + p[0]
    return p
def sprinkle(pieces, text):
    L = [x.replace(" | ", "\n") for x in text.strip().split("\n") if x.strip()]
    n = len(pieces)
    for k, p in enumerate(pieces):
        a(p)
        for x in L[len(L) * k // n: len(L) * (k + 1) // n]: a(x)
WADDR = f"""
s_mul_i32 s{sT0}, s{sJ}, 168
s_and_b32 s{sT0}, s{sT0}, -16
s_mul_i32 s{sT2}, s{sG}, {16*2688}
s_add_u32 s{sT0}, s{sT0}, s{sT2}
s_mul_i32 s{sLW}, s{sG}, 3072
"""
for q in range(3):
    WADDR += f"""
v_add_u32 v128, {64*q}, v0
v_mul_u32_u24 v129, 43691, v128
v_lshrrev_b32 v129, 19, v129
v_mul_u32_u24 v131, 12, v129
v_sub_u32 v128, v128, v131
v_min_u32 v128, 10, v128
v_mul_u32_u24 v129, 2688, v129
v_lshl_add_u32 v128, v128, 4, v129
v_add_u32 v{vWD+q}, s{sT0}, v128
""" + (f"s_sub_u32 s{sT0}, s{sT0}, 1024" if q < 2 else "")
HELP = f"""
s_lshl_b32 s{sT4}, s{sH}, 6
s_add_u32 s{sT4}, s{sT4}, s{sT3}
s_lshl_b32 s{sT4}, s{sT4}, 11
s_add_u32 s{sQO}, s{sT4}, {QF}
s_mul_i32 s{sT4}, s{sH}, 21846
s_lshr_b32 s{sT4}, s{sT4}, 16
{flagpos(sT5, sT3, sT4)}
s_add_u32 s{sT0}, s{sH}, 16
s_mul_i32 s{sT0}, s{sT0}, 21846
s_lshr_b32 s{sT0}, s{sT0}, 16
s_add_u32 s{sT1}, s{sH}, 32
s_mul_i32 s{sT1}, s{sT1}, 21846
s_lshr_b32 s{sT1}, s{sT1}, 16
s_sub_u32 s{sT1}, s{sT1}, s{sT0}
s_lshl_b32 s{sT1}, s{sT1}, 8
s_lshl_b32 s{sT0}, s{sT0}, 8
s_lshl_b32 s{sT2}, s{sG}, 6
s_add_u32 s{sT0}, s{sT0}, s{sT2}
s_add_u32 s{sT0}, s{sT0}, {FB}
v_lshl_add_u32 v133, v139, 2, s{sT0}
v_and_b32 v134, 1, v130
v_mad_u32_u24 v{vPB}, v134, s{sT1}, v133
s_mov_b32 exec_lo, 0 | v_mov_b32 v{vPB}, s{sT5} | s_mov_b32 exec_lo, -1
s_mul_i32 s{sT0}, s{sC}, 4682
s_lshr_b32 s{sT0}, s{sT0}, 16
s_lshl_b32 s{sT0}, s{sT0}, 8
s_add_u32 s{sT0}, s{sT0}, s{sT2}
s_add_u32 s{sT0}, s{sT0}, {FA}
v_lshl_add_u32 v{vPA}, v139, 2, s{sT0}
v_lshrrev_b32 v133, 2, v0
v_mul_u32_u24 v133, 28672, v133
v_lshl_add_u32 v{vUD}, v132, 4, v133
s_mul_i32 s{sT0}, s{sG}, {16*28672}
s_lshl_b32 s{sT1}, s{sC}, 7
s_add_u32 s{sT0}, s{sT0}, s{sT1}
s_add_u32 s{sUO}, s{sT0}, {UU}
v_bfe_u32 v138, v0, 1, 2
v_mul_u32_u24 v138, {HP}, v138
v_and_b32 v139, 1, v0
v_lshl_add_u32 v138, v139, 4, v138
v_add_u32 v139, {UOFF}, v1
v_cmp_gt_u32 vcc, 32, v0
v_mov_b64 v[140:141], 0
v_mov_b64 v[142:143], 0
v_cndmask_b32 v138, v138, v139, vcc
v_add_u32 v139, {LP}, v138
{srdc(((HK, 1835008),))}
s_lshl_b32 s{sT3}, s{sC}, 13
s_lshl_b32 s{sT4}, s{sG}, 10
s_add_u32 s{sT3}, s{sT3}, s{sT4}
v_add_u32 v11, s{sT3}, v1
v_add_u32 v{vHO}, s{sT4}, v1
v_subrev_u32 v12, 8, v11
v_cmp_eq_u32 vcc, 0, v{vHO}
v_mov_b32 v136, 0xffffe000
s_movk_i32 s{sT7}, 4096
v_cndmask_b32 v12, v12, v136, vcc
"""
def hprep(p):
    R = H0 + 8 * p; T = 40 + 12 * p
    a(f"v_add_u32 v{134+p}, {(LP if p else LX)+32}, v{vHO}")
    for i in range(4): a(f"v_alignbit_b32 v{T+i}, v{R+2+i}, v{R+1+i}, 16")
    for i in range(4): a(f"v_mov_b32 v{T+4+i}, v{R+1+i}")
    for i in range(4): a(f"v_alignbit_b32 v{T+8+i}, v{R+1+i}, v{R+i}, 16")
def hwrite(p):
    R = H0 + 8 * p; T = 40 + 12 * p
    a(f"ds_write_b128 v{134+p}, {v(R+2,4)}")
    for c in range(1, 4): a(f"ds_write_b128 v{134+p}, {v(T+4*(c-1),4)} offset:{HP*c}")
    a.c("zero pads: lanes 0-31 the u pad, lanes 32-39 the h pads")
    a(f"ds_write_b128 v{138+p}, {v(140,4)}")
def u_dma():
    a(f"""
s_lshl_b32 s{sT2}, s{sG}, 10
s_add_u32 m0, s{sT2}, {LX+UOFF+512}
s_add_u32 s{sT1}, s{sUO}, 64
buffer_load_dwordx4 v{vUD}, {srd(WS)}, s{sUO} offen sc1 lds
s_add_u32 m0, s{sT2}, {LP+UOFF+512}
s_nop 0
buffer_load_dwordx4 v{vUD}, {srd(WS)}, s{sT1} offen sc1 lds
""")

sprinkle(dma_x(0), WADDR)
sprinkle(dma_w(0) + dma_x(1) + dma_w(1) + dma_x(2) + dma_w(2), IDS_U + COMMON + HELP)
stamp(1)
HL = [f"buffer_load_dwordx{2+2*k} {v(H0+8*p+2*k,2+2*k)}, v{12-k}, {srd(HK)}, {s(sT7) if p else 0} offen" for p in range(2) for k in range(2)]
rest = [(st, p) for st in range(3, 7) for p in dma_w(st) + dma_x(st)]
HPOS = OPT.get("hpos", 14)
rest[HPOS:HPOS] = [(9, x) for x in HL]
issued = [0] * 7 + [1] * 7 + [2] * 7
CUTS = [7, 6, 7, 6, 6, 0]
for n in range(6):
    young = len(issued) - 1 - max(k for k, st in enumerate(issued) if st == n or (n == 5 and st == 8))
    assert issued.count(n) == 7
    a(f"s_waitcnt vmcnt({young})")
    a("s_barrier")
    stamp(9 + n, 2)
    if n == 4: a(f"buffer_load_dword v144, v{vPA}, {srd(WS)}, 0 offen sc1"); issued.append(8)
    for st, p in rest[:CUTS[n]]:
        assert st == 9 or "s[8:11]" in p or st - 4 < n
        a(p); issued.append(st)
    rest = rest[CUTS[n]:]
assert not rest
a(f"v_cmp_ne_u32 vcc, s{sNON}, v144\ns_cbranch_vccnz L_ulate")
u_dma()
hprep(1); hwrite(1)
a("s_waitcnt vmcnt(2)\ns_barrier\ns_branch L_uok\nL_ulate:\ns_waitcnt vmcnt(0)\ns_barrier")
poll(vPA, 144)
u_dma()
hprep(1); hwrite(1)
a("L_uok:")
stamp(4)
hprep(0); hwrite(0)
a("s_setprio 1\ns_waitcnt vmcnt(0) lgkmcnt(0)")

a.label("L_conv")
CAC, CU, FA_, FB_ = 16, 48, 64, 128
a.c("---- long causal conv as block-Toeplitz MFMA: channel = wave>>2, lag phases split over wave&3")
a("s_barrier")
stamp(5)
def c_readA(i, r): return [f"ds_read_b64 {v(FA_+32*i+4*r+2*t,2)}, v{vCA} offset:{512*r+64*i+8*t}" for t in range(2)]
def c_readB(i, x): return [f"ds_read_b128 {v(FB_+32*i+4*x,4)}, v{vCB} offset:{512*x+64*(1-i)}"]
def c_m(i, nt, r, first=False): return mfma16(CAC+4*nt, FA_+32*i+4*r, FB_+32*i+4*(nt-r), "0" if first else CAC+4*nt)
lq = LQ()
rds = [x for i in range(2) for k in range(8) for x in c_readA(i, k) + c_readB(i, k)] + [f"ds_read_b128 {v(CU,4)}, v{vCU}"]
for x in rds[:15]: lq(x)
rds = rds[15:]
a(f"""
s_cmp_ge_u32 s{sW}, 4
s_cbranch_scc1 L_cm
s_waitcnt vmcnt(0)
""")
signal(f"s{sFL}")
stamp(4)
a.label("L_cm")
seen = set(); prev = -1
for k in range(8):
    grp = [(r, x) for r in range(k + 1) for x in range(k + 1) if max(r, x) == k and r + x <= 7]
    while grp:
        r, x = next((p for p in grp if p[0] + p[1] != prev), grp[0]); grp.remove((r, x))
        lq(c_m(0, r + x, r, first=(r + x) not in seen)); seen.add(r + x); prev = r + x
        if rds: lq(rds.pop(0))
assert not rds
lq.drain()
a("s_barrier")
pend = []
for n0 in range(0, 8, 2):
    ms = []
    for r in range(n0 + 2):
        ms.append(c_m(1, n0 + 1, r))
        if r <= n0: ms.append(c_m(1, n0, r))
    for m_ in ms:
        a(m_)
        pend = [(w, n + 1) for w, n in pend]
        if pend and pend[0][1] >= 8: a(pend.pop(0)[0])
    for nt in (n0, n0 + 1): pend.append((f"ds_write_b128 v{vCW}, {v(CAC+4*nt,4)} offset:{1024*nt}", 0))
for t in range(8):
    m = (7 - t) // 2
    a(f"v_lshlrev_b32 v{56+t}, 16, v{CU+m}" if t % 2 else f"v_and_b32 v{56+t}, 0xffff0000, v{CU+m}")
for w, n in pend: a(w)
stamp(6)
a(f"""
s_cmp_lt_u32 s{sW}, 4
s_cbranch_scc1 L_cred
""")
poll(vPB, 144)
stamp(7)
a(f"""
s_lshl_b32 s{sT5}, s{sG}, 11
s_add_u32 m0, s{sT5}, {LR}
s_nop 0
buffer_load_dwordx4 v1, {srd(WS)}, s{sQO} offen sc1 lds
buffer_load_dwordx4 v1, {srd(WS)}, s{sQO} offen offset:1024 sc1 lds
""")
def kv_first(stages=(0, 1)):
    a(f"s_lshl_b32 s{sT5}, s{sG}, 13\ns_add_u32 s{sT4}, s{sT5}, s{sKVB}")
    for n in stages:
        for p in range(2):
            o = 32768 * n + 4096 * p
            a(f"s_add_u32 m0, s{sT5}, {LA+o}\ns_add_u32 s{sT3}, s{sT4}, {o}")
            for i in range(4): a(f"buffer_load_dwordx4 v1, {srd(WS)}, s{sT3} offen offset:{1024*i} sc1 lds")
kv_first((0,))
a.label("L_cred")
a("s_waitcnt lgkmcnt(0)\ns_barrier")
for q in range(4):
    for i in range(2): a(f"ds_read_b128 {v(64+8*q+4*i,4)}, v{vCR} offset:{8192*q+256*i}")
a("s_waitcnt lgkmcnt(4)")
for t in range(8): a(f"v_fma_f32 v{56+t}, v{56+t}, v{vD}, v{64+t}")
for t in range(0, 8, 2): a(f"v_pk_add_f32 {v(56+t,2)}, {v(56+t,2)}, {v(72+t,2)}")
a("s_waitcnt lgkmcnt(0)")
for t in range(0, 8, 2): a(f"v_pk_add_f32 {v(80+t,2)}, {v(80+t,2)}, {v(88+t,2)}")
for t in range(0, 8, 2): a(f"v_pk_add_f32 {v(56+t,2)}, {v(56+t,2)}, {v(80+t,2)}")
for m in range(4): a(f"v_cvt_pk_bf16_f32 v{104+m}, v{56+2*m}, v{57+2*m}")
a.c("publish z; mark this workgroup's attention-output slots as not yet written")
a(f"""
v_mov_b64 v[108:109], -1
v_mov_b64 v[110:111], -1
buffer_store_dwordx4 {v(104,4)}, v{vZ}, {srd(WS)}, s{sZO} offen sc1
buffer_store_dwordx4 {v(108,4)}, v1, {srd(WS)}, s{sOO} offen sc1
s_cmp_ge_u32 s{sW}, 4
s_cbranch_scc1 L_cw
""")
a.c("behind that barrier every wave knows the QKV flags matched: waves 0-3 fetch the second key stage")
kv_first((1,))
a("s_branch L_att\nL_cw:\ns_waitcnt vmcnt(2)")

vQ, vK, vV, vP, vSa, vSb, vO, vM, vKC, vZR, vFC = 16, 24, 32, 40, 48, 64, 80, 14, 96, 112, 120
a.c("---- attention: S^T = K Q^T - m (m rides in the pad slots), P = exp2, O^T += V^T P^T (row 28 = sum)")
a(f"""
L_att:
s_cmp_lg_u32 s{sTRY}, 0
s_barrier
""")
stamp(8)
def kvaddr(T, f):
    o = 32768 * ((T >> 2) & 3) + 4096 * (T & 3) + 1024 * f
    return f"v{vB0 if o < 65536 else vB1} offset:{o & 65535}"
def rdK(T, f): return f"ds_read_b128 {v(vK+4*f,4)}, {kvaddr(T, f)}"
def rdV(T, f): return f"ds_read_b128 {v(vV+4*f,4)}, {kvaddr(T, 2+f)}"
def wo_piece(g): return [f"s_add_u32 m0, s{sWM}, {7168*g}", f"s_mov_b32 s{sSO2}, {28672*g}", f"buffer_load_dwordx4 v{vWOA}, {srd(WO)}, s{sSO2} offen lds"]
def pieces(n):
    out = []
    if n < 4: out.append(wo_piece(n))
    if n < 6:
        for i in range(4):
            p = [f"buffer_load_dwordx4 v1, {srd(WS)}, s{sSO} offen offset:{1024*i} sc1 lds"]
            if i == 0: p = [f"s_add_u32 m0, s{sKL}, {LA+32768*((n+2)&3)}", f"s_add_u32 s{sSO}, s{sKS}, {32768*(n+2)}"] + p
            out.append(p)
    elif n < 8: out = [wo_piece(4 + 5 * (n - 6) + i) for i in range(5)]
    return out
def maxtree(S, dst, have):
    a(f"v_max3_f32 v{dst}, v{S}, v{S+1}, v{dst}" if have else f"v_max_f32 v{dst}, v{S}, v{S+1}")
    for i in range(2, 16, 2): a(f"v_max3_f32 v{dst}, v{S+i}, v{S+i+1}, v{dst}")
p0 = pieces(0)
a(f"""
{rdK(0,0)}
{rdK(0,1)}
{rdV(0,0)}
s_cbranch_scc1 L_havem
ds_read_b128 {v(vQ,4)}, v{vQA}
ds_read_b128 {v(vKC,4)}, v1 offset:{LA}
ds_read_b128 {v(vQ+4,4)}, v{vQA} offset:1024
ds_read_b128 {v(vKC+4,4)}, v1 offset:{LA+1024}
s_waitcnt lgkmcnt(2)
{mfma32(vSb, vKC, vQ, "0")}
s_waitcnt lgkmcnt(0)
{mfma32(vSb, vKC+4, vQ+4, vSb)}
L_havem:
s_waitcnt lgkmcnt(0)
{mfma32(vSa, vK, vQ, "0")}
""")
lq = LQ()
lq(rdK(1, 0))
a("\n".join(p0[0] + p0[1]))
a(f"s_cmp_lg_u32 s{sTRY}, 0\ns_cbranch_scc1 L_havem2")
maxtree(vSb, vM, False)
a(f"""
L_havem2:
v_mov_b32 v96, v{vM}
v_permlane32_swap_b32 v96, v{vM}
v_max_f32 v{vM}, v96, v{vM}
v_sub_f32 v96, 0, v{vM}
v_and_b32 v97, 0xffff0000, v96
v_sub_f32 v96, v96, v97
v_and_b32 v98, 0xffff0000, v96
v_sub_f32 v96, v96, v98
s_mov_b32 exec_lo, 0
v_alignbit_b32 v{vQ+6}, v98, v97, 16
v_lshrrev_b32 v{vQ+7}, 16, v96
v_and_b32 v{vQ+6}, 0xffff, v{vQ+6}
v_or_b32 v{vQ+6}, v{vQ+6}, v98
s_mov_b32 exec_lo, -1
{mfma32(vSa, vK+4, vQ+4, vSa)}
""".replace(f"v_alignbit_b32 v{vQ+6}, v98, v97, 16", f"v_lshrrev_b32 v{vQ+6}, 16, v97").replace(f"v_and_b32 v{vQ+6}, 0xffff, v{vQ+6}\n", ""))
lq(rdK(1, 1))
a("\n".join(p0[2]))
stamp(9)
PRIO = {0: 3, 7: 2, 12: 1, 15: 0} if OPT.get("prio", 1) else {}
DSL = (0, 3, 6, 9, 12)
todo = {9: p0[3], 12: p0[4]}
firstO = True
for T in range(32):
    S, Sn = (vSa, vSb) if T % 2 == 0 else (vSb, vSa)
    n = (T + 2) >> 2
    if T & 3 == 2:
        if n < 8: a(f"s_waitcnt vmcnt({len(pieces(n-1))})")
        a("s_barrier")
        pc = pieces(n)
        todo = dict(zip(DSL[5 - len(pc):], pc))
    for k in range(4):
        sl = (4 * T + k + 8) & 15
        if sl in PRIO and n < 8 or (T, k) == (0, 0): a(f"s_setprio {PRIO.get(sl, 2 if PRIO else 0)}")
        if k < 2:
            if T < 31: lq(mfma32(Sn, vK+4*k, vQ+4*k, Sn if k else "0"))
            if T < 30: lq(rdK(T + 2, k))
        elif k == 2:
            if T > 0: lq(mfma32(vO, vV+4, vP+4, vO))
            lq(rdV(T, 1))
        else:
            lq(mfma32(vO, vV, vP, "0" if T == 0 else vO))
            if T < 31: lq(rdV(T + 1, 0))
        ex = [f"v_exp_f32 v{S+r}, v{S+r}" for r in range(4 * k, 4 * k + 4)]
        cv = [f"v_cvt_pk_bf16_f32 v{vP+r}, v{S+2*r}, v{S+2*r+1}" for r in range(2 * k, 2 * k + 2)]
        p = todo.pop(sl, [])
        body = []
        for e in range(4):
            body.append(ex[e])
            if e < len(p): body.append(p[e])
        a("\n".join(body + cv))
        if sl == 1 and n == 2:
            a(f"s_cmp_eq_u32 s{sW}, 7\ns_cbranch_scc1 L_sigc\nL_sigc_r:")
        if sl == 1 and n == 4:
            a(f"s_cmp_ge_u32 s{sW}, 4\ns_cbranch_scc1 L_ldq\nL_ldq_r:")
        if sl == 15 and n == 5:
            a.c("flags of all workgroups' z and slot marks (one word each)")
            a(f"s_movk_i32 s{sT0}, {FC}\nbuffer_load_dwordx4 {v(vFC,4)}, v1, {srd(WS)}, s{sT0} offen sc1")
        if sl == 1 and n == 7:
            a(f"s_cmp_ge_u32 s{sW}, 4\ns_cbranch_scc1 L_chkc\nL_chkc_r:")
lq(mfma32(vO, vV+4, vP+4, vO))
a("s_setprio 0")
stamp(10)
a(f"""
s_mov_b32 s{sT2}, 0x5f800000
v_mov_b64 v[100:101], 0
v_mov_b64 v[102:103], 0
v_add_u32 v99, {448*224}, v1
s_cmp_lt_u32 s{sW}, 4
s_cbranch_scc1 L_mA
ds_write_b128 v99, {v(100,4)}
""")
for i in range(4): a(f"ds_write_b128 v{vMG}, {v(vO+4*i,4)} offset:{1024*i}")
a(f"""
L_mA:
v_cmp_nle_f32 vcc, v{vO+12}, s{sT2}
v_mov_b32 v98, vcc_hi
ds_write_b32 v{vBW}, v98
s_waitcnt vmcnt(0) lgkmcnt(0)
s_barrier
ds_read_b32 v98, v{vBR}
s_cbranch_scc0 L_mB
""")
for i in range(4): a(f"ds_read_b128 {v(vSa+4*i,4)}, v{vMG} offset:{1024*i}")
a(f"""
L_mB:
s_waitcnt lgkmcnt(0)
v_cmp_lt_u32 vcc, s{sTRY}, v98
s_cbranch_vccnz L_fallback
s_cbranch_scc0 L_gate
""")
a(f"""
v_add_f32 v96, v{vO+12}, v{vSa+12}
v_add_f32 v97, v{vO+12}, v{vSa+12}
""")
for r in range(0, 4, 2): a(f"v_pk_add_f32 {v(vO+r,2)}, {v(vO+r,2)}, {v(vSa+r,2)}")
a(f"v_permlane32_swap_b32 v96, v97\nv_rcp_f32 v96, v97")
for r in range(4, 16, 2): a(f"v_pk_add_f32 {v(vO+r,2)}, {v(vO+r,2)}, {v(vSa+r,2)}")
for hf in range(2):
    for r in range(8*hf, 8*hf+8, 2): a(f"v_pk_mul_f32 {v(vO+r,2)}, {v(vO+r,2)}, v[96:97] op_sel_hi:[1,0]")
    for r in range(4*hf, 4*hf+4): a(f"v_cvt_pk_bf16_f32 v{vP+r}, v{vO+2*r}, v{vO+2*r+1}")
    if hf: a(f"s_mov_b32 exec_lo, 0\nv_mov_b64 {v(vP+6,2)}, 0\ns_mov_b32 exec_lo, -1")
    a(f"buffer_store_dwordx4 {v(vP+4*hf,4)}, v1, {srd(WS)}, s{sOO} offen offset:{1024*hf} sc1")
stamp(11)
WFR, OB, OA = 112, 16, 48
a(f"""
v_bfe_u32 v96, v0, 2, 2
v_lshrrev_b32 v97, 5, v0
v_lshl_add_u32 v96, v97, 2, v96
v_mul_u32_u24 v96, 224, v96
v_bfe_u32 v98, v0, 4, 1
v_lshl_add_u32 v96, v98, 5, v96
v_and_b32 v98, 3, v0
v_lshl_add_u32 v96, v98, 3, v96
s_lshl_b32 s{sT2}, s{sG}, 6
v_add_u32 v2, s{sT2}, v96
v_add_u32 v3, {8*28*224}, v2
""")
for h in range(16):
    for s_ in range(2):
        for t in range(2):
            a(f"ds_read_b64_tr_b16 {v(WFR+8*h+4*s_+2*t,2)}, v{2+(h>>3)} offset:{(28*(h&7)+16*s_+8*t)*224}")
a(f"""
v_add_u32 v5, {LR}, v1
v_and_b32 v99, 31, v0
v_mul_u32_u24 v99, 80, v99
v_lshl_add_u32 v99, v97, 3, v99
s_mul_i32 s{sT0}, s{sG}, 4096
s_add_u32 s{sT0}, s{sT0}, {MERGE}
v_add_u32 v6, s{sT0}, v99
v_lshrrev_b32 v99, 2, v0
v_mul_u32_u24 v100, 80, v99
v_lshl_add_u32 v100, v98, 4, v100
v_add_u32 v7, s{sT0}, v100
v_mul_u32_u24 v100, 1792, v99
v_lshl_add_u32 v8, v98, 4, v100
s_mul_i32 s{sT0}, s{sRT}, {32*1792}
s_mul_i32 s{sT1}, s{sCG}, 224
s_add_u32 s{sT0}, s{sT0}, s{sT1}
s_add_u32 s{sT0}, s{sT0}, s{sT2}
s_add_u32 s{sT1}, s{sT0}, {16*1792}
s_cmp_eq_u32 s{sG}, 3
s_cselect_b32 s{sM1}, 0x33333333, -1
s_mov_b32 s{sM1+1}, s{sM1}
s_waitcnt lgkmcnt(0)
""")
stamp(12)
lq = LQ()
held = []
for k in range(4):
    ob = OB if k % 2 == 0 else 64
    a("s_barrier")
    if k == 0: stamp(13)
    for f in range(8):
        lq(f"ds_read_b128 {v(ob+4*f,4)}, v5 offset:{8192*k+1024*f}")
        if f % 3 == 0 and held: lq(held.pop(0))
    ms = [mfma32(OA, WFR+32*k+4*f, ob+4*f, "0" if k == 0 and f == 0 else OA) for f in range(8)]
    cut = 5 if k < 3 else 8
    for m_ in ms[:cut]: lq(m_)
    held = ms[cut:]
for r in range(8): a(f"v_cvt_pk_bf16_f32 v{16+r}, v{OA+2*r}, v{OA+2*r+1}")
for m in range(4): a(f"ds_write_b64 v6, {v(16+2*m,2)} offset:{16*m}")
a(f"""
s_waitcnt lgkmcnt(0)
ds_read_b128 {v(24,4)}, v7
ds_read_b128 {v(28,4)}, v7 offset:{16*80}
s_mov_b64 exec, s[{sM1}:{sM1+1}]
s_waitcnt lgkmcnt(1)
buffer_store_dwordx4 {v(24,4)}, v8, {srd(OUT)}, s{sT0} offen
s_waitcnt lgkmcnt(0)
buffer_store_dwordx4 {v(28,4)}, v8, {srd(OUT)}, s{sT1} offen
""")
stamp(14)
a("s_branch L_fin" if DIAG else "s_endpgm")

a.label("L_gate")
a(f"""
s_mul_i32 s{sT3}, s{sRT}, {32*896}
s_add_u32 s{sT3}, s{sT3}, 896
""")
for i in range(8): a(f"v_lshlrev_b32 v{16+2*i}, 16, v{QR+i}\nv_and_b32 v{17+2*i}, 0xffff0000, v{QR+i}")
for t in range(8):
    for p in range(2):
        src = vZR + 4 * p + t // 2
        a(f"v_lshlrev_b32 v{32+2*t+p}, 16, v{src}" if t % 2 == 0 else f"v_and_b32 v{32+2*t+p}, 0xffff0000, v{src}")
for t in range(8): a(f"v_pk_mul_f32 {v(32+2*t,2)}, {v(32+2*t,2)}, {v(16+2*t,2)}")
for t in range(8): a(f"v_cvt_pk_bf16_f32 v{56+t}, v{32+2*t}, v{33+2*t}")
for t in range(8):
    a(f"buffer_store_dword v{56+t}, v{vGO}, {srd(OUT)}, s{sT3} offen offset:{1792*(t&1)}")
    if t & 1 and t < 7: a(f"s_add_u32 s{sT3}, s{sT3}, 3584")
stamp(11)
a.c("O fragments: every word differs from the all-ones mark once its producer's store has landed")
OL = 64
a(f"""
s_lshl_b32 s{sT0}, s{sRT}, 15
s_lshl_b32 s{sT1}, s{sG}, 11
s_add_u32 s{sT0}, s{sT0}, s{sT1}
s_add_u32 s{sT0}, s{sT0}, {OF}
s_add_u32 s{sT1}, s{sT0}, 8192
s_add_u32 s{sT2}, s{sT0}, 16384
s_add_u32 s{sT3}, s{sT0}, 24576
s_mov_b32 s{sSP}, {SPIN}
""")
def o_issue(k0):
    for k in range(k0, 4):
        for i in range(2): a(f"buffer_load_dwordx4 {v(OL+8*k+4*i,4)}, v1, {srd(WS)}, s{sT0+k} offen offset:{1024*i} sc1")
o_issue(0)
for k in range(4):
    r = OL + 8 * k
    a(f"""
L_ochk{k}:
s_waitcnt vmcnt({6-2*k})
v_max3_u32 v96, v{r}, v{r+1}, v{r+2}
v_max3_u32 v97, v{r+3}, v{r+4}, v{r+5}
v_max3_u32 v96, v{r+6}, v{r+7}, v96
v_max_u32 v96, v96, v97
v_cmp_eq_u32 vcc, -1, v96
s_cbranch_vccnz L_oretry{k}
L_ogo{k}:
ds_write_b128 v{vQA}, {v(r,4)} offset:{8192*k}
ds_write_b128 v{vQA}, {v(r+4,4)} offset:{8192*k+1024}
s_waitcnt lgkmcnt(0)
s_barrier
""")
    if k == 0: stamp(12)
stamp(13)
a.label("L_fin")
if DIAG:
    a(f"s_mov_b64 exec, -1\ns_mov_b32 s{sST+15}, s98")
    a(f"s_lshl_b32 s{sT0}, s2, 3\ns_add_u32 s{sT0}, s{sT0}, s{sW}\ns_lshl_b32 s{sT0}, s{sT0}, 6\ns_add_u32 s{sT0}, s{sT0}, {DG}\nv_lshlrev_b32 v96, 2, v0")
    for k in range(16): a(f"v_writelane_b32 v97, s{sST+k}, {k}")
    a(f"s_mov_b64 exec, 0xffff\nbuffer_store_dword v97, v96, {srd(WS)}, s{sT0} offen")
if "probe" in OPT:
    a(f"""
s_cmp_lg_u32 s2, {OPT.get("pwg", 100)}
s_cbranch_scc1 L_end
s_cmp_lg_u32 s{sW}, {OPT.get("pw", 0)}
s_cbranch_scc1 L_end
s_sub_u32 s{sT0}, s{sST+OPT["probe"]}, s98
s_lshl_b32 s{sT0}, s{sT0}, 2
s_add_u32 s{sT0}, s{sT0}, 4000
s_min_u32 s{sT0}, s{sT0}, 20000
L_probe:
s_memrealtime s[96:97]
s_waitcnt lgkmcnt(0)
s_sub_u32 s96, s96, s98
s_cmp_lt_u32 s96, s{sT0}
s_cbranch_scc1 L_probe
""")
a.label("L_end")
a("s_endpgm")
for k in range(4):
    a(f"L_oretry{k}:\ns_sub_u32 s{sSP}, s{sSP}, 1\ns_cbranch_scc1 L_ogo{k}".replace(f"s_cbranch_scc1 L_ogo{k}", f"s_cselect_b32 s{sSP}, 0, s{sSP}\ns_cbranch_scc1 L_ogo{k}"))
    o_issue(k)
    a(f"s_branch L_ochk{k}")

a(f"""
L_sigc:
s_lshl_b32 s{sT0}, s2, 2
s_add_u32 s{sT0}, s{sT0}, {FC}
""")
signal(f"s{sT0}")
a(f"s_branch L_sigc_r\nL_ldq:\ns_movk_i32 s{sT5}, 3584")
for i in range(8): a(f"buffer_load_dword v{QR+i}, v{vGA}, {srd(Q_)}, {'0' if i<4 else s(sT5)} offen offset:{896*(i&3)}")
a(f"""
s_branch L_ldq_r
L_chkc:
s_mov_b32 s{sSP}, {SPIN}
L_chkc1:
v_xor_b32 v{vFC}, s{sNON}, v{vFC}
v_xor_b32 v{vFC+1}, s{sNON}, v{vFC+1}
v_xor_b32 v{vFC+2}, s{sNON}, v{vFC+2}
v_or3_b32 v{vFC}, v{vFC}, v{vFC+1}, v{vFC+2}
v_xor_b32 v{vFC+3}, s{sNON}, v{vFC+3}
v_or_b32 v{vFC}, v{vFC}, v{vFC+3}
v_cmp_ne_u32 vcc, 0, v{vFC}
s_cbranch_vccnz L_chkc3
L_chkc2:
buffer_load_dwordx4 {v(vZR,4)}, v{vZL}, {srd(WS)}, s{sUT} offen sc1
buffer_load_dwordx4 {v(vZR+4,4)}, v{vZL}, {srd(WS)}, s{sUT} offen offset:64 sc1
s_add_u32 s{sT1}, s2, s{sG}
s_cmp_lg_u32 s{sT1}, 0
s_cbranch_scc1 L_chkc_r
""")
a.c("workgroup 0 advances the epoch word: every workgroup is known to have read it")
signal("0")
a(f"""
s_branch L_chkc_r
L_chkc3:
s_sub_u32 s{sSP}, s{sSP}, 1
s_cbranch_scc1 L_chkc2
buffer_load_dwordx4 {v(vFC,4)}, v1, {srd(WS)}, s{sT0} offen sc1
s_waitcnt vmcnt(0)
s_branch L_chkc1
""")

a.label("L_fallback")
a(f"""
s_mov_b32 s{sTRY}, -1
s_barrier
s_cbranch_scc1 L_fb0
""")
kv_first()
a(f"""
L_fb0:
s_mov_b32 exec_lo, 0
v_mov_b32 v{vQ+6}, 0
v_mov_b32 v{vQ+7}, 0
s_mov_b32 exec_lo, -1
v_mov_b32 v{vM}, 0xff800000
s_mov_b32 s{sT3}, s{sKVB}
s_mov_b32 s{sI}, 0
L_fb1:
buffer_load_dwordx4 {v(vK,4)}, v1, {srd(WS)}, s{sT3} offen sc1
buffer_load_dwordx4 {v(vK+4,4)}, v1, {srd(WS)}, s{sT3} offen offset:1024 sc1
s_waitcnt vmcnt(0)
{mfma32(vSb, vK, vQ, "0")}
{mfma32(vSb, vK+4, vQ+4, vSb)}
s_add_u32 s{sT3}, s{sT3}, 4096
s_add_u32 s{sI}, s{sI}, 1
""")
maxtree(vSb, vM, True)
a(f"""
s_cmp_lt_u32 s{sI}, 64
s_cbranch_scc1 L_fb1
s_branch L_att
L_codeend:
""")

import subprocess
body0 = pad(a.l, verbose="v" in sys.argv)
def emit(pfs, fill):
    body = [l.replace("@@PFS@@", str(pfs)) for l in body0]
    hdr = open("cdna_kernels/" + NAME + ".s.ref").read().split("; Override launch")[0]
    return hdr + f"""; One persistent launch, one workgroup per CU; phases hand data over through d_ws with tagged flags.
; @launch grid=(256,1,1) block=(512,1,1) lds=163840
.amdgcn_target "amdgcn-amd-amdhsa--gfx950"
.text
.globl {NAME}_kernel
.p2align 8
.type {NAME}_kernel,@function
""" + "\n".join(body) + f"""
    .fill {fill}, 4, 0xbf810000
.section .rodata,"a"
.p2align 6
.amdhsa_kernel {NAME}_kernel
  .amdhsa_next_free_vgpr 256
  .amdhsa_next_free_sgpr 102
  .amdhsa_accum_offset 256
  .amdhsa_group_segment_fixed_size 0
  .amdhsa_kernarg_size 96
  .amdhsa_user_sgpr_count 2
  .amdhsa_user_sgpr_kernarg_segment_ptr 1
  .amdhsa_system_sgpr_workgroup_id_x 1
.end_amdhsa_kernel
"""
def size_of(txt):
    open("_sz.s", "w").write(txt)
    subprocess.run(["clang", "-x", "assembler", "-target", "amdgcn-amd-amdhsa", "-mcpu=gfx950", "-c", "_sz.s", "-o", "_sz.o"], check=True)
    o = subprocess.run(["llvm-objdump", "-t", "_sz.o"], capture_output=True, text=True).stdout
    return [int(l.split()[0], 16) for l in o.splitlines() if l.endswith("L_codeend")][0]
sz = size_of(emit(40, 1))
pfs = OPT.get("pfs", (sz + 2047) // 2048 * 4)
assert pfs <= 64
print("code bytes", sz, "prefetch stride", pfs)
open(sys.argv[1], "w").write(emit(pfs, max(1, (pfs * 512 - sz + 3) // 4)))
```

```python
import sys, struct, math
from asmlib import *

NAME = "concat_heads__softmax_full_mha__ssm_conv_h3__prompt"
DIAG = "diag" in sys.argv
SOPT = dict(a.split("=") for a in sys.argv[2:] if "=" in a)
OPT = {k: int(x) for k, x in SOPT.items() if x.isdigit()}
OPT.setdefault("rt", 40404040)
SPIN = 1 << 16

FA, FB, FC = 0x40000, 0x60000, 0x3000
FS = OPT.get('fs', 4)
QF, KV, UU, ZZ, OF, WSEND = 0x100000, 0x300000, 0x700000, 0x900000, 0xB00000, 0xD00000
DG = 0x10000
LX, LA, LB, LP, LR = 0, 32768, 65536, 98304, 131072
HP, UOFF = 4160, 16640
MERGE, BADF = LP + 4096, LP + 3968
ONES = 0x3f803f80
def fbits(x): return struct.unpack("<I", struct.pack("<f", x))[0]
QSCALE = fbits(28 ** -0.5 * math.log2(math.e))

X_, WQ, WO, Q_, K_, V_, SK, HK, OUT, WS = 4, 8, 12, 16, 20, 24, 28, 32, 36, 40
sDP, sNON, sW = 44, 46, 47
sJ, sTT, sRT, sCG, sC, sH, sQT, sG = 48, 49, 50, 51, 52, 53, 54, 55
sED, sT0, sT1, sT2, sT3, sT4, sT5, sT6, sT7 = 56, 57, 58, 59, 60, 61, 62, 63, 64
sI, sSO, sSO2, sLW, sLX, sTRY, sSP, sCB = 65, 66, 67, 68, 69, 70, 71, 72
sDV, sM1, sM2 = 73, 74, 76
sKVB, sWM = 78, 79
sFL, sE0, sE1, sE2, sKP, sZO, sOO, sKL, sUO, sQO, sUT, sKS = 20, 21, 22, 23, 24, 26, 27, 28, 29, 30, 31, 3
sUS, sCL, sK0 = 29, 44, 45
sQS = 34
sST = 80
def srd(b): return s(b, 4)

a = Asm()
def stamp(k, st=None):
    if not DIAG: return
    if st is None and k >= 9: st = 0
    if st is not None and st != OPT.get("set", 0): return
    a(f"{'s_memtime' if OPT.get('cyc') else 's_memrealtime'} s[96:97]\ns_waitcnt lgkmcnt(0)\ns_mov_b32 s{sST+k}, s96")

npoll = [0]
def poll(vaddr, vtmp):
    n = npoll[0]; npoll[0] += 1
    a(f"""
s_mov_b32 s{sSP}, {SPIN}
L_poll{n}:
buffer_load_dword v{vtmp}, v{vaddr}, {srd(WS)}, 0 offen sc1
s_waitcnt vmcnt(0)
v_cmp_ne_u32 vcc, s{sNON}, v{vtmp}
s_cbranch_vccz L_pollok{n}
s_sub_u32 s{sSP}, s{sSP}, 1
s_cbranch_scc0 L_poll{n}
L_pollok{n}:
""")
vNON = 15
def signal(soff):
    a(f"s_mov_b64 exec, 1\nbuffer_store_dword v{vNON}, v1, {srd(WS)}, {soff} offen sc1\ns_mov_b64 exec, -1")

def mfma32(d, A, B, C): return f"v_mfma_f32_32x32x16_bf16 {v(d,16)}, {v(A,4)}, {v(B,4)}, {C if isinstance(C,str) else v(C,16)}"
def mfma16(d, A, B, C): return f"v_mfma_f32_16x16x32_bf16 {v(d,4)}, {v(A,4)}, {v(B,4)}, {C if isinstance(C,str) else v(C,4)}"

class LQ:
    def __init__(self): self.q = []
    def __call__(self, txt):
        for t in txt.strip("\n").split("\n"):
            i = Ins(t)
            if not i.mn: a(t); continue
            last = max([k for k, w in enumerate(self.q) if w & (i.rd | (i.wr if not i.ds else set()))], default=-1)
            if last >= 0:
                n = min(15, len(self.q) - 1 - last)
                a(f"s_waitcnt lgkmcnt({n})"); self.q = self.q[len(self.q) - n:]
            a(t)
            if i.ds: self.q.append(vset(i.wr))
    def drain(self, n=0):
        if len(self.q) > n:
            a(f"s_waitcnt lgkmcnt({n})"); self.q = self.q[len(self.q) - n:]

vXD, vWD, vXR, vWR, vXB = 2, 6, 9, 13, 14
ACC, RS = 16, 64
vCA, vCB, vCW, vCR, vCU, vZ, vD = 192, 193, 194, 195, 196, 197, 198
vB0, vB1, vQA, vWOA, vMG, vBW, vBR = 199, 200, 201, 202, 203, 204, 205
vPA, vUD, vPB, vZL, vGO, vGA = 206, 207, 208, 209, 210, 211
vHO, vCP = 10, 129
KR, VR, SR, KF, WF, UA, VF, UP = 140, 152, 160, 164, 212, 220, 64, 236
H0, QR = 112, 240
def srdc(lst): return "\n".join(f"s_mov_b32 s{b+2}, {n}\ns_mov_b32 s{b+3}, 0x20000" for b, n in lst)
def karg(lst): return "\n".join(f"s_load_dwordx2 s[{b}:{b+1}], s[0:1], {o}" for b, o in lst)
a.label(NAME + "_kernel")
if DIAG: a(f"{'s_memtime' if OPT.get('cyc') else 's_memrealtime'} s[98:99]")
a(f"""
s_cmp_ge_u32 s2, 256
s_cbranch_scc1 L_end
{karg(((K_, 32), (X_, 0), (V_, 40), (SK, 48), (WQ, 8), (WS, 88), (sDP, 64)))}
s_getpc_b64 s[{sT5}:{sT6}]
L_pc:
v_lshrrev_b32 v1, 6, v0
v_and_b32 v0, 63, v0
s_bfe_u32 s{sT0}, s2, 0x30003
v_lshl_add_u32 v2, s{sT0}, 6, v0
s_sub_u32 s{sT5}, s{sT5}, L_pc-{NAME}_kernel
s_subb_u32 s{sT6}, s{sT6}, 0
v_mul_u32_u24 v2, @@PFS@@, v2
v_mov_b32 v3, s{sT6}
v_add_co_u32 v2, vcc, s{sT5}, v2
v_readfirstlane_b32 s{sW}, v1
v_lshrrev_b32 v130, 4, v0
v_addc_co_u32 v3, vcc, 0, v3, vcc
global_load_dword v255, v[2:3], off
s_and_b32 s{sG}, s{sW}, 3
s_cmp_lt_u32 s{sW}, 4
s_cbranch_scc1 L_uprep
""")
IDS_U = f"""
s_and_b32 s{sT2}, s2, 7
s_lshr_b32 s{sT3}, s2, 5
s_lshl3_add_u32 s{sRT}, s{sT2}, s{sT3}
s_bfe_u32 s{sCG}, s2, 0x20003
v_and_b32 v{vCP}, 15, v0
v_min_u32 v{vCP}, 13, v{vCP}
s_lshl2_add_u32 s{sT0}, s{sCG}, s{sG}
s_mul_i32 s{sT1}, s{sT0}, 56
s_mul_i32 s{sT2}, s{sRT}, {32*896}
s_add_u32 s{sT2}, s{sT2}, s{sT1}
v_mul_u32_u24 v{vGO}, {8*896}, v130
v_lshl_add_u32 v132, v{vCP}, 2, v{vGO}
v_add_u32 v{vGA}, s{sT2}, v132
"""
IDS_G = f"""
s_and_b32 s{sT2}, s2, 1
s_bfe_u32 s{sT3}, s2, 0x30003
s_lshl3_add_u32 s{sJ}, s{sT2}, s{sT3}
s_bfe_u32 s{sT2}, s2, 0x20001
s_lshr_b32 s{sT3}, s2, 6
s_lshl2_add_u32 s{sT2}, s{sT2}, s{sT3}
s_lshl2_add_u32 s{sTT}, s{sT2}, s{sG}
s_and_b32 s{sT2}, s{sG}, 1
s_lshr_b32 s{sT3}, s{sG}, 1
s_lshl2_add_u32 s{sT2}, s{sT3}, s{sT2}
s_add_u32 s{sT2}, s{sT2}, 4
s_lshl_b32 s{sLX}, s{sT2}, 14
"""
COMMON = f"""
v_lshlrev_b32 v1, 4, v0
s_sub_u32 s{sT2}, s2, 32
s_cmp_lt_u32 s2, 224 | s_cselect_b32 s{sC}, s2, s{sT2}
s_load_dword s{sED}, s[{WS}:{WS+1}], 0
s_lshl_b32 s{sT0}, s{sC}, 2
s_load_dword s{sDV}, s[{sDP}:{sDP+1}], s{sT0}
{karg(((HK, 56), (WO, 16), (Q_, 24), (OUT, 72)))}
{srdc(((WO, 401408), (Q_, 1835008), (OUT, 3670016), (WS, WSEND)))}
v_add_u32 v{vGO}, v{vGO}, v{vGA}
v_lshlrev_b32 v133, 7, v{vCP}
v_lshl_add_u32 v{vZL}, v130, 4, v133
s_lshl2_add_u32 s{sT4}, s{sCG}, s{sG}
s_mul_i32 s{sT1}, s{sT4}, 1792
s_mul_i32 s{sT3}, s{sRT}, 28672
s_add_u32 s{sUT}, s{sT1}, s{sT3}
s_add_u32 s{sUT}, s{sUT}, {ZZ}
s_and_b32 s{sT2}, s2, 7
s_lshr_b32 s{sT3}, s2, 7
s_lshl1_add_u32 s{sH}, s{sT2}, s{sT3}
s_bfe_u32 s{sQT}, s2, 0x40003
s_mov_b32 s{sTRY}, 0
s_lshr_b32 s{sT7}, s{sW}, 2
s_mul_i32 s{sCB}, s{sT7}, {LP}
v_and_b32 v132, 3, v0
v_sub_u32 v133, 3, v132
v_mul_u32_u24 v133, {HP}, v133
v_and_b32 v134, 12, v0
v_lshl_add_u32 v133, v134, 1, v133
v_and_b32 v134, 0x30, v0
v_sub_u32 v133, v133, v134
s_lshl_b32 s{sT0}, s{sG}, 7
s_add_u32 s{sT1}, s{sT0}, s{sCB}
s_add_u32 s{sT1}, s{sT1}, 56
v_add_u32 v{vCA}, s{sT1}, v133
v_and_b32 v139, 15, v0
v_lshl_add_u32 v133, v139, 5, v134
s_sub_u32 s{sT1}, s{sCB}, s{sT0}
s_add_u32 s{sT1}, s{sT1}, {UOFF+512-96}
v_add_u32 v{vCB}, s{sT1}, v133
v_lshrrev_b32 v131, 5, v0
v_lshlrev_b32 v133, 7, v131
v_xor_b32 v133, v133, v1
s_lshl_b32 s{sT0}, s{sG}, 13
s_add_u32 s{sT0}, s{sT0}, s{sCB}
v_add_u32 v{vCW}, s{sT0}, v133
v_bfe_u32 v135, v0, 2, 1
v_mul_u32_u24 v136, {LP}, v135
v_lshrrev_b32 v137, 3, v0
v_lshl_add_u32 v138, v137, 2, v132
v_lshrrev_b32 v133, 1, v138
v_and_b32 v134, 1, v0
v_mul_u32_u24 v134, 40, v134
v_xor_b32 v133, v133, v134
v_lshl_add_u32 v133, v133, 4, v136
s_lshl_b32 s{sT0}, s{sW}, 10
v_add_u32 v{vCR}, s{sT0}, v133
v_lshl_add_u32 v133, v138, 4, v136
s_lshl_b32 s{sT0}, s{sW}, 9
s_add_u32 s{sT0}, s{sT0}, {UOFF+512}
v_add_u32 v{vCU}, s{sT0}, v133
v_mul_u32_u24 v133, 28672, v137
v_and_b32 v134, 7, v0
v_lshl_add_u32 v{vZ}, v134, 4, v133
v_lshlrev_b32 v134, 2, v134
v_add_u32 v{vBR}, {BADF}, v134
s_mul_i32 s{sT0}, s{sW}, {8*28672}
s_lshl_b32 s{sT1}, s{sC}, 7
s_add_u32 s{sT0}, s{sT0}, s{sT1}
s_add_u32 s{sZO}, s{sT0}, {ZZ}
s_lshl_b32 s{sKVB}, s{sH}, 18
s_add_u32 s{sKVB}, s{sKVB}, {KV}
s_lshl_b32 s{sKL}, s{sW}, 12
s_add_u32 s{sKS}, s{sKVB}, s{sKL}
s_min_u32 s{sT0}, s{sW}, 6
s_lshl_b32 s{sWM}, s{sT0}, 10
s_lshl_b32 s{sT1}, s{sT0}, 6
v_add_u32 v133, s{sT1}, v0
v_mul_u32_u24 v134, 4682, v133
v_lshrrev_b32 v134, 16, v134
v_mul_u32_u24 v136, 14, v134
v_sub_u32 v133, v133, v136
v_bfe_u32 v136, v134, 1, 2
v_and_b32 v138, 1, v134
v_lshl_add_u32 v136, v138, 2, v136
v_and_or_b32 v134, v134, 24, v136
v_mul_u32_u24 v134, 896, v134
v_lshl_add_u32 v133, v133, 4, v134
s_mul_i32 s{sT1}, s{sCG}, 224
v_add_u32 v{vWOA}, s{sT1}, v133
s_lshl_b32 s{sT0}, s{sT7}, 14
s_add_u32 s{sT0}, s{sT0}, {LA}
v_add_u32 v{vB0}, s{sT0}, v1
v_add_u32 v{vB1}, 0x10000, v{vB0}
s_lshl_b32 s{sT0}, s{sG}, 11
s_add_u32 s{sT0}, s{sT0}, {LR}
v_add_u32 v{vQA}, s{sT0}, v1
s_lshl_b32 s{sT0}, s{sG}, 12
s_add_u32 s{sT0}, s{sT0}, {MERGE}
v_add_u32 v{vMG}, s{sT0}, v1
s_lshl_b32 s{sT1}, s{sW}, 2
s_add_u32 s{sT1}, s{sT1}, {BADF}
v_mov_b32 v{vBW}, s{sT1}
s_lshl_b32 s{sT3}, s{sQT}, 2
s_add_u32 s{sT3}, s{sT3}, s{sG}
s_lshl_b32 s{sT0}, s{sT3}, 4
s_add_u32 s{sT0}, s{sT0}, s{sH}
s_lshl_b32 s{sT0}, s{sT0}, 11
s_add_u32 s{sOO}, s{sT0}, {OF}
s_lshl4_add_u32 s{sT0}, s{sH}, s{sQT}
s_lshl3_add_u32 s{sT0}, s{sT0}, s{sW}
s_lshl_b32 s{sT0}, s{sT0}, 10
s_add_u32 s{sQO}, s{sT0}, {QF}
v_cmp_eq_u32 vcc, 0, v135
s_waitcnt lgkmcnt(0)
s_mul_i32 s{sNON}, s{sED}, 1664525
s_add_u32 s{sNON}, s{sNON}, 1013904223
s_lshl_b32 s{sT0}, s{sDV}, 16
s_and_b32 s{sT1}, s{sDV}, 0xffff0000
v_mov_b32 v133, s{sT0}
v_mov_b32 v134, s{sT1}
v_cndmask_b32 v{vD}, v134, v133, vcc
v_mov_b32 v{vNON}, s{sNON}
s_lshl_b32 s{sT0}, s{sT7}, 10
s_add_u32 s{sCL}, s{sOO}, s{sT0}
s_lshl3_add_u32 s{sT0}, s{sT7}, s{sG}
s_lshl_b32 s{sK0}, s{sT0}, 11
"""
CNT = 65520

a(IDS_G + srdc(((X_, 1835008), (WQ, 1204224))) + f"""
v_lshrrev_b32 v128, 3, v0
s_lshl_b32 s{sT0}, s{sTT}, 5
v_add_u32 v128, s{sT0}, v128
v_mul_u32_u24 v128, 896, v128
v_and_b32 v129, 7, v0
v_xor_b32 v129, v129, v130
v_lshl_add_u32 v{vXD}, v129, 4, v128
v_xor_b32 v129, 4, v129
v_lshl_add_u32 v{vXD+1}, v129, 4, v128
v_add_u32 v{vXD+1}, {7168-1024}, v{vXD+1}
v_add_u32 v{vXD+2}, {14336-2048}, v{vXD}
v_add_u32 v{vXD+3}, {14336-2048}, v{vXD+1}
""")
if OPT.get("rt"): a(f"""
s_lshr_b32 s{sT3}, s2, 6
s_mul_i32 s{sT3}, s{sT3}, {OPT.get("rc", 1)}
s_add_u32 s{sT3}, s{sT3}, s{sJ}
s_and_b32 s{sT3}, s{sT3}, 7
s_lshl_b32 s{sT3}, s{sT3}, 2
s_lshr_b32 s{sI}, {int(str(OPT["rt"]), 16):#x}, s{sT3}
s_and_b32 s{sI}, s{sI}, 7
""")
a("s_waitcnt lgkmcnt(0)")
stamp(0)
def wbase(st): return LP + 12288 * st if st < 2 else 12288 * (st - 2)
RT = OPT["rt"]
def rot(dst, st, mul):
    if not RT: return f"s_mov_b32 s{dst}, {st*mul}\n"
    return f"s_add_u32 s{dst}, s{sI}, {st}\ns_cmp_ge_u32 s{dst}, 7\ns_cselect_b32 s{sSP}, 7, 0\ns_sub_u32 s{dst}, s{dst}, s{sSP}\ns_mul_i32 s{dst}, s{dst}, {mul}\n"
def dma_x(st):
    p = [f"buffer_load_dwordx4 v{vXD+i}, {srd(X_)}, s{sSO} offen offset:{1024*i} lds" for i in range(4)]
    p[0] = f"s_add_u32 m0, s{sLX}, {4096*(st&3)}\n" + rot(sSO, st, 128) + p[0]
    return p
def dma_w(st):
    p = [f"buffer_load_dwordx4 v{vWD+q}, {srd(WQ)}, s{sSO2} offen offset:{1024*q} lds" for q in range(3)]
    p[0] = f"s_add_u32 m0, s{sLW}, {wbase(st)}\n" + rot(sSO2, st, 64*2688) + p[0]
    return p
def sprinkle(pieces, text):
    L = [x.replace(" | ", "\n") for x in text.strip().split("\n") if x.strip()]
    n = len(pieces)
    for k, p in enumerate(pieces):
        a(p)
        for x in L[len(L) * k // n: len(L) * (k + 1) // n]: a(x)
WADDR = f"""
s_mul_i32 s{sT0}, s{sJ}, 168
s_and_b32 s{sT0}, s{sT0}, -16
s_mul_i32 s{sT2}, s{sG}, {16*2688}
s_add_u32 s{sT0}, s{sT0}, s{sT2}
s_mul_i32 s{sLW}, s{sG}, 3072
"""
for q in range(3):
    WADDR += f"""
v_add_u32 v128, {64*q}, v0
v_mul_u32_u24 v129, 43691, v128
v_lshrrev_b32 v129, 19, v129
v_mul_u32_u24 v131, 12, v129
v_sub_u32 v128, v128, v131
v_min_u32 v128, 10, v128
v_mul_u32_u24 v129, 2688, v129
v_lshl_add_u32 v128, v128, 4, v129
v_add_u32 v{vWD+q}, s{sT0}, v128
""" + (f"s_sub_u32 s{sT0}, s{sT0}, 1024" if q < 2 else "")
for p in dma_x(0): a(p)
a("s_branch L_loader\nL_uprep:")
a("s_setprio 3\n" + IDS_U + srdc(((K_, 1835008), (V_, 1835008), (SK, 3584))) + f"""
v_subrev_u32 v135, 2688, v{vGA}
s_lshl_b32 s{sT1}, s{sT1}, 2
v_lshl_add_u32 v137, v{vCP}, 4, s{sT1}
s_movk_i32 s{sT5}, 3584
s_waitcnt lgkmcnt(0)
""")
stamp(0)
a(f"buffer_load_dwordx4 {v(SR,4)}, v137, {srd(SK)}, 0 offen")
for i in range(3): a(f"buffer_load_dword v{KR+i}, v135, {srd(K_)}, 0 offen offset:{896*i}")
for i in range(8): a(f"buffer_load_dword v{KR+3+i}, v{vGA}, {srd(K_)}, {'0' if i<4 else s(sT5)} offen offset:{896*(i&3)}")
for i in range(8): a(f"buffer_load_dword v{VR+i}, v{vGA}, {srd(V_)}, {'0' if i<4 else s(sT5)} offen offset:{896*(i&3)}")
a("s_setprio 0\n" + IDS_G + COMMON.replace(" | ", "\n") + f"""
s_sub_u32 s{sUS}, s{sUT}, {ZZ-UU}
s_lshl_b32 s{sT4}, s{sG}, 11
s_add_u32 s{sT4}, s{sT4}, {LP+24576}
v_and_b32 v136, 7, v{vCP}
v_lshlrev_b32 v136, 4, v136
v_xor_b32 v136, v136, v{vZL}
v_add_u32 v136, s{sT4}, v136
v_xor_b32 v138, 64, v136
v_lshlrev_b32 v137, 4, v137
v_xor_b32 v137, v137, v1
v_add_u32 v137, s{sT4}, v137
s_and_b32 s{sT6}, s{sJ}, 1
s_lshl_b32 s{sT6}, s{sT6}, 3
""")
a.c("---- QKV projection: 32 tokens x 3 head blocks per wave")
a(f"""
v_and_b32 v128, 31, v0
v_bfe_u32 v129, v0, 1, 3
v_xor_b32 v129, v129, v131
v_lshlrev_b32 v128, 7, v128
v_lshl_add_u32 v128, v129, 4, v128
v_add_u32 v{vXB}, s{sLX}, v128
v_bfe_u32 v128, v0, 2, 2
v_lshl_add_u32 v128, v131, 3, v128
v_mul_u32_u24 v128, 192, v128
v_and_b32 v129, 1, v130
v_lshl_add_u32 v128, v129, 5, v128
v_lshl_add_u32 v128, v132, 3, v128
s_add_u32 s{sT6}, s{sT6}, {LP}
v_add_u32 v{vWR}, s{sT6}, v128
v_mov_b32 v{vXR}, v{vXB}
v_mov_b32 v{vPB}, 0
v_xor_b32 v{vXR+1}, 32, v{vXB}
v_xor_b32 v{vXR+2}, 64, v{vXB}
v_xor_b32 v{vXR+3}, 0x60, v{vXB}
""")
a(f"s_lshr_b32 s{sT0}, s{sTT}, 2\ns_lshl4_add_u32 s{sT0}, s{sJ}, s{sT0}\ns_lshl_b32 s{sT0}, s{sT0}, {FS}\ns_add_u32 s{sFL}, s{sT0}, {FB}")
a(f"s_mul_i32 s{sT7}, s{sJ}, 3")
for b in range(3):
    a(f"""
s_add_u32 s{sT3}, s{sT7}, {b}
s_and_b32 s{sT0}, s{sT3}, 15
s_lshl_b32 s{sT0}, s{sT0}, 6
s_add_u32 s{sT0}, s{sT0}, s{sTT}
s_cmp_lt_u32 s{sT3}, 16
s_cselect_b32 s{sT1}, 11, 12
s_mov_b32 s{sT2}, {KV}
s_cselect_b32 s{sT2}, {QF}, s{sT2}
s_lshl_b32 s{sT0}, s{sT0}, s{sT1}
s_add_u32 s{sE0+b}, s{sT0}, s{sT2}
""")
a(f"""
s_mov_b32 s{sKP}, {ONES}
s_movk_i32 s{sKP+1}, 0x3f80
s_mov_b32 s{sQS}, {QSCALE:#x}
s_mov_b32 s{sQS+1}, {QSCALE:#x}
s_mov_b32 s{sM1}, 0xf0000000
s_mov_b32 s{sM1+1}, 0xf0000000
s_mov_b32 s{sM2}, {ONES}
s_mov_b32 s{sM2+1}, {ONES}
""")
for r in list(range(ACC, ACC + 48, 2)) + list(range(RS + 16, RS + 64, 2)): a(f"v_mov_b64 {v(r,2)}, 0")
a(f"s_mov_b32 s{sI}, 0\ns_setprio 2\ns_waitcnt vmcnt(8)")
stamp(2)
for j in range(4):
    for p in range(2):
        src = SR + 2 * p + (j >> 1)
        a(f"v_lshlrev_b32 v{WF+2*j+p}, 16, v{src}" if j % 2 == 0 else f"v_and_b32 v{WF+2*j+p}, 0xffff0000, v{src}")
for i in range(11): a(f"v_lshlrev_b32 v{KF+2*i}, 16, v{KR+i}\nv_and_b32 v{KF+2*i+1}, 0xffff0000, v{KR+i}")
for t in range(8): a(f"v_pk_mul_f32 {v(UA+2*t,2)}, {v(KF+2*t,2)}, {v(WF+6,2)}")
for j in (2, 1, 0):
    for t in range(8): a(f"v_pk_fma_f32 {v(UA+2*t,2)}, {v(KF+2*(t+3-j),2)}, {v(WF+2*j,2)}, {v(UA+2*t,2)}")
a("s_waitcnt vmcnt(0)")
for i in range(8): a(f"v_lshlrev_b32 v{VF+2*i}, 16, v{VR+i}\nv_and_b32 v{VF+2*i+1}, 0xffff0000, v{VR+i}")
for t in range(8): a(f"v_pk_mul_f32 {v(UA+2*t,2)}, {v(UA+2*t,2)}, {v(VF+2*t,2)}")
for p in range(2):
    for m in range(4): a(f"v_cvt_pk_bf16_f32 v{UP+4*p+m}, v{UA+2*(7-2*m)+p}, v{UA+2*(6-2*m)+p}")
    a(f"ds_write_b128 v{136+2*p}, {v(UP+4*p,4)}")
a(f"""
s_waitcnt lgkmcnt(0)
ds_read_b128 {v(UP,4)}, v137
ds_read_b128 {v(UP+4,4)}, v137 offset:1024
s_waitcnt lgkmcnt(1)
buffer_store_dwordx4 {v(UP,4)}, v1, {srd(WS)}, s{sUS} offen sc1
s_mov_b32 exec_hi, 0xffff
s_waitcnt lgkmcnt(0)
buffer_store_dwordx4 {v(UP+4,4)}, v1, {srd(WS)}, s{sUS} offen offset:1024 sc1
s_mov_b32 exec_hi, -1
""")
stamp(3)
a(f"""
s_cmp_eq_u32 s{sJ}, 10
s_cbranch_scc1 L_gemm1
s_cmp_gt_u32 s{sJ}, 10
s_cbranch_scc1 L_gemm2
""")
def g_reads(ks):
    r = RS + 16 * ks
    out = [f"ds_read_b128 {v(r,4)}, v{vXR+ks}"]
    for b in range(3):
        for t in range(2):
            out.append(f"ds_read_b64_tr_b16 {v(r+4+4*b+2*t,2)}, v{vWR} offset:{(16*ks+4*t)*192+56*b}")
    return out
def g_mfma(ks, isv):
    r = RS + 16 * ks
    return [mfma32(ACC+16*b, r, r+4+4*b, ACC+16*b) if isv[b] else mfma32(ACC+16*b, r+4+4*b, r, ACC+16*b) for b in range(3)]
for var, isv in enumerate(((0,0,0), (0,0,1), (1,1,1))):
    m = [g_mfma(k, isv) for k in range(4)]
    rd = g_reads(0) + g_reads(1) + g_reads(2) + g_reads(3)
    a(f"L_gemm{var}:\n{m[1][2]}\ns_barrier")
    seq = m[2] + m[3] + m[0] + m[1][:1]
    for k, x in enumerate(seq):
        if k == 6: a("s_waitcnt lgkmcnt(11)")
        if k == 9: a("s_waitcnt lgkmcnt(13)")
        a("\n".join([x] + rd[3*k:3*k+3]))
    a(f"""
s_cmp_eq_u32 s{sI}, 1
s_movk_i32 s{sT1}, 12288
s_cselect_b32 s{sT1}, {(-LP-12288) & 0xffffffff}, s{sT1}
s_add_u32 s{sI}, s{sI}, 1
s_and_b32 s{sT0}, s{sI}, 3
s_lshl_b32 s{sT0}, s{sT0}, 12
{m[1][1]}
v_add_u32 v{vWR}, s{sT1}, v{vWR}
v_xor_b32 v{vXR}, s{sT0}, v{vXB}
v_xor_b32 v{vXR+1}, 32, v{vXR}
v_xor_b32 v{vXR+2}, 64, v{vXR}
v_xor_b32 v{vXR+3}, 0x60, v{vXR}
s_cmp_lt_u32 s{sI}, 7
s_waitcnt vmcnt(0) lgkmcnt(0)
s_cbranch_scc1 L_gemm{var}
""")
    a("\n".join([m[2][0], m[1][2], m[3][0], m[2][1], m[2][2], m[3][1], m[3][2]]))
    stamp(1)
    a.c("epilogue: scale Q, pack to bf16 fragments, patch the pad slots, publish")
    for b in range(3):
        pk = 128 + 8 * b
        padp = sKP
        if var == 0:
            padp = sM1
            a(f"s_cmp_lt_u32 s{sT7}, {16-b}\ns_cselect_b64 {s(sM1,2)}, 0, {s(sKP,2)}\ns_cbranch_scc0 L_nosc{b}")
            for r in range(0, 16, 2): a(f"v_pk_mul_f32 {v(ACC+16*b+r,2)}, {v(ACC+16*b+r,2)}, {s(sQS,2)}")
            a.label(f"L_nosc{b}")
        for r in range(8): a(f"v_cvt_pk_bf16_f32 v{pk+r}, v{ACC+16*b+2*r}, v{ACC+16*b+2*r+1}")
        if isv[b]:
            a(f"s_mov_b64 exec, {s(sM1,2)}")
            for r in range(0, 8, 2): a(f"v_mov_b64 {v(pk+r,2)}, {s(sM2,2)}")
        else: a(f"s_mov_b32 exec_lo, 0\nv_mov_b64 {v(pk+6,2)}, {s(padp,2)}")
        o = 2048 * isv[b]
        a(f"""
s_mov_b64 exec, -1
buffer_store_dwordx4 {v(pk,4)}, v1, {srd(WS)}, s{sE0+b} offen offset:{o} sc1
buffer_store_dwordx4 {v(pk+4,4)}, v1, {srd(WS)}, s{sE0+b} offen offset:{o+1024} sc1
""")
    a("s_branch L_conv")

a.label("L_loader")
HELP = f"""
v_mov_b32 v133, {CNT}
v_mov_b32 v134, 0
ds_write_b32 v133, v134
v_min_u32 v133, 2, v130
v_lshl_add_u32 v133, v133, 4, s{sH}
v_mul_u32_u24 v133, 21846, v133
v_lshrrev_b32 v133, 16, v133
v_mov_b32 v134, s{sQT}
v_cmp_gt_u32 vcc, 16, v0
s_lshl_b32 s{sT0}, s{sCG}, 6
s_add_u32 s{sT0}, s{sT0}, s{sRT}
s_lshl_b32 s{sT0}, s{sT0}, {FS}
s_add_u32 s{sFL}, s{sT0}, {FA}
v_cndmask_b32 v134, v139, v134, vcc
v_lshl_add_u32 v133, v133, 4, v134
v_lshlrev_b32 v133, {FS}, v133
v_add_u32 v{vPB}, {FB}, v133
s_mul_i32 s{sT0}, s{sC}, 1171
s_lshr_b32 s{sT0}, s{sT0}, 16
s_lshl2_add_u32 s{sT0}, s{sT0}, s{sG}
s_lshl_b32 s{sT0}, s{sT0}, {4+FS}
s_add_u32 s{sT0}, s{sT0}, {FA}
v_lshl_add_u32 v{vPA}, v139, {FS}, s{sT0}
v_lshrrev_b32 v133, 2, v0
v_mul_u32_u24 v133, 28672, v133
v_lshl_add_u32 v{vUD}, v132, 4, v133
s_mul_i32 s{sT0}, s{sG}, {16*28672}
s_lshl_b32 s{sT1}, s{sC}, 7
s_add_u32 s{sT0}, s{sT0}, s{sT1}
s_add_u32 s{sUO}, s{sT0}, {UU}
v_bfe_u32 v138, v0, 1, 2
v_mul_u32_u24 v138, {HP}, v138
v_and_b32 v139, 1, v0
v_lshl_add_u32 v138, v139, 4, v138
v_add_u32 v139, {UOFF}, v1
v_cmp_gt_u32 vcc, 32, v0
v_mov_b64 v[140:141], 0
v_mov_b64 v[142:143], 0
v_cndmask_b32 v138, v138, v139, vcc
v_add_u32 v139, {LP}, v138
{srdc(((HK, 1835008),))}
s_lshl_b32 s{sT3}, s{sC}, 13
s_lshl_b32 s{sT4}, s{sG}, 10
s_add_u32 s{sT3}, s{sT3}, s{sT4}
v_add_u32 v11, s{sT3}, v1
v_add_u32 v{vHO}, s{sT4}, v1
v_subrev_u32 v12, 8, v11
v_cmp_eq_u32 vcc, 0, v{vHO}
v_mov_b32 v136, 0xffffe000
s_movk_i32 s{sT7}, 4096
v_cndmask_b32 v12, v12, v136, vcc
"""
def hprep(p):
    R = H0 + 8 * p; T = 40 + 12 * p
    a(f"v_add_u32 v{134+p}, {(LP if p else LX)+32}, v{vHO}")
    for i in range(4): a(f"v_alignbit_b32 v{T+i}, v{R+2+i}, v{R+1+i}, 16")
    for i in range(4): a(f"v_mov_b32 v{T+4+i}, v{R+1+i}")
    for i in range(4): a(f"v_alignbit_b32 v{T+8+i}, v{R+1+i}, v{R+i}, 16")
def hwrite(p):
    R = H0 + 8 * p; T = 40 + 12 * p
    a(f"ds_write_b128 v{134+p}, {v(R+2,4)}")
    for c in range(1, 4): a(f"ds_write_b128 v{134+p}, {v(T+4*(c-1),4)} offset:{HP*c}")
    a.c("zero pads: lanes 0-31 the u pad, lanes 32-39 the h pads")
    a(f"ds_write_b128 v{138+p}, {v(140,4)}")
def u_dma():
    a(f"""
s_lshl_b32 s{sT2}, s{sG}, 10
s_add_u32 m0, s{sT2}, {LX+UOFF+512}
s_add_u32 s{sT1}, s{sUO}, 64
buffer_load_dwordx4 v{vUD}, {srd(WS)}, s{sUO} offen sc1 lds
s_add_u32 m0, s{sT2}, {LP+UOFF+512}
s_nop 0
buffer_load_dwordx4 v{vUD}, {srd(WS)}, s{sT1} offen sc1 lds
""")

a(WADDR)
HL = [f"buffer_load_dwordx{2+2*k} {v(H0+8*p+2*k,2+2*k)}, v{12-k}, {srd(HK)}, {s(sT7) if p else 0} offen" for p in range(2) for k in range(2)]
rest = [(0, p) for p in dma_w(0)] + [(st, p) for st in range(1, 7) for p in dma_w(st) + dma_x(st)]
HPOS = 3 + 7 * OPT.get("hst", 4)
rest[HPOS:HPOS] = [(9, x) for x in HL]
rest.append((8, f"buffer_load_dword v144, v{vPA}, {srd(WS)}, 0 offen sc1"))
calc = [x.replace(" | ", "\n") for x in (IDS_U + COMMON + HELP).strip().split("\n") if x.strip()]
NC = min(HPOS, 17); LAGS = [int(x, 36) for x in SOPT.get("lags", "eedc97")]
issued = [0] * 4; n = 0
def bar(n):
    young = len(issued) - 1 - max(k for k, st in enumerate(issued) if st == n)
    if n == 0: stamp(1)
    a(f"s_waitcnt vmcnt({young})\ns_barrier")
    if n < 6: stamp(9 + n, 2)
    if n == 1:
        assert len(issued) >= NC + 4
        a.c("waves 0-3 waited for their u stores before this barrier")
        a(f"s_cmp_lg_u32 s{sW}, 4\ns_cbranch_scc1 L_nsa")
        signal(f"s{sFL}")
        a.label("L_nsa")
for k, (st, p) in enumerate(rest):
    assert st > 7 or "s[8:11]" in p or st - 4 < n - 1
    a(p); issued.append(st)
    if k < NC:
        for x in calc[len(calc) * k // NC: len(calc) * (k + 1) // NC]: a(x)
    if n < 6 and issued.count(n) == 7 and len(issued) - 1 - max(q for q, s_ in enumerate(issued) if s_ == n) >= LAGS[n]:
        bar(n); n += 1
while n < 6: bar(n); n += 1
EARLYH = OPT.get("hst", 4) < 5
if EARLYH: hprep(1); hwrite(1)
bar(6)
a(f"s_waitcnt vmcnt(0)\nv_cmp_ne_u32 vcc, s{sNON}, v144\ns_cbranch_vccz L_uok")
poll(vPA, 144)
a("L_uok:")
u_dma()
stamp(4)
if not EARLYH: hprep(1); hwrite(1)
hprep(0); hwrite(0)
a("s_setprio 1\ns_waitcnt vmcnt(0) lgkmcnt(0)")

a.label("L_conv")
CAC, CU, FA_, FB_ = 16, 48, 64, 128
a.c("---- long causal conv as block-Toeplitz MFMA: channel = wave>>2, lag phases split over wave&3")
a("s_barrier")
stamp(5)
def c_readA(i, r): return [f"ds_read_b64 {v(FA_+32*i+4*r+2*t,2)}, v{vCA} offset:{512*r+64*i+8*t}" for t in range(2)]
def c_readB(i, x): return [f"ds_read_b128 {v(FB_+32*i+4*x,4)}, v{vCB} offset:{512*x+64*(1-i)}"]
def c_m(i, nt, r, first=False): return mfma16(CAC+4*nt, FA_+32*i+4*r, FB_+32*i+4*(nt-r), "0" if first else CAC+4*nt)
lq = LQ()
rds = [x for i in range(2) for k in range(8) for x in c_readA(i, k) + c_readB(i, k)] + [f"ds_read_b128 {v(CU,4)}, v{vCU}"]
for x in rds[:15]: lq(x)
rds = rds[15:]
seen = set(); prev = -1
for k in range(8):
    grp = [(r, x) for r in range(k + 1) for x in range(k + 1) if max(r, x) == k and r + x <= 7]
    while grp:
        r, x = next((p for p in grp if p[0] + p[1] != prev), grp[0]); grp.remove((r, x))
        lq(c_m(0, r + x, r, first=(r + x) not in seen)); seen.add(r + x); prev = r + x
        if rds: lq(rds.pop(0))
assert not rds
stamp(9, 3)
a(f"""
s_cmp_ge_u32 s{sW}, 4
s_cbranch_scc1 L_cm
s_setprio 0
v_mov_b32 v52, {CNT}
v_mov_b32 v53, 1
s_mov_b64 exec, 1
s_waitcnt vmcnt(0)
ds_add_rtn_u32 v53, v52, v53
s_waitcnt lgkmcnt(0)
v_cmp_eq_u32 vcc, 3, v53
s_cbranch_vccz L_cnl
buffer_store_dword v{vNON}, v1, {srd(WS)}, s{sFL} offen sc1
L_cnl:
s_mov_b64 exec, -1
""")
stamp(4)
a.label("L_cm")
lq.drain()
a("s_barrier")
stamp(10, 3)
pend = []; cnt = 0; PP = ((36,), (25, 36), (14, 25, 36))[OPT.get("pp", 3) - 1]
for n0 in range(0, 8, 2):
    ms = []
    for r in range(n0 + 2):
        ms.append(c_m(1, n0 + 1, r))
        if r <= n0: ms.append(c_m(1, n0, r))
    for m_ in ms:
        a(m_); cnt += 1
        pend = [(w, n + 1) for w, n in pend]
        if pend and pend[0][1] >= 8: a(pend.pop(0)[0])
    for nt in (n0, n0 + 1): pend.append((f"ds_write_b128 v{vCW}, {v(CAC+4*nt,4)} offset:{1024*nt}", 0))
for t in range(8):
    m = (7 - t) // 2
    a(f"v_lshlrev_b32 v{56+t}, 16, v{CU+m}" if t % 2 else f"v_and_b32 v{56+t}, 0xffff0000, v{CU+m}")
for w, n in pend: a(w)
stamp(6)
a(f"s_cmp_lg_u32 s{sW}, 4\ns_cbranch_scc1 L_cred")
poll(vPB, 52)
a.label("L_cred")
a("s_waitcnt lgkmcnt(0)\ns_barrier")
stamp(7)
def kv_stage(n):
    a(f"s_add_u32 m0, s{sKL}, {LA+32768*n}\ns_add_u32 s{sSO}, s{sKS}, {32768*n}")
    for i in range(4): a(f"buffer_load_dwordx4 v1, {srd(WS)}, s{sSO} offen offset:{1024*i} sc1 lds")
a.c("behind that barrier every wave knows the QKV flags matched: Q and the first tiles go first")
a(f"""
s_setprio 0
s_lshl_b32 s{sT5}, s{sW}, 10
s_add_u32 m0, s{sT5}, {LR}
s_add_u32 s{sSO}, s{sKVB}, s{sK0}
buffer_load_dwordx4 v1, {srd(WS)}, s{sQO} offen sc1 lds
s_add_u32 m0, s{sK0}, {LA}
s_add_u32 s{sSO2}, s{sSO}, 8192
buffer_load_dwordx4 v1, {srd(WS)}, s{sSO} offen sc1 lds
buffer_load_dwordx4 v1, {srd(WS)}, s{sSO} offen offset:1024 sc1 lds
s_add_u32 m0, s{sK0}, {LA+8192}
""")
for q in range(4):
    for i in range(2): a(f"ds_read_b128 {v(64+8*q+4*i,4)}, v{vCR} offset:{8192*q+256*i}")
a(f"""
buffer_load_dwordx4 v1, {srd(WS)}, s{sSO2} offen sc1 lds
buffer_load_dwordx4 v1, {srd(WS)}, s{sSO2} offen offset:1024 sc1 lds
""")
stamp(11, 3)
a("s_waitcnt lgkmcnt(4)")
for t in range(8): a(f"v_fma_f32 v{56+t}, v{56+t}, v{vD}, v{64+t}")
for t in range(0, 8, 2): a(f"v_pk_add_f32 {v(56+t,2)}, {v(56+t,2)}, {v(72+t,2)}")
a("s_waitcnt lgkmcnt(0)")
for t in range(0, 8, 2): a(f"v_pk_add_f32 {v(80+t,2)}, {v(80+t,2)}, {v(88+t,2)}")
for t in range(0, 8, 2): a(f"v_pk_add_f32 {v(56+t,2)}, {v(56+t,2)}, {v(80+t,2)}")
for m in range(4): a(f"v_cvt_pk_bf16_f32 v{104+m}, v{56+2*m}, v{57+2*m}")
a("v_mov_b64 v[108:109], -1\nv_mov_b64 v[110:111], -1")
stamp(12, 3)
kv_stage(1)
stamp(13, 3)
a("s_waitcnt vmcnt(6)")
stamp(14, 3)

vQ, vK, vV, vP, vSa, vSb, vO, vM, vKC, vZR, vFC = 16, 24, 32, 40, 48, 64, 80, 14, 96, 112, 120
a.c("---- attention: S^T = K Q^T - m (m rides in the pad slots), P = exp2, O^T += V^T P^T (row 28 = sum)")
a(f"""
L_att:
s_cmp_lg_u32 s{sTRY}, 0
s_barrier
""")
stamp(8)
def kvaddr(T, f):
    o = 32768 * ((T >> 2) & 3) + 4096 * (T & 3) + 1024 * f
    return f"v{vB0 if o < 65536 else vB1} offset:{o & 65535}"
def rdK(T, f): return f"ds_read_b128 {v(vK+4*f,4)}, {kvaddr(T, f)}"
def rdV(T, f): return f"ds_read_b128 {v(vV+4*f,4)}, {kvaddr(T, 2+f)}"
def wo_piece(g): return [f"s_add_u32 m0, s{sWM}, {7168*g}", f"s_mov_b32 s{sSO2}, {28672*g}", f"buffer_load_dwordx4 v{vWOA}, {srd(WO)}, s{sSO2} offen lds"]
def pieces(n):
    out = []
    if 2 <= n < 6: out.append(wo_piece(n - 2))
    if n == 1:
        out += [[f"buffer_store_dwordx4 {v(104,4)}, v{vZ}, {srd(WS)}, s{sZO} offen sc1"], [f"buffer_store_dwordx4 {v(108,4)}, v1, {srd(WS)}, s{sCL} offen sc1"]]
    if n < 6:
        for i in range(4):
            p = [f"buffer_load_dwordx4 v1, {srd(WS)}, s{sSO} offen offset:{1024*i} sc1 lds"]
            if i == 0: p = [f"s_add_u32 m0, s{sKL}, {LA+32768*((n+2)&3)}", f"s_add_u32 s{sSO}, s{sKS}, {32768*(n+2)}"] + p
            out.append(p)
    elif n < 8: out = [wo_piece(4 + 5 * (n - 6) + i) for i in range(5)]
    return out
def maxtree(S, dst, have):
    a(f"v_max3_f32 v{dst}, v{S}, v{S+1}, v{dst}" if have else f"v_max_f32 v{dst}, v{S}, v{S+1}")
    for i in range(2, 16, 2): a(f"v_max3_f32 v{dst}, v{S+i}, v{S+i+1}, v{dst}")
p0 = pieces(0)
a(f"""
{rdK(0,0)}
{rdK(0,1)}
{rdV(0,0)}
s_cbranch_scc1 L_havem
ds_read_b128 {v(vQ,4)}, v{vQA}
ds_read_b128 {v(vKC,4)}, v1 offset:{LA}
ds_read_b128 {v(vQ+4,4)}, v{vQA} offset:1024
ds_read_b128 {v(vKC+4,4)}, v1 offset:{LA+1024}
s_waitcnt lgkmcnt(2)
{mfma32(vSb, vKC, vQ, "0")}
s_waitcnt lgkmcnt(0)
{mfma32(vSb, vKC+4, vQ+4, vSb)}
L_havem:
s_waitcnt lgkmcnt(0)
{mfma32(vSa, vK, vQ, "0")}
""")
lq = LQ()
lq(rdK(1, 0))
a(f"s_cmp_lg_u32 s{sTRY}, 0\ns_cbranch_scc1 L_havem2")
maxtree(vSb, vM, False)
a(f"""
L_havem2:
v_mov_b32 v96, v{vM}
v_permlane32_swap_b32 v96, v{vM}
v_max_f32 v{vM}, v96, v{vM}
v_sub_f32 v96, 0, v{vM}
v_and_b32 v97, 0xffff0000, v96
v_sub_f32 v96, v96, v97
v_and_b32 v98, 0xffff0000, v96
v_sub_f32 v96, v96, v98
s_mov_b32 exec_lo, 0
v_alignbit_b32 v{vQ+6}, v98, v97, 16
v_lshrrev_b32 v{vQ+7}, 16, v96
v_and_b32 v{vQ+6}, 0xffff, v{vQ+6}
v_or_b32 v{vQ+6}, v{vQ+6}, v98
s_mov_b32 exec_lo, -1
{mfma32(vSa, vK+4, vQ+4, vSa)}
""".replace(f"v_alignbit_b32 v{vQ+6}, v98, v97, 16", f"v_lshrrev_b32 v{vQ+6}, 16, v97").replace(f"v_and_b32 v{vQ+6}, 0xffff, v{vQ+6}\n", ""))
lq(rdK(1, 1))
a("s_waitcnt vmcnt(4)\ns_barrier")
stamp(9)
PRIO = {0: 3, 7: 2, 12: 1, 15: 0} if OPT.get("prio", 1) else {}
DSL = (0, 3, 6, 9, 12)
todo = dict(zip((8, 10, 12, 14), p0))
firstO = True
for T in range(32):
    S, Sn = (vSa, vSb) if T % 2 == 0 else (vSb, vSa)
    n = (T + 2) >> 2
    if T & 3 == 2:
        if n < 8: a(f"s_waitcnt vmcnt({len(pieces(n-1))})")
        a("s_barrier")
        pc = pieces(n)
        todo = dict(zip(DSL if len(pc) < 6 else (0, 2, 4, 7, 10, 13), pc))
        if n == 8: a(f"s_cmp_lt_u32 s{sW}, 4\ns_cbranch_scc1 L_np\ns_setprio 3\nL_np:")
    for k in range(4):
        sl = (4 * T + k + 8) & 15
        if sl in PRIO and n < 8 or (T, k) == (0, 0): a(f"s_setprio {PRIO.get(sl, 2 if PRIO else 0)}")
        if k < 2:
            if T < 31: lq(mfma32(Sn, vK+4*k, vQ+4*k, Sn if k else "0"))
            if T < 30: lq(rdK(T + 2, k))
        elif k == 2:
            if T > 0: lq(mfma32(vO, vV+4, vP+4, vO))
            lq(rdV(T, 1))
        else:
            lq(mfma32(vO, vV, vP, "0" if T == 0 else vO))
            if T < 31: lq(rdV(T + 1, 0))
        ex = [f"v_exp_f32 v{S+r}, v{S+r}" for r in range(4 * k, 4 * k + 4)]
        cv = [f"v_cvt_pk_bf16_f32 v{vP+r}, v{S+2*r}, v{S+2*r+1}" for r in range(2 * k, 2 * k + 2)]
        p = todo.pop(sl, [])
        body = []
        for e in range(4):
            body.append(ex[e])
            if e < len(p): body.append(p[e])
        a("\n".join(body + cv))
        if sl == 1 and n == 3:
            a(f"s_cmp_eq_u32 s{sW}, 7\ns_cbranch_scc1 L_sigc\nL_sigc_r:")
        if sl == 1 and n == 4:
            a(f"s_cmp_ge_u32 s{sW}, 4\ns_cbranch_scc1 L_ldq\nL_ldq_r:")
        if sl == 15 and n == 5:
            a.c("flags of all workgroups' z and slot marks (one word each)")
            a(f"s_movk_i32 s{sT0}, {FC}\nbuffer_load_dwordx4 {v(vFC,4)}, v1, {srd(WS)}, s{sT0} offen sc1")
        if sl == 1 and n == 7:
            a(f"s_cmp_ge_u32 s{sW}, 4\ns_cbranch_scc1 L_chkc\nL_chkc_r:")
lq(mfma32(vO, vV+4, vP+4, vO))
a("s_setprio 0")
stamp(10)
a(f"""
s_mov_b32 s{sT2}, 0x5f800000
v_mov_b64 v[100:101], 0
v_mov_b64 v[102:103], 0
s_and_b32 s{sT1}, s{sW}, 1
s_mul_i32 s{sT1}, s{sT1}, 768
s_add_u32 s{sT1}, s{sT1}, {448*224}
v_add_u32 v99, s{sT1}, v1
s_cmp_lt_u32 s{sW}, 4
s_cbranch_scc1 L_mA
ds_write_b128 v99, {v(100,4)}
""")
for i in range(4): a(f"ds_write_b128 v{vMG}, {v(vO+4*i,4)} offset:{1024*i}")
a(f"""
L_mA:
v_cmp_nle_f32 vcc, v{vO+12}, s{sT2}
v_mov_b32 v98, vcc_hi
ds_write_b32 v{vBW}, v98
s_waitcnt vmcnt(0) lgkmcnt(0)
s_barrier
ds_read_b32 v98, v{vBR}
s_cbranch_scc0 L_mB
""")
for i in range(4): a(f"ds_read_b128 {v(vSa+4*i,4)}, v{vMG} offset:{1024*i}")
a(f"""
L_mB:
s_waitcnt lgkmcnt(0)
v_cmp_lt_u32 vcc, s{sTRY}, v98
s_cbranch_vccnz L_fallback
s_cbranch_scc0 L_gate
""")
a(f"""
v_add_f32 v96, v{vO+12}, v{vSa+12}
v_add_f32 v97, v{vO+12}, v{vSa+12}
""")
for r in range(0, 4, 2): a(f"v_pk_add_f32 {v(vO+r,2)}, {v(vO+r,2)}, {v(vSa+r,2)}")
a(f"v_permlane32_swap_b32 v96, v97\nv_rcp_f32 v96, v97")
for r in range(4, 16, 2): a(f"v_pk_add_f32 {v(vO+r,2)}, {v(vO+r,2)}, {v(vSa+r,2)}")
for hf in range(2):
    for r in range(8*hf, 8*hf+8, 2): a(f"v_pk_mul_f32 {v(vO+r,2)}, {v(vO+r,2)}, v[96:97] op_sel_hi:[1,0]")
    for r in range(4*hf, 4*hf+4): a(f"v_cvt_pk_bf16_f32 v{vP+r}, v{vO+2*r}, v{vO+2*r+1}")
    if hf: a(f"s_mov_b32 exec_lo, 0\nv_mov_b64 {v(vP+6,2)}, 0\ns_mov_b32 exec_lo, -1")
    a(f"buffer_store_dwordx4 {v(vP+4*hf,4)}, v1, {srd(WS)}, s{sOO} offen offset:{1024*hf} sc1")
stamp(11)
WFR, OB, OA = 112, 16, 48
a(f"""
v_bfe_u32 v96, v0, 2, 2
v_lshrrev_b32 v97, 5, v0
v_lshl_add_u32 v96, v96, 1, v97
v_mul_u32_u24 v96, 224, v96
v_bfe_u32 v98, v0, 4, 1
v_lshl_add_u32 v96, v98, 5, v96
v_and_b32 v98, 3, v0
v_lshl_add_u32 v96, v98, 3, v96
s_lshl_b32 s{sT2}, s{sG}, 6
v_add_u32 v2, s{sT2}, v96
v_mul_u32_u24 v99, {6*224}, v97
v_add_u32 v3, v99, v2
v_add_u32 v9, {8*28*224}, v2
v_add_u32 v10, {8*28*224}, v3
""")
for h in range(16):
    for s_ in range(2):
        for t in range(2):
            Qd = 7 * (h & 7) + 4 * s_ + 2 * t
            a(f"ds_read_b64_tr_b16 {v(WFR+8*h+4*s_+2*t,2)}, v{(2, 3, 9, 10)[(h&1) + 2*(h>>3)]} offset:{(8*(Qd>>1) + (Qd&1))*224}")
a(f"""
v_add_u32 v5, {LR}, v1
v_and_b32 v99, 31, v0
v_mul_u32_u24 v99, 80, v99
v_lshl_add_u32 v99, v97, 3, v99
s_mul_i32 s{sT0}, s{sG}, 4096
s_add_u32 s{sT0}, s{sT0}, {MERGE}
v_add_u32 v6, s{sT0}, v99
v_lshrrev_b32 v99, 2, v0
v_mul_u32_u24 v100, 80, v99
v_lshl_add_u32 v100, v98, 4, v100
v_add_u32 v7, s{sT0}, v100
v_mul_u32_u24 v100, 1792, v99
v_lshl_add_u32 v8, v98, 4, v100
s_mul_i32 s{sT0}, s{sRT}, {32*1792}
s_mul_i32 s{sT1}, s{sCG}, 224
s_add_u32 s{sT0}, s{sT0}, s{sT1}
s_add_u32 s{sT0}, s{sT0}, s{sT2}
s_add_u32 s{sT1}, s{sT0}, {16*1792}
s_cmp_eq_u32 s{sG}, 3
s_cselect_b32 s{sM1}, 0x33333333, -1
s_mov_b32 s{sM1+1}, s{sM1}
s_waitcnt lgkmcnt(0)
""")
stamp(12)
lq = LQ()
held = []
for k in range(4):
    ob = OB if k % 2 == 0 else 64
    a("s_barrier")
    if k == 0: stamp(13)
    for f in range(8):
        lq(f"ds_read_b128 {v(ob+4*f,4)}, v5 offset:{8192*k+1024*f}")
        if f % 3 == 0 and held: lq(held.pop(0))
    ms = [mfma32(OA, WFR+32*k+4*f, ob+4*f, "0" if k == 0 and f == 0 else OA) for f in range(8)]
    cut = 5 if k < 3 else 8
    for m_ in ms[:cut]: lq(m_)
    held = ms[cut:]
for r in range(8): a(f"v_cvt_pk_bf16_f32 v{16+r}, v{OA+2*r}, v{OA+2*r+1}")
for m in range(4): a(f"ds_write_b64 v6, {v(16+2*m,2)} offset:{16*m}")
a(f"""
s_waitcnt lgkmcnt(0)
ds_read_b128 {v(24,4)}, v7
ds_read_b128 {v(28,4)}, v7 offset:{16*80}
s_mov_b64 exec, s[{sM1}:{sM1+1}]
s_waitcnt lgkmcnt(1)
buffer_store_dwordx4 {v(24,4)}, v8, {srd(OUT)}, s{sT0} offen
s_waitcnt lgkmcnt(0)
buffer_store_dwordx4 {v(28,4)}, v8, {srd(OUT)}, s{sT1} offen
""")
stamp(14)
a("s_branch L_fin" if DIAG else "s_endpgm")

a.label("L_gate")
a(f"""
s_mul_i32 s{sT5}, s{sRT}, {32*896}
s_add_u32 s{sT5}, s{sT5}, 896
""")
for i in range(8): a(f"v_lshlrev_b32 v{16+2*i}, 16, v{QR+i}\nv_and_b32 v{17+2*i}, 0xffff0000, v{QR+i}")
for t in range(8):
    for p in range(2):
        src = vZR + 4 * p + t // 2
        a(f"v_lshlrev_b32 v{32+2*t+p}, 16, v{src}" if t % 2 == 0 else f"v_and_b32 v{32+2*t+p}, 0xffff0000, v{src}")
for t in range(8): a(f"v_pk_mul_f32 {v(32+2*t,2)}, {v(32+2*t,2)}, {v(16+2*t,2)}")
for t in range(8): a(f"v_cvt_pk_bf16_f32 v{56+t}, v{32+2*t}, v{33+2*t}")
def gate_st():
    for t in range(8):
        a(f"buffer_store_dword v{56+t}, v{vGO}, {srd(OUT)}, s{sT5} offen offset:{1792*(t&1)}")
        if t & 1 and t < 7: a(f"s_add_u32 s{sT5}, s{sT5}, 3584")
if not OPT.get("gl"): gate_st()
stamp(11)
a.c("O fragments: every word differs from the all-ones mark once its producer's store has landed")
OL = 64
a(f"""
s_lshl_b32 s{sT0}, s{sRT}, 15
s_lshl_b32 s{sT1}, s{sG}, 11
s_add_u32 s{sT0}, s{sT0}, s{sT1}
s_add_u32 s{sT0}, s{sT0}, {OF}
s_add_u32 s{sT1}, s{sT0}, 8192
s_add_u32 s{sT2}, s{sT0}, 16384
s_add_u32 s{sT3}, s{sT0}, 24576
s_mov_b32 s{sSP}, {SPIN}
""")
def o_issue(k0):
    for k in range(k0, 4):
        for i in range(2): a(f"buffer_load_dwordx4 {v(OL+8*k+4*i,4)}, v1, {srd(WS)}, s{sT0+k} offen offset:{1024*i} sc1")
o_issue(0)
for k in range(4):
    r = OL + 8 * k
    a(f"""
L_ochk{k}:
s_waitcnt vmcnt({6-2*k})
v_max3_u32 v96, v{r}, v{r+1}, v{r+2}
v_max3_u32 v97, v{r+3}, v{r+4}, v{r+5}
v_max3_u32 v96, v{r+6}, v{r+7}, v96
v_max_u32 v96, v96, v97
v_cmp_eq_u32 vcc, -1, v96
s_cbranch_vccnz L_oretry{k}
L_ogo{k}:
ds_write_b128 v{vQA}, {v(r,4)} offset:{8192*k}
ds_write_b128 v{vQA}, {v(r+4,4)} offset:{8192*k+1024}
s_waitcnt lgkmcnt(0)
s_barrier
""")
    if k == 0: stamp(12)
stamp(13)
if OPT.get("gl"): gate_st()
a.label("L_fin")
if DIAG:
    a(f"s_mov_b64 exec, -1\ns_mov_b32 s{sST+15}, s98")
    a(f"s_lshl_b32 s{sT0}, s2, 3\ns_add_u32 s{sT0}, s{sT0}, s{sW}\ns_lshl_b32 s{sT0}, s{sT0}, 6\ns_add_u32 s{sT0}, s{sT0}, {DG}\nv_lshlrev_b32 v96, 2, v0")
    for k in range(16): a(f"v_writelane_b32 v97, s{sST+k}, {k}")
    a(f"s_mov_b64 exec, 0xffff\nbuffer_store_dword v97, v96, {srd(WS)}, s{sT0} offen")
if "probe" in OPT:
    a(f"""
s_cmp_lg_u32 s2, {OPT.get("pwg", 100)}
s_cbranch_scc1 L_end
s_cmp_lg_u32 s{sW}, {OPT.get("pw", 0)}
s_cbranch_scc1 L_end
s_sub_u32 s{sT0}, s{sST+OPT["probe"]}, s98
s_lshl_b32 s{sT0}, s{sT0}, 2
s_add_u32 s{sT0}, s{sT0}, 4000
s_min_u32 s{sT0}, s{sT0}, 20000
L_probe:
s_memrealtime s[96:97]
s_waitcnt lgkmcnt(0)
s_sub_u32 s96, s96, s98
s_cmp_lt_u32 s96, s{sT0}
s_cbranch_scc1 L_probe
""")
a.label("L_end")
a("s_endpgm")
for k in range(4):
    a(f"L_oretry{k}:\ns_sub_u32 s{sSP}, s{sSP}, 1\ns_cbranch_scc1 L_ogo{k}".replace(f"s_cbranch_scc1 L_ogo{k}", f"s_cselect_b32 s{sSP}, 0, s{sSP}\ns_cbranch_scc1 L_ogo{k}"))
    o_issue(k)
    a(f"s_branch L_ochk{k}")

a(f"""
L_sigc:
s_lshl_b32 s{sT0}, s2, 2
s_add_u32 s{sT0}, s{sT0}, {FC}
""")
signal(f"s{sT0}")
a(f"s_branch L_sigc_r\nL_ldq:\ns_movk_i32 s{sT5}, 3584")
for i in range(8): a(f"buffer_load_dword v{QR+i}, v{vGA}, {srd(Q_)}, {'0' if i<4 else s(sT5)} offen offset:{896*(i&3)}")
a(f"""
s_branch L_ldq_r
L_chkc:
s_mov_b32 s{sSP}, {SPIN}
L_chkc1:
v_xor_b32 v{vFC}, s{sNON}, v{vFC}
v_xor_b32 v{vFC+1}, s{sNON}, v{vFC+1}
v_xor_b32 v{vFC+2}, s{sNON}, v{vFC+2}
v_or3_b32 v{vFC}, v{vFC}, v{vFC+1}, v{vFC+2}
v_xor_b32 v{vFC+3}, s{sNON}, v{vFC+3}
v_or_b32 v{vFC}, v{vFC}, v{vFC+3}
v_cmp_ne_u32 vcc, 0, v{vFC}
s_cbranch_vccnz L_chkc3
L_chkc2:
buffer_load_dwordx4 {v(vZR,4)}, v{vZL}, {srd(WS)}, s{sUT} offen sc1
buffer_load_dwordx4 {v(vZR+4,4)}, v{vZL}, {srd(WS)}, s{sUT} offen offset:64 sc1
s_add_u32 s{sT1}, s2, s{sG}
s_cmp_lg_u32 s{sT1}, 0
s_cbranch_scc1 L_chkc_r
""")
a.c("workgroup 0 advances the epoch word: every workgroup is known to have read it")
signal("0")
a(f"""
s_branch L_chkc_r
L_chkc3:
s_sub_u32 s{sSP}, s{sSP}, 1
s_cbranch_scc1 L_chkc2
buffer_load_dwordx4 {v(vFC,4)}, v1, {srd(WS)}, s{sT0} offen sc1
s_waitcnt vmcnt(0)
s_branch L_chkc1
""")

a.label("L_fallback")
a(f"""
s_mov_b32 s{sTRY}, -1
s_barrier
""")
kv_stage(0); kv_stage(1)
a(f"""
s_mov_b32 exec_lo, 0
v_mov_b32 v{vQ+6}, 0
v_mov_b32 v{vQ+7}, 0
s_mov_b32 exec_lo, -1
v_mov_b32 v{vM}, 0xff800000
s_mov_b32 s{sT3}, s{sKVB}
s_mov_b32 s{sI}, 0
L_fb1:
buffer_load_dwordx4 {v(vK,4)}, v1, {srd(WS)}, s{sT3} offen sc1
buffer_load_dwordx4 {v(vK+4,4)}, v1, {srd(WS)}, s{sT3} offen offset:1024 sc1
s_waitcnt vmcnt(0)
{mfma32(vSb, vK, vQ, "0")}
{mfma32(vSb, vK+4, vQ+4, vSb)}
s_add_u32 s{sT3}, s{sT3}, 4096
s_add_u32 s{sI}, s{sI}, 1
""")
maxtree(vSb, vM, True)
a(f"""
s_cmp_lt_u32 s{sI}, 64
s_cbranch_scc1 L_fb1
s_branch L_att
L_codeend:
""")

import subprocess
body0 = pad(a.l, verbose="v" in sys.argv)
def emit(pfs, fill):
    body = [l.replace("@@PFS@@", str(pfs)) for l in body0]
    hdr = open("cdna_kernels/" + NAME + ".s.ref").read().split("; Override launch")[0]
    return hdr + f"""; One persistent launch, one workgroup per CU; phases hand data over through d_ws with tagged flags.
; @launch grid=(256,1,1) block=(512,1,1) lds=163840
.amdgcn_target "amdgcn-amd-amdhsa--gfx950"
.text
.globl {NAME}_kernel
.p2align 8
.type {NAME}_kernel,@function
""" + "\n".join(body) + f"""
    .fill {fill}, 4, 0xbf810000
.section .rodata,"a"
.p2align 6
.amdhsa_kernel {NAME}_kernel
  .amdhsa_next_free_vgpr 256
  .amdhsa_next_free_sgpr 102
  .amdhsa_accum_offset 256
  .amdhsa_group_segment_fixed_size 0
  .amdhsa_kernarg_size 96
  .amdhsa_user_sgpr_count 2
  .amdhsa_user_sgpr_kernarg_segment_ptr 1
  .amdhsa_system_sgpr_workgroup_id_x 1
.end_amdhsa_kernel
"""
def size_of(txt):
    open("_sz.s", "w").write(txt)
    subprocess.run(["clang", "-x", "assembler", "-target", "amdgcn-amd-amdhsa", "-mcpu=gfx950", "-c", "_sz.s", "-o", "_sz.o"], check=True)
    o = subprocess.run(["llvm-objdump", "-t", "_sz.o"], capture_output=True, text=True).stdout
    return [int(l.split()[0], 16) for l in o.splitlines() if l.endswith("L_codeend")][0]
sz = size_of(emit(40, 1))
pfs = OPT.get("pfs", (sz + 2047) // 2048 * 4)
assert pfs <= 64
print("code bytes", sz, "prefetch stride", pfs)
open(sys.argv[1], "w").write(emit(pfs, max(1, (pfs * 512 - sz + 3) // 4)))
```

```python
import sys, struct, math
from asmlib import *

NAME = "concat_heads__softmax_full_mha__ssm_conv_h3__prompt"
DIAG = "diag" in sys.argv
SOPT = dict(a.split("=") for a in sys.argv[2:] if "=" in a)
OPT = {k: int(x) for k, x in SOPT.items() if x.isdigit()}
OPT.setdefault("rt", 40404040)
SPIN = 1 << 16

FA, FB, FC = 0x40000, 0x60000, 0x3000
FS = OPT.get('fs', 4)
QF, KV, UU, ZZ, OF, WSEND = 0x100000, 0x300000, 0x700000, 0x900000, 0xB00000, 0xD00000
DG = 0x10000
LX, LA, LB, LP, LR = 0, 32768, 65536, 98304, 131072
HP, UOFF = 4160, 16640
MERGE, BADF = LP + 4096, LP + 3968
ONES = 0x3f803f80
def fbits(x): return struct.unpack("<I", struct.pack("<f", x))[0]
QSCALE = fbits(28 ** -0.5 * math.log2(math.e))

X_, WQ, WO, Q_, K_, V_, SK, HK, OUT, WS = 4, 8, 12, 16, 20, 24, 28, 32, 36, 40
sDP, sNON, sW = 44, 46, 47
sJ, sTT, sRT, sCG, sC, sH, sQT, sG = 48, 49, 50, 51, 52, 53, 54, 55
sED, sT0, sT1, sT2, sT3, sT4, sT5, sT6, sT7 = 56, 57, 58, 59, 60, 61, 62, 63, 64
sI, sSO, sSO2, sLW, sLX, sTRY, sSP, sCB = 65, 66, 67, 68, 69, 70, 71, 72
sDV, sM1, sM2 = 73, 74, 76
sKVB, sWM = 78, 79
sFL, sE0, sE1, sE2, sKP, sZO, sOO, sKL, sUO, sQO, sUT, sKS = 20, 21, 22, 23, 24, 26, 27, 28, 29, 30, 31, 3
sUS, sCL, sK0 = 29, 44, 45
sQS = 34
sST = 80
def srd(b): return s(b, 4)

a = Asm()
def stamp(k, st=None):
    if not DIAG: return
    if st is None and k >= 9: st = 0
    if st is not None and st != OPT.get("set", 0): return
    a(f"{'s_memtime' if OPT.get('cyc') else 's_memrealtime'} s[96:97]\ns_waitcnt lgkmcnt(0)\ns_mov_b32 s{sST+k}, s96")

npoll = [0]
def poll(vaddr, vtmp):
    n = npoll[0]; npoll[0] += 1
    a(f"""
s_mov_b32 s{sSP}, {SPIN}
L_poll{n}:
buffer_load_dword v{vtmp}, v{vaddr}, {srd(WS)}, 0 offen sc1
s_waitcnt vmcnt(0)
v_cmp_ne_u32 vcc, s{sNON}, v{vtmp}
s_cbranch_vccz L_pollok{n}
s_sub_u32 s{sSP}, s{sSP}, 1
s_cbranch_scc0 L_poll{n}
L_pollok{n}:
""")
vNON = 15
def signal(soff):
    a(f"s_mov_b64 exec, 1\nbuffer_store_dword v{vNON}, v1, {srd(WS)}, {soff} offen sc1\ns_mov_b64 exec, -1")

def mfma32(d, A, B, C): return f"v_mfma_f32_32x32x16_bf16 {v(d,16)}, {v(A,4)}, {v(B,4)}, {C if isinstance(C,str) else v(C,16)}"
def mfma16(d, A, B, C): return f"v_mfma_f32_16x16x32_bf16 {v(d,4)}, {v(A,4)}, {v(B,4)}, {C if isinstance(C,str) else v(C,4)}"

class LQ:
    def __init__(self): self.q = []
    def __call__(self, txt):
        for t in txt.strip("\n").split("\n"):
            i = Ins(t)
            if not i.mn: a(t); continue
            last = max([k for k, w in enumerate(self.q) if w & (i.rd | (i.wr if not i.ds else set()))], default=-1)
            if last >= 0:
                n = min(15, len(self.q) - 1 - last)
                a(f"s_waitcnt lgkmcnt({n})"); self.q = self.q[len(self.q) - n:]
            a(t)
            if i.ds: self.q.append(vset(i.wr))
    def drain(self, n=0):
        if len(self.q) > n:
            a(f"s_waitcnt lgkmcnt({n})"); self.q = self.q[len(self.q) - n:]

vXD, vWD, vXR, vWR, vXB = 2, 6, 9, 13, 14
ACC, RS = 16, 64
vCA, vCB, vCW, vCR, vCU, vZ, vD = 192, 193, 194, 195, 196, 197, 198
vB0, vB1, vQA, vWOA, vMG, vBW, vBR = 199, 200, 201, 202, 203, 204, 205
vPA, vUD, vPB, vZL, vGO, vGA = 206, 207, 208, 209, 210, 211
vHO, vCP = 10, 129
KR, VR, SR, KF, WF, UA, VF, UP = 140, 152, 160, 164, 212, 220, 64, 236
H0, QR = 112, 240
def srdc(lst): return "\n".join(f"s_mov_b32 s{b+2}, {n}\ns_mov_b32 s{b+3}, 0x20000" for b, n in lst)
def karg(lst): return "\n".join(f"s_load_dwordx2 s[{b}:{b+1}], s[0:1], {o}" for b, o in lst)
a.label(NAME + "_kernel")
if DIAG: a(f"{'s_memtime' if OPT.get('cyc') else 's_memrealtime'} s[98:99]")
a(f"""
s_cmp_ge_u32 s2, 256
s_cbranch_scc1 L_end
{karg(((K_, 32), (X_, 0), (V_, 40), (SK, 48), (WQ, 8), (WS, 88), (sDP, 64)))}
s_getpc_b64 s[{sT5}:{sT6}]
L_pc:
v_lshrrev_b32 v1, 6, v0
v_and_b32 v0, 63, v0
s_bfe_u32 s{sT0}, s2, 0x30003
v_lshl_add_u32 v2, s{sT0}, 6, v0
s_sub_u32 s{sT5}, s{sT5}, L_pc-{NAME}_kernel
s_subb_u32 s{sT6}, s{sT6}, 0
v_mul_u32_u24 v2, @@PFS@@, v2
v_mov_b32 v3, s{sT6}
v_add_co_u32 v2, vcc, s{sT5}, v2
v_readfirstlane_b32 s{sW}, v1
v_lshrrev_b32 v130, 4, v0
v_addc_co_u32 v3, vcc, 0, v3, vcc
global_load_dword v255, v[2:3], off
s_and_b32 s{sG}, s{sW}, 3
s_cmp_lt_u32 s{sW}, 4
s_cbranch_scc1 L_uprep
""")
IDS_U = f"""
s_and_b32 s{sT2}, s2, 7
s_lshr_b32 s{sT3}, s2, 5
s_lshl3_add_u32 s{sRT}, s{sT2}, s{sT3}
s_bfe_u32 s{sCG}, s2, 0x20003
v_and_b32 v{vCP}, 15, v0
v_min_u32 v{vCP}, 13, v{vCP}
s_lshl2_add_u32 s{sT0}, s{sCG}, s{sG}
s_mul_i32 s{sT1}, s{sT0}, 56
s_mul_i32 s{sT2}, s{sRT}, {32*896}
s_add_u32 s{sT2}, s{sT2}, s{sT1}
v_mul_u32_u24 v{vGO}, {8*896}, v130
v_lshl_add_u32 v132, v{vCP}, 2, v{vGO}
v_add_u32 v{vGA}, s{sT2}, v132
"""
IDS_G = f"""
s_and_b32 s{sT2}, s2, 1
s_bfe_u32 s{sT3}, s2, 0x30003
s_lshl3_add_u32 s{sJ}, s{sT2}, s{sT3}
s_bfe_u32 s{sT2}, s2, 0x20001
s_lshr_b32 s{sT3}, s2, 6
s_lshl2_add_u32 s{sT2}, s{sT2}, s{sT3}
s_lshl2_add_u32 s{sTT}, s{sT2}, s{sG}
s_and_b32 s{sT2}, s{sG}, 1
s_lshr_b32 s{sT3}, s{sG}, 1
s_lshl2_add_u32 s{sT2}, s{sT3}, s{sT2}
s_add_u32 s{sT2}, s{sT2}, 4
s_lshl_b32 s{sLX}, s{sT2}, 14
"""
COMMON = f"""
v_lshlrev_b32 v1, 4, v0
s_sub_u32 s{sT2}, s2, 32
s_cmp_lt_u32 s2, 224 | s_cselect_b32 s{sC}, s2, s{sT2}
s_load_dword s{sED}, s[{WS}:{WS+1}], 0
s_lshl_b32 s{sT0}, s{sC}, 2
s_load_dword s{sDV}, s[{sDP}:{sDP+1}], s{sT0}
{karg(((HK, 56), (WO, 16), (Q_, 24), (OUT, 72)))}
{srdc(((WO, 401408), (Q_, 1835008), (OUT, 3670016), (WS, WSEND)))}
v_add_u32 v{vGO}, v{vGO}, v{vGA}
v_lshlrev_b32 v133, 7, v{vCP}
v_lshl_add_u32 v{vZL}, v130, 4, v133
s_lshl2_add_u32 s{sT4}, s{sCG}, s{sG}
s_mul_i32 s{sT1}, s{sT4}, 1792
s_mul_i32 s{sT3}, s{sRT}, 28672
s_add_u32 s{sUT}, s{sT1}, s{sT3}
s_add_u32 s{sUT}, s{sUT}, {ZZ}
s_and_b32 s{sT2}, s2, 7
s_lshr_b32 s{sT3}, s2, 7
s_lshl1_add_u32 s{sH}, s{sT2}, s{sT3}
s_bfe_u32 s{sQT}, s2, 0x40003
s_mov_b32 s{sTRY}, 0
s_lshr_b32 s{sT7}, s{sW}, 2
s_mul_i32 s{sCB}, s{sT7}, {LP}
v_and_b32 v132, 3, v0
v_sub_u32 v133, 3, v132
v_mul_u32_u24 v133, {HP}, v133
v_and_b32 v134, 12, v0
v_lshl_add_u32 v133, v134, 1, v133
v_and_b32 v134, 0x30, v0
v_sub_u32 v133, v133, v134
s_lshl_b32 s{sT0}, s{sG}, 7
s_add_u32 s{sT1}, s{sT0}, s{sCB}
s_add_u32 s{sT1}, s{sT1}, 56
v_add_u32 v{vCA}, s{sT1}, v133
v_and_b32 v139, 15, v0
v_lshl_add_u32 v133, v139, 5, v134
s_sub_u32 s{sT1}, s{sCB}, s{sT0}
s_add_u32 s{sT1}, s{sT1}, {UOFF+512-96}
v_add_u32 v{vCB}, s{sT1}, v133
v_lshrrev_b32 v131, 5, v0
v_lshlrev_b32 v133, 7, v131
v_xor_b32 v133, v133, v1
s_lshl_b32 s{sT0}, s{sG}, 13
s_add_u32 s{sT0}, s{sT0}, s{sCB}
v_add_u32 v{vCW}, s{sT0}, v133
v_bfe_u32 v135, v0, 2, 1
v_mul_u32_u24 v136, {LP}, v135
v_lshrrev_b32 v137, 3, v0
v_lshl_add_u32 v138, v137, 2, v132
v_lshrrev_b32 v133, 1, v138
v_and_b32 v134, 1, v0
v_mul_u32_u24 v134, 40, v134
v_xor_b32 v133, v133, v134
v_lshl_add_u32 v133, v133, 4, v136
s_lshl_b32 s{sT0}, s{sW}, 10
v_add_u32 v{vCR}, s{sT0}, v133
v_lshl_add_u32 v133, v138, 4, v136
s_lshl_b32 s{sT0}, s{sW}, 9
s_add_u32 s{sT0}, s{sT0}, {UOFF+512}
v_add_u32 v{vCU}, s{sT0}, v133
v_mul_u32_u24 v133, 28672, v137
v_and_b32 v134, 7, v0
v_lshl_add_u32 v{vZ}, v134, 4, v133
v_lshlrev_b32 v134, 2, v134
v_add_u32 v{vBR}, {BADF}, v134
s_mul_i32 s{sT0}, s{sW}, {8*28672}
s_lshl_b32 s{sT1}, s{sC}, 7
s_add_u32 s{sT0}, s{sT0}, s{sT1}
s_add_u32 s{sZO}, s{sT0}, {ZZ}
s_lshl_b32 s{sKVB}, s{sH}, 18
s_add_u32 s{sKVB}, s{sKVB}, {KV}
s_lshl_b32 s{sKL}, s{sW}, 12
s_add_u32 s{sKS}, s{sKVB}, s{sKL}
s_min_u32 s{sT0}, s{sW}, 6
s_lshl_b32 s{sWM}, s{sT0}, 10
s_lshl_b32 s{sT1}, s{sT0}, 6
v_add_u32 v133, s{sT1}, v0
v_mul_u32_u24 v134, 4682, v133
v_lshrrev_b32 v134, 16, v134
v_mul_u32_u24 v136, 14, v134
v_sub_u32 v133, v133, v136
v_bfe_u32 v136, v134, 1, 2
v_and_b32 v138, 1, v134
v_lshl_add_u32 v136, v138, 2, v136
v_and_or_b32 v134, v134, 24, v136
v_mul_u32_u24 v134, 896, v134
v_lshl_add_u32 v133, v133, 4, v134
s_mul_i32 s{sT1}, s{sCG}, 224
v_add_u32 v{vWOA}, s{sT1}, v133
s_lshl_b32 s{sT0}, s{sT7}, 14
s_add_u32 s{sT0}, s{sT0}, {LA}
v_add_u32 v{vB0}, s{sT0}, v1
v_add_u32 v{vB1}, 0x10000, v{vB0}
s_lshl_b32 s{sT0}, s{sG}, 11
s_add_u32 s{sT0}, s{sT0}, {LR}
v_add_u32 v{vQA}, s{sT0}, v1
s_lshl_b32 s{sT0}, s{sG}, 12
s_add_u32 s{sT0}, s{sT0}, {MERGE}
v_add_u32 v{vMG}, s{sT0}, v1
s_lshl_b32 s{sT1}, s{sW}, 2
s_add_u32 s{sT1}, s{sT1}, {BADF}
v_mov_b32 v{vBW}, s{sT1}
s_lshl_b32 s{sT3}, s{sQT}, 2
s_add_u32 s{sT3}, s{sT3}, s{sG}
s_lshl_b32 s{sT0}, s{sT3}, 4
s_add_u32 s{sT0}, s{sT0}, s{sH}
s_lshl_b32 s{sT0}, s{sT0}, 11
s_add_u32 s{sOO}, s{sT0}, {OF}
s_lshl4_add_u32 s{sT0}, s{sH}, s{sQT}
s_lshl3_add_u32 s{sT0}, s{sT0}, s{sW}
s_lshl_b32 s{sT0}, s{sT0}, 10
s_add_u32 s{sQO}, s{sT0}, {QF}
v_cmp_eq_u32 vcc, 0, v135
s_waitcnt lgkmcnt(0)
s_mul_i32 s{sNON}, s{sED}, 1664525
s_add_u32 s{sNON}, s{sNON}, 1013904223
s_lshl_b32 s{sT0}, s{sDV}, 16
s_and_b32 s{sT1}, s{sDV}, 0xffff0000
v_mov_b32 v133, s{sT0}
v_mov_b32 v134, s{sT1}
v_cndmask_b32 v{vD}, v134, v133, vcc
v_mov_b32 v{vNON}, s{sNON}
s_lshl_b32 s{sT0}, s{sT7}, 10
s_add_u32 s{sCL}, s{sOO}, s{sT0}
s_lshl3_add_u32 s{sT0}, s{sT7}, s{sG}
s_lshl_b32 s{sK0}, s{sT0}, 11
"""
CNT = 65520

a(IDS_G + srdc(((X_, 1835008), (WQ, 1204224))) + f"""
v_lshrrev_b32 v128, 3, v0
s_lshl_b32 s{sT0}, s{sTT}, 5
v_add_u32 v128, s{sT0}, v128
v_mul_u32_u24 v128, 896, v128
v_and_b32 v129, 7, v0
v_xor_b32 v129, v129, v130
v_lshl_add_u32 v{vXD}, v129, 4, v128
v_xor_b32 v129, 4, v129
v_lshl_add_u32 v{vXD+1}, v129, 4, v128
v_add_u32 v{vXD+1}, {7168-1024}, v{vXD+1}
v_add_u32 v{vXD+2}, {14336-2048}, v{vXD}
v_add_u32 v{vXD+3}, {14336-2048}, v{vXD+1}
""")
if OPT.get("rt"): a(f"""
s_lshr_b32 s{sT3}, s2, 6
s_mul_i32 s{sT3}, s{sT3}, {OPT.get("rc", 1)}
s_add_u32 s{sT3}, s{sT3}, s{sJ}
s_and_b32 s{sT3}, s{sT3}, 7
s_lshl_b32 s{sT3}, s{sT3}, 2
s_lshr_b32 s{sI}, {int(str(OPT["rt"]), 16):#x}, s{sT3}
s_and_b32 s{sI}, s{sI}, 7
""")
a("s_waitcnt lgkmcnt(0)")
stamp(0)
def wbase(st): return LP + 12288 * st if st < 2 else 12288 * (st - 2)
RT = OPT["rt"]
def rot(dst, st, mul):
    if not RT: return f"s_mov_b32 s{dst}, {st*mul}\n"
    return f"s_add_u32 s{dst}, s{sI}, {st}\ns_cmp_ge_u32 s{dst}, 7\ns_cselect_b32 s{sSP}, 7, 0\ns_sub_u32 s{dst}, s{dst}, s{sSP}\ns_mul_i32 s{dst}, s{dst}, {mul}\n"
def dma_x(st):
    p = [f"buffer_load_dwordx4 v{vXD+i}, {srd(X_)}, s{sSO} offen offset:{1024*i} lds" for i in range(4)]
    p[0] = f"s_add_u32 m0, s{sLX}, {4096*(st&3)}\n" + rot(sSO, st, 128) + p[0]
    return p
def dma_w(st):
    p = [f"buffer_load_dwordx4 v{vWD+q}, {srd(WQ)}, s{sSO2} offen offset:{1024*q} lds" for q in range(3)]
    p[0] = f"s_add_u32 m0, s{sLW}, {wbase(st)}\n" + rot(sSO2, st, 64*2688) + p[0]
    return p
def sprinkle(pieces, text):
    L = [x.replace(" | ", "\n") for x in text.strip().split("\n") if x.strip()]
    n = len(pieces)
    for k, p in enumerate(pieces):
        a(p)
        for x in L[len(L) * k // n: len(L) * (k + 1) // n]: a(x)
WADDR = f"""
s_mul_i32 s{sT0}, s{sJ}, 168
s_and_b32 s{sT0}, s{sT0}, -16
s_mul_i32 s{sT2}, s{sG}, {16*2688}
s_add_u32 s{sT0}, s{sT0}, s{sT2}
s_mul_i32 s{sLW}, s{sG}, 3072
"""
for q in range(3):
    WADDR += f"""
v_add_u32 v128, {64*q}, v0
v_mul_u32_u24 v129, 43691, v128
v_lshrrev_b32 v129, 19, v129
v_mul_u32_u24 v131, 12, v129
v_sub_u32 v128, v128, v131
v_min_u32 v128, 10, v128
v_mul_u32_u24 v129, 2688, v129
v_lshl_add_u32 v128, v128, 4, v129
v_add_u32 v{vWD+q}, s{sT0}, v128
""" + (f"s_sub_u32 s{sT0}, s{sT0}, 1024" if q < 2 else "")
for p in dma_x(0): a(p)
a("s_branch L_loader\nL_uprep:")
a("s_setprio 3\n" + IDS_U + srdc(((K_, 1835008), (V_, 1835008), (SK, 3584))) + f"""
v_subrev_u32 v135, 2688, v{vGA}
s_lshl_b32 s{sT1}, s{sT1}, 2
v_lshl_add_u32 v137, v{vCP}, 4, s{sT1}
s_movk_i32 s{sT5}, 3584
s_waitcnt lgkmcnt(0)
""")
stamp(0)
a(f"buffer_load_dwordx4 {v(SR,4)}, v137, {srd(SK)}, 0 offen")
for i in range(3): a(f"buffer_load_dword v{KR+i}, v135, {srd(K_)}, 0 offen offset:{896*i}")
for i in range(8): a(f"buffer_load_dword v{KR+3+i}, v{vGA}, {srd(K_)}, {'0' if i<4 else s(sT5)} offen offset:{896*(i&3)}")
for i in range(8): a(f"buffer_load_dword v{VR+i}, v{vGA}, {srd(V_)}, {'0' if i<4 else s(sT5)} offen offset:{896*(i&3)}")
a("s_setprio 0\n" + IDS_G + COMMON.replace(" | ", "\n") + f"""
s_sub_u32 s{sUS}, s{sUT}, {ZZ-UU}
s_lshl_b32 s{sT4}, s{sG}, 11
s_add_u32 s{sT4}, s{sT4}, {LP+24576}
v_and_b32 v136, 7, v{vCP}
v_lshlrev_b32 v136, 4, v136
v_xor_b32 v136, v136, v{vZL}
v_add_u32 v136, s{sT4}, v136
v_xor_b32 v138, 64, v136
v_lshlrev_b32 v137, 4, v137
v_xor_b32 v137, v137, v1
v_add_u32 v137, s{sT4}, v137
s_and_b32 s{sT6}, s{sJ}, 1
s_lshl_b32 s{sT6}, s{sT6}, 3
""")
a.c("---- QKV projection: 32 tokens x 3 head blocks per wave")
a(f"""
v_and_b32 v128, 31, v0
v_bfe_u32 v129, v0, 1, 3
v_xor_b32 v129, v129, v131
v_lshlrev_b32 v128, 7, v128
v_lshl_add_u32 v128, v129, 4, v128
v_add_u32 v{vXB}, s{sLX}, v128
v_bfe_u32 v128, v0, 2, 2
v_lshl_add_u32 v128, v131, 3, v128
v_mul_u32_u24 v128, 192, v128
v_and_b32 v129, 1, v130
v_lshl_add_u32 v128, v129, 5, v128
v_lshl_add_u32 v128, v132, 3, v128
s_add_u32 s{sT6}, s{sT6}, {LP}
v_add_u32 v{vWR}, s{sT6}, v128
v_mov_b32 v{vXR}, v{vXB}
v_mov_b32 v{vPB}, 0
v_xor_b32 v{vXR+1}, 32, v{vXB}
v_xor_b32 v{vXR+2}, 64, v{vXB}
v_xor_b32 v{vXR+3}, 0x60, v{vXB}
""")
a(f"s_lshr_b32 s{sT0}, s{sTT}, 2\ns_lshl4_add_u32 s{sT0}, s{sJ}, s{sT0}\ns_lshl_b32 s{sT0}, s{sT0}, {FS}\ns_add_u32 s{sFL}, s{sT0}, {FB}")
a(f"s_mul_i32 s{sT7}, s{sJ}, 3")
for b in range(3):
    a(f"""
s_add_u32 s{sT3}, s{sT7}, {b}
s_and_b32 s{sT0}, s{sT3}, 15
s_lshl_b32 s{sT0}, s{sT0}, 6
s_add_u32 s{sT0}, s{sT0}, s{sTT}
s_cmp_lt_u32 s{sT3}, 16
s_cselect_b32 s{sT1}, 11, 12
s_mov_b32 s{sT2}, {KV}
s_cselect_b32 s{sT2}, {QF}, s{sT2}
s_lshl_b32 s{sT0}, s{sT0}, s{sT1}
s_add_u32 s{sE0+b}, s{sT0}, s{sT2}
""")
a(f"""
s_mov_b32 s{sKP}, {ONES}
s_movk_i32 s{sKP+1}, 0x3f80
s_mov_b32 s{sQS}, {QSCALE:#x}
s_mov_b32 s{sQS+1}, {QSCALE:#x}
s_mov_b32 s{sM1}, 0xf0000000
s_mov_b32 s{sM1+1}, 0xf0000000
s_mov_b32 s{sM2}, {ONES}
s_mov_b32 s{sM2+1}, {ONES}
""")
for r in list(range(ACC, ACC + 48, 2)) + list(range(RS + 16, RS + 64, 2)): a(f"v_mov_b64 {v(r,2)}, 0")
a(f"s_mov_b32 s{sI}, 0\ns_setprio 2\ns_waitcnt vmcnt(8)")
stamp(2)
for j in range(4):
    for p in range(2):
        src = SR + 2 * p + (j >> 1)
        a(f"v_lshlrev_b32 v{WF+2*j+p}, 16, v{src}" if j % 2 == 0 else f"v_and_b32 v{WF+2*j+p}, 0xffff0000, v{src}")
for i in range(11): a(f"v_lshlrev_b32 v{KF+2*i}, 16, v{KR+i}\nv_and_b32 v{KF+2*i+1}, 0xffff0000, v{KR+i}")
for t in range(8): a(f"v_pk_mul_f32 {v(UA+2*t,2)}, {v(KF+2*t,2)}, {v(WF+6,2)}")
for j in (2, 1, 0):
    for t in range(8): a(f"v_pk_fma_f32 {v(UA+2*t,2)}, {v(KF+2*(t+3-j),2)}, {v(WF+2*j,2)}, {v(UA+2*t,2)}")
a("s_waitcnt vmcnt(0)")
for i in range(8): a(f"v_lshlrev_b32 v{VF+2*i}, 16, v{VR+i}\nv_and_b32 v{VF+2*i+1}, 0xffff0000, v{VR+i}")
for t in range(8): a(f"v_pk_mul_f32 {v(UA+2*t,2)}, {v(UA+2*t,2)}, {v(VF+2*t,2)}")
for p in range(2):
    for m in range(4): a(f"v_cvt_pk_bf16_f32 v{UP+4*p+m}, v{UA+2*(7-2*m)+p}, v{UA+2*(6-2*m)+p}")
    a(f"ds_write_b128 v{136+2*p}, {v(UP+4*p,4)}")
a(f"""
s_waitcnt lgkmcnt(0)
ds_read_b128 {v(UP,4)}, v137
ds_read_b128 {v(UP+4,4)}, v137 offset:1024
s_waitcnt lgkmcnt(1)
buffer_store_dwordx4 {v(UP,4)}, v1, {srd(WS)}, s{sUS} offen sc1
s_mov_b32 exec_hi, 0xffff
s_waitcnt lgkmcnt(0)
buffer_store_dwordx4 {v(UP+4,4)}, v1, {srd(WS)}, s{sUS} offen offset:1024 sc1
s_mov_b32 exec_hi, -1
""")
stamp(3)
a(f"""
s_cmp_eq_u32 s{sJ}, 10
s_cbranch_scc1 L_gemm1
s_cmp_gt_u32 s{sJ}, 10
s_cbranch_scc1 L_gemm2
""")
def g_reads(ks):
    r = RS + 16 * ks
    out = [f"ds_read_b128 {v(r,4)}, v{vXR+ks}"]
    for b in range(3):
        for t in range(2):
            out.append(f"ds_read_b64_tr_b16 {v(r+4+4*b+2*t,2)}, v{vWR} offset:{(16*ks+4*t)*192+56*b}")
    return out
def g_mfma(ks, isv):
    r = RS + 16 * ks
    return [mfma32(ACC+16*b, r, r+4+4*b, ACC+16*b) if isv[b] else mfma32(ACC+16*b, r+4+4*b, r, ACC+16*b) for b in range(3)]
for var, isv in enumerate(((0,0,0), (0,0,1), (1,1,1))):
    m = [g_mfma(k, isv) for k in range(4)]
    rd = g_reads(0) + g_reads(1) + g_reads(2) + g_reads(3)
    a(f"L_gemm{var}:\n{m[1][2]}\ns_barrier")
    seq = m[2] + m[3] + m[0] + m[1][:1]
    for k, x in enumerate(seq):
        if k == 6: a("s_waitcnt lgkmcnt(11)")
        if k == 9: a("s_waitcnt lgkmcnt(13)")
        a("\n".join([x] + rd[3*k:3*k+3]))
    a(f"""
s_cmp_eq_u32 s{sI}, 1
s_movk_i32 s{sT1}, 12288
s_cselect_b32 s{sT1}, {(-LP-12288) & 0xffffffff}, s{sT1}
s_add_u32 s{sI}, s{sI}, 1
s_and_b32 s{sT0}, s{sI}, 3
s_lshl_b32 s{sT0}, s{sT0}, 12
{m[1][1]}
v_add_u32 v{vWR}, s{sT1}, v{vWR}
v_xor_b32 v{vXR}, s{sT0}, v{vXB}
v_xor_b32 v{vXR+1}, 32, v{vXR}
v_xor_b32 v{vXR+2}, 64, v{vXR}
v_xor_b32 v{vXR+3}, 0x60, v{vXR}
s_cmp_lt_u32 s{sI}, 7
s_waitcnt vmcnt(0) lgkmcnt(0)
s_cbranch_scc1 L_gemm{var}
""")
    a("\n".join([m[2][0], m[1][2], m[3][0], m[2][1], m[2][2], m[3][1], m[3][2]]))
    stamp(1)
    a.c("epilogue: scale Q, pack to bf16 fragments, patch the pad slots, publish")
    for b in range(3):
        pk = 128 + 8 * b
        padp = sKP
        if var == 0:
            padp = sM1
            a(f"s_cmp_lt_u32 s{sT7}, {16-b}\ns_cselect_b64 {s(sM1,2)}, 0, {s(sKP,2)}\ns_cbranch_scc0 L_nosc{b}")
            for r in range(0, 16, 2): a(f"v_pk_mul_f32 {v(ACC+16*b+r,2)}, {v(ACC+16*b+r,2)}, {s(sQS,2)}")
            a.label(f"L_nosc{b}")
        for r in range(8): a(f"v_cvt_pk_bf16_f32 v{pk+r}, v{ACC+16*b+2*r}, v{ACC+16*b+2*r+1}")
        if isv[b]:
            a(f"s_mov_b64 exec, {s(sM1,2)}")
            for r in range(0, 8, 2): a(f"v_mov_b64 {v(pk+r,2)}, {s(sM2,2)}")
        else: a(f"s_mov_b32 exec_lo, 0\nv_mov_b64 {v(pk+6,2)}, {s(padp,2)}")
        o = 2048 * isv[b]
        a(f"""
s_mov_b64 exec, -1
buffer_store_dwordx4 {v(pk,4)}, v1, {srd(WS)}, s{sE0+b} offen offset:{o} sc1
buffer_store_dwordx4 {v(pk+4,4)}, v1, {srd(WS)}, s{sE0+b} offen offset:{o+1024} sc1
""")
    a("s_branch L_conv")

a.label("L_loader")
HELP = f"""
v_mov_b32 v133, {CNT}
v_mov_b32 v134, 0
ds_write_b32 v133, v134
v_min_u32 v133, 2, v130
v_lshl_add_u32 v133, v133, 4, s{sH}
v_mul_u32_u24 v133, 21846, v133
v_lshrrev_b32 v133, 16, v133
v_mov_b32 v134, s{sQT}
v_cmp_gt_u32 vcc, 16, v0
s_lshl_b32 s{sT0}, s{sCG}, 6
s_add_u32 s{sT0}, s{sT0}, s{sRT}
s_lshl_b32 s{sT0}, s{sT0}, {FS}
s_add_u32 s{sFL}, s{sT0}, {FA}
v_cndmask_b32 v134, v139, v134, vcc
v_lshl_add_u32 v133, v133, 4, v134
v_lshlrev_b32 v133, {FS}, v133
v_add_u32 v{vPB}, {FB}, v133
s_mul_i32 s{sT0}, s{sC}, 1171
s_lshr_b32 s{sT0}, s{sT0}, 16
s_lshl2_add_u32 s{sT0}, s{sT0}, s{sG}
s_lshl_b32 s{sT0}, s{sT0}, {4+FS}
s_add_u32 s{sT0}, s{sT0}, {FA}
v_lshl_add_u32 v{vPA}, v139, {FS}, s{sT0}
v_lshrrev_b32 v133, 2, v0
v_mul_u32_u24 v133, 28672, v133
v_lshl_add_u32 v{vUD}, v132, 4, v133
s_mul_i32 s{sT0}, s{sG}, {16*28672}
s_lshl_b32 s{sT1}, s{sC}, 7
s_add_u32 s{sT0}, s{sT0}, s{sT1}
s_add_u32 s{sUO}, s{sT0}, {UU}
v_bfe_u32 v138, v0, 1, 2
v_mul_u32_u24 v138, {HP}, v138
v_and_b32 v139, 1, v0
v_lshl_add_u32 v138, v139, 4, v138
v_add_u32 v139, {UOFF}, v1
v_cmp_gt_u32 vcc, 32, v0
v_mov_b64 v[140:141], 0
v_mov_b64 v[142:143], 0
v_cndmask_b32 v138, v138, v139, vcc
v_add_u32 v139, {LP}, v138
{srdc(((HK, 1835008),))}
s_lshl_b32 s{sT3}, s{sC}, 13
s_lshl_b32 s{sT4}, s{sG}, 10
s_add_u32 s{sT3}, s{sT3}, s{sT4}
v_add_u32 v11, s{sT3}, v1
v_add_u32 v{vHO}, s{sT4}, v1
v_subrev_u32 v12, 8, v11
v_cmp_eq_u32 vcc, 0, v{vHO}
v_mov_b32 v136, 0xffffe000
s_movk_i32 s{sT7}, 4096
v_cndmask_b32 v12, v12, v136, vcc
"""
def hprep(p):
    R = H0 + 8 * p; T = 40 + 12 * p
    a(f"v_add_u32 v{134+p}, {(LP if p else LX)+32}, v{vHO}")
    for i in range(4): a(f"v_alignbit_b32 v{T+i}, v{R+2+i}, v{R+1+i}, 16")
    for i in range(4): a(f"v_mov_b32 v{T+4+i}, v{R+1+i}")
    for i in range(4): a(f"v_alignbit_b32 v{T+8+i}, v{R+1+i}, v{R+i}, 16")
def hwrite(p):
    R = H0 + 8 * p; T = 40 + 12 * p
    a(f"ds_write_b128 v{134+p}, {v(R+2,4)}")
    for c in range(1, 4): a(f"ds_write_b128 v{134+p}, {v(T+4*(c-1),4)} offset:{HP*c}")
    a.c("zero pads: lanes 0-31 the u pad, lanes 32-39 the h pads")
    a(f"ds_write_b128 v{138+p}, {v(140,4)}")
def u_dma():
    a(f"""
s_lshl_b32 s{sT2}, s{sG}, 10
s_add_u32 m0, s{sT2}, {LX+UOFF+512}
s_add_u32 s{sT1}, s{sUO}, 64
buffer_load_dwordx4 v{vUD}, {srd(WS)}, s{sUO} offen sc1 lds
s_add_u32 m0, s{sT2}, {LP+UOFF+512}
s_nop 0
buffer_load_dwordx4 v{vUD}, {srd(WS)}, s{sT1} offen sc1 lds
""")

a(WADDR)
HL = [f"buffer_load_dwordx{2+2*k} {v(H0+8*p+2*k,2+2*k)}, v{12-k}, {srd(HK)}, {s(sT7) if p else 0} offen" for p in range(2) for k in range(2)]
rest = [(0, p) for p in dma_w(0)] + [(st, p) for st in range(1, 7) for p in dma_w(st) + dma_x(st)]
HPOS = 3 + 7 * OPT.get("hst", 4)
rest[HPOS:HPOS] = [(9, x) for x in HL]
rest.append((8, f"buffer_load_dword v144, v{vPA}, {srd(WS)}, 0 offen sc1"))
calc = [x.replace(" | ", "\n") for x in (IDS_U + COMMON + HELP).strip().split("\n") if x.strip()]
NC = min(HPOS, 17); LAGS = [int(x, 36) for x in SOPT.get("lags", "eedc97")]
issued = [0] * 4; n = 0
def bar(n):
    young = len(issued) - 1 - max(k for k, st in enumerate(issued) if st == n)
    if n == 0: stamp(1)
    a(f"s_waitcnt vmcnt({young})\ns_barrier")
    if n < 6: stamp(9 + n, 2)
    if n == 1:
        assert len(issued) >= NC + 4
        a.c("waves 0-3 waited for their u stores before this barrier")
        a(f"s_cmp_lg_u32 s{sW}, 4\ns_cbranch_scc1 L_nsa")
        signal(f"s{sFL}")
        a.label("L_nsa")
for k, (st, p) in enumerate(rest):
    assert st > 7 or "s[8:11]" in p or st - 4 < n - 1
    a(p); issued.append(st)
    if k < NC:
        for x in calc[len(calc) * k // NC: len(calc) * (k + 1) // NC]: a(x)
    if n < 6 and issued.count(n) == 7 and len(issued) - 1 - max(q for q, s_ in enumerate(issued) if s_ == n) >= LAGS[n]:
        bar(n); n += 1
while n < 6: bar(n); n += 1
EARLYH = OPT.get("hst", 4) < 5
if EARLYH: hprep(1); hwrite(1)
bar(6)
a(f"s_waitcnt vmcnt(0)\nv_cmp_ne_u32 vcc, s{sNON}, v144\ns_cbranch_vccz L_uok")
poll(vPA, 144)
a("L_uok:")
u_dma()
stamp(4)
if not EARLYH: hprep(1); hwrite(1)
hprep(0); hwrite(0)
a("s_setprio 1\ns_waitcnt vmcnt(0) lgkmcnt(0)")
def ldq():
    for i in range(8): a(f"buffer_load_dword v{QR+i}, v{vGA}, {srd(Q_)}, {'0' if i<4 else s(sT5)} offen offset:{896*(i&3)}")

a.label("L_conv")
CAC, CU, FA_, FB_ = 16, 48, 64, 128
a.c("---- long causal conv as block-Toeplitz MFMA: channel = wave>>2, lag phases split over wave&3")
a("s_barrier")
stamp(5)
def c_readA(i, r): return [f"ds_read_b64 {v(FA_+32*i+4*r+2*t,2)}, v{vCA} offset:{512*r+64*i+8*t}" for t in range(2)]
def c_readB(i, x): return [f"ds_read_b128 {v(FB_+32*i+4*x,4)}, v{vCB} offset:{512*x+64*(1-i)}"]
def c_m(i, nt, r, first=False): return mfma16(CAC+4*nt, FA_+32*i+4*r, FB_+32*i+4*(nt-r), "0" if first else CAC+4*nt)
lq = LQ()
rds = [x for i in range(2) for k in range(8) for x in c_readA(i, k) + c_readB(i, k)] + [f"ds_read_b128 {v(CU,4)}, v{vCU}"]
for x in rds[:15]: lq(x)
rds = rds[15:]
seen = set(); prev = -1
for k in range(8):
    grp = [(r, x) for r in range(k + 1) for x in range(k + 1) if max(r, x) == k and r + x <= 7]
    while grp:
        r, x = next((p for p in grp if p[0] + p[1] != prev), grp[0]); grp.remove((r, x))
        lq(c_m(0, r + x, r, first=(r + x) not in seen)); seen.add(r + x); prev = r + x
        if rds: lq(rds.pop(0))
assert not rds
stamp(9, 3)
a(f"""
s_cmp_ge_u32 s{sW}, 4
s_cbranch_scc1 L_cm
s_setprio 0
v_mov_b32 v52, {CNT}
v_mov_b32 v53, 1
s_mov_b64 exec, 1
s_waitcnt vmcnt(0)
ds_add_rtn_u32 v53, v52, v53
s_waitcnt lgkmcnt(0)
v_cmp_eq_u32 vcc, 3, v53
s_cbranch_vccz L_cnl
buffer_store_dword v{vNON}, v1, {srd(WS)}, s{sFL} offen sc1
L_cnl:
s_mov_b64 exec, -1
""")
stamp(4)
a.label("L_cm")
lq.drain()
a("s_barrier")
stamp(10, 3)
pend = []; cnt = 0; PP = ((36,), (25, 36), (14, 25, 36))[OPT.get("pp", 3) - 1]
for n0 in range(0, 8, 2):
    ms = []
    for r in range(n0 + 2):
        ms.append(c_m(1, n0 + 1, r))
        if r <= n0: ms.append(c_m(1, n0, r))
    for m_ in ms:
        a(m_); cnt += 1
        pend = [(w, n + 1) for w, n in pend]
        if pend and pend[0][1] >= 8: a(pend.pop(0)[0])
    for nt in (n0, n0 + 1): pend.append((f"ds_write_b128 v{vCW}, {v(CAC+4*nt,4)} offset:{1024*nt}", 0))
for t in range(8):
    m = (7 - t) // 2
    a(f"v_lshlrev_b32 v{56+t}, 16, v{CU+m}" if t % 2 else f"v_and_b32 v{56+t}, 0xffff0000, v{CU+m}")
a("v_and_b32 v126, 7, v0\nv_lshlrev_b32 v130, 3, v126\nv_mov_b64 v[128:129], 0")
for w, n in pend: a(w)
stamp(6)
a(f"s_cmp_lg_u32 s{sW}, 4\ns_cbranch_scc1 L_cred")
poll(vPB, 52)
a.label("L_cred")
a("s_waitcnt lgkmcnt(0)\ns_barrier")
stamp(7)
def kv_stage(n):
    a(f"s_add_u32 m0, s{sKL}, {LA+32768*n}\ns_add_u32 s{sSO}, s{sKS}, {32768*n}")
    for i in range(4): a(f"buffer_load_dwordx4 v1, {srd(WS)}, s{sSO} offen offset:{1024*i} sc1 lds")
a.c("behind that barrier every wave knows the QKV flags matched: Q and the first tiles go first")
a(f"""
s_setprio 0
s_lshl_b32 s{sT5}, s{sW}, 10
s_add_u32 m0, s{sT5}, {LR}
s_add_u32 s{sSO}, s{sKVB}, s{sK0}
buffer_load_dwordx4 v1, {srd(WS)}, s{sQO} offen sc1 lds
s_add_u32 m0, s{sK0}, {LA}
s_add_u32 s{sSO2}, s{sSO}, 8192
buffer_load_dwordx4 v1, {srd(WS)}, s{sSO} offen sc1 lds
buffer_load_dwordx4 v1, {srd(WS)}, s{sSO} offen offset:1024 sc1 lds
s_add_u32 m0, s{sK0}, {LA+8192}
""")
for q in range(4):
    for i in range(2): a(f"ds_read_b128 {v(64+8*q+4*i,4)}, v{vCR} offset:{8192*q+256*i}")
a(f"""
buffer_load_dwordx4 v1, {srd(WS)}, s{sSO2} offen sc1 lds
buffer_load_dwordx4 v1, {srd(WS)}, s{sSO2} offen offset:1024 sc1 lds
""")
stamp(11, 3)
a("s_waitcnt lgkmcnt(4)")
for t in range(8): a(f"v_fma_f32 v{56+t}, v{56+t}, v{vD}, v{64+t}")
for t in range(0, 8, 2): a(f"v_pk_add_f32 {v(56+t,2)}, {v(56+t,2)}, {v(72+t,2)}")
a("s_waitcnt lgkmcnt(0)")
a.c("wave 0 alone reads the first 128 bytes: it clears the progress bytes of the key loop behind its reads")
a(f"""
s_cmp_lg_u32 s{sW}, 0
s_cbranch_scc1 L_nclr
s_mov_b64 exec, 0xff
ds_write_b64 v130, v[128:129]
s_mov_b64 exec, -1
L_nclr:
""")
for t in range(0, 8, 2): a(f"v_pk_add_f32 {v(80+t,2)}, {v(80+t,2)}, {v(88+t,2)}")
for t in range(0, 8, 2): a(f"v_pk_add_f32 {v(56+t,2)}, {v(56+t,2)}, {v(80+t,2)}")
for m in range(4): a(f"v_cvt_pk_bf16_f32 v{104+m}, v{56+2*m}, v{57+2*m}")
a("v_mov_b64 v[108:109], -1\nv_mov_b64 v[110:111], -1")
stamp(12, 3)
kv_stage(1)
a(f"""
v_mov_b32 v124, s{sW}
s_and_b32 s{sT0}, s{sW}, 4
v_and_or_b32 v125, v0, 3, s{sT0}
""")
stamp(13, 3)
a("s_waitcnt vmcnt(6)")
stamp(14, 3)

WS0 = 128
vFW, vFG, vF8, vFT = 124, 125, 126, 127
vQ, vK, vV, vP, vSa, vSb, vO, vM, vKC, vZR, vFC = 16, 24, 32, 40, 48, 64, 80, 14, 96, 112, 120
a.c("---- attention: S^T = K Q^T - m (m rides in the pad slots), P = exp2, O^T += V^T P^T (row 28 = sum)")
a(f"""
L_att:
s_cmp_lg_u32 s{sTRY}, 0
s_barrier
""")
stamp(8)
def kvaddr(T, f):
    o = 32768 * ((T >> 2) & 3) + 4096 * (T & 3) + 1024 * f
    return f"v{vB0 if o < 65536 else vB1} offset:{o & 65535}"
def rdK(T, f): return f"ds_read_b128 {v(vK+4*f,4)}, {kvaddr(T, f)}"
def rdV(T, f): return f"ds_read_b128 {v(vV+4*f,4)}, {kvaddr(T, 2+f)}"
def wo_piece(g): return [f"s_add_u32 m0, s{sWM}, {WS0+7168*g}", f"s_mov_b32 s{sSO2}, {28672*g}", f"buffer_load_dwordx4 v{vWOA}, {srd(WO)}, s{sSO2} offen lds"]
def pieces(n):
    out = []
    if n == 1:
        out += [[f"buffer_store_dwordx4 {v(104,4)}, v{vZ}, {srd(WS)}, s{sZO} offen sc1"], [f"buffer_store_dwordx4 {v(108,4)}, v1, {srd(WS)}, s{sCL} offen sc1"]]
    if n < 6:
        for i in range(4):
            p = [f"buffer_load_dwordx4 v1, {srd(WS)}, s{sSO} offen offset:{1024*i} sc1 lds"]
            if i == 0: p = [f"s_add_u32 m0, s{sKL}, {LA+32768*((n+2)&3)}", f"s_add_u32 s{sSO}, s{sKS}, {32768*(n+2)}"] + p
            out.append(p)
        if n >= 2: out.append(wo_piece(n - 2))
    elif n < 8: out = [wo_piece(4 + 5 * (n - 6) + i) for i in range(5)]
    return out
def maxtree(S, dst, have):
    a(f"v_max3_f32 v{dst}, v{S}, v{S+1}, v{dst}" if have else f"v_max_f32 v{dst}, v{S}, v{S+1}")
    for i in range(2, 16, 2): a(f"v_max3_f32 v{dst}, v{S+i}, v{S+i+1}, v{dst}")
p0 = pieces(0)
a(f"""
{rdK(0,0)}
{rdK(0,1)}
{rdV(0,0)}
s_cbranch_scc1 L_havem
ds_read_b128 {v(vQ,4)}, v{vQA}
ds_read_b128 {v(vKC,4)}, v1 offset:{LA}
ds_read_b128 {v(vQ+4,4)}, v{vQA} offset:1024
ds_read_b128 {v(vKC+4,4)}, v1 offset:{LA+1024}
s_waitcnt lgkmcnt(2)
{mfma32(vSb, vKC, vQ, "0")}
s_waitcnt lgkmcnt(0)
{mfma32(vSb, vKC+4, vQ+4, vSb)}
L_havem:
s_waitcnt lgkmcnt(0)
{mfma32(vSa, vK, vQ, "0")}
""")
lq = LQ()
lq(rdK(1, 0))
a(f"s_cmp_lg_u32 s{sTRY}, 0\ns_cbranch_scc1 L_havem2")
maxtree(vSb, vM, False)
a(f"""
L_havem2:
v_mov_b32 v96, v{vM}
v_permlane32_swap_b32 v96, v{vM}
v_max_f32 v{vM}, v96, v{vM}
v_sub_f32 v96, 0, v{vM}
v_and_b32 v97, 0xffff0000, v96
v_sub_f32 v96, v96, v97
v_and_b32 v98, 0xffff0000, v96
v_sub_f32 v96, v96, v98
s_mov_b32 exec_lo, 0
v_alignbit_b32 v{vQ+6}, v98, v97, 16
v_lshrrev_b32 v{vQ+7}, 16, v96
v_and_b32 v{vQ+6}, 0xffff, v{vQ+6}
v_or_b32 v{vQ+6}, v{vQ+6}, v98
s_mov_b32 exec_lo, -1
{mfma32(vSa, vK+4, vQ+4, vSa)}
""".replace(f"v_alignbit_b32 v{vQ+6}, v98, v97, 16", f"v_lshrrev_b32 v{vQ+6}, 16, v97").replace(f"v_and_b32 v{vQ+6}, 0xffff, v{vQ+6}\n", ""))
lq(rdK(1, 1))
a("s_waitcnt vmcnt(4)\ns_barrier")
stamp(9)
stamp(1, 4)
PRIO = {int(x, 16): 3 - i for i, x in enumerate(SOPT.get("pr", "07cf"))}
DSL = [int(x, 16) for x in SOPT.get("dsl", "89abc")]; DSL6 = [int(x, 16) for x in SOPT.get("dsl6", "0189ab")]; DSL0 = [int(x, 16) for x in SOPT.get("dsl0", "89ab")]
todo = dict(zip(DSL0, p0)); since = 0
RS_ = OPT.get("rs", 13); QS = OPT.get("qs", 14); CW = OPT.get("cw", 2)
def fl_read(i): return f"ds_read_u8 v{vFT}, v{vF8 if i in (3, 6, 7, 8) else vFG} offset:{8*(i-1)}"
a.c("no barriers in the loop: a wave posts a byte once its DMA of the next stage landed and it left the stage before; readers check half a stage later")
for T in range(32):
    S, Sn = (vSa, vSb) if T % 2 == 0 else (vSb, vSa)
    n = (T + 2) >> 2
    if T & 3 == 2:
        if OPT.get("spi", 0): a(f"s_cbranch_vccz L_spr{n}\nL_sp{n}:\n{fl_read(n)}\ns_waitcnt lgkmcnt(0)\nv_cmp_eq_u32 vcc, 0, v{vFT}\ns_cbranch_vccnz L_sp{n}\nL_spr{n}:")
        else: a(f"s_cbranch_vccnz L_sp{n}\nL_spr{n}:")
        if DIAG and OPT.get("set") == 4:
            if n > 1: a(f"s_mov_b32 s{sST+(7+n if n < 8 else 2)}, s96")
            if n < 8: a("s_memtime s[96:97]")
        pc = pieces(n); assert not todo
        todo = dict(zip(DSL if len(pc) < 6 else DSL6, pc)); since = 0
        if n == 8: a(f"s_cmp_lt_u32 s{sW}, 4\ns_cbranch_scc1 L_np\ns_setprio 3\nL_np:")
    for k in range(4):
        sl = (4 * T + k + 8) & 15
        if sl in PRIO and n < 8 or (T, k) == (0, 0): a(f"s_setprio {PRIO.get(sl, 2 if PRIO else 0)}")
        if k < 2:
            if T < 31: lq(mfma32(Sn, vK+4*k, vQ+4*k, Sn if k else "0"))
            if T < 30: lq(rdK(T + 2, k))
        elif k == 2:
            if T > 0: lq(mfma32(vO, vV+4, vP+4, vO))
            lq(rdV(T, 1))
        else:
            lq(mfma32(vO, vV, vP, "0" if T == 0 else vO))
            if T < 31: lq(rdV(T + 1, 0))
        if sl == (8 if n else 12):
            if n == 4: assert since == 0; a(f"s_cmp_ge_u32 s{sW}, 4\ns_cbranch_scc1 L_w4\ns_cmp_eq_u32 s{sW}, 3\ns_waitcnt vmcnt(1)\ns_cbranch_scc1 L_w4\ns_waitcnt vmcnt(0)\nL_w4:\ns_waitcnt vmcnt(8)")
            elif n < 7: a(f"s_waitcnt vmcnt({since})")
            if n == 6: a(f"""
s_cmp_lg_u32 s{sW}, {CW}
s_cbranch_scc1 L_chkc_r
s_mov_b32 s{sSP}, {SPIN}
L_chkc1:
v_cmp_ne_u32 vcc, s{sNON}, v{vFC}
v_cmp_ne_u32 s[{sM1}:{sM1+1}], s{sNON}, v{vFC+1}
s_or_b64 s[{sM1}:{sM1+1}], vcc, s[{sM1}:{sM1+1}]
v_cmp_ne_u32 vcc, s{sNON}, v{vFC+2}
s_or_b64 s[{sM1}:{sM1+1}], vcc, s[{sM1}:{sM1+1}]
v_cmp_ne_u32 vcc, s{sNON}, v{vFC+3}
s_or_b64 vcc, vcc, s[{sM1}:{sM1+1}]
s_cbranch_scc1 L_chkc3
L_chkc2:
s_cmp_eq_u32 s2, 0
s_cbranch_scc1 L_epoch
L_chkc_r:
""")
            lq(f"ds_write_b8 v{vFW}, v108 offset:{8*n}" if OPT.get("nox", 1) else f"s_mov_b64 exec, 1\nds_write_b8 v{vFW}, v108 offset:{8*n}\ns_mov_b64 exec, -1")
        if sl == (RS_ if n else 14): lq(fl_read(n + 1))
        ex = [f"v_exp_f32 v{S+r}, v{S+r}" for r in range(4 * k, 4 * k + 4)]
        cv = [f"v_cvt_pk_bf16_f32 v{vP+r}, v{S+2*r}, v{S+2*r+1}" for r in range(2 * k, 2 * k + 2)]
        p = todo.pop(sl, []); since += len(p) > 0
        body = []
        for e in range(4):
            body.append(ex[e])
            if e < len(p): body.append(p[e])
        a("\n".join(body))
        if sl == 15: lq(f"v_cmp_eq_u32 vcc, 0, v{vFT}")
        a("\n".join(cv))
        if sl == QS and n == 3:
            a.c("z and the slot marks are out (all waves posted): wave 3 raises the flag; waves 4-7 fetch the gate inputs")
            a(f"s_cmp_lt_u32 s{sW}, 3\ns_cbranch_scc1 L_ldq_r\ns_movk_i32 s{sT5}, 3584\ns_cmp_lg_u32 s{sW}, 3\ns_cbranch_scc1 L_ldq\ns_lshl_b32 s{sT0}, s2, 2\ns_add_u32 s{sT0}, s{sT0}, {FC}")
            signal(f"s{sT0}")
            a("s_branch L_ldq_r\nL_ldq:")
            ldq()
            a("L_ldq_r:")
            assert not todo
        if sl == 8 and n == 5:
            a.c("flags of all workgroups' z and slot marks (one word each)")
            a(f"s_cmp_lg_u32 s{sW}, {CW}\ns_cbranch_scc1 L_nfc\ns_movk_i32 s{sT0}, {FC}\nbuffer_load_dwordx4 {v(vFC,4)}, v1, {srd(WS)}, s{sT0} offen sc1\nL_nfc:")
        if sl == 1 and n == 7:
            a(f"""
s_cmp_lt_u32 s{sW}, 4
s_cbranch_scc1 L_nz
buffer_load_dwordx4 {v(vZR,4)}, v{vZL}, {srd(WS)}, s{sUT} offen sc1
buffer_load_dwordx4 {v(vZR+4,4)}, v{vZL}, {srd(WS)}, s{sUT} offen offset:64 sc1
L_nz:
""")
lq(mfma32(vO, vV+4, vP+4, vO))
a("s_setprio 0")
stamp(10)
stamp(3, 4)
a(f"""
s_mov_b32 s{sT2}, 0x5f800000
v_mov_b64 v[100:101], 0
v_mov_b64 v[102:103], 0
s_and_b32 s{sT1}, s{sW}, 1
s_mul_i32 s{sT1}, s{sT1}, 768
s_add_u32 s{sT1}, s{sT1}, {WS0+448*224}
v_add_u32 v99, s{sT1}, v1
s_cmp_lt_u32 s{sW}, 4
s_cbranch_scc1 L_mA
ds_write_b128 v99, {v(100,4)}
""")
for i in range(4): a(f"ds_write_b128 v{vMG}, {v(vO+4*i,4)} offset:{1024*i}")
a(f"""
L_mA:
v_cmp_nle_f32 vcc, v{vO+12}, s{sT2}
v_mov_b32 v98, vcc_hi
ds_write_b32 v{vBW}, v98
s_waitcnt vmcnt(0) lgkmcnt(0)
s_barrier
ds_read_b32 v98, v{vBR}
s_cbranch_scc0 L_mB
""")
for i in range(4): a(f"ds_read_b128 {v(vSa+4*i,4)}, v{vMG} offset:{1024*i}")
a(f"""
L_mB:
s_waitcnt lgkmcnt(0)
v_cmp_lt_u32 vcc, s{sTRY}, v98
s_cbranch_vccnz L_fallback
s_cbranch_scc0 L_gate
""")
a(f"""
v_add_f32 v96, v{vO+12}, v{vSa+12}
v_add_f32 v97, v{vO+12}, v{vSa+12}
""")
for r in range(0, 4, 2): a(f"v_pk_add_f32 {v(vO+r,2)}, {v(vO+r,2)}, {v(vSa+r,2)}")
a(f"v_permlane32_swap_b32 v96, v97\nv_rcp_f32 v96, v97")
for r in range(4, 16, 2): a(f"v_pk_add_f32 {v(vO+r,2)}, {v(vO+r,2)}, {v(vSa+r,2)}")
for hf in range(2):
    for r in range(8*hf, 8*hf+8, 2): a(f"v_pk_mul_f32 {v(vO+r,2)}, {v(vO+r,2)}, v[96:97] op_sel_hi:[1,0]")
    for r in range(4*hf, 4*hf+4): a(f"v_cvt_pk_bf16_f32 v{vP+r}, v{vO+2*r}, v{vO+2*r+1}")
    if hf: a(f"s_mov_b32 exec_lo, 0\nv_mov_b64 {v(vP+6,2)}, 0\ns_mov_b32 exec_lo, -1")
    a(f"buffer_store_dwordx4 {v(vP+4*hf,4)}, v1, {srd(WS)}, s{sOO} offen offset:{1024*hf} sc1")
stamp(11)
WFR, OB, OA = 112, 16, 48
a(f"""
v_bfe_u32 v96, v0, 2, 2
v_lshrrev_b32 v97, 5, v0
v_lshl_add_u32 v96, v96, 1, v97
v_mul_u32_u24 v96, 224, v96
v_bfe_u32 v98, v0, 4, 1
v_lshl_add_u32 v96, v98, 5, v96
v_and_b32 v98, 3, v0
v_lshl_add_u32 v96, v98, 3, v96
s_lshl_b32 s{sT2}, s{sG}, 6
v_add_u32 v2, s{sT2}, v96
v_mul_u32_u24 v99, {6*224}, v97
v_add_u32 v3, v99, v2
v_add_u32 v9, {8*28*224}, v2
v_add_u32 v10, {8*28*224}, v3
""")
for h in range(16):
    for s_ in range(2):
        for t in range(2):
            Qd = 7 * (h & 7) + 4 * s_ + 2 * t
            a(f"ds_read_b64_tr_b16 {v(WFR+8*h+4*s_+2*t,2)}, v{(2, 3, 9, 10)[(h&1) + 2*(h>>3)]} offset:{WS0+(8*(Qd>>1) + (Qd&1))*224}")
a(f"""
v_add_u32 v5, {LR}, v1
v_and_b32 v99, 31, v0
v_mul_u32_u24 v99, 80, v99
v_lshl_add_u32 v99, v97, 3, v99
s_mul_i32 s{sT0}, s{sG}, 4096
s_add_u32 s{sT0}, s{sT0}, {MERGE}
v_add_u32 v6, s{sT0}, v99
v_lshrrev_b32 v99, 2, v0
v_mul_u32_u24 v100, 80, v99
v_lshl_add_u32 v100, v98, 4, v100
v_add_u32 v7, s{sT0}, v100
v_mul_u32_u24 v100, 1792, v99
v_lshl_add_u32 v8, v98, 4, v100
s_mul_i32 s{sT0}, s{sRT}, {32*1792}
s_mul_i32 s{sT1}, s{sCG}, 224
s_add_u32 s{sT0}, s{sT0}, s{sT1}
s_add_u32 s{sT0}, s{sT0}, s{sT2}
s_add_u32 s{sT1}, s{sT0}, {16*1792}
s_cmp_eq_u32 s{sG}, 3
s_cselect_b32 s{sM1}, 0x33333333, -1
s_mov_b32 s{sM1+1}, s{sM1}
s_waitcnt lgkmcnt(0)
""")
stamp(12)
lq = LQ()
held = []
for k in range(4):
    ob = OB if k % 2 == 0 else 64
    a("s_barrier")
    if k == 0: stamp(13)
    for f in range(8):
        lq(f"ds_read_b128 {v(ob+4*f,4)}, v5 offset:{8192*k+1024*f}")
        if f % 3 == 0 and held: lq(held.pop(0))
    ms = [mfma32(OA, WFR+32*k+4*f, ob+4*f, "0" if k == 0 and f == 0 else OA) for f in range(8)]
    cut = 5 if k < 3 else 8
    for m_ in ms[:cut]: lq(m_)
    held = ms[cut:]
for r in range(8): a(f"v_cvt_pk_bf16_f32 v{16+r}, v{OA+2*r}, v{OA+2*r+1}")
for m in range(4): a(f"ds_write_b64 v6, {v(16+2*m,2)} offset:{16*m}")
a(f"""
s_waitcnt lgkmcnt(0)
ds_read_b128 {v(24,4)}, v7
ds_read_b128 {v(28,4)}, v7 offset:{16*80}
s_mov_b64 exec, s[{sM1}:{sM1+1}]
s_waitcnt lgkmcnt(1)
buffer_store_dwordx4 {v(24,4)}, v8, {srd(OUT)}, s{sT0} offen
s_waitcnt lgkmcnt(0)
buffer_store_dwordx4 {v(28,4)}, v8, {srd(OUT)}, s{sT1} offen
""")
stamp(14)
a("s_branch L_fin" if DIAG else "s_endpgm")

a.label("L_gate")
a(f"""
s_mul_i32 s{sT5}, s{sRT}, {32*896}
s_add_u32 s{sT5}, s{sT5}, 896
""")
for i in range(8): a(f"v_lshlrev_b32 v{16+2*i}, 16, v{QR+i}\nv_and_b32 v{17+2*i}, 0xffff0000, v{QR+i}")
for t in range(8):
    for p in range(2):
        src = vZR + 4 * p + t // 2
        a(f"v_lshlrev_b32 v{32+2*t+p}, 16, v{src}" if t % 2 == 0 else f"v_and_b32 v{32+2*t+p}, 0xffff0000, v{src}")
for t in range(8): a(f"v_pk_mul_f32 {v(32+2*t,2)}, {v(32+2*t,2)}, {v(16+2*t,2)}")
for t in range(8): a(f"v_cvt_pk_bf16_f32 v{56+t}, v{32+2*t}, v{33+2*t}")
def gate_st():
    for t in range(8):
        a(f"buffer_store_dword v{56+t}, v{vGO}, {srd(OUT)}, s{sT5} offen offset:{1792*(t&1)}")
        if t & 1 and t < 7: a(f"s_add_u32 s{sT5}, s{sT5}, 3584")
if not OPT.get("gl"): gate_st()
stamp(11)
a.c("O fragments: every word differs from the all-ones mark once its producer's store has landed")
OL = 64
a(f"""
s_lshl_b32 s{sT0}, s{sRT}, 15
s_lshl_b32 s{sT1}, s{sG}, 11
s_add_u32 s{sT0}, s{sT0}, s{sT1}
s_add_u32 s{sT0}, s{sT0}, {OF}
s_add_u32 s{sT1}, s{sT0}, 8192
s_add_u32 s{sT2}, s{sT0}, 16384
s_add_u32 s{sT3}, s{sT0}, 24576
s_mov_b32 s{sSP}, {SPIN}
""")
def o_issue(k0):
    for k in range(k0, 4):
        for i in range(2): a(f"buffer_load_dwordx4 {v(OL+8*k+4*i,4)}, v1, {srd(WS)}, s{sT0+k} offen offset:{1024*i} sc1")
o_issue(0)
for k in range(4):
    r = OL + 8 * k
    a(f"""
L_ochk{k}:
s_waitcnt vmcnt({6-2*k})
v_max3_u32 v96, v{r}, v{r+1}, v{r+2}
v_max3_u32 v97, v{r+3}, v{r+4}, v{r+5}
v_max3_u32 v96, v{r+6}, v{r+7}, v96
v_max_u32 v96, v96, v97
v_cmp_eq_u32 vcc, -1, v96
s_cbranch_vccnz L_oretry{k}
L_ogo{k}:
ds_write_b128 v{vQA}, {v(r,4)} offset:{8192*k}
ds_write_b128 v{vQA}, {v(r+4,4)} offset:{8192*k+1024}
s_waitcnt lgkmcnt(0)
s_barrier
""")
    if k == 0: stamp(12)
stamp(13)
if OPT.get("gl"): gate_st()
a.label("L_fin")
if DIAG:
    a(f"s_mov_b64 exec, -1\ns_mov_b32 s{sST+15}, s98")
    a(f"s_lshl_b32 s{sT0}, s2, 3\ns_add_u32 s{sT0}, s{sT0}, s{sW}\ns_lshl_b32 s{sT0}, s{sT0}, 6\ns_add_u32 s{sT0}, s{sT0}, {DG}\nv_lshlrev_b32 v96, 2, v0")
    for k in range(16): a(f"v_writelane_b32 v97, s{sST+k}, {k}")
    a(f"s_mov_b64 exec, 0xffff\nbuffer_store_dword v97, v96, {srd(WS)}, s{sT0} offen")
if "probe" in OPT:
    a(f"""
s_cmp_lg_u32 s2, {OPT.get("pwg", 100)}
s_cbranch_scc1 L_end
s_cmp_lg_u32 s{sW}, {OPT.get("pw", 0)}
s_cbranch_scc1 L_end
s_sub_u32 s{sT0}, s{sST+OPT["probe"]}, s98
s_lshl_b32 s{sT0}, s{sT0}, 2
s_add_u32 s{sT0}, s{sT0}, 4000
s_min_u32 s{sT0}, s{sT0}, 20000
L_probe:
s_memrealtime s[96:97]
s_waitcnt lgkmcnt(0)
s_sub_u32 s96, s96, s98
s_cmp_lt_u32 s96, s{sT0}
s_cbranch_scc1 L_probe
""")
a.label("L_end")
a("s_endpgm")
for k in range(4):
    a(f"L_oretry{k}:\ns_sub_u32 s{sSP}, s{sSP}, 1\ns_cbranch_scc1 L_ogo{k}".replace(f"s_cbranch_scc1 L_ogo{k}", f"s_cselect_b32 s{sSP}, 0, s{sSP}\ns_cbranch_scc1 L_ogo{k}"))
    o_issue(k)
    a(f"s_branch L_ochk{k}")

for i in range(1, 9):
    if not OPT.get("spi", 0): a(f"L_sp{i}:\n{fl_read(i)}\ns_waitcnt lgkmcnt(0)\nv_cmp_eq_u32 vcc, 0, v{vFT}\ns_cbranch_vccnz L_sp{i}\ns_branch L_spr{i}")
a(f"""
L_chkc3:
s_sub_u32 s{sSP}, s{sSP}, 1
s_cbranch_scc1 L_chkc2
buffer_load_dwordx4 {v(vFC,4)}, v1, {srd(WS)}, s{sT0} offen sc1
s_waitcnt vmcnt(0)
s_branch L_chkc1
L_epoch:
""")
a.c("workgroup 0 advances the epoch word: every workgroup is known to have read it")
signal("0")
a("s_branch L_chkc_r")

a.label("L_fallback")
a(f"""
s_mov_b32 s{sTRY}, -1
s_barrier
ds_write_b64 v130, v[128:129]
s_waitcnt lgkmcnt(0)
""")
kv_stage(0); kv_stage(1)
a(f"""
s_mov_b32 exec_lo, 0
v_mov_b32 v{vQ+6}, 0
v_mov_b32 v{vQ+7}, 0
s_mov_b32 exec_lo, -1
v_mov_b32 v{vM}, 0xff800000
s_mov_b32 s{sT3}, s{sKVB}
s_mov_b32 s{sI}, 0
L_fb1:
buffer_load_dwordx4 {v(vK,4)}, v1, {srd(WS)}, s{sT3} offen sc1
buffer_load_dwordx4 {v(vK+4,4)}, v1, {srd(WS)}, s{sT3} offen offset:1024 sc1
s_waitcnt vmcnt(0)
{mfma32(vSb, vK, vQ, "0")}
{mfma32(vSb, vK+4, vQ+4, vSb)}
s_add_u32 s{sT3}, s{sT3}, 4096
s_add_u32 s{sI}, s{sI}, 1
""")
maxtree(vSb, vM, True)
a(f"""
s_cmp_lt_u32 s{sI}, 64
s_cbranch_scc1 L_fb1
s_branch L_att
L_codeend:
""")

import subprocess
body0 = pad(a.l, verbose="v" in sys.argv)
def emit(pfs, fill):
    body = [l.replace("@@PFS@@", str(pfs)) for l in body0]
    hdr = open("cdna_kernels/" + NAME + ".s.ref").read().split("; Override launch")[0]
    return hdr + f"""; One persistent launch, one workgroup per CU; phases hand data over through d_ws with tagged flags.
; @launch grid=(256,1,1) block=(512,1,1) lds=163840
.amdgcn_target "amdgcn-amd-amdhsa--gfx950"
.text
.globl {NAME}_kernel
.p2align 8
.type {NAME}_kernel,@function
""" + "\n".join(body) + f"""
    .fill {fill}, 4, 0xbf810000
.section .rodata,"a"
.p2align 6
.amdhsa_kernel {NAME}_kernel
  .amdhsa_next_free_vgpr 256
  .amdhsa_next_free_sgpr 102
  .amdhsa_accum_offset 256
  .amdhsa_group_segment_fixed_size 0
  .amdhsa_kernarg_size 96
  .amdhsa_user_sgpr_count 2
  .amdhsa_user_sgpr_kernarg_segment_ptr 1
  .amdhsa_system_sgpr_workgroup_id_x 1
.end_amdhsa_kernel
"""
def size_of(txt):
    open("_sz.s", "w").write(txt)
    subprocess.run(["clang", "-x", "assembler", "-target", "amdgcn-amd-amdhsa", "-mcpu=gfx950", "-c", "_sz.s", "-o", "_sz.o"], check=True)
    o = subprocess.run(["llvm-objdump", "-t", "_sz.o"], capture_output=True, text=True).stdout
    return [int(l.split()[0], 16) for l in o.splitlines() if l.endswith("L_codeend")][0]
sz = size_of(emit(40, 1))
pfs = OPT.get("pfs", (sz + 2047) // 2048 * 4)
assert pfs <= 64
print("code bytes", sz, "prefetch stride", pfs)
open(sys.argv[1], "w").write(emit(pfs, max(1, (pfs * 512 - sz + 3) // 4)))
```

```python
import sys, struct, math
from asmlib import *

NAME = "concat_heads__softmax_full_mha__ssm_conv_h3__prompt"
DIAG = "diag" in sys.argv
SOPT = dict(a.split("=") for a in sys.argv[2:] if "=" in a)
OPT = {k: int(x) for k, x in SOPT.items() if x.isdigit()}
OPT.setdefault("rt", 40404040)
SPIN = 1 << 16

FA, FB, FC = 0x40000, 0x60000, 0x3000
FS = OPT.get('fs', 4)
QF, KV, UU, ZZ, OF, WSEND = 0x100000, 0x300000, 0x700000, 0x900000, 0xB00000, 0xD00000
DG = 0x10000
LX, LA, LB, LP, LR = 0, 32768, 65536, 98304, 131072
HP, UOFF = 4160, 16640
MERGE, BADF = LP + 16384, LP + 3968
ONES = 0x3f803f80
def fbits(x): return struct.unpack("<I", struct.pack("<f", x))[0]
QSCALE = fbits(28 ** -0.5 * math.log2(math.e))

X_, WQ, WO, Q_, K_, V_, SK, HK, OUT, WS = 4, 8, 12, 16, 20, 24, 28, 32, 36, 40
sDP, sNON, sW = 44, 46, 47
sJ, sTT, sRT, sCG, sC, sH, sQT, sG = 48, 49, 50, 51, 52, 53, 54, 55
sED, sT0, sT1, sT2, sT3, sT4, sT5, sT6, sT7 = 56, 57, 58, 59, 60, 61, 62, 63, 64
sI, sSO, sSO2, sLW, sLX, sTRY, sSP, sCB = 65, 66, 67, 68, 69, 70, 71, 72
sDV, sM1, sM2 = 73, 74, 76
sKVB, sWM = 78, 79
sFL, sE0, sE1, sE2, sKP, sZO, sOO, sKL, sUO, sQO, sUT, sKS = 20, 21, 22, 23, 24, 26, 27, 28, 29, 30, 31, 3
sUS, sCL, sK0 = 29, 44, 45
sQS = 34
sST = 80
def srd(b): return s(b, 4)

a = Asm()
def stamp(k, st=None):
    if not DIAG: return
    if st is None and k >= 9: st = 0
    if st is not None and st != OPT.get("set", 0): return
    a(f"{'s_memtime' if OPT.get('cyc') else 's_memrealtime'} s[96:97]\ns_waitcnt lgkmcnt(0)\ns_mov_b32 s{sST+k}, s96")

npoll = [0]
def poll(vaddr, vtmp):
    n = npoll[0]; npoll[0] += 1
    a(f"""
s_mov_b32 s{sSP}, {SPIN}
L_poll{n}:
buffer_load_dword v{vtmp}, v{vaddr}, {srd(WS)}, 0 offen sc1
s_waitcnt vmcnt(0)
v_cmp_ne_u32 vcc, s{sNON}, v{vtmp}
s_cbranch_vccz L_pollok{n}
s_sub_u32 s{sSP}, s{sSP}, 1
s_cbranch_scc0 L_poll{n}
L_pollok{n}:
""")
vNON = 15
def signal(soff):
    a(f"s_mov_b64 exec, 1\nbuffer_store_dword v{vNON}, v1, {srd(WS)}, {soff} offen sc1\ns_mov_b64 exec, -1")

def mfma32(d, A, B, C): return f"v_mfma_f32_32x32x16_bf16 {v(d,16)}, {v(A,4)}, {v(B,4)}, {C if isinstance(C,str) else v(C,16)}"
def mfma16(d, A, B, C): return f"v_mfma_f32_16x16x32_bf16 {v(d,4)}, {v(A,4)}, {v(B,4)}, {C if isinstance(C,str) else v(C,4)}"

class LQ:
    def __init__(self): self.q = []
    def __call__(self, txt):
        for t in txt.strip("\n").split("\n"):
            i = Ins(t)
            if not i.mn: a(t); continue
            last = max([k for k, w in enumerate(self.q) if w & (i.rd | (i.wr if not i.ds else set()))], default=-1)
            if last >= 0:
                n = min(15, len(self.q) - 1 - last)
                a(f"s_waitcnt lgkmcnt({n})"); self.q = self.q[len(self.q) - n:]
            a(t)
            if i.ds: self.q.append(vset(i.wr))
    def drain(self, n=0):
        if len(self.q) > n:
            a(f"s_waitcnt lgkmcnt({n})"); self.q = self.q[len(self.q) - n:]

vXD, vWD, vXR, vWR, vXB = 2, 6, 9, 13, 14
ACC, RS = 16, 64
vCA, vCB, vCW, vCR, vCU, vZ, vD = 192, 193, 194, 195, 196, 197, 198
vB0, vB1, vQA, vWOA, vMG, vBW, vBR = 199, 200, 201, 202, 203, 204, 205
vPA, vUD, vPB, vZL, vGO, vGA = 206, 207, 208, 209, 210, 211
vHO, vCP = 10, 129
KR, VR, SR, KF, WF, UA, VF, UP = 140, 152, 160, 164, 212, 220, 64, 236
H0, QR = 112, 240
def srdc(lst): return "\n".join(f"s_mov_b32 s{b+2}, {n}\ns_mov_b32 s{b+3}, 0x20000" for b, n in lst)
def karg(lst): return "\n".join(f"s_load_dwordx2 s[{b}:{b+1}], s[0:1], {o}" for b, o in lst)
a.label(NAME + "_kernel")
if DIAG: a(f"{'s_memtime' if OPT.get('cyc') else 's_memrealtime'} s[98:99]")
a(f"""
s_cmp_ge_u32 s2, 256
s_cbranch_scc1 L_end
{karg(((K_, 32), (X_, 0), (V_, 40), (SK, 48), (WQ, 8), (WS, 88), (sDP, 64)))}
s_getpc_b64 s[{sT5}:{sT6}]
L_pc:
v_lshrrev_b32 v1, 6, v0
v_and_b32 v0, 63, v0
s_bfe_u32 s{sT0}, s2, 0x30003
v_lshl_add_u32 v2, s{sT0}, 6, v0
s_sub_u32 s{sT5}, s{sT5}, L_pc-{NAME}_kernel
s_subb_u32 s{sT6}, s{sT6}, 0
v_mul_u32_u24 v2, @@PFS@@, v2
v_mov_b32 v3, s{sT6}
v_add_co_u32 v2, vcc, s{sT5}, v2
v_readfirstlane_b32 s{sW}, v1
v_lshrrev_b32 v130, 4, v0
v_addc_co_u32 v3, vcc, 0, v3, vcc
global_load_dword v255, v[2:3], off
s_and_b32 s{sG}, s{sW}, 3
s_cmp_lt_u32 s{sW}, 4
s_cbranch_scc1 L_uprep
""")
IDS_U = f"""
s_and_b32 s{sT2}, s2, 7
s_lshr_b32 s{sT3}, s2, 5
s_lshl3_add_u32 s{sRT}, s{sT2}, s{sT3}
s_bfe_u32 s{sCG}, s2, 0x20003
v_and_b32 v{vCP}, 15, v0
v_min_u32 v{vCP}, 13, v{vCP}
s_lshl2_add_u32 s{sT0}, s{sCG}, s{sG}
s_mul_i32 s{sT1}, s{sT0}, 56
s_mul_i32 s{sT2}, s{sRT}, {32*896}
s_add_u32 s{sT2}, s{sT2}, s{sT1}
v_mul_u32_u24 v{vGO}, {8*896}, v130
v_lshl_add_u32 v132, v{vCP}, 2, v{vGO}
v_add_u32 v{vGA}, s{sT2}, v132
"""
IDS_G = f"""
s_and_b32 s{sT2}, s2, 1
s_bfe_u32 s{sT3}, s2, 0x30003
s_lshl3_add_u32 s{sJ}, s{sT2}, s{sT3}
s_bfe_u32 s{sT2}, s2, 0x20001
s_lshr_b32 s{sT3}, s2, 6
s_lshl2_add_u32 s{sT2}, s{sT2}, s{sT3}
s_lshl2_add_u32 s{sTT}, s{sT2}, s{sG}
s_and_b32 s{sT2}, s{sG}, 1
s_lshr_b32 s{sT3}, s{sG}, 1
s_lshl2_add_u32 s{sT2}, s{sT3}, s{sT2}
s_add_u32 s{sT2}, s{sT2}, 4
s_lshl_b32 s{sLX}, s{sT2}, 14
"""
COMMON = f"""
v_lshlrev_b32 v1, 4, v0
s_sub_u32 s{sT2}, s2, 32
s_cmp_lt_u32 s2, 224 | s_cselect_b32 s{sC}, s2, s{sT2}
s_load_dword s{sED}, s[{WS}:{WS+1}], 0
s_lshl_b32 s{sT0}, s{sC}, 2
s_load_dword s{sDV}, s[{sDP}:{sDP+1}], s{sT0}
{karg(((HK, 56), (WO, 16), (Q_, 24), (OUT, 72)))}
{srdc(((WO, 401408), (Q_, 1835008), (OUT, 3670016), (WS, WSEND)))}
v_add_u32 v{vGO}, v{vGO}, v{vGA}
v_lshlrev_b32 v133, 7, v{vCP}
v_lshl_add_u32 v{vZL}, v130, 4, v133
s_lshl2_add_u32 s{sT4}, s{sCG}, s{sG}
s_mul_i32 s{sT1}, s{sT4}, 1792
s_mul_i32 s{sT3}, s{sRT}, 28672
s_add_u32 s{sUT}, s{sT1}, s{sT3}
s_add_u32 s{sUT}, s{sUT}, {ZZ}
s_and_b32 s{sT2}, s2, 7
s_lshr_b32 s{sT3}, s2, 7
s_lshl1_add_u32 s{sQT if OPT.get("xq", 0) else sH}, s{sT2}, s{sT3}
s_bfe_u32 s{sH if OPT.get("xq", 0) else sQT}, s2, 0x40003
s_mov_b32 s{sTRY}, 0
s_lshr_b32 s{sT7}, s{sW}, 2
s_mul_i32 s{sCB}, s{sT7}, {LP}
v_and_b32 v132, 3, v0
v_sub_u32 v133, 3, v132
v_mul_u32_u24 v133, {HP}, v133
v_and_b32 v134, 12, v0
v_lshl_add_u32 v133, v134, 1, v133
v_and_b32 v134, 0x30, v0
v_sub_u32 v133, v133, v134
s_lshl_b32 s{sT0}, s{sG}, 7
s_add_u32 s{sT1}, s{sT0}, s{sCB}
s_add_u32 s{sT1}, s{sT1}, 56
v_add_u32 v{vCA}, s{sT1}, v133
v_and_b32 v139, 15, v0
v_lshl_add_u32 v133, v139, 5, v134
s_sub_u32 s{sT1}, s{sCB}, s{sT0}
s_add_u32 s{sT1}, s{sT1}, {UOFF+512-96}
v_add_u32 v{vCB}, s{sT1}, v133
v_lshrrev_b32 v131, 5, v0
v_lshlrev_b32 v133, 7, v131
v_xor_b32 v133, v133, v1
s_lshl_b32 s{sT0}, s{sG}, 13
s_add_u32 s{sT0}, s{sT0}, s{sCB}
v_add_u32 v{vCW}, s{sT0}, v133
v_bfe_u32 v135, v0, 2, 1
v_mul_u32_u24 v136, {LP}, v135
v_lshrrev_b32 v137, 3, v0
v_lshl_add_u32 v138, v137, 2, v132
v_lshrrev_b32 v133, 1, v138
v_and_b32 v134, 1, v0
v_mul_u32_u24 v134, 40, v134
v_xor_b32 v133, v133, v134
v_lshl_add_u32 v133, v133, 4, v136
s_lshl_b32 s{sT0}, s{sW}, 10
v_add_u32 v{vCR}, s{sT0}, v133
v_lshl_add_u32 v133, v138, 4, v136
s_lshl_b32 s{sT0}, s{sW}, 9
s_add_u32 s{sT0}, s{sT0}, {UOFF+512}
v_add_u32 v{vCU}, s{sT0}, v133
v_mul_u32_u24 v133, 28672, v137
v_and_b32 v134, 7, v0
v_lshl_add_u32 v{vZ}, v134, 4, v133
v_lshlrev_b32 v134, 2, v134
v_add_u32 v{vBR}, {BADF}, v134
s_mul_i32 s{sT0}, s{sW}, {8*28672}
s_lshl_b32 s{sT1}, s{sC}, 7
s_add_u32 s{sT0}, s{sT0}, s{sT1}
s_add_u32 s{sZO}, s{sT0}, {ZZ}
s_lshl_b32 s{sKVB}, s{sH}, 18
s_add_u32 s{sKVB}, s{sKVB}, {KV}
s_lshl_b32 s{sKL}, s{sW}, 12
s_add_u32 s{sKS}, s{sKVB}, s{sKL}
s_min_u32 s{sT0}, s{sW}, 6
s_lshl_b32 s{sWM}, s{sT0}, 10
s_lshl_b32 s{sT1}, s{sT0}, 6
v_add_u32 v133, s{sT1}, v0
v_mul_u32_u24 v134, 4682, v133
v_lshrrev_b32 v134, 16, v134
v_mul_u32_u24 v136, 14, v134
v_sub_u32 v133, v133, v136
v_bfe_u32 v136, v134, 1, 2
v_and_b32 v138, 1, v134
v_lshl_add_u32 v136, v138, 2, v136
v_and_or_b32 v134, v134, 24, v136
v_mul_u32_u24 v134, 896, v134
v_lshl_add_u32 v133, v133, 4, v134
s_mul_i32 s{sT1}, s{sCG}, 224
v_add_u32 v{vWOA}, s{sT1}, v133
s_lshl_b32 s{sT0}, s{sT7}, 14
s_add_u32 s{sT0}, s{sT0}, {LA}
v_add_u32 v{vB0}, s{sT0}, v1
v_add_u32 v{vB1}, 0x10000, v{vB0}
s_lshl_b32 s{sT0}, s{sG}, 11
s_add_u32 s{sT0}, s{sT0}, {LR}
v_add_u32 v{vQA}, s{sT0}, v1
s_lshl_b32 s{sT0}, s{sG}, 12
s_add_u32 s{sT0}, s{sT0}, {MERGE}
v_add_u32 v{vMG}, s{sT0}, v1
s_lshl_b32 s{sT1}, s{sW}, 2
s_add_u32 s{sT1}, s{sT1}, {BADF}
v_mov_b32 v{vBW}, s{sT1}
s_lshl_b32 s{sT3}, s{sQT}, 2
s_add_u32 s{sT3}, s{sT3}, s{sG}
s_lshl_b32 s{sT0}, s{sT3}, 4
s_add_u32 s{sT0}, s{sT0}, s{sH}
s_lshl_b32 s{sT0}, s{sT0}, 11
s_add_u32 s{sOO}, s{sT0}, {OF}
s_lshl4_add_u32 s{sT0}, s{sH}, s{sQT}
s_lshl3_add_u32 s{sT0}, s{sT0}, s{sW}
s_lshl_b32 s{sT0}, s{sT0}, 10
s_add_u32 s{sQO}, s{sT0}, {QF}
v_cmp_eq_u32 vcc, 0, v135
s_waitcnt lgkmcnt(0)
s_mul_i32 s{sNON}, s{sED}, 1664525
s_add_u32 s{sNON}, s{sNON}, 1013904223
s_lshl_b32 s{sT0}, s{sDV}, 16
s_and_b32 s{sT1}, s{sDV}, 0xffff0000
v_mov_b32 v133, s{sT0}
v_mov_b32 v134, s{sT1}
v_cndmask_b32 v{vD}, v134, v133, vcc
v_mov_b32 v{vNON}, s{sNON}
s_lshl_b32 s{sT0}, s{sT7}, 10
s_add_u32 s{sCL}, s{sOO}, s{sT0}
s_lshl3_add_u32 s{sT0}, s{sT7}, s{sG}
s_lshl_b32 s{sK0}, s{sT0}, 11
"""
CNT = 65520

a(IDS_G + srdc(((X_, 1835008), (WQ, 1204224))) + f"""
v_lshrrev_b32 v128, 3, v0
s_lshl_b32 s{sT0}, s{sTT}, 5
v_add_u32 v128, s{sT0}, v128
v_mul_u32_u24 v128, 896, v128
v_and_b32 v129, 7, v0
v_xor_b32 v129, v129, v130
v_lshl_add_u32 v{vXD}, v129, 4, v128
v_xor_b32 v129, 4, v129
v_lshl_add_u32 v{vXD+1}, v129, 4, v128
v_add_u32 v{vXD+1}, {7168-1024}, v{vXD+1}
v_add_u32 v{vXD+2}, {14336-2048}, v{vXD}
v_add_u32 v{vXD+3}, {14336-2048}, v{vXD+1}
""")
if OPT.get("rt"): a(f"""
s_lshr_b32 s{sT3}, s2, 6
s_mul_i32 s{sT3}, s{sT3}, {OPT.get("rc", 1)}
s_add_u32 s{sT3}, s{sT3}, s{sJ}
s_and_b32 s{sT3}, s{sT3}, 7
s_lshl_b32 s{sT3}, s{sT3}, 2
s_lshr_b32 s{sI}, {int(str(OPT["rt"]), 16):#x}, s{sT3}
s_and_b32 s{sI}, s{sI}, 7
""")
a("s_waitcnt lgkmcnt(0)")
stamp(0)
def wbase(st): return LP + 12288 * st if st < 2 else 12288 * (st - 2)
RT = OPT["rt"]
def rot(dst, st, mul):
    if not RT: return f"s_mov_b32 s{dst}, {st*mul}\n"
    return f"s_add_u32 s{dst}, s{sI}, {st}\ns_cmp_ge_u32 s{dst}, 7\ns_cselect_b32 s{sSP}, 7, 0\ns_sub_u32 s{dst}, s{dst}, s{sSP}\ns_mul_i32 s{dst}, s{dst}, {mul}\n"
def dma_x(st):
    p = [f"buffer_load_dwordx4 v{vXD+i}, {srd(X_)}, s{sSO} offen offset:{1024*i} lds" for i in range(4)]
    p[0] = f"s_add_u32 m0, s{sLX}, {4096*(st&3)}\n" + rot(sSO, st, 128) + p[0]
    return p
def dma_w(st):
    p = [f"buffer_load_dwordx4 v{vWD+q}, {srd(WQ)}, s{sSO2} offen offset:{1024*q} lds" for q in range(3)]
    p[0] = f"s_add_u32 m0, s{sLW}, {wbase(st)}\n" + rot(sSO2, st, 64*2688) + p[0]
    return p
def sprinkle(pieces, text):
    L = [x.replace(" | ", "\n") for x in text.strip().split("\n") if x.strip()]
    n = len(pieces)
    for k, p in enumerate(pieces):
        a(p)
        for x in L[len(L) * k // n: len(L) * (k + 1) // n]: a(x)
WADDR = f"""
s_mul_i32 s{sT0}, s{sJ}, 168
s_and_b32 s{sT0}, s{sT0}, -16
s_mul_i32 s{sT2}, s{sG}, {16*2688}
s_add_u32 s{sT0}, s{sT0}, s{sT2}
s_mul_i32 s{sLW}, s{sG}, 3072
"""
for q in range(3):
    WADDR += f"""
v_add_u32 v128, {64*q}, v0
v_mul_u32_u24 v129, 43691, v128
v_lshrrev_b32 v129, 19, v129
v_mul_u32_u24 v131, 12, v129
v_sub_u32 v128, v128, v131
v_min_u32 v128, 10, v128
v_mul_u32_u24 v129, 2688, v129
v_lshl_add_u32 v128, v128, 4, v129
v_add_u32 v{vWD+q}, s{sT0}, v128
""" + (f"s_sub_u32 s{sT0}, s{sT0}, 1024" if q < 2 else "")
for p in dma_x(0): a(p)
a("s_branch L_loader\nL_uprep:")
a("s_setprio 3\n" + IDS_U + srdc(((K_, 1835008), (V_, 1835008), (SK, 3584))) + f"""
v_subrev_u32 v135, 2688, v{vGA}
s_lshl_b32 s{sT1}, s{sT1}, 2
v_lshl_add_u32 v137, v{vCP}, 4, s{sT1}
s_movk_i32 s{sT5}, 3584
s_waitcnt lgkmcnt(0)
""")
stamp(0)
a(f"buffer_load_dwordx4 {v(SR,4)}, v137, {srd(SK)}, 0 offen")
for i in range(3): a(f"buffer_load_dword v{KR+i}, v135, {srd(K_)}, 0 offen offset:{896*i}")
for i in range(8): a(f"buffer_load_dword v{KR+3+i}, v{vGA}, {srd(K_)}, {'0' if i<4 else s(sT5)} offen offset:{896*(i&3)}")
for i in range(8): a(f"buffer_load_dword v{VR+i}, v{vGA}, {srd(V_)}, {'0' if i<4 else s(sT5)} offen offset:{896*(i&3)}")
a("s_setprio 0\n" + IDS_G + COMMON.replace(" | ", "\n") + f"""
s_sub_u32 s{sUS}, s{sUT}, {ZZ-UU}
s_lshl_b32 s{sT4}, s{sG}, 11
s_add_u32 s{sT4}, s{sT4}, {LP+24576}
v_and_b32 v136, 7, v{vCP}
v_lshlrev_b32 v136, 4, v136
v_xor_b32 v136, v136, v{vZL}
v_add_u32 v136, s{sT4}, v136
v_xor_b32 v138, 64, v136
v_lshlrev_b32 v137, 4, v137
v_xor_b32 v137, v137, v1
v_add_u32 v137, s{sT4}, v137
s_and_b32 s{sT6}, s{sJ}, 1
s_lshl_b32 s{sT6}, s{sT6}, 3
""")
a.c("---- QKV projection: 32 tokens x 3 head blocks per wave")
a(f"""
v_and_b32 v128, 31, v0
v_bfe_u32 v129, v0, 1, 3
v_xor_b32 v129, v129, v131
v_lshlrev_b32 v128, 7, v128
v_lshl_add_u32 v128, v129, 4, v128
v_add_u32 v{vXB}, s{sLX}, v128
v_bfe_u32 v128, v0, 2, 2
v_lshl_add_u32 v128, v131, 3, v128
v_mul_u32_u24 v128, 192, v128
v_and_b32 v129, 1, v130
v_lshl_add_u32 v128, v129, 5, v128
v_lshl_add_u32 v128, v132, 3, v128
s_add_u32 s{sT6}, s{sT6}, {LP}
v_add_u32 v{vWR}, s{sT6}, v128
v_mov_b32 v{vXR}, v{vXB}
v_mov_b32 v{vPB}, 0
v_xor_b32 v{vXR+1}, 32, v{vXB}
v_xor_b32 v{vXR+2}, 64, v{vXB}
v_xor_b32 v{vXR+3}, 0x60, v{vXB}
""")
a(f"s_lshr_b32 s{sT0}, s{sTT}, 2\ns_lshl4_add_u32 s{sT0}, s{sJ}, s{sT0}\ns_lshl_b32 s{sT0}, s{sT0}, {FS}\ns_add_u32 s{sFL}, s{sT0}, {FB}")
a(f"s_mul_i32 s{sT7}, s{sJ}, 3")
for b in range(3):
    a(f"""
s_add_u32 s{sT3}, s{sT7}, {b}
s_and_b32 s{sT0}, s{sT3}, 15
s_lshl_b32 s{sT0}, s{sT0}, 6
s_add_u32 s{sT0}, s{sT0}, s{sTT}
s_cmp_lt_u32 s{sT3}, 16
s_cselect_b32 s{sT1}, 11, 12
s_mov_b32 s{sT2}, {KV}
s_cselect_b32 s{sT2}, {QF}, s{sT2}
s_lshl_b32 s{sT0}, s{sT0}, s{sT1}
s_add_u32 s{sE0+b}, s{sT0}, s{sT2}
""")
a(f"""
s_mov_b32 s{sKP}, {ONES}
s_movk_i32 s{sKP+1}, 0x3f80
s_mov_b32 s{sQS}, {QSCALE:#x}
s_mov_b32 s{sQS+1}, {QSCALE:#x}
s_mov_b32 s{sM1}, 0xf0000000
s_mov_b32 s{sM1+1}, 0xf0000000
s_mov_b32 s{sM2}, {ONES}
s_mov_b32 s{sM2+1}, {ONES}
""")
for r in list(range(ACC, ACC + 48, 2)) + list(range(RS + 16, RS + 64, 2)): a(f"v_mov_b64 {v(r,2)}, 0")
a(f"s_mov_b32 s{sI}, 0\ns_setprio 2\ns_waitcnt vmcnt(8)")
stamp(2)
for j in range(4):
    for p in range(2):
        src = SR + 2 * p + (j >> 1)
        a(f"v_lshlrev_b32 v{WF+2*j+p}, 16, v{src}" if j % 2 == 0 else f"v_and_b32 v{WF+2*j+p}, 0xffff0000, v{src}")
for i in range(11): a(f"v_lshlrev_b32 v{KF+2*i}, 16, v{KR+i}\nv_and_b32 v{KF+2*i+1}, 0xffff0000, v{KR+i}")
for t in range(8): a(f"v_pk_mul_f32 {v(UA+2*t,2)}, {v(KF+2*t,2)}, {v(WF+6,2)}")
for j in (2, 1, 0):
    for t in range(8): a(f"v_pk_fma_f32 {v(UA+2*t,2)}, {v(KF+2*(t+3-j),2)}, {v(WF+2*j,2)}, {v(UA+2*t,2)}")
a("s_waitcnt vmcnt(0)")
for i in range(8): a(f"v_lshlrev_b32 v{VF+2*i}, 16, v{VR+i}\nv_and_b32 v{VF+2*i+1}, 0xffff0000, v{VR+i}")
for t in range(8): a(f"v_pk_mul_f32 {v(UA+2*t,2)}, {v(UA+2*t,2)}, {v(VF+2*t,2)}")
for p in range(2):
    for m in range(4): a(f"v_cvt_pk_bf16_f32 v{UP+4*p+m}, v{UA+2*(7-2*m)+p}, v{UA+2*(6-2*m)+p}")
    a(f"ds_write_b128 v{136+2*p}, {v(UP+4*p,4)}")
a(f"""
s_waitcnt lgkmcnt(0)
ds_read_b128 {v(UP,4)}, v137
ds_read_b128 {v(UP+4,4)}, v137 offset:1024
s_waitcnt lgkmcnt(1)
buffer_store_dwordx4 {v(UP,4)}, v1, {srd(WS)}, s{sUS} offen sc1
s_mov_b32 exec_hi, 0xffff
s_waitcnt lgkmcnt(0)
buffer_store_dwordx4 {v(UP+4,4)}, v1, {srd(WS)}, s{sUS} offen offset:1024 sc1
s_mov_b32 exec_hi, -1
""")
stamp(3)
a(f"""
s_cmp_eq_u32 s{sJ}, 10
s_cbranch_scc1 L_gemm1
s_cmp_gt_u32 s{sJ}, 10
s_cbranch_scc1 L_gemm2
""")
def g_reads(ks):
    r = RS + 16 * ks
    out = [f"ds_read_b128 {v(r,4)}, v{vXR+ks}"]
    for b in range(3):
        for t in range(2):
            out.append(f"ds_read_b64_tr_b16 {v(r+4+4*b+2*t,2)}, v{vWR} offset:{(16*ks+4*t)*192+56*b}")
    return out
def g_mfma(ks, isv):
    r = RS + 16 * ks
    return [mfma32(ACC+16*b, r, r+4+4*b, ACC+16*b) if isv[b] else mfma32(ACC+16*b, r+4+4*b, r, ACC+16*b) for b in range(3)]
for var, isv in enumerate(((0,0,0), (0,0,1), (1,1,1))):
    m = [g_mfma(k, isv) for k in range(4)]
    rd = g_reads(0) + g_reads(1) + g_reads(2) + g_reads(3)
    a(f"L_gemm{var}:\n{m[1][2]}\ns_barrier")
    seq = m[2] + m[3] + m[0] + m[1][:1]
    for k, x in enumerate(seq):
        if k == 6: a("s_waitcnt lgkmcnt(11)")
        if k == 9: a("s_waitcnt lgkmcnt(13)")
        a("\n".join([x] + rd[3*k:3*k+3]))
    a(f"""
s_cmp_eq_u32 s{sI}, 1
s_movk_i32 s{sT1}, 12288
s_cselect_b32 s{sT1}, {(-LP-12288) & 0xffffffff}, s{sT1}
s_add_u32 s{sI}, s{sI}, 1
s_and_b32 s{sT0}, s{sI}, 3
s_lshl_b32 s{sT0}, s{sT0}, 12
{m[1][1]}
v_add_u32 v{vWR}, s{sT1}, v{vWR}
v_xor_b32 v{vXR}, s{sT0}, v{vXB}
v_xor_b32 v{vXR+1}, 32, v{vXR}
v_xor_b32 v{vXR+2}, 64, v{vXR}
v_xor_b32 v{vXR+3}, 0x60, v{vXR}
s_cmp_lt_u32 s{sI}, 7
s_waitcnt vmcnt(0) lgkmcnt(0)
s_cbranch_scc1 L_gemm{var}
""")
    a("\n".join([m[2][0], m[1][2], m[3][0], m[2][1], m[2][2], m[3][1], m[3][2]]))
    stamp(1)
    a.c("epilogue: scale Q, pack to bf16 fragments, patch the pad slots, publish")
    for b in range(3):
        pk = 128 + 8 * b
        padp = sKP
        if var == 0:
            padp = sM1
            a(f"s_cmp_lt_u32 s{sT7}, {16-b}\ns_cselect_b64 {s(sM1,2)}, 0, {s(sKP,2)}\ns_cbranch_scc0 L_nosc{b}")
            for r in range(0, 16, 2): a(f"v_pk_mul_f32 {v(ACC+16*b+r,2)}, {v(ACC+16*b+r,2)}, {s(sQS,2)}")
            a.label(f"L_nosc{b}")
        for r in range(8): a(f"v_cvt_pk_bf16_f32 v{pk+r}, v{ACC+16*b+2*r}, v{ACC+16*b+2*r+1}")
        if isv[b]:
            a(f"s_mov_b64 exec, {s(sM1,2)}")
            for r in range(0, 8, 2): a(f"v_mov_b64 {v(pk+r,2)}, {s(sM2,2)}")
        else: a(f"s_mov_b32 exec_lo, 0\nv_mov_b64 {v(pk+6,2)}, {s(padp,2)}")
        o = 2048 * isv[b]
        a(f"""
s_mov_b64 exec, -1
buffer_store_dwordx4 {v(pk,4)}, v1, {srd(WS)}, s{sE0+b} offen offset:{o} sc1
buffer_store_dwordx4 {v(pk+4,4)}, v1, {srd(WS)}, s{sE0+b} offen offset:{o+1024} sc1
""")
    a("s_branch L_conv")

a.label("L_loader")
HELP = f"""
v_mov_b32 v133, {CNT}
v_mov_b32 v134, 0
ds_write_b32 v133, v134
v_min_u32 v133, 2, v130
v_lshl_add_u32 v133, v133, 4, s{sH}
v_mul_u32_u24 v133, 21846, v133
v_lshrrev_b32 v133, 16, v133
v_mov_b32 v134, s{sQT}
v_cmp_gt_u32 vcc, 16, v0
s_lshl_b32 s{sT0}, s{sCG}, 6
s_add_u32 s{sT0}, s{sT0}, s{sRT}
s_lshl_b32 s{sT0}, s{sT0}, {FS}
s_add_u32 s{sFL}, s{sT0}, {FA}
v_cndmask_b32 v134, v139, v134, vcc
v_lshl_add_u32 v133, v133, 4, v134
v_lshlrev_b32 v133, {FS}, v133
v_add_u32 v{vPB}, {FB}, v133
s_mul_i32 s{sT0}, s{sC}, 1171
s_lshr_b32 s{sT0}, s{sT0}, 16
s_lshl2_add_u32 s{sT0}, s{sT0}, s{sG}
s_lshl_b32 s{sT0}, s{sT0}, {4+FS}
s_add_u32 s{sT0}, s{sT0}, {FA}
v_lshl_add_u32 v{vPA}, v139, {FS}, s{sT0}
v_lshrrev_b32 v133, 2, v0
v_mul_u32_u24 v133, 28672, v133
v_lshl_add_u32 v{vUD}, v132, 4, v133
s_mul_i32 s{sT0}, s{sG}, {16*28672}
s_lshl_b32 s{sT1}, s{sC}, 7
s_add_u32 s{sT0}, s{sT0}, s{sT1}
s_add_u32 s{sUO}, s{sT0}, {UU}
v_bfe_u32 v138, v0, 1, 2
v_mul_u32_u24 v138, {HP}, v138
v_and_b32 v139, 1, v0
v_lshl_add_u32 v138, v139, 4, v138
v_add_u32 v139, {UOFF}, v1
v_cmp_gt_u32 vcc, 32, v0
v_mov_b64 v[140:141], 0
v_mov_b64 v[142:143], 0
v_cndmask_b32 v138, v138, v139, vcc
v_add_u32 v139, {LP}, v138
{srdc(((HK, 1835008),))}
s_lshl_b32 s{sT3}, s{sC}, 13
s_lshl_b32 s{sT4}, s{sG}, 10
s_add_u32 s{sT3}, s{sT3}, s{sT4}
v_add_u32 v11, s{sT3}, v1
v_add_u32 v{vHO}, s{sT4}, v1
v_subrev_u32 v12, 8, v11
v_cmp_eq_u32 vcc, 0, v{vHO}
v_mov_b32 v136, 0xffffe000
s_movk_i32 s{sT7}, 4096
v_cndmask_b32 v12, v12, v136, vcc
"""
def hprep(p):
    R = H0 + 8 * p; T = 40 + 12 * p
    a(f"v_add_u32 v{134+p}, {(LP if p else LX)+32}, v{vHO}")
    for i in range(4): a(f"v_alignbit_b32 v{T+i}, v{R+2+i}, v{R+1+i}, 16")
    for i in range(4): a(f"v_mov_b32 v{T+4+i}, v{R+1+i}")
    for i in range(4): a(f"v_alignbit_b32 v{T+8+i}, v{R+1+i}, v{R+i}, 16")
def hwrite(p):
    R = H0 + 8 * p; T = 40 + 12 * p
    a(f"ds_write_b128 v{134+p}, {v(R+2,4)}")
    for c in range(1, 4): a(f"ds_write_b128 v{134+p}, {v(T+4*(c-1),4)} offset:{HP*c}")
    a.c("zero pads: lanes 0-31 the u pad, lanes 32-39 the h pads")
    a(f"ds_write_b128 v{138+p}, {v(140,4)}")
def u_dma():
    a(f"""
s_lshl_b32 s{sT2}, s{sG}, 10
s_add_u32 m0, s{sT2}, {LX+UOFF+512}
s_add_u32 s{sT1}, s{sUO}, 64
buffer_load_dwordx4 v{vUD}, {srd(WS)}, s{sUO} offen sc1 lds
s_add_u32 m0, s{sT2}, {LP+UOFF+512}
s_nop 0
buffer_load_dwordx4 v{vUD}, {srd(WS)}, s{sT1} offen sc1 lds
""")

a(WADDR)
HL = [f"buffer_load_dwordx{2+2*k} {v(H0+8*p+2*k,2+2*k)}, v{12-k}, {srd(HK)}, {s(sT7) if p else 0} offen" for p in range(2) for k in range(2)]
rest = [(0, p) for p in dma_w(0)] + [(st, p) for st in range(1, 7) for p in dma_w(st) + dma_x(st)]
HPOS = 3 + 7 * OPT.get("hst", 4)
rest[HPOS:HPOS] = [(9, x) for x in HL]
rest.append((8, f"buffer_load_dword v144, v{vPA}, {srd(WS)}, 0 offen sc1"))
calc = [x.replace(" | ", "\n") for x in (IDS_U + COMMON + HELP).strip().split("\n") if x.strip()]
NC = min(HPOS, 17); LAGS = [int(x, 36) for x in SOPT.get("lags", "eedc97")]
issued = [0] * 4; n = 0
def bar(n):
    young = len(issued) - 1 - max(k for k, st in enumerate(issued) if st == n)
    if n == 0: stamp(1)
    a(f"s_waitcnt vmcnt({young})\ns_barrier")
    if n < 6: stamp(9 + n, 2)
    if n == 1:
        assert len(issued) >= NC + 4
        a.c("waves 0-3 waited for their u stores before this barrier")
        a(f"s_cmp_lg_u32 s{sW}, 4\ns_cbranch_scc1 L_nsa")
        signal(f"s{sFL}")
        a.label("L_nsa")
for k, (st, p) in enumerate(rest):
    assert st > 7 or "s[8:11]" in p or st - 4 < n - 1
    a(p); issued.append(st)
    if k < NC:
        for x in calc[len(calc) * k // NC: len(calc) * (k + 1) // NC]: a(x)
    if n < 6 and issued.count(n) == 7 and len(issued) - 1 - max(q for q, s_ in enumerate(issued) if s_ == n) >= LAGS[n]:
        bar(n); n += 1
while n < 6: bar(n); n += 1
EARLYH = OPT.get("hst", 4) < 5
if EARLYH: hprep(1); hwrite(1)
bar(6)
a(f"s_waitcnt vmcnt(0)\nv_cmp_ne_u32 vcc, s{sNON}, v144\ns_cbranch_vccz L_uok")
poll(vPA, 144)
a("L_uok:")
u_dma()
stamp(4)
if not EARLYH: hprep(1); hwrite(1)
hprep(0); hwrite(0)
a("s_setprio 1\ns_waitcnt vmcnt(0) lgkmcnt(0)")
def ldq():
    for i in range(8): a(f"buffer_load_dword v{QR+i}, v{vGA}, {srd(Q_)}, {'0' if i<4 else s(sT5)} offen offset:{896*(i&3)}")

a.label("L_conv")
CAC, CU, FA_, FB_ = 16, 48, 64, 128
a.c("---- long causal conv as block-Toeplitz MFMA: channel = wave>>2, lag phases split over wave&3")
a("s_barrier")
stamp(5)
def c_readA(i, r): return [f"ds_read_b64 {v(FA_+32*i+4*r+2*t,2)}, v{vCA} offset:{512*r+64*i+8*t}" for t in range(2)]
def c_readB(i, x): return [f"ds_read_b128 {v(FB_+32*i+4*x,4)}, v{vCB} offset:{512*x+64*(1-i)}"]
def c_m(i, nt, r, first=False): return mfma16(CAC+4*nt, FA_+32*i+4*r, FB_+32*i+4*(nt-r), "0" if first else CAC+4*nt)
lq = LQ()
rds = [x for i in range(2) for k in range(8) for x in c_readA(i, k) + c_readB(i, k)] + [f"ds_read_b128 {v(CU,4)}, v{vCU}"]
for x in rds[:15]: lq(x)
rds = rds[15:]
seen = set(); prev = -1
for k in range(8):
    grp = [(r, x) for r in range(k + 1) for x in range(k + 1) if max(r, x) == k and r + x <= 7]
    while grp:
        r, x = next((p for p in grp if p[0] + p[1] != prev), grp[0]); grp.remove((r, x))
        lq(c_m(0, r + x, r, first=(r + x) not in seen)); seen.add(r + x); prev = r + x
        if rds: lq(rds.pop(0))
assert not rds
stamp(9, 3)
a(f"""
s_cmp_ge_u32 s{sW}, 4
s_cbranch_scc1 L_cm
s_setprio 0
v_mov_b32 v52, {CNT}
v_mov_b32 v53, 1
s_mov_b64 exec, 1
s_waitcnt vmcnt(0)
ds_add_rtn_u32 v53, v52, v53
s_waitcnt lgkmcnt(0)
v_cmp_eq_u32 vcc, 3, v53
s_cbranch_vccz L_cnl
buffer_store_dword v{vNON}, v1, {srd(WS)}, s{sFL} offen sc1
L_cnl:
s_mov_b64 exec, -1
""")
stamp(4)
a.label("L_cm")
lq.drain()
a("s_barrier")
stamp(10, 3)
pend = []; cnt = 0; PP = ((36,), (25, 36), (14, 25, 36))[OPT.get("pp", 3) - 1]
for n0 in range(0, 8, 2):
    ms = []
    for r in range(n0 + 2):
        ms.append(c_m(1, n0 + 1, r))
        if r <= n0: ms.append(c_m(1, n0, r))
    for m_ in ms:
        a(m_); cnt += 1
        pend = [(w, n + 1) for w, n in pend]
        if pend and pend[0][1] >= 8: a(pend.pop(0)[0])
    for nt in (n0, n0 + 1): pend.append((f"ds_write_b128 v{vCW}, {v(CAC+4*nt,4)} offset:{1024*nt}", 0))
for t in range(8):
    m = (7 - t) // 2
    a(f"v_lshlrev_b32 v{56+t}, 16, v{CU+m}" if t % 2 else f"v_and_b32 v{56+t}, 0xffff0000, v{CU+m}")
a("v_and_b32 v126, 7, v0\nv_lshlrev_b32 v130, 3, v0\nv_mov_b64 v[128:129], 0")
for w, n in pend: a(w)
stamp(6)
a(f"s_cmp_lg_u32 s{sW}, 4\ns_cbranch_scc1 L_cred")
poll(vPB, 52)
a.label("L_cred")
a("s_waitcnt lgkmcnt(0)\ns_barrier")
stamp(7)
def kv_stage(n):
    a(f"s_add_u32 m0, s{sKL}, {LA+32768*n}\ns_add_u32 s{sSO}, s{sKS}, {32768*n}")
    for i in range(4): a(f"buffer_load_dwordx4 v1, {srd(WS)}, s{sSO} offen offset:{1024*i} sc1 lds")
a.c("behind that barrier every wave knows the QKV flags matched: Q and the first tiles go first")
a(f"""
s_setprio 0
s_lshl_b32 s{sT5}, s{sW}, 10
s_add_u32 m0, s{sT5}, {LR}
s_add_u32 s{sSO}, s{sKVB}, s{sK0}
buffer_load_dwordx4 v1, {srd(WS)}, s{sQO} offen sc1 lds
s_add_u32 m0, s{sK0}, {LA}
s_add_u32 s{sSO2}, s{sSO}, 8192
buffer_load_dwordx4 v1, {srd(WS)}, s{sSO} offen sc1 lds
buffer_load_dwordx4 v1, {srd(WS)}, s{sSO} offen offset:1024 sc1 lds
s_add_u32 m0, s{sK0}, {LA+8192}
""")
for q in range(4):
    for i in range(2): a(f"ds_read_b128 {v(64+8*q+4*i,4)}, v{vCR} offset:{8192*q+256*i}")
a(f"""
buffer_load_dwordx4 v1, {srd(WS)}, s{sSO2} offen sc1 lds
buffer_load_dwordx4 v1, {srd(WS)}, s{sSO2} offen offset:1024 sc1 lds
""")
stamp(11, 3)
a("s_waitcnt lgkmcnt(4)")
for t in range(8): a(f"v_fma_f32 v{56+t}, v{56+t}, v{vD}, v{64+t}")
for t in range(0, 8, 2): a(f"v_pk_add_f32 {v(56+t,2)}, {v(56+t,2)}, {v(72+t,2)}")
a("s_waitcnt lgkmcnt(0)")
a.c("wave 0 alone reads the first 128 bytes: it clears the progress bytes of the key loop behind its reads")
a(f"""
s_cmp_lg_u32 s{sW}, 0
s_cbranch_scc1 L_nclr
s_mov_b64 exec, 0xffff
ds_write_b64 v130, v[128:129]
s_mov_b64 exec, -1
L_nclr:
""")
for t in range(0, 8, 2): a(f"v_pk_add_f32 {v(80+t,2)}, {v(80+t,2)}, {v(88+t,2)}")
for t in range(0, 8, 2): a(f"v_pk_add_f32 {v(56+t,2)}, {v(56+t,2)}, {v(80+t,2)}")
for m in range(4): a(f"v_cvt_pk_bf16_f32 v{104+m}, v{56+2*m}, v{57+2*m}")
a("v_mov_b64 v[108:109], -1\nv_mov_b64 v[110:111], -1")
stamp(12, 3)
kv_stage(1)
a(f"""
v_mov_b32 v124, s{sW}
s_and_b32 s{sT0}, s{sW}, 4
v_and_or_b32 v125, v0, 3, s{sT0}
s_lshr_b32 s{sT0}, s2, 3
s_mul_i32 s{sT0}, s{sT0}, 3
s_add_u32 s{sT0}, s{sT0}, s{sG}
s_lshl_b32 s{sT0}, s{sT0}, 12
s_add_u32 s{sT0}, s{sT0}, {128*896 if OPT.get("wp", 1) else 1<<20}
v_lshl_add_u32 v131, v0, 6, s{sT0}
""")
stamp(13, 3)
a("s_waitcnt vmcnt(6)")
stamp(14, 3)

WS0 = 128
vFW, vFG, vF8, vFT = 124, 125, 126, 127
vQ, vK, vV, vP, vSa, vSb, vO, vM, vKC, vZR, vFC = 16, 24, 32, 40, 48, 64, 80, 14, 96, 248, 120
a.c("---- attention: S^T = K Q^T - m (m rides in the pad slots), P = exp2, O^T += V^T P^T (row 28 = sum)")
a(f"""
L_att:
s_cmp_lg_u32 s{sTRY}, 0
s_barrier
""")
stamp(8)
def kvaddr(T, f):
    o = 32768 * ((T >> 2) & 3) + 4096 * (T & 3) + 1024 * f
    return f"v{vB0 if o < 65536 else vB1} offset:{o & 65535}"
def rdK(T, f): return f"ds_read_b128 {v(vK+4*f,4)}, {kvaddr(T, f)}"
def rdV(T, f): return f"ds_read_b128 {v(vV+4*f,4)}, {kvaddr(T, 2+f)}"
def wo_piece(g): return [f"s_add_u32 m0, s{sWM}, {WS0+7168*g}", f"s_mov_b32 s{sSO2}, {28672*g}", f"buffer_load_dwordx4 v{vWOA}, {srd(WO)}, s{sSO2} offen lds"]
def pieces(n):
    out = []
    if n == 1:
        out += [[f"buffer_store_dwordx4 {v(104,4)}, v{vZ}, {srd(WS)}, s{sZO} offen sc1"], [f"buffer_store_dwordx4 {v(108,4)}, v1, {srd(WS)}, s{sCL} offen sc1"]]
    if n < 6:
        for i in range(4):
            p = [f"buffer_load_dwordx4 v1, {srd(WS)}, s{sSO} offen offset:{1024*i} sc1 lds"]
            if i == 0: p = [f"s_add_u32 m0, s{sKL}, {LA+32768*((n+2)&3)}", f"s_add_u32 s{sSO}, s{sKS}, {32768*(n+2)}"] + p
            out.append(p)
        if n >= 2: out.append(wo_piece(n - 2))
    elif n < 8: out = [wo_piece(4 + 5 * (n - 6) + i) for i in range(5)]
    return out
def maxtree(S, dst, have):
    a(f"v_max3_f32 v{dst}, v{S}, v{S+1}, v{dst}" if have else f"v_max_f32 v{dst}, v{S}, v{S+1}")
    for i in range(2, 16, 2): a(f"v_max3_f32 v{dst}, v{S+i}, v{S+i+1}, v{dst}")
p0 = pieces(0)
a(f"""
{rdK(0,0)}
{rdK(0,1)}
{rdV(0,0)}
s_cbranch_scc1 L_havem
ds_read_b128 {v(vQ,4)}, v{vQA}
ds_read_b128 {v(vKC,4)}, v1 offset:{LA}
ds_read_b128 {v(vQ+4,4)}, v{vQA} offset:1024
ds_read_b128 {v(vKC+4,4)}, v1 offset:{LA+1024}
s_waitcnt lgkmcnt(2)
{mfma32(vSb, vKC, vQ, "0")}
s_waitcnt lgkmcnt(0)
{mfma32(vSb, vKC+4, vQ+4, vSb)}
L_havem:
s_waitcnt lgkmcnt(0)
{mfma32(vSa, vK, vQ, "0")}
""")
lq = LQ()
lq(rdK(1, 0))
a(f"s_cmp_lg_u32 s{sTRY}, 0\ns_cbranch_scc1 L_havem2")
maxtree(vSb, vM, False)
a(f"""
L_havem2:
v_mov_b32 v96, v{vM}
v_permlane32_swap_b32 v96, v{vM}
v_max_f32 v{vM}, v96, v{vM}
v_sub_f32 v96, 0, v{vM}
v_and_b32 v97, 0xffff0000, v96
v_sub_f32 v96, v96, v97
v_and_b32 v98, 0xffff0000, v96
v_sub_f32 v96, v96, v98
s_mov_b32 exec_lo, 0
v_alignbit_b32 v{vQ+6}, v98, v97, 16
v_lshrrev_b32 v{vQ+7}, 16, v96
v_and_b32 v{vQ+6}, 0xffff, v{vQ+6}
v_or_b32 v{vQ+6}, v{vQ+6}, v98
s_mov_b32 exec_lo, -1
{mfma32(vSa, vK+4, vQ+4, vSa)}
""".replace(f"v_alignbit_b32 v{vQ+6}, v98, v97, 16", f"v_lshrrev_b32 v{vQ+6}, 16, v97").replace(f"v_and_b32 v{vQ+6}, 0xffff, v{vQ+6}\n", ""))
lq(rdK(1, 1))
a("s_waitcnt vmcnt(4)\ns_barrier")
stamp(9)
stamp(1, 4)
PRIO = {int(x, 16): 3 - i for i, x in enumerate(SOPT.get("pr", "07cf"))}
DSL = [int(x, 16) for x in SOPT.get("dsl", "89abc")]; DSL6 = [int(x, 16) for x in SOPT.get("dsl6", "0189ab")]; DSL7 = [int(x, 16) for x in SOPT.get("dsl7", "01234")]; S7 = OPT.get("s7", 14); DSL0 = [int(x, 16) for x in SOPT.get("dsl0", "89ab")]
todo = dict(zip(DSL0, p0)); since = 0
RS_ = OPT.get("rs", 13); QS = OPT.get("qs", 14); CW = OPT.get("cw", 2); BP = OPT.get("bp", 120)
def fl_read(i): return f"ds_read_u8 v{vFT}, v{vF8 if i in (3, 6, 7) else vFG} offset:{8*(i-1)}"
a.c("no barriers in the loop: a wave posts a byte once its DMA of the next stage landed and it left the stage before; readers check half a stage later")
for T in range(32):
    S, Sn = (vSa, vSb) if T % 2 == 0 else (vSb, vSa)
    n = (T + 2) >> 2
    if T & 3 == 2:
        if n == 8: pass
        elif OPT.get("spi", 0): a(f"s_cbranch_vccz L_spr{n}\nL_sp{n}:\n{fl_read(n)}\ns_waitcnt lgkmcnt(0)\nv_cmp_eq_u32 vcc, 0, v{vFT}\ns_cbranch_vccnz L_sp{n}\nL_spr{n}:")
        else: a(f"s_cbranch_vccnz L_sp{n}\nL_spr{n}:")
        if DIAG and OPT.get("set") == 4:
            if n > 1: a(f"s_mov_b32 s{sST+(7+n if n < 8 else 2)}, s96")
            if n < 8: a("s_memtime s[96:97]")
        pc = pieces(n); assert not todo
        todo = dict(zip(DSL7 if n == 7 else [x + 2 for x in DSL] if n == 6 else DSL if len(pc) < 6 else DSL6, pc)); since = 0
    for k in range(4):
        sl = (4 * T + k + 8) & 15
        if 4 * T + k == BP: a(f"s_setprio 0\ns_cmp_lt_u32 s{sW}, 4\ns_cbranch_scc1 L_np\ns_setprio 3\nL_np:")
        if 4 * T + k == OPT.get("s8", 121): a(f"s_cmp_lt_u32 s{sW}, 4\ns_cbranch_scc1 L_ns8\nds_write_b8 v{vFW}, v108 offset:56\nL_ns8:")
        if sl in PRIO and 4 * T + k < BP or (T, k) == (0, 0): a(f"s_setprio {PRIO.get(sl, 2 if PRIO else 0)}")
        X16 = OPT.get("x16", 0); DQ = OPT.get("dq", 0); late = []
        qq = vKC if DQ and T & 1 else vQ
        if k < 2:
            if T < 31:
                if X16 & 1: lq(mfma16(Sn+4*k, vK+4*k, qq, "0")); late = [mfma16(Sn+8+4*k, vK+4*k, qq+4, "0")]
                else: lq(mfma32(Sn, vK+4*k, qq+4*k, Sn if k else "0"))
            if T < 30 and not (DQ and T & 1): late.append(rdK(T + 2, k))
        elif k == 2:
            if T > 0:
                if X16 & 2: lq(mfma16(vO+8, vV, vP+4, vO+8)); late = [mfma16(vO+12, vV+4, vP+4, vO+12)]
                else: lq(mfma32(vO, vV+4, vP+4, vO))
            if not (DQ and T & 1): late.append(rdV(T, 1))
        else:
            if X16 & 2 and T: lq(mfma16(vO+4, vV+4, vP, vO+4)); late = [mfma16(vO, vV, vP, vO)]
            else: lq(mfma32(vO, vV, vP, "0" if T == 0 else vO))
            if T < 31 and not (DQ and T & 1): late.append(rdV(T + 1, 0))
        if not (late and "mfma" in late[0]):
            for x in late: lq(x)
            late = []
        if sl == {0: 12, 6: 10, 7: -1}.get(n, 8):
            if n == 4: assert since == 0; a(f"s_cmp_ge_u32 s{sW}, 4\ns_cbranch_scc1 L_w4\ns_waitcnt vmcnt(1)\nL_w4:\ns_waitcnt vmcnt(8)")
            elif n < 7: a(f"s_waitcnt vmcnt({since})")
            if n == 6: a(f"""
s_cmp_lg_u32 s{sW}, {CW}
s_cbranch_scc1 L_chkc_r
s_mov_b32 s{sSP}, {SPIN}
L_chkc1:
v_cmp_ne_u32 vcc, s{sNON}, v{vFC}
v_cmp_ne_u32 s[{sM1}:{sM1+1}], s{sNON}, v{vFC+1}
s_or_b64 s[{sM1}:{sM1+1}], vcc, s[{sM1}:{sM1+1}]
v_cmp_ne_u32 vcc, s{sNON}, v{vFC+2}
s_or_b64 s[{sM1}:{sM1+1}], vcc, s[{sM1}:{sM1+1}]
v_cmp_ne_u32 vcc, s{sNON}, v{vFC+3}
s_or_b64 vcc, vcc, s[{sM1}:{sM1+1}]
s_cbranch_scc1 L_chkc3
L_chkc2:
s_cmp_eq_u32 s2, 0
s_cbranch_scc1 L_epoch
L_chkc_r:
""")
            lq(f"ds_write_b8 v{vFW}, v108 offset:{8*n}" if OPT.get("nox", 1) else f"s_mov_b64 exec, 1\nds_write_b8 v{vFW}, v108 offset:{8*n}\ns_mov_b64 exec, -1")
        if sl == {0: 14, 6: 14, 7: -1, 8: 6}.get(n, RS_): lq(fl_read(min(n + 1, 8)))
        ex = [f"v_exp_f32 v{S+r}, v{S+r}" for r in range(4 * k, 4 * k + 4)]
        cv = [f"v_cvt_pk_bf16_f32 v{vP+r}, v{S+2*r}, v{S+2*r+1}" for r in range(2 * k, 2 * k + 2)]
        p = todo.pop(sl, []); since += len(p) > 0
        body = []
        for e in range(4):
            body.append(ex[e])
            if e < len(p): body.append(p[e])
        a("\n".join(body[:2]))
        for x in late: lq(x)
        if DIAG and OPT.get("dum") == 1 and k == 1: a(mfma32(144, vV, vQ, 144))
        if DIAG and OPT.get("dum") == 2 and k in (1, 2): a(mfma16(144 + 4 * k, vV, vQ + 4 * (k - 1), 144 + 4 * k))
        if DIAG and OPT.get("dum") == 3 and k & 1: lq(f"ds_read_b128 {v(144+2*(k-1),4)}, {kvaddr(T, k)}")
        a("\n".join(body[2:]))
        if sl == {7: -1, 8: 7}.get(n, 15): lq(f"v_cmp_eq_u32 vcc, 0, v{vFT}")
        a("\n".join(cv))
        if sl == QS and n == 3:
            a.c("z and the slot marks are out (all waves posted): wave 3 raises the flag; waves 4-7 fetch the gate inputs")
            a(f"s_movk_i32 s{sT5}, 3584\ns_cmp_ge_u32 s{sW}, 4\ns_cbranch_scc1 L_ldq\ns_cmp_lg_u32 s{sW}, 3\ns_cbranch_scc1 L_wpf\ns_lshl_b32 s{sT0}, s2, 2\ns_add_u32 s{sT0}, s{sT0}, {FC}")
            signal(f"s{sT0}")
            a("s_branch L_ldq_r\nL_ldq:")
            ldq()
            a.c("waves 0-2 pull a slice of the wo rows that are staged last towards the cache")
            a(f"s_branch L_ldq_r\nL_wpf:\nbuffer_load_dword v{QR}, v131, {srd(WO)}, 0 offen\nL_ldq_r:")
            assert not todo
        if sl == 8 and n == 5:
            a.c("flags of all workgroups' z and slot marks (one word each)")
            a(f"s_cmp_lg_u32 s{sW}, {CW}\ns_cbranch_scc1 L_nfc\ns_movk_i32 s{sT0}, {FC}\nbuffer_load_dwordx4 {v(vFC,4)}, v1, {srd(WS)}, s{sT0} offen sc1\nL_nfc:")
        if sl == OPT.get("zs", 5) and n == 7:
            a(f"""
s_cmp_lt_u32 s{sW}, 4
s_cbranch_scc1 L_nz
buffer_load_dwordx4 {v(vZR,4)}, v{vZL}, {srd(WS)}, s{sUT} offen sc1
buffer_load_dwordx4 {v(vZR+4,4)}, v{vZL}, {srd(WS)}, s{sUT} offen offset:64 sc1
L_nz:
""")
lq(mfma32(vO, vV+4, vP+4, vO))
a("s_setprio 0")
stamp(10)
stamp(3, 4)
a(f"""
s_mov_b32 s{sT2}, 0x5f800000
v_mov_b64 v[100:101], 0
v_mov_b64 v[102:103], 0
s_and_b32 s{sT1}, s{sW}, 1
s_mul_i32 s{sT1}, s{sT1}, 768
s_add_u32 s{sT1}, s{sT1}, {WS0+448*224}
v_add_u32 v99, s{sT1}, v1
s_cmp_lt_u32 s{sW}, 4
s_cbranch_scc1 L_mA
s_cbranch_vccnz L_sp8
L_spr8:
ds_write_b128 v99, {v(100,4)}
""")
for i in range(4): a(f"ds_write_b128 v{vMG}, {v(vO+4*i,4)} offset:{1024*i}")
a(f"""
L_mA:
v_cmp_nle_f32 vcc, v{vO+12}, s{sT2}
v_mov_b32 v98, vcc_hi
ds_write_b32 v{vBW}, v98
s_waitcnt vmcnt(0) lgkmcnt(0)
s_barrier
ds_read_b32 v98, v{vBR}
s_cbranch_scc0 L_mB
""")
for i in range(4): a(f"ds_read_b128 {v(vSa+4*i,4)}, v{vMG} offset:{1024*i}")
a(f"""
L_mB:
s_waitcnt lgkmcnt(0)
v_cmp_lt_u32 vcc, s{sTRY}, v98
{"s_cbranch_vccnz L_fallback" if not (X16 or DQ) else ""}
s_cbranch_scc0 L_gate
""")
if OPT.get("ap", 1): a("s_setprio 3")
a(f"""
v_add_f32 v96, v{vO+12}, v{vSa+12}
v_add_f32 v97, v{vO+12}, v{vSa+12}
""")
for r in range(0, 4, 2): a(f"v_pk_add_f32 {v(vO+r,2)}, {v(vO+r,2)}, {v(vSa+r,2)}")
a(f"v_permlane32_swap_b32 v96, v97\nv_rcp_f32 v96, v97")
for r in range(4, 16, 2): a(f"v_pk_add_f32 {v(vO+r,2)}, {v(vO+r,2)}, {v(vSa+r,2)}")
for hf in range(2):
    for r in range(8*hf, 8*hf+8, 2): a(f"v_pk_mul_f32 {v(vO+r,2)}, {v(vO+r,2)}, v[96:97] op_sel_hi:[1,0]")
    for r in range(4*hf, 4*hf+4): a(f"v_cvt_pk_bf16_f32 v{vP+r}, v{vO+2*r}, v{vO+2*r+1}")
    if hf: a(f"s_mov_b32 exec_lo, 0\nv_mov_b64 {v(vP+6,2)}, 0\ns_mov_b32 exec_lo, -1")
    a(f"buffer_store_dwordx4 {v(vP+4*hf,4)}, v1, {srd(WS)}, s{sOO} offen offset:{1024*hf} sc1")
if OPT.get("ap", 1): a("s_setprio 0")
if OPT.get("ob", 1): a("s_barrier")
stamp(11)
WFR, OB, OA = 112, 16, 48
a(f"""
v_bfe_u32 v96, v0, 2, 2
v_lshrrev_b32 v97, 5, v0
v_lshl_add_u32 v96, v96, 1, v97
v_mul_u32_u24 v96, 224, v96
v_bfe_u32 v98, v0, 4, 1
v_lshl_add_u32 v96, v98, 5, v96
v_and_b32 v98, 3, v0
v_lshl_add_u32 v96, v98, 3, v96
s_lshl_b32 s{sT2}, s{sG}, 6
v_add_u32 v2, s{sT2}, v96
v_mul_u32_u24 v99, {6*224}, v97
v_add_u32 v3, v99, v2
v_add_u32 v9, {8*28*224}, v2
v_add_u32 v10, {8*28*224}, v3
""")
for h in range(16):
    for s_ in range(2):
        for t in range(2):
            Qd = 7 * (h & 7) + 4 * s_ + 2 * t
            a(f"ds_read_b64_tr_b16 {v(WFR+8*h+4*s_+2*t,2)}, v{(2, 3, 9, 10)[(h&1) + 2*(h>>3)]} offset:{WS0+(8*(Qd>>1) + (Qd&1))*224}")
a(f"""
v_mov_b32 v4, 0
v_add_u32 v5, {LR}, v1
v_and_b32 v99, 31, v0
v_mul_u32_u24 v99, 1792, v99
v_lshl_add_u32 v8, v97, 4, v99
s_mul_i32 s{sT0}, s{sRT}, {32*1792}
s_mul_i32 s{sT1}, s{sCG}, 224
s_add_u32 s{sT0}, s{sT0}, s{sT1}
s_add_u32 s{sT0}, s{sT0}, s{sT2}
s_waitcnt lgkmcnt(0)
""")
stamp(12)
a.c("waves 4-7 post one byte per staged head; chunk k+1 (4 heads) is checked and read while chunk k multiplies")
def ob(k): return OB if k % 2 == 0 else 64
def o_rd(k, f): return f"ds_read_b128 {v(ob(k)+4*f,4)}, v5 offset:{8192*k+1024*f}"
def o_fl(k): return f"ds_read_b32 v96, v4 offset:{64+4*k}"
def o_spin(k): return f"L_os{k}:\n{o_fl(k)}\ns_waitcnt lgkmcnt(0)\nv_cmp_ne_u32 vcc, -1, v96\ns_cbranch_vccnz L_os{k}"
a("s_barrier" if OPT.get("fb") else o_spin(0))
stamp(13)
lq = LQ()
for f in range(8): lq(o_rd(0, f))
CK = OPT.get("ck", 3)
for k in range(4):
    rd = [o_rd(k + 1, f) for f in range(8)] if k < 3 else []
    if rd: lq(o_fl(k + 1))
    for f in range(8):
        lq(mfma32(OA, WFR+32*k+4*f, ob(k)+4*f, "0" if k == 0 and f == 0 else OA))
        if rd and f == CK:
            lq(f"v_cmp_ne_u32 vcc, -1, v96\ns_cbranch_vccz L_or{k+1}")
            a(o_spin(k + 1) + f"\nL_or{k+1}:")
        if f >= CK:
            for x in rd[:2]: lq(x)
            rd = rd[2:]
for hf in range(2):
    if hf: a(f"s_cmp_eq_u32 s{sG}, 3\ns_cbranch_scc1 L_ost")
    for r in range(4*hf, 4*hf+4): a(f"v_cvt_pk_bf16_f32 v{16+r}, v{OA+2*r}, v{OA+2*r+1}")
    for d in range(2): a(f"v_permlane32_swap_b32 v{16+4*hf+d}, v{18+4*hf+d}")
    a(f"buffer_store_dwordx4 {v(16+4*hf,4)}, v8, {srd(OUT)}, s{sT0} offen offset:{32*hf}")
a("L_ost:")
stamp(14)
a("s_branch L_fin" if DIAG else "s_endpgm")

a.label("L_gate")
a(f"""
s_mul_i32 s{sT5}, s{sRT}, {32*896}
s_add_u32 s{sT5}, s{sT5}, 896
""")
for i in range(8): a(f"v_lshlrev_b32 v{16+2*i}, 16, v{QR+i}\nv_and_b32 v{17+2*i}, 0xffff0000, v{QR+i}")
for t in range(8):
    for p in range(2):
        src = vZR + 4 * p + t // 2
        a(f"v_lshlrev_b32 v{32+2*t+p}, 16, v{src}" if t % 2 == 0 else f"v_and_b32 v{32+2*t+p}, 0xffff0000, v{src}")
for t in range(8): a(f"v_pk_mul_f32 {v(32+2*t,2)}, {v(32+2*t,2)}, {v(16+2*t,2)}")
for t in range(8): a(f"v_cvt_pk_bf16_f32 v{56+t}, v{32+2*t}, v{33+2*t}")
def gate_st():
    for t in range(8):
        a(f"buffer_store_dword v{56+t}, v{vGO}, {srd(OUT)}, s{sT5} offen offset:{1792*(t&1)}")
        if t & 1 and t < 7: a(f"s_add_u32 s{sT5}, s{sT5}, 3584")
GO = OPT.get("go", 0)
if OPT.get("ob", 1): a.c("the O stores of waves 0-3 go out first"); a("s_barrier")
if OPT.get("gp"): a(f"s_setprio {OPT['gp']}")
if not OPT.get("gl") and not GO: gate_st()
if OPT.get("dl"): a(f"s_sleep {OPT['dl']}" if OPT["dl"] > 1 else "s_waitcnt vmcnt(0)")
stamp(11)
a.c("O fragments: every word differs from the all-ones mark once its producer's store has landed")
OL = 64
a(f"""
s_lshl_b32 s{sT0}, s{sRT}, 15
s_lshl_b32 s{sT1}, s{sG}, 11
s_add_u32 s{sT0}, s{sT0}, s{sT1}
s_add_u32 s{sT0}, s{sT0}, {OF}
s_add_u32 s{sT1}, s{sT0}, 8192
s_add_u32 s{sT2}, s{sT0}, 16384
s_add_u32 s{sT3}, s{sT0}, 24576
s_mov_b32 s{sSP}, {SPIN}
""")
def o_issue(k0):
    for k in range(k0, 4):
        for i in range(2): a(f"buffer_load_dwordx4 {v(OL+8*k+4*i,4)}, v1, {srd(WS)}, s{sT0+k} offen offset:{1024*i} sc1")
o_issue(0)
if GO: gate_st()
for k in range(4):
    r = OL + 8 * k
    a(f"""
s_waitcnt vmcnt({6-2*k+8*GO})
L_ochk{k}:
v_max3_u32 v96, v{r}, v{r+1}, v{r+2}
v_max3_u32 v97, v{r+3}, v{r+4}, v{r+5}
v_max3_u32 v96, v{r+6}, v{r+7}, v96
v_max_u32 v96, v96, v97
v_cmp_eq_u32 vcc, -1, v96
s_cbranch_vccnz L_oretry{k}
L_ogo{k}:
ds_write_b128 v{vQA}, {v(r,4)} offset:{8192*k}
ds_write_b128 v{vQA}, {v(r+4,4)} offset:{8192*k+1024}
""")
    a("s_waitcnt lgkmcnt(0)\ns_barrier" if k == 0 and OPT.get("fb") else f"ds_write_b8 v{vFW}, v108 offset:{60+4*k}")
    if k == 0: stamp(12)
a("s_waitcnt lgkmcnt(0)")
stamp(13)
if DIAG and OPT.get("cyc"): a(f"s_sub_u32 s{sST+2}, {SPIN}, s{sSP}\ns_mul_i32 s{sST+2}, s{sST+2}, 100\ns_add_u32 s{sST+2}, s{sST+2}, s98\ns_add_u32 s{sST+2}, s{sST+2}, 1")
a.label("L_fin")
if DIAG:
    a(f"s_mov_b64 exec, -1\ns_mov_b32 s{sST+15}, s98")
    a(f"s_lshl_b32 s{sT0}, s2, 3\ns_add_u32 s{sT0}, s{sT0}, s{sW}\ns_lshl_b32 s{sT0}, s{sT0}, 6\ns_add_u32 s{sT0}, s{sT0}, {DG}\nv_lshlrev_b32 v96, 2, v0")
    for k in range(16): a(f"v_writelane_b32 v97, s{sST+k}, {k}")
    a(f"s_mov_b64 exec, 0xffff\nbuffer_store_dword v97, v96, {srd(WS)}, s{sT0} offen")
if "probe" in OPT:
    a(f"""
s_cmp_lg_u32 s2, {OPT.get("pwg", 100)}
s_cbranch_scc1 L_end
s_cmp_lg_u32 s{sW}, {OPT.get("pw", 0)}
s_cbranch_scc1 L_end
s_sub_u32 s{sT0}, s{sST+OPT["probe"]}, s{sST+OPT["pb"] if "pb" in OPT else 98}
s_lshl_b32 s{sT0}, s{sT0}, {3 if "pb" in OPT else 2}
s_add_u32 s{sT0}, s{sT0}, 4000
s_min_u32 s{sT0}, s{sT0}, 20000
L_probe:
s_memrealtime s[96:97]
s_waitcnt lgkmcnt(0)
s_sub_u32 s96, s96, s98
s_cmp_lt_u32 s96, s{sT0}
s_cbranch_scc1 L_probe
""")
a.label("L_end")
a("s_endpgm")

for k in range(4):
    a(f"L_oretry{k}:\ns_sub_u32 s{sSP}, s{sSP}, 1\ns_cbranch_scc1 L_ogo{k}".replace(f"s_cbranch_scc1 L_ogo{k}", f"s_cselect_b32 s{sSP}, 0, s{sSP}\ns_cbranch_scc1 L_ogo{k}"))
    o_issue(k)
    a(f"s_waitcnt vmcnt({0 if GO else 6-2*k})\ns_branch L_ochk{k}")

for i in range(1, 9):
    if i == 8 or not OPT.get("spi", 0): a(f"L_sp{i}:\n{fl_read(i)}\ns_waitcnt lgkmcnt(0)\nv_cmp_eq_u32 vcc, 0, v{vFT}\ns_cbranch_vccnz L_sp{i}\ns_branch L_spr{i}")
a(f"""
L_chkc3:
s_sub_u32 s{sSP}, s{sSP}, 1
s_cbranch_scc1 L_chkc2
buffer_load_dwordx4 {v(vFC,4)}, v1, {srd(WS)}, s{sT0} offen sc1
s_waitcnt vmcnt(0)
s_branch L_chkc1
L_epoch:
""")
a.c("workgroup 0 advances the epoch word: every workgroup is known to have read it")
signal("0")
a("s_branch L_chkc_r")

a.label("L_fallback")
a(f"""
s_mov_b32 s{sTRY}, -1
s_barrier
s_mov_b64 exec, 0xffff
ds_write_b64 v130, v[128:129]
s_mov_b64 exec, -1
s_waitcnt lgkmcnt(0)
""")
kv_stage(0); kv_stage(1)
a(f"""
s_mov_b32 exec_lo, 0
v_mov_b32 v{vQ+6}, 0
v_mov_b32 v{vQ+7}, 0
s_mov_b32 exec_lo, -1
v_mov_b32 v{vM}, 0xff800000
s_mov_b32 s{sT3}, s{sKVB}
s_mov_b32 s{sI}, 0
L_fb1:
buffer_load_dwordx4 {v(vK,4)}, v1, {srd(WS)}, s{sT3} offen sc1
buffer_load_dwordx4 {v(vK+4,4)}, v1, {srd(WS)}, s{sT3} offen offset:1024 sc1
s_waitcnt vmcnt(0)
{mfma32(vSb, vK, vQ, "0")}
{mfma32(vSb, vK+4, vQ+4, vSb)}
s_add_u32 s{sT3}, s{sT3}, 4096
s_add_u32 s{sI}, s{sI}, 1
""")
maxtree(vSb, vM, True)
a(f"""
s_cmp_lt_u32 s{sI}, 64
s_cbranch_scc1 L_fb1
s_branch L_att
L_codeend:
""")

import subprocess
body0 = pad(a.l, verbose="v" in sys.argv)
def emit(pfs, fill):
    body = [l.replace("@@PFS@@", str(pfs)) for l in body0]
    hdr = open("cdna_kernels/" + NAME + ".s.ref").read().split("; Override launch")[0]
    return hdr + f"""; One persistent launch, one workgroup per CU; phases hand data over through d_ws with tagged flags.
; @launch grid=(256,1,1) block=(512,1,1) lds=163840
.amdgcn_target "amdgcn-amd-amdhsa--gfx950"
.text
.globl {NAME}_kernel
.p2align 8
.type {NAME}_kernel,@function
""" + "\n".join(body) + f"""
    .fill {fill}, 4, 0xbf810000
.section .rodata,"a"
.p2align 6
.amdhsa_kernel {NAME}_kernel
  .amdhsa_next_free_vgpr 256
  .amdhsa_next_free_sgpr 102
  .amdhsa_accum_offset 256
  .amdhsa_group_segment_fixed_size 0
  .amdhsa_kernarg_size 96
  .amdhsa_user_sgpr_count 2
  .amdhsa_user_sgpr_kernarg_segment_ptr 1
  .amdhsa_system_sgpr_workgroup_id_x 1
.end_amdhsa_kernel
"""
def size_of(txt):
    open("_sz.s", "w").write(txt)
    subprocess.run(["clang", "-x", "assembler", "-target", "amdgcn-amd-amdhsa", "-mcpu=gfx950", "-c", "_sz.s", "-o", "_sz.o"], check=True)
    o = subprocess.run(["llvm-objdump", "-t", "_sz.o"], capture_output=True, text=True).stdout
    return [int(l.split()[0], 16) for l in o.splitlines() if l.endswith("L_codeend")][0]
sz = size_of(emit(40, 1))
pfs = OPT.get("pfs", (sz + 2047) // 2048 * 4)
assert pfs <= 64
print("code bytes", sz, "prefetch stride", pfs)
open(sys.argv[1], "w").write(emit(pfs, max(1, (pfs * 512 - sz + 3) // 4)))
```

```python
import sys, struct, math
from asmlib import *

NAME = "concat_heads__softmax_full_mha__ssm_conv_h3__prompt"
DIAG = "diag" in sys.argv
SOPT = dict(a.split("=") for a in sys.argv[2:] if "=" in a)
OPT = {k: int(x) for k, x in SOPT.items() if x.isdigit()}
OPT.setdefault("rt", 40404040)
SPIN = 1 << 16

FA, FB, FC = 0x40000, 0x60000, 0x3000
FS = OPT.get('fs', 4)
QF, KV, UU, ZZ, OF, WSEND = 0x100000, 0x300000, 0x700000, 0x900000, 0xB00000, 0xD00000
DG = 0x10000
LX, LA, LB, LP, LR = 0, 32768, 65536, 98304, 131072
HP, UOFF = 4160, 16640
MERGE, BADF = LP + 16384, LP + 3968
ONES = 0x3f803f80
def fbits(x): return struct.unpack("<I", struct.pack("<f", x))[0]
QSCALE = fbits(28 ** -0.5 * math.log2(math.e))

X_, WQ, WO, Q_, K_, V_, SK, HK, OUT, WS = 4, 8, 12, 16, 20, 24, 28, 32, 36, 40
sDP, sNON, sW = 44, 46, 47
sJ, sTT, sRT, sCG, sC, sH, sQT, sG = 48, 49, 50, 51, 52, 53, 54, 55
sED, sT0, sT1, sT2, sT3, sT4, sT5, sT6, sT7 = 56, 57, 58, 59, 60, 61, 62, 63, 64
sI, sSO, sSO2, sLW, sLX, sTRY, sSP, sCB = 65, 66, 67, 68, 69, 70, 71, 72
sDV, sM1, sM2 = 73, 74, 76
sKVB, sWM = 78, 79
sFL, sE0, sE1, sE2, sKP, sZO, sOO, sKL, sUO, sQO, sUT, sKS = 20, 21, 22, 23, 24, 26, 27, 28, 29, 30, 31, 3
sUS, sCL, sK0 = 29, 44, 45
sQS = 34
sST = 80
def srd(b): return s(b, 4)

a = Asm()
def stamp(k, st=None):
    if not DIAG: return
    if st is None and k >= 9: st = 0
    if st is not None and st != OPT.get("set", 0): return
    a(f"{'s_memtime' if OPT.get('cyc') else 's_memrealtime'} s[96:97]\ns_waitcnt lgkmcnt(0)\ns_mov_b32 s{sST+k}, s96")

npoll = [0]
def poll(vaddr, vtmp):
    n = npoll[0]; npoll[0] += 1
    a(f"""
s_mov_b32 s{sSP}, {SPIN}
L_poll{n}:
buffer_load_dword v{vtmp}, v{vaddr}, {srd(WS)}, 0 offen sc1
s_waitcnt vmcnt(0)
v_cmp_ne_u32 vcc, s{sNON}, v{vtmp}
s_cbranch_vccz L_pollok{n}
s_sub_u32 s{sSP}, s{sSP}, 1
s_cbranch_scc0 L_poll{n}
L_pollok{n}:
""")
vNON = 15
def signal(soff):
    a(f"s_mov_b64 exec, 1\nbuffer_store_dword v{vNON}, v1, {srd(WS)}, {soff} offen sc1\ns_mov_b64 exec, -1")

def mfma32(d, A, B, C): return f"v_mfma_f32_32x32x16_bf16 {v(d,16)}, {v(A,4)}, {v(B,4)}, {C if isinstance(C,str) else v(C,16)}"
def mfma16(d, A, B, C): return f"v_mfma_f32_16x16x32_bf16 {v(d,4)}, {v(A,4)}, {v(B,4)}, {C if isinstance(C,str) else v(C,4)}"

class LQ:
    def __init__(self): self.q = []
    def __call__(self, txt):
        for t in txt.strip("\n").split("\n"):
            i = Ins(t)
            if not i.mn: a(t); continue
            last = max([k for k, w in enumerate(self.q) if w & (i.rd | (i.wr if not i.ds else set()))], default=-1)
            if last >= 0:
                n = min(15, len(self.q) - 1 - last)
                a(f"s_waitcnt lgkmcnt({n})"); self.q = self.q[len(self.q) - n:]
            a(t)
            if i.ds: self.q.append(vset(i.wr))
    def drain(self, n=0):
        if len(self.q) > n:
            a(f"s_waitcnt lgkmcnt({n})"); self.q = self.q[len(self.q) - n:]

vXD, vWD, vXR, vWR, vXB = 2, 6, 9, 13, 14
ACC, RS = 16, 64
vCA, vCB, vCW, vCR, vCU, vZ, vD = 192, 193, 194, 195, 196, 197, 198
vB0, vB1, vQA, vWOA, vMG, vBW, vBR = 199, 200, 201, 202, 203, 204, 205
vPA, vUD, vPB, vZL, vGO, vGA = 206, 207, 208, 209, 210, 211
vHO, vCP = 10, 129
KR, VR, SR, KF, WF, UA, VF, UP = 140, 152, 160, 164, 212, 220, 64, 236
H0, QR = 112, 240
def srdc(lst): return "\n".join(f"s_mov_b32 s{b+2}, {n}\ns_mov_b32 s{b+3}, 0x20000" for b, n in lst)
def karg(lst): return "\n".join(f"s_load_dwordx2 s[{b}:{b+1}], s[0:1], {o}" for b, o in lst)
a.label(NAME + "_kernel")
if DIAG: a(f"{'s_memtime' if OPT.get('cyc') else 's_memrealtime'} s[98:99]")
a(f"""
s_cmp_ge_u32 s2, 256
s_cbranch_scc1 L_end
{karg(((K_, 32), (X_, 0), (V_, 40), (SK, 48), (WQ, 8), (WS, 88), (sDP, 64)))}
s_getpc_b64 s[{sT5}:{sT6}]
L_pc:
v_lshrrev_b32 v1, 6, v0
v_and_b32 v0, 63, v0
s_bfe_u32 s{sT0}, s2, 0x30003
v_lshl_add_u32 v2, s{sT0}, 6, v0
s_sub_u32 s{sT5}, s{sT5}, L_pc-{NAME}_kernel
s_subb_u32 s{sT6}, s{sT6}, 0
v_mul_u32_u24 v2, @@PFS@@, v2
v_mov_b32 v3, s{sT6}
v_add_co_u32 v2, vcc, s{sT5}, v2
v_readfirstlane_b32 s{sW}, v1
v_lshrrev_b32 v130, 4, v0
v_addc_co_u32 v3, vcc, 0, v3, vcc
global_load_dword v255, v[2:3], off
s_and_b32 s{sG}, s{sW}, 3
s_cmp_lt_u32 s{sW}, 4
s_cbranch_scc1 L_uprep
""")
IDS_U = f"""
s_and_b32 s{sT2}, s2, 7
s_lshr_b32 s{sT3}, s2, 5
s_lshl3_add_u32 s{sRT}, s{sT2}, s{sT3}
s_bfe_u32 s{sCG}, s2, 0x20003
v_and_b32 v{vCP}, 15, v0
v_min_u32 v{vCP}, 13, v{vCP}
s_lshl2_add_u32 s{sT0}, s{sCG}, s{sG}
s_mul_i32 s{sT1}, s{sT0}, 56
s_mul_i32 s{sT2}, s{sRT}, {32*896}
s_add_u32 s{sT2}, s{sT2}, s{sT1}
v_mul_u32_u24 v{vGO}, {8*896}, v130
v_lshl_add_u32 v132, v{vCP}, 2, v{vGO}
v_add_u32 v{vGA}, s{sT2}, v132
"""
IDS_G = f"""
s_and_b32 s{sT2}, s2, 1
s_bfe_u32 s{sT3}, s2, 0x30003
s_lshl3_add_u32 s{sJ}, s{sT2}, s{sT3}
s_bfe_u32 s{sT2}, s2, 0x20001
s_lshr_b32 s{sT3}, s2, 6
s_lshl2_add_u32 s{sT2}, s{sT2}, s{sT3}
s_lshl2_add_u32 s{sTT}, s{sT2}, s{sG}
s_and_b32 s{sT2}, s{sG}, 1
s_lshr_b32 s{sT3}, s{sG}, 1
s_lshl2_add_u32 s{sT2}, s{sT3}, s{sT2}
s_add_u32 s{sT2}, s{sT2}, 4
s_lshl_b32 s{sLX}, s{sT2}, 14
"""
COMMON = f"""
v_lshlrev_b32 v1, 4, v0
s_sub_u32 s{sT2}, s2, 32
s_cmp_lt_u32 s2, 224 | s_cselect_b32 s{sC}, s2, s{sT2}
s_load_dword s{sED}, s[{WS}:{WS+1}], 0
s_lshl_b32 s{sT0}, s{sC}, 2
s_load_dword s{sDV}, s[{sDP}:{sDP+1}], s{sT0}
{karg(((HK, 56), (WO, 16), (Q_, 24), (OUT, 72)))}
{srdc(((WO, 401408), (Q_, 1835008), (OUT, 3670016), (WS, WSEND)))}
v_add_u32 v{vGO}, v{vGO}, v{vGA}
v_lshlrev_b32 v133, 7, v{vCP}
v_lshl_add_u32 v{vZL}, v130, 4, v133
s_lshl2_add_u32 s{sT4}, s{sCG}, s{sG}
s_mul_i32 s{sT1}, s{sT4}, 1792
s_mul_i32 s{sT3}, s{sRT}, 28672
s_add_u32 s{sUT}, s{sT1}, s{sT3}
s_add_u32 s{sUT}, s{sUT}, {ZZ}
s_and_b32 s{sT2}, s2, 7
s_lshr_b32 s{sT3}, s2, 7
s_lshl1_add_u32 s{sQT if OPT.get("xq", 0) else sH}, s{sT2}, s{sT3}
s_bfe_u32 s{sH if OPT.get("xq", 0) else sQT}, s2, 0x40003
s_mov_b32 s{sTRY}, 0
s_lshr_b32 s{sT7}, s{sW}, 2
s_mul_i32 s{sCB}, s{sT7}, {LP}
v_and_b32 v132, 3, v0
v_sub_u32 v133, 3, v132
v_mul_u32_u24 v133, {HP}, v133
v_and_b32 v134, 12, v0
v_lshl_add_u32 v133, v134, 1, v133
v_and_b32 v134, 0x30, v0
v_sub_u32 v133, v133, v134
s_lshl_b32 s{sT0}, s{sG}, 7
s_add_u32 s{sT1}, s{sT0}, s{sCB}
s_add_u32 s{sT1}, s{sT1}, 56
v_add_u32 v{vCA}, s{sT1}, v133
v_and_b32 v139, 15, v0
v_lshl_add_u32 v133, v139, 5, v134
s_sub_u32 s{sT1}, s{sCB}, s{sT0}
s_add_u32 s{sT1}, s{sT1}, {UOFF+512-96}
v_add_u32 v{vCB}, s{sT1}, v133
v_lshrrev_b32 v131, 5, v0
v_lshlrev_b32 v133, 7, v131
v_xor_b32 v133, v133, v1
s_lshl_b32 s{sT0}, s{sG}, 13
s_add_u32 s{sT0}, s{sT0}, s{sCB}
v_add_u32 v{vCW}, s{sT0}, v133
v_bfe_u32 v135, v0, 2, 1
v_mul_u32_u24 v136, {LP}, v135
v_lshrrev_b32 v137, 3, v0
v_lshl_add_u32 v138, v137, 2, v132
v_lshrrev_b32 v133, 1, v138
v_and_b32 v134, 1, v0
v_mul_u32_u24 v134, 40, v134
v_xor_b32 v133, v133, v134
v_lshl_add_u32 v133, v133, 4, v136
s_lshl_b32 s{sT0}, s{sW}, 10
v_add_u32 v{vCR}, s{sT0}, v133
v_lshl_add_u32 v133, v138, 4, v136
s_lshl_b32 s{sT0}, s{sW}, 9
s_add_u32 s{sT0}, s{sT0}, {UOFF+512}
v_add_u32 v{vCU}, s{sT0}, v133
v_mul_u32_u24 v133, 28672, v137
v_and_b32 v134, 7, v0
v_lshl_add_u32 v{vZ}, v134, 4, v133
v_lshlrev_b32 v134, 2, v134
v_add_u32 v{vBR}, {BADF}, v134
s_mul_i32 s{sT0}, s{sW}, {8*28672}
s_lshl_b32 s{sT1}, s{sC}, 7
s_add_u32 s{sT0}, s{sT0}, s{sT1}
s_add_u32 s{sZO}, s{sT0}, {ZZ}
s_lshl_b32 s{sKVB}, s{sH}, 18
s_add_u32 s{sKVB}, s{sKVB}, {KV}
s_lshl_b32 s{sKL}, s{sW}, 12
s_add_u32 s{sKS}, s{sKVB}, s{sKL}
s_min_u32 s{sT0}, s{sW}, 6
s_lshl_b32 s{sWM}, s{sT0}, 10
s_lshl_b32 s{sT1}, s{sT0}, 6
v_add_u32 v133, s{sT1}, v0
v_mul_u32_u24 v134, 4682, v133
v_lshrrev_b32 v134, 16, v134
v_mul_u32_u24 v136, 14, v134
v_sub_u32 v133, v133, v136
v_bfe_u32 v136, v134, 1, 2
v_and_b32 v138, 1, v134
v_lshl_add_u32 v136, v138, 2, v136
v_and_or_b32 v134, v134, 24, v136
v_mul_u32_u24 v134, 896, v134
v_lshl_add_u32 v133, v133, 4, v134
s_mul_i32 s{sT1}, s{sCG}, 224
v_add_u32 v{vWOA}, s{sT1}, v133
s_and_b32 s{sT0}, s{sW}, 1
s_lshl1_add_u32 s{sT0}, s{sT7}, s{sT0}
s_lshl_b32 s{sT0}, s{sT0}, 13
s_add_u32 s{sT0}, s{sT0}, {LA}
v_add_u32 v{vB0}, s{sT0}, v1
v_add_u32 v{vB1}, 0x10000, v{vB0}
s_lshl_b32 s{sT0}, s{sG}, 11
s_add_u32 s{sT0}, s{sT0}, {LR}
v_add_u32 v{vQA}, s{sT0}, v1
s_lshl_b32 s{sT0}, s{sG}, 12
s_add_u32 s{sT0}, s{sT0}, {MERGE}
v_add_u32 v{vMG}, s{sT0}, v1
s_lshl_b32 s{sT1}, s{sW}, 2
s_add_u32 s{sT1}, s{sT1}, {BADF}
v_mov_b32 v{vBW}, s{sT1}
s_lshl_b32 s{sT3}, s{sQT}, 2
s_add_u32 s{sT3}, s{sT3}, s{sG}
s_lshl_b32 s{sT0}, s{sT3}, 4
s_add_u32 s{sT0}, s{sT0}, s{sH}
s_lshl_b32 s{sT0}, s{sT0}, 11
s_add_u32 s{sOO}, s{sT0}, {OF}
s_lshl4_add_u32 s{sT0}, s{sH}, s{sQT}
s_lshl3_add_u32 s{sT0}, s{sT0}, s{sW}
s_lshl_b32 s{sT0}, s{sT0}, 10
s_add_u32 s{sQO}, s{sT0}, {QF}
v_cmp_eq_u32 vcc, 0, v135
s_waitcnt lgkmcnt(0)
s_mul_i32 s{sNON}, s{sED}, 1664525
s_add_u32 s{sNON}, s{sNON}, 1013904223
s_lshl_b32 s{sT0}, s{sDV}, 16
s_and_b32 s{sT1}, s{sDV}, 0xffff0000
v_mov_b32 v133, s{sT0}
v_mov_b32 v134, s{sT1}
v_cndmask_b32 v{vD}, v134, v133, vcc
v_mov_b32 v{vNON}, s{sNON}
s_lshl_b32 s{sT0}, s{sT7}, 10
s_add_u32 s{sCL}, s{sOO}, s{sT0}
s_and_b32 s{sT0}, s{sW}, 6
s_add_u32 s{sT0}, s{sT0}, s{sW}
s_lshl_b32 s{sK0}, s{sT0}, 11
"""
CNT = 65520

a(IDS_G + srdc(((X_, 1835008), (WQ, 1204224))) + f"""
v_lshrrev_b32 v128, 3, v0
s_lshl_b32 s{sT0}, s{sTT}, 5
v_add_u32 v128, s{sT0}, v128
v_mul_u32_u24 v128, 896, v128
v_and_b32 v129, 7, v0
v_xor_b32 v129, v129, v130
v_lshl_add_u32 v{vXD}, v129, 4, v128
v_xor_b32 v129, 4, v129
v_lshl_add_u32 v{vXD+1}, v129, 4, v128
v_add_u32 v{vXD+1}, {7168-1024}, v{vXD+1}
v_add_u32 v{vXD+2}, {14336-2048}, v{vXD}
v_add_u32 v{vXD+3}, {14336-2048}, v{vXD+1}
""")
if OPT.get("rt"): a(f"""
s_lshr_b32 s{sT3}, s2, 6
s_mul_i32 s{sT3}, s{sT3}, {OPT.get("rc", 1)}
s_add_u32 s{sT3}, s{sT3}, s{sJ}
s_and_b32 s{sT3}, s{sT3}, 7
s_lshl_b32 s{sT3}, s{sT3}, 2
s_lshr_b32 s{sI}, {int(str(OPT["rt"]), 16):#x}, s{sT3}
s_and_b32 s{sI}, s{sI}, 7
""")
a("s_waitcnt lgkmcnt(0)")
stamp(0)
def wbase(st): return LP + 12288 * st if st < 2 else 12288 * (st - 2)
RT = OPT["rt"]
def rot(dst, st, mul):
    if not RT: return f"s_mov_b32 s{dst}, {st*mul}\n"
    return f"s_add_u32 s{dst}, s{sI}, {st}\ns_cmp_ge_u32 s{dst}, 7\ns_cselect_b32 s{sSP}, 7, 0\ns_sub_u32 s{dst}, s{dst}, s{sSP}\ns_mul_i32 s{dst}, s{dst}, {mul}\n"
def dma_x(st):
    p = [f"buffer_load_dwordx4 v{vXD+i}, {srd(X_)}, s{sSO} offen offset:{1024*i} lds" for i in range(4)]
    p[0] = f"s_add_u32 m0, s{sLX}, {4096*(st&3)}\n" + rot(sSO, st, 128) + p[0]
    return p
def dma_w(st):
    p = [f"buffer_load_dwordx4 v{vWD+q}, {srd(WQ)}, s{sSO2} offen offset:{1024*q} lds" for q in range(3)]
    p[0] = f"s_add_u32 m0, s{sLW}, {wbase(st)}\n" + rot(sSO2, st, 64*2688) + p[0]
    return p
def sprinkle(pieces, text):
    L = [x.replace(" | ", "\n") for x in text.strip().split("\n") if x.strip()]
    n = len(pieces)
    for k, p in enumerate(pieces):
        a(p)
        for x in L[len(L) * k // n: len(L) * (k + 1) // n]: a(x)
WADDR = f"""
s_mul_i32 s{sT0}, s{sJ}, 168
s_and_b32 s{sT0}, s{sT0}, -16
s_mul_i32 s{sT2}, s{sG}, {16*2688}
s_add_u32 s{sT0}, s{sT0}, s{sT2}
s_mul_i32 s{sLW}, s{sG}, 3072
"""
for q in range(3):
    WADDR += f"""
v_add_u32 v128, {64*q}, v0
v_mul_u32_u24 v129, 43691, v128
v_lshrrev_b32 v129, 19, v129
v_mul_u32_u24 v131, 12, v129
v_sub_u32 v128, v128, v131
v_min_u32 v128, 10, v128
v_mul_u32_u24 v129, 2688, v129
v_lshl_add_u32 v128, v128, 4, v129
v_add_u32 v{vWD+q}, s{sT0}, v128
""" + (f"s_sub_u32 s{sT0}, s{sT0}, 1024" if q < 2 else "")
for p in dma_x(0): a(p)
a("s_branch L_loader\nL_uprep:")
a("s_setprio 3\n" + IDS_U + srdc(((K_, 1835008), (V_, 1835008), (SK, 3584))) + f"""
v_subrev_u32 v135, 2688, v{vGA}
s_lshl_b32 s{sT1}, s{sT1}, 2
v_lshl_add_u32 v137, v{vCP}, 4, s{sT1}
s_movk_i32 s{sT5}, 3584
s_waitcnt lgkmcnt(0)
""")
stamp(0)
a(f"buffer_load_dwordx4 {v(SR,4)}, v137, {srd(SK)}, 0 offen")
for i in range(3): a(f"buffer_load_dword v{KR+i}, v135, {srd(K_)}, 0 offen offset:{896*i}")
for i in range(8): a(f"buffer_load_dword v{KR+3+i}, v{vGA}, {srd(K_)}, {'0' if i<4 else s(sT5)} offen offset:{896*(i&3)}")
for i in range(8): a(f"buffer_load_dword v{VR+i}, v{vGA}, {srd(V_)}, {'0' if i<4 else s(sT5)} offen offset:{896*(i&3)}")
a("s_setprio 0\n" + IDS_G + COMMON.replace(" | ", "\n") + f"""
s_sub_u32 s{sUS}, s{sUT}, {ZZ-UU}
s_lshl_b32 s{sT4}, s{sG}, 11
s_add_u32 s{sT4}, s{sT4}, {LP+24576}
v_and_b32 v136, 7, v{vCP}
v_lshlrev_b32 v136, 4, v136
v_xor_b32 v136, v136, v{vZL}
v_add_u32 v136, s{sT4}, v136
v_xor_b32 v138, 64, v136
v_lshlrev_b32 v137, 4, v137
v_xor_b32 v137, v137, v1
v_add_u32 v137, s{sT4}, v137
s_and_b32 s{sT6}, s{sJ}, 1
s_lshl_b32 s{sT6}, s{sT6}, 3
""")
a.c("---- QKV projection: 32 tokens x 3 head blocks per wave")
a(f"""
v_and_b32 v128, 31, v0
v_bfe_u32 v129, v0, 1, 3
v_xor_b32 v129, v129, v131
v_lshlrev_b32 v128, 7, v128
v_lshl_add_u32 v128, v129, 4, v128
v_add_u32 v{vXB}, s{sLX}, v128
v_bfe_u32 v128, v0, 2, 2
v_lshl_add_u32 v128, v131, 3, v128
v_mul_u32_u24 v128, 192, v128
v_and_b32 v129, 1, v130
v_lshl_add_u32 v128, v129, 5, v128
v_lshl_add_u32 v128, v132, 3, v128
s_add_u32 s{sT6}, s{sT6}, {LP}
v_add_u32 v{vWR}, s{sT6}, v128
v_mov_b32 v{vXR}, v{vXB}
v_mov_b32 v{vPB}, 0
v_xor_b32 v{vXR+1}, 32, v{vXB}
v_xor_b32 v{vXR+2}, 64, v{vXB}
v_xor_b32 v{vXR+3}, 0x60, v{vXB}
""")
a(f"s_lshr_b32 s{sT0}, s{sTT}, 2\ns_lshl4_add_u32 s{sT0}, s{sJ}, s{sT0}\ns_lshl_b32 s{sT0}, s{sT0}, {FS}\ns_add_u32 s{sFL}, s{sT0}, {FB}")
a(f"s_mul_i32 s{sT7}, s{sJ}, 3")
for b in range(3):
    a(f"""
s_add_u32 s{sT3}, s{sT7}, {b}
s_and_b32 s{sT0}, s{sT3}, 15
s_lshl_b32 s{sT0}, s{sT0}, 6
s_add_u32 s{sT0}, s{sT0}, s{sTT}
s_cmp_lt_u32 s{sT3}, 16
s_cselect_b32 s{sT1}, 11, 12
s_mov_b32 s{sT2}, {KV}
s_cselect_b32 s{sT2}, {QF}, s{sT2}
s_lshl_b32 s{sT0}, s{sT0}, s{sT1}
s_add_u32 s{sE0+b}, s{sT0}, s{sT2}
""")
a(f"""
s_mov_b32 s{sKP}, {ONES}
s_movk_i32 s{sKP+1}, 0x3f80
s_mov_b32 s{sQS}, {QSCALE:#x}
s_mov_b32 s{sQS+1}, {QSCALE:#x}
s_mov_b32 s{sM1}, 0xf0000000
s_mov_b32 s{sM1+1}, 0xf0000000
s_mov_b32 s{sM2}, {ONES}
s_mov_b32 s{sM2+1}, {ONES}
""")
for r in list(range(ACC, ACC + 48, 2)) + list(range(RS + 16, RS + 64, 2)): a(f"v_mov_b64 {v(r,2)}, 0")
a(f"s_mov_b32 s{sI}, 0\ns_setprio 2\ns_waitcnt vmcnt(8)")
stamp(2)
for j in range(4):
    for p in range(2):
        src = SR + 2 * p + (j >> 1)
        a(f"v_lshlrev_b32 v{WF+2*j+p}, 16, v{src}" if j % 2 == 0 else f"v_and_b32 v{WF+2*j+p}, 0xffff0000, v{src}")
for i in range(11): a(f"v_lshlrev_b32 v{KF+2*i}, 16, v{KR+i}\nv_and_b32 v{KF+2*i+1}, 0xffff0000, v{KR+i}")
for t in range(8): a(f"v_pk_mul_f32 {v(UA+2*t,2)}, {v(KF+2*t,2)}, {v(WF+6,2)}")
for j in (2, 1, 0):
    for t in range(8): a(f"v_pk_fma_f32 {v(UA+2*t,2)}, {v(KF+2*(t+3-j),2)}, {v(WF+2*j,2)}, {v(UA+2*t,2)}")
a("s_waitcnt vmcnt(0)")
for i in range(8): a(f"v_lshlrev_b32 v{VF+2*i}, 16, v{VR+i}\nv_and_b32 v{VF+2*i+1}, 0xffff0000, v{VR+i}")
for t in range(8): a(f"v_pk_mul_f32 {v(UA+2*t,2)}, {v(UA+2*t,2)}, {v(VF+2*t,2)}")
for p in range(2):
    for m in range(4): a(f"v_cvt_pk_bf16_f32 v{UP+4*p+m}, v{UA+2*(7-2*m)+p}, v{UA+2*(6-2*m)+p}")
    a(f"ds_write_b128 v{136+2*p}, {v(UP+4*p,4)}")
a(f"""
s_waitcnt lgkmcnt(0)
ds_read_b128 {v(UP,4)}, v137
ds_read_b128 {v(UP+4,4)}, v137 offset:1024
s_waitcnt lgkmcnt(1)
buffer_store_dwordx4 {v(UP,4)}, v1, {srd(WS)}, s{sUS} offen sc1
s_mov_b32 exec_hi, 0xffff
s_waitcnt lgkmcnt(0)
buffer_store_dwordx4 {v(UP+4,4)}, v1, {srd(WS)}, s{sUS} offen offset:1024 sc1
s_mov_b32 exec_hi, -1
""")
stamp(3)
a(f"""
s_cmp_eq_u32 s{sJ}, 10
s_cbranch_scc1 L_gemm1
s_cmp_gt_u32 s{sJ}, 10
s_cbranch_scc1 L_gemm2
""")
def g_reads(ks):
    r = RS + 16 * ks
    out = [f"ds_read_b128 {v(r,4)}, v{vXR+ks}"]
    for b in range(3):
        for t in range(2):
            out.append(f"ds_read_b64_tr_b16 {v(r+4+4*b+2*t,2)}, v{vWR} offset:{(16*ks+4*t)*192+56*b}")
    return out
def g_mfma(ks, isv):
    r = RS + 16 * ks
    return [mfma32(ACC+16*b, r, r+4+4*b, ACC+16*b) if isv[b] else mfma32(ACC+16*b, r+4+4*b, r, ACC+16*b) for b in range(3)]
for var, isv in enumerate(((0,0,0), (0,0,1), (1,1,1))):
    m = [g_mfma(k, isv) for k in range(4)]
    rd = g_reads(0) + g_reads(1) + g_reads(2) + g_reads(3)
    a(f"L_gemm{var}:\n{m[1][2]}\ns_barrier")
    seq = m[2] + m[3] + m[0] + m[1][:1]
    for k, x in enumerate(seq):
        if k == 6: a("s_waitcnt lgkmcnt(11)")
        if k == 9: a("s_waitcnt lgkmcnt(13)")
        a("\n".join([x] + rd[3*k:3*k+3]))
    a(f"""
s_cmp_eq_u32 s{sI}, 1
s_movk_i32 s{sT1}, 12288
s_cselect_b32 s{sT1}, {(-LP-12288) & 0xffffffff}, s{sT1}
s_add_u32 s{sI}, s{sI}, 1
s_and_b32 s{sT0}, s{sI}, 3
s_lshl_b32 s{sT0}, s{sT0}, 12
{m[1][1]}
v_add_u32 v{vWR}, s{sT1}, v{vWR}
v_xor_b32 v{vXR}, s{sT0}, v{vXB}
v_xor_b32 v{vXR+1}, 32, v{vXR}
v_xor_b32 v{vXR+2}, 64, v{vXR}
v_xor_b32 v{vXR+3}, 0x60, v{vXR}
s_cmp_lt_u32 s{sI}, 7
s_waitcnt vmcnt(0) lgkmcnt(0)
s_cbranch_scc1 L_gemm{var}
""")
    a("\n".join([m[2][0], m[1][2], m[3][0], m[2][1], m[2][2], m[3][1], m[3][2]]))
    stamp(1)
    a.c("epilogue: scale Q, pack to bf16 fragments, patch the pad slots, publish")
    for b in range(3):
        pk = 128 + 8 * b
        padp = sKP
        if var == 0:
            padp = sM1
            a(f"s_cmp_lt_u32 s{sT7}, {16-b}\ns_cselect_b64 {s(sM1,2)}, 0, {s(sKP,2)}\ns_cbranch_scc0 L_nosc{b}")
            for r in range(0, 16, 2): a(f"v_pk_mul_f32 {v(ACC+16*b+r,2)}, {v(ACC+16*b+r,2)}, {s(sQS,2)}")
            a.label(f"L_nosc{b}")
        for r in range(8): a(f"v_cvt_pk_bf16_f32 v{pk+r}, v{ACC+16*b+2*r}, v{ACC+16*b+2*r+1}")
        if isv[b]:
            a(f"s_mov_b64 exec, {s(sM1,2)}")
            for r in range(0, 8, 2): a(f"v_mov_b64 {v(pk+r,2)}, {s(sM2,2)}")
        else: a(f"s_mov_b32 exec_lo, 0\nv_mov_b64 {v(pk+6,2)}, {s(padp,2)}")
        o = 2048 * isv[b]
        a(f"""
s_mov_b64 exec, -1
buffer_store_dwordx4 {v(pk,4)}, v1, {srd(WS)}, s{sE0+b} offen offset:{o} sc1
buffer_store_dwordx4 {v(pk+4,4)}, v1, {srd(WS)}, s{sE0+b} offen offset:{o+1024} sc1
""")
    a("s_branch L_conv")

a.label("L_loader")
HELP = f"""
v_mov_b32 v133, {CNT}
v_mov_b32 v134, 0
ds_write_b32 v133, v134
v_min_u32 v133, 2, v130
v_lshl_add_u32 v133, v133, 4, s{sH}
v_mul_u32_u24 v133, 21846, v133
v_lshrrev_b32 v133, 16, v133
v_mov_b32 v134, s{sQT}
v_cmp_gt_u32 vcc, 16, v0
s_lshl_b32 s{sT0}, s{sCG}, 6
s_add_u32 s{sT0}, s{sT0}, s{sRT}
s_lshl_b32 s{sT0}, s{sT0}, {FS}
s_add_u32 s{sFL}, s{sT0}, {FA}
v_cndmask_b32 v134, v139, v134, vcc
v_lshl_add_u32 v133, v133, 4, v134
v_lshlrev_b32 v133, {FS}, v133
v_add_u32 v{vPB}, {FB}, v133
s_mul_i32 s{sT0}, s{sC}, 1171
s_lshr_b32 s{sT0}, s{sT0}, 16
s_lshl2_add_u32 s{sT0}, s{sT0}, s{sG}
s_lshl_b32 s{sT0}, s{sT0}, {4+FS}
s_add_u32 s{sT0}, s{sT0}, {FA}
v_lshl_add_u32 v{vPA}, v139, {FS}, s{sT0}
v_lshrrev_b32 v133, 2, v0
v_mul_u32_u24 v133, 28672, v133
v_lshl_add_u32 v{vUD}, v132, 4, v133
s_mul_i32 s{sT0}, s{sG}, {16*28672}
s_lshl_b32 s{sT1}, s{sC}, 7
s_add_u32 s{sT0}, s{sT0}, s{sT1}
s_add_u32 s{sUO}, s{sT0}, {UU}
v_bfe_u32 v138, v0, 1, 2
v_mul_u32_u24 v138, {HP}, v138
v_and_b32 v139, 1, v0
v_lshl_add_u32 v138, v139, 4, v138
v_add_u32 v139, {UOFF}, v1
v_cmp_gt_u32 vcc, 32, v0
v_mov_b64 v[140:141], 0
v_mov_b64 v[142:143], 0
v_cndmask_b32 v138, v138, v139, vcc
v_add_u32 v139, {LP}, v138
{srdc(((HK, 1835008),))}
s_lshl_b32 s{sT3}, s{sC}, 13
s_lshl_b32 s{sT4}, s{sG}, 10
s_add_u32 s{sT3}, s{sT3}, s{sT4}
v_add_u32 v11, s{sT3}, v1
v_add_u32 v{vHO}, s{sT4}, v1
v_subrev_u32 v12, 8, v11
v_cmp_eq_u32 vcc, 0, v{vHO}
v_mov_b32 v136, 0xffffe000
s_movk_i32 s{sT7}, 4096
v_cndmask_b32 v12, v12, v136, vcc
"""
def hprep(p):
    R = H0 + 8 * p; T = 40 + 12 * p
    a(f"v_add_u32 v{134+p}, {(LP if p else LX)+32}, v{vHO}")
    for i in range(4): a(f"v_alignbit_b32 v{T+i}, v{R+2+i}, v{R+1+i}, 16")
    for i in range(4): a(f"v_mov_b32 v{T+4+i}, v{R+1+i}")
    for i in range(4): a(f"v_alignbit_b32 v{T+8+i}, v{R+1+i}, v{R+i}, 16")
def hwrite(p):
    R = H0 + 8 * p; T = 40 + 12 * p
    a(f"ds_write_b128 v{134+p}, {v(R+2,4)}")
    for c in range(1, 4): a(f"ds_write_b128 v{134+p}, {v(T+4*(c-1),4)} offset:{HP*c}")
    a.c("zero pads: lanes 0-31 the u pad, lanes 32-39 the h pads")
    a(f"ds_write_b128 v{138+p}, {v(140,4)}")
def u_dma():
    a(f"""
s_lshl_b32 s{sT2}, s{sG}, 10
s_add_u32 m0, s{sT2}, {LX+UOFF+512}
s_add_u32 s{sT1}, s{sUO}, 64
buffer_load_dwordx4 v{vUD}, {srd(WS)}, s{sUO} offen sc1 lds
s_add_u32 m0, s{sT2}, {LP+UOFF+512}
s_nop 0
buffer_load_dwordx4 v{vUD}, {srd(WS)}, s{sT1} offen sc1 lds
""")

a(WADDR)
HL = [f"buffer_load_dwordx{2+2*k} {v(H0+8*p+2*k,2+2*k)}, v{12-k}, {srd(HK)}, {s(sT7) if p else 0} offen" for p in range(2) for k in range(2)]
rest = [(0, p) for p in dma_w(0)] + [(st, p) for st in range(1, 7) for p in dma_w(st) + dma_x(st)]
HPOS = 3 + 7 * OPT.get("hst", 4)
rest[HPOS:HPOS] = [(9, x) for x in HL]
rest.append((8, f"buffer_load_dword v144, v{vPA}, {srd(WS)}, 0 offen sc1"))
calc = [x.replace(" | ", "\n") for x in (IDS_U + COMMON + HELP).strip().split("\n") if x.strip()]
NC = min(HPOS, 17); LAGS = [int(x, 36) for x in SOPT.get("lags", "eedc97")]
issued = [0] * 4; n = 0
def bar(n):
    young = len(issued) - 1 - max(k for k, st in enumerate(issued) if st == n)
    if n == 0: stamp(1)
    a(f"s_waitcnt vmcnt({young})\ns_barrier")
    if n < 6: stamp(9 + n, 2)
    if n == 1:
        assert len(issued) >= NC + 4
        a.c("waves 0-3 waited for their u stores before this barrier")
        a(f"s_cmp_lg_u32 s{sW}, 4\ns_cbranch_scc1 L_nsa")
        signal(f"s{sFL}")
        a.label("L_nsa")
for k, (st, p) in enumerate(rest):
    assert st > 7 or "s[8:11]" in p or st - 4 < n - 1
    a(p); issued.append(st)
    if k < NC:
        for x in calc[len(calc) * k // NC: len(calc) * (k + 1) // NC]: a(x)
    if n < 6 and issued.count(n) == 7 and len(issued) - 1 - max(q for q, s_ in enumerate(issued) if s_ == n) >= LAGS[n]:
        bar(n); n += 1
while n < 6: bar(n); n += 1
EARLYH = OPT.get("hst", 4) < 5
if EARLYH: hprep(1); hwrite(1)
bar(6)
a(f"s_waitcnt vmcnt(0)\nv_cmp_ne_u32 vcc, s{sNON}, v144\ns_cbranch_vccz L_uok")
poll(vPA, 144)
a("L_uok:")
u_dma()
stamp(4)
if not EARLYH: hprep(1); hwrite(1)
hprep(0); hwrite(0)
a("s_setprio 1\ns_waitcnt vmcnt(0) lgkmcnt(0)")
def ldq():
    for i in range(8): a(f"buffer_load_dword v{QR+i}, v{vGA}, {srd(Q_)}, {'0' if i<4 else s(sT5)} offen offset:{896*(i&3)}")

a.label("L_conv")
CAC, CU, FA_, FB_ = 16, 48, 64, 128
a.c("---- long causal conv as block-Toeplitz MFMA: channel = wave>>2, lag phases split over wave&3")
a("s_barrier")
stamp(5)
def c_readA(i, r): return [f"ds_read_b64 {v(FA_+32*i+4*r+2*t,2)}, v{vCA} offset:{512*r+64*i+8*t}" for t in range(2)]
def c_readB(i, x): return [f"ds_read_b128 {v(FB_+32*i+4*x,4)}, v{vCB} offset:{512*x+64*(1-i)}"]
def c_m(i, nt, r, first=False): return mfma16(CAC+4*nt, FA_+32*i+4*r, FB_+32*i+4*(nt-r), "0" if first else CAC+4*nt)
lq = LQ()
rds = [x for i in range(2) for k in range(8) for x in c_readA(i, k) + c_readB(i, k)] + [f"ds_read_b128 {v(CU,4)}, v{vCU}"]
for x in rds[:15]: lq(x)
rds = rds[15:]
seen = set(); prev = -1
for k in range(8):
    grp = [(r, x) for r in range(k + 1) for x in range(k + 1) if max(r, x) == k and r + x <= 7]
    while grp:
        r, x = next((p for p in grp if p[0] + p[1] != prev), grp[0]); grp.remove((r, x))
        lq(c_m(0, r + x, r, first=(r + x) not in seen)); seen.add(r + x); prev = r + x
        if rds: lq(rds.pop(0))
assert not rds
stamp(9, 3)
a(f"""
s_cmp_ge_u32 s{sW}, 4
s_cbranch_scc1 L_cm
s_setprio 0
v_mov_b32 v52, {CNT}
v_mov_b32 v53, 1
s_mov_b64 exec, 1
s_waitcnt vmcnt(0)
ds_add_rtn_u32 v53, v52, v53
s_waitcnt lgkmcnt(0)
v_cmp_eq_u32 vcc, 3, v53
s_cbranch_vccz L_cnl
buffer_store_dword v{vNON}, v1, {srd(WS)}, s{sFL} offen sc1
L_cnl:
s_mov_b64 exec, -1
""")
stamp(4)
a.label("L_cm")
lq.drain()
a("s_barrier")
stamp(10, 3)
pend = []; cnt = 0; PP = ((36,), (25, 36), (14, 25, 36))[OPT.get("pp", 3) - 1]
for n0 in range(0, 8, 2):
    ms = []
    for r in range(n0 + 2):
        ms.append(c_m(1, n0 + 1, r))
        if r <= n0: ms.append(c_m(1, n0, r))
    for m_ in ms:
        a(m_); cnt += 1
        pend = [(w, n + 1) for w, n in pend]
        if pend and pend[0][1] >= 8: a(pend.pop(0)[0])
    for nt in (n0, n0 + 1): pend.append((f"ds_write_b128 v{vCW}, {v(CAC+4*nt,4)} offset:{1024*nt}", 0))
for t in range(8):
    m = (7 - t) // 2
    a(f"v_lshlrev_b32 v{56+t}, 16, v{CU+m}" if t % 2 else f"v_and_b32 v{56+t}, 0xffff0000, v{CU+m}")
a("v_and_b32 v126, 7, v0\nv_lshlrev_b32 v130, 3, v0\nv_mov_b64 v[128:129], 0")
for w, n in pend: a(w)
stamp(6)
a(f"s_cmp_lg_u32 s{sW}, 4\ns_cbranch_scc1 L_cred")
poll(vPB, 52)
a.label("L_cred")
a("s_waitcnt lgkmcnt(0)\ns_barrier")
stamp(7)
def kv_stage(n):
    a(f"s_add_u32 m0, s{sKL}, {LA+32768*n}\ns_add_u32 s{sSO}, s{sKS}, {32768*n}")
    for i in range(4): a(f"buffer_load_dwordx4 v1, {srd(WS)}, s{sSO} offen offset:{1024*i} sc1 lds")
a.c("behind that barrier every wave knows the QKV flags matched: Q and the first tiles go first")
a(f"""
s_setprio 0
s_lshl_b32 s{sT5}, s{sW}, 10
s_add_u32 m0, s{sT5}, {LR}
s_add_u32 s{sSO}, s{sKVB}, s{sK0}
buffer_load_dwordx4 v1, {srd(WS)}, s{sQO} offen sc1 lds
s_add_u32 m0, s{sK0}, {LA}
s_add_u32 s{sSO2}, s{sSO}, 4096
buffer_load_dwordx4 v1, {srd(WS)}, s{sSO} offen sc1 lds
buffer_load_dwordx4 v1, {srd(WS)}, s{sSO} offen offset:1024 sc1 lds
s_add_u32 m0, s{sK0}, {LA+4096}
""")
for q in range(4):
    for i in range(2): a(f"ds_read_b128 {v(64+8*q+4*i,4)}, v{vCR} offset:{8192*q+256*i}")
a(f"""
buffer_load_dwordx4 v1, {srd(WS)}, s{sSO2} offen sc1 lds
buffer_load_dwordx4 v1, {srd(WS)}, s{sSO2} offen offset:1024 sc1 lds
""")
stamp(11, 3)
a("s_waitcnt lgkmcnt(4)")
for t in range(8): a(f"v_fma_f32 v{56+t}, v{56+t}, v{vD}, v{64+t}")
for t in range(0, 8, 2): a(f"v_pk_add_f32 {v(56+t,2)}, {v(56+t,2)}, {v(72+t,2)}")
a("s_waitcnt lgkmcnt(0)")
a.c("wave 0 alone reads the first 128 bytes: it clears the progress bytes of the key loop behind its reads")
a(f"""
s_cmp_lg_u32 s{sW}, 0
s_cbranch_scc1 L_nclr
s_mov_b64 exec, 0xffff
ds_write_b64 v130, v[128:129]
s_mov_b64 exec, -1
L_nclr:
""")
for t in range(0, 8, 2): a(f"v_pk_add_f32 {v(80+t,2)}, {v(80+t,2)}, {v(88+t,2)}")
for t in range(0, 8, 2): a(f"v_pk_add_f32 {v(56+t,2)}, {v(56+t,2)}, {v(80+t,2)}")
for m in range(4): a(f"v_cvt_pk_bf16_f32 v{104+m}, v{56+2*m}, v{57+2*m}")
a("v_mov_b64 v[108:109], -1\nv_mov_b64 v[110:111], -1")
stamp(12, 3)
kv_stage(1)
a(f"""
v_mov_b32 v124, s{sW}
s_and_b32 s{sT0}, s{sW}, 4
v_and_or_b32 v125, v0, 3, s{sT0}
s_lshr_b32 s{sT0}, s2, 3
s_mul_i32 s{sT0}, s{sT0}, 3
s_add_u32 s{sT0}, s{sT0}, s{sG}
s_lshl_b32 s{sT0}, s{sT0}, 12
s_add_u32 s{sT0}, s{sT0}, {128*896 if OPT.get("wp", 1) else 1<<20}
v_lshl_add_u32 v131, v0, 6, s{sT0}
v_xor_b32 v180, 2048, v{vQA}
s_add_u32 s{sT0}, s{sKL}, {LR}
v_add_u32 v181, s{sT0}, v1
v_xor_b32 v182, 4096, v181
""")
stamp(13, 3)
a("s_waitcnt vmcnt(6)")
stamp(14, 3)

WS0 = 128
vFW, vFG, vF8, vFT = 124, 125, 126, 127
vQ, vK, vV, vP, vSa, vSb, vO, vM, vKC, vZR, vFC = 16, 24, 32, 40, 48, 64, 80, 14, 96, 248, 120
a.c("---- attention: S^T = K Q^T - m (m rides in the pad slots), P = exp2, O^T += V^T P^T (row 28 = sum)")
a(f"""
L_att:
s_cmp_lg_u32 s{sTRY}, 0
s_barrier
""")
stamp(8)
QQ, OO, MM, vVL, vQB, vW0, vR0 = (132, vQ), (148, vO), (183, vM), 164, 180, 181, 182
def kvaddr(T, f):
    o = 32768 * ((T >> 1) & 3) + 4096 * (T & 1) + 1024 * f
    return f"v{vB0 if o < 65536 else vB1} offset:{o & 65535}"
def rdK(T, f): return f"ds_read_b128 {v(vK+4*f,4)}, {kvaddr(T, f)}"
def rdV(T, f): return f"ds_read_b128 {v(vV+4*f,4)}, {kvaddr(T, 2+f)}"
def wo_piece(g): return [f"s_add_u32 m0, s{sWM}, {WS0+7168*g}", f"s_mov_b32 s{sSO2}, {28672*g}", f"buffer_load_dwordx4 v{vWOA}, {srd(WO)}, s{sSO2} offen lds"]
def pieces(n):
    out = []
    if n == 1:
        out += [[f"buffer_store_dwordx4 {v(104,4)}, v{vZ}, {srd(WS)}, s{sZO} offen sc1"], [f"buffer_store_dwordx4 {v(108,4)}, v1, {srd(WS)}, s{sCL} offen sc1"]]
    if n < 6:
        for i in range(4):
            p = [f"buffer_load_dwordx4 v1, {srd(WS)}, s{sSO} offen offset:{1024*i} sc1 lds"]
            if i == 0: p = [f"s_add_u32 m0, s{sKL}, {LA+32768*((n+2)&3)}", f"s_add_u32 s{sSO}, s{sKS}, {32768*(n+2)}"] + p
            out.append(p)
        if n >= 2: out.append(wo_piece(n - 2))
    elif n < 8: out = [wo_piece(4 + 5 * (n - 6) + i) for i in range(5)]
    return out
def maxtree(S, dst, have):
    a(f"v_max3_f32 v{dst}, v{S}, v{S+1}, v{dst}" if have else f"v_max_f32 v{dst}, v{S}, v{S+1}")
    for i in range(2, 16, 2): a(f"v_max3_f32 v{dst}, v{S+i}, v{S+i+1}, v{dst}")
p0 = pieces(0)
a(f"""
s_cbranch_scc1 L_haveq
ds_read_b128 {v(QQ[0],4)}, v{vQB}
ds_read_b128 {v(vKC,4)}, v1 offset:{LA}
ds_read_b128 {v(QQ[0]+4,4)}, v{vQB} offset:1024
ds_read_b128 {v(vKC+4,4)}, v1 offset:{LA+1024}
ds_read_b128 {v(vQ,4)}, v{vQA}
ds_read_b128 {v(vQ+4,4)}, v{vQA} offset:1024
L_haveq:
{rdK(0,0)}
{rdK(0,1)}
{rdV(0,0)}
s_cbranch_scc1 L_havem
s_waitcnt lgkmcnt(7)
{mfma32(vSb, vKC, QQ[0], "0")}
s_waitcnt lgkmcnt(5)
{mfma32(vSb, vKC+4, QQ[0]+4, vSb)}
s_waitcnt lgkmcnt(3)
{mfma32(vO, vKC, vQ, "0")}
{mfma32(vO, vKC+4, vQ+4, vO)}
L_havem:
s_waitcnt lgkmcnt(0)
{mfma32(vSa, vK, QQ[0], "0")}
""")
NM = OPT.get("nm", 2)
a("s_cbranch_scc1 L_hm")
for i in range(NM):
    for S_, m in ((vSb, MM[0]), (vO, MM[1])): a(f"v_max3_f32 v{m}, v{S_+2*i+1}, v{S_+(2*i+2)%16}, v{m if i else S_}")
a.c("lanes 0-31 split the shift of tile 0, lanes 32-63 that of tile 1, into three bf16 parts")
a(f"""
L_hm:
v_permlane32_swap_b32 v{MM[0]}, v{MM[1]}
v_max_f32 v96, v{MM[0]}, v{MM[1]}
v_xor_b32 v96, 0x80000000, v96
v_and_b32 v97, 0xffff0000, v96
v_sub_f32 v96, v96, v97
v_and_b32 v98, 0xffff0000, v96
v_sub_f32 v96, v96, v98
v_lshrrev_b32 v97, 16, v97
v_lshrrev_b32 v99, 16, v96
v_or_b32 v98, v97, v98
s_mov_b32 exec_lo, 0
v_mov_b64 {v(vQ+6,2)}, v[98:99]
s_mov_b32 exec_lo, -1
v_permlane32_swap_b32 v{QQ[0]+6}, v98
v_permlane32_swap_b32 v{QQ[0]+7}, v99
{mfma32(vSa, vK+4, QQ[0]+4, vSa)}
""")
lq = LQ()
a("s_waitcnt vmcnt(4)\ns_barrier")
stamp(9)
stamp(1, 4)
PRIO = {int(x, 16): 3 - i for i, x in enumerate(SOPT.get("pr", "07cf"))}
DSL = [int(x, 16) for x in SOPT.get("dsl", "89abc")]; DSL6 = [int(x, 16) for x in SOPT.get("dsl6", "0189ab")]; DSL7 = [int(x, 16) for x in SOPT.get("dsl7", "01234")]; S7 = OPT.get("s7", 14); DSL0 = [int(x, 16) for x in SOPT.get("dsl0", "89ab")]
todo = dict(zip(DSL0, p0)); since = 0
def sub(T): return T & 1 if T < 28 else (T >> 1) & 1
def fr(T, f): return (vVL if T in (29, 31) else vK) + 4 * f
LAST = {(27, 0): 0, (27, 1): 1, (27, 2): 2, (28, 0): 3}
RS_ = OPT.get("rs", 13); QS = OPT.get("qs", 14); CW = OPT.get("cw", 2); BP = OPT.get("bp", 120)
def fl_read(i): return f"ds_read_u8 v{vFT}, v{vF8 if i in (3, 6, 7) else vFG} offset:{8*(i-1)}"
a.c("no barriers in the loop: a wave posts a byte once its DMA of the next stage landed and it left the stage before; readers check half a stage later")
for T in range(32):
    S, Sn = (vSa, vSb) if T % 2 == 0 else (vSb, vSa)
    n = (T + 2) >> 2
    if T & 3 == 2:
        if n == 8: pass
        elif OPT.get("spi", 0): a(f"s_cbranch_vccz L_spr{n}\nL_sp{n}:\n{fl_read(n)}\ns_waitcnt lgkmcnt(0)\nv_cmp_eq_u32 vcc, 0, v{vFT}\ns_cbranch_vccnz L_sp{n}\nL_spr{n}:")
        else: a(f"s_cbranch_vccnz L_sp{n}\nL_spr{n}:")
        if DIAG and OPT.get("set") == 4:
            if n > 1: a(f"s_mov_b32 s{sST+(7+n if n < 8 else 2)}, s96")
            if n < 8: a("s_memtime s[96:97]")
        pc = pieces(n); assert not todo
        todo = dict(zip(DSL7 if n == 7 else [x + 2 for x in DSL] if n == 6 else DSL if len(pc) < 6 else DSL6, pc)); since = 0
    for k in range(4):
        sl = (4 * T + k + 8) & 15
        if 4 * T + k == BP: a(f"s_setprio 0\ns_cmp_lt_u32 s{sW}, 4\ns_cbranch_scc1 L_np\ns_setprio 3\nL_np:")
        if 4 * T + k == OPT.get("s8", 115): assert 4 * T + k >= 115; lq(f"ds_write_b8 v{vFW}, v108 offset:56")
        if sl in PRIO and 4 * T + k < BP or (T, k) == (0, 0): a(f"s_setprio {PRIO.get(sl, 2 if PRIO else 0)}")
        j = T >> 1
        if T == 31:
            if k == 0: a("s_cbranch_vccnz L_sp8\nL_spr8:")
            lq(f"ds_write_b128 v{vW0}, {v(OO[0]+4*k,4)} offset:{1024*k}")
        if k < 2:
            if T < 31: lq(mfma32(Sn, fr(T+1, k), QQ[sub(T+1)]+4*k, Sn if k else "0"))
            if T % 2 == 0 and j < 14: lq(rdK(j + 1, k))
        elif k == 2:
            if T > 0: lq(mfma32(OO[sub(T-1)], fr(T-1, 3), vP+4, OO[sub(T-1)]))
            if T % 2 == 0 and j < 15: lq(rdV(j, 1))
        else:
            lq(mfma32(OO[sub(T)], fr(T, 2), vP, "0" if T < 2 else OO[sub(T)]))
            if T % 2 and j < 14: lq(rdV(j + 1, 0))
        if (T, k) in LAST: lq(f"ds_read_b128 {v(vVL+4*LAST[T, k],4)}, {kvaddr(15, LAST[T, k])}")
        if sl == {0: 12, 6: 10, 7: -1}.get(n, 8):
            if n == 4: assert since == 0; a(f"s_cmp_ge_u32 s{sW}, 4\ns_cbranch_scc1 L_w4\ns_waitcnt vmcnt(1)\nL_w4:\ns_waitcnt vmcnt(8)")
            elif n < 7: a(f"s_waitcnt vmcnt({since})")
            if n == 6: a(f"""
s_cmp_lg_u32 s{sW}, {CW}
s_cbranch_scc1 L_chkc_r
s_mov_b32 s{sSP}, {SPIN}
L_chkc1:
v_cmp_ne_u32 vcc, s{sNON}, v{vFC}
v_cmp_ne_u32 s[{sM1}:{sM1+1}], s{sNON}, v{vFC+1}
s_or_b64 s[{sM1}:{sM1+1}], vcc, s[{sM1}:{sM1+1}]
v_cmp_ne_u32 vcc, s{sNON}, v{vFC+2}
s_or_b64 s[{sM1}:{sM1+1}], vcc, s[{sM1}:{sM1+1}]
v_cmp_ne_u32 vcc, s{sNON}, v{vFC+3}
s_or_b64 vcc, vcc, s[{sM1}:{sM1+1}]
s_cbranch_scc1 L_chkc3
L_chkc2:
s_cmp_eq_u32 s2, 0
s_cbranch_scc1 L_epoch
L_chkc_r:
""")
            lq(f"ds_write_b8 v{vFW}, v108 offset:{8*n}" if OPT.get("nox", 1) else f"s_mov_b64 exec, 1\nds_write_b8 v{vFW}, v108 offset:{8*n}\ns_mov_b64 exec, -1")
        if sl == {0: 14, 6: 14, 7: -1, 8: 2}.get(n, RS_): lq(fl_read(min(n + 1, 8)))
        ex = [f"v_exp_f32 v{S+r}, v{S+r}" for r in range(4 * k, 4 * k + 4)]
        cv = [f"v_cvt_pk_bf16_f32 v{vP+r}, v{S+2*r}, v{S+2*r+1}" for r in range(2 * k, 2 * k + 2)]
        p = todo.pop(sl, []); since += len(p) > 0
        body = []
        for e in range(4):
            body.append(ex[e])
            if e < len(p): body.append(p[e])
        a("\n".join(body))
        if sl == {7: -1, 8: 3}.get(n, 15): lq(f"v_cmp_eq_u32 vcc, 0, v{vFT}")
        a("\n".join(cv))
        if sl == QS and n == 3:
            a.c("z and the slot marks are out (all waves posted): wave 3 raises the flag; waves 4-7 fetch the gate inputs")
            a(f"s_movk_i32 s{sT5}, 3584\ns_cmp_ge_u32 s{sW}, 4\ns_cbranch_scc1 L_ldq\ns_cmp_lg_u32 s{sW}, 3\ns_cbranch_scc1 L_wpf\ns_lshl_b32 s{sT0}, s2, 2\ns_add_u32 s{sT0}, s{sT0}, {FC}")
            signal(f"s{sT0}")
            a("s_branch L_ldq_r\nL_ldq:")
            ldq()
            a.c("waves 0-2 pull a slice of the wo rows that are staged last towards the cache")
            a(f"s_branch L_ldq_r\nL_wpf:\nbuffer_load_dword v{QR}, v131, {srd(WO)}, 0 offen\nL_ldq_r:")
            assert not todo
        if sl == 8 and n == 5:
            a.c("flags of all workgroups' z and slot marks (one word each)")
            a(f"s_cmp_lg_u32 s{sW}, {CW}\ns_cbranch_scc1 L_nfc\ns_movk_i32 s{sT0}, {FC}\nbuffer_load_dwordx4 {v(vFC,4)}, v1, {srd(WS)}, s{sT0} offen sc1\nL_nfc:")
        if sl == OPT.get("zs", 5) and n == 7:
            a(f"""
s_cmp_lt_u32 s{sW}, 4
s_cbranch_scc1 L_nz
buffer_load_dwordx4 {v(vZR,4)}, v{vZL}, {srd(WS)}, s{sUT} offen sc1
buffer_load_dwordx4 {v(vZR+4,4)}, v{vZL}, {srd(WS)}, s{sUT} offen offset:64 sc1
L_nz:
""")
lq(mfma32(vO, fr(31, 3), vP+4, vO))
a("s_setprio 0")
stamp(10)
stamp(3, 4)
a(f"""
s_mov_b32 s{sT2}, 0x5f800000
v_mov_b64 v[100:101], 0
v_mov_b64 v[102:103], 0
s_and_b32 s{sT1}, s{sW}, 1
s_mul_i32 s{sT1}, s{sT1}, 768
s_add_u32 s{sT1}, s{sT1}, {WS0+448*224}
v_add_u32 v99, s{sT1}, v1
s_cmp_lt_u32 s{sW}, 4
s_cbranch_scc1 L_mA
ds_write_b128 v99, {v(100,4)}
""")
for i in range(4): a(f"ds_write_b128 v{vMG}, {v(vO+4*i,4)} offset:{1024*i}")
a(f"""
L_mA:
v_add_f32 v98, v{vO+12}, v{OO[0]+12}
v_cmp_nle_f32 vcc, v98, s{sT2}
v_mov_b32 v98, vcc_hi
ds_write_b32 v{vBW}, v98
s_waitcnt vmcnt(0) lgkmcnt(0)
s_barrier
ds_read_b32 v98, v{vBR}
s_cbranch_scc0 L_mB
""")
lq = LQ(); lq.q = [{("v", 98)}]
PB = (vSa, vSb, 164)
for i in (3, 0, 1, 2):
    for b, ad in zip(PB, (f"v{vMG} offset:{1024*i}", f"v{vR0} offset:{1024*i}", f"v{vR0} offset:{16384+1024*i}")): lq(f"ds_read_b128 {v(b+4*i,4)}, {ad}")
a(f"s_setprio 3\ns_waitcnt lgkmcnt(12)\nv_cmp_lt_u32 vcc, s{sTRY}, v98\ns_cbranch_vccnz L_fallback"); lq.q = lq.q[1:]
for i in (3, 0, 1, 2):
    for d, s_ in ((vO, PB[0]), (PB[1], PB[2]), (vO, PB[1])):
        for r in (4*i, 4*i+2): lq(f"v_pk_add_f32 {v(d+r,2)}, {v(d+r,2)}, {v(s_+r,2)}")
    if i == 3: a(f"v_mov_b32 v96, v{vO+12}\nv_mov_b32 v97, v{vO+12}")
    if i == 0: a(f"v_permlane32_swap_b32 v96, v97\nv_rcp_f32 v96, v97")
for hf in range(2):
    for r in range(8*hf, 8*hf+8, 2): a(f"v_pk_mul_f32 {v(vO+r,2)}, {v(vO+r,2)}, v[96:97] op_sel_hi:[1,0]")
    for r in range(4*hf, 4*hf+4): a(f"v_cvt_pk_bf16_f32 v{vP+r}, v{vO+2*r}, v{vO+2*r+1}")
    if hf: a(f"s_mov_b32 exec_lo, 0\nv_mov_b64 {v(vP+6,2)}, 0\ns_mov_b32 exec_lo, -1")
    a(f"buffer_store_dwordx4 {v(vP+4*hf,4)}, v1, {srd(WS)}, s{sOO} offen offset:{1024*hf} sc1")
a("s_setprio 0\ns_barrier")
stamp(11)
WFR, OB, OA = 112, 16, 48
a(f"""
v_bfe_u32 v96, v0, 2, 2
v_lshrrev_b32 v97, 5, v0
v_lshl_add_u32 v96, v96, 1, v97
v_mul_u32_u24 v96, 224, v96
v_bfe_u32 v98, v0, 4, 1
v_lshl_add_u32 v96, v98, 5, v96
v_and_b32 v98, 3, v0
v_lshl_add_u32 v96, v98, 3, v96
s_lshl_b32 s{sT2}, s{sG}, 6
v_add_u32 v2, s{sT2}, v96
v_mul_u32_u24 v99, {6*224}, v97
v_add_u32 v3, v99, v2
v_add_u32 v9, {8*28*224}, v2
v_add_u32 v10, {8*28*224}, v3
""")
for h in range(16):
    for s_ in range(2):
        for t in range(2):
            Qd = 7 * (h & 7) + 4 * s_ + 2 * t
            a(f"ds_read_b64_tr_b16 {v(WFR+8*h+4*s_+2*t,2)}, v{(2, 3, 9, 10)[(h&1) + 2*(h>>3)]} offset:{WS0+(8*(Qd>>1) + (Qd&1))*224}")
a(f"""
v_mov_b32 v4, 0
v_add_u32 v5, {LR}, v1
v_and_b32 v99, 31, v0
v_mul_u32_u24 v99, 1792, v99
v_lshl_add_u32 v8, v97, 4, v99
s_mul_i32 s{sT0}, s{sRT}, {32*1792}
s_mul_i32 s{sT1}, s{sCG}, 224
s_add_u32 s{sT0}, s{sT0}, s{sT1}
s_add_u32 s{sT0}, s{sT0}, s{sT2}
s_waitcnt lgkmcnt(0)
""")
stamp(12)
a.c("waves 4-7 post one byte per staged head; chunk k+1 (4 heads) is checked and read while chunk k multiplies")
def ob(k): return OB if k % 2 == 0 else 64
def o_rd(k, f): return f"ds_read_b128 {v(ob(k)+4*f,4)}, v5 offset:{8192*k+1024*f}"
def o_fl(k): return f"ds_read_b32 v96, v4 offset:{64+4*k}"
def o_spin(k): return f"L_os{k}:\n{o_fl(k)}\ns_waitcnt lgkmcnt(0)\nv_cmp_ne_u32 vcc, -1, v96\ns_cbranch_vccnz L_os{k}"
a("s_barrier" if OPT.get("fb") else o_spin(0))
stamp(13)
lq = LQ()
for f in range(8): lq(o_rd(0, f))
CK = OPT.get("ck", 3)
for k in range(4):
    rd = [o_rd(k + 1, f) for f in range(8)] if k < 3 else []
    if rd: lq(o_fl(k + 1))
    for f in range(8):
        lq(mfma32(OA, WFR+32*k+4*f, ob(k)+4*f, "0" if k == 0 and f == 0 else OA))
        if rd and f == CK:
            lq(f"v_cmp_ne_u32 vcc, -1, v96\ns_cbranch_vccz L_or{k+1}")
            a(o_spin(k + 1) + f"\nL_or{k+1}:")
        if f >= CK:
            for x in rd[:2]: lq(x)
            rd = rd[2:]
for hf in range(2):
    if hf: a(f"s_cmp_eq_u32 s{sG}, 3\ns_cbranch_scc1 L_ost")
    for r in range(4*hf, 4*hf+4): a(f"v_cvt_pk_bf16_f32 v{16+r}, v{OA+2*r}, v{OA+2*r+1}")
    for d in range(2): a(f"v_permlane32_swap_b32 v{16+4*hf+d}, v{18+4*hf+d}")
    a(f"buffer_store_dwordx4 {v(16+4*hf,4)}, v8, {srd(OUT)}, s{sT0} offen offset:{32*hf}")
a("L_ost:")
stamp(14)
a("s_branch L_fin" if DIAG else "s_endpgm")

a(f"L_mB:\ns_waitcnt lgkmcnt(0)\nv_cmp_lt_u32 vcc, s{sTRY}, v98\ns_cbranch_vccnz L_fallback")
a(f"""
s_mul_i32 s{sT5}, s{sRT}, {32*896}
s_add_u32 s{sT5}, s{sT5}, 896
""")
for i in range(8): a(f"v_lshlrev_b32 v{16+2*i}, 16, v{QR+i}\nv_and_b32 v{17+2*i}, 0xffff0000, v{QR+i}")
for t in range(8):
    for p in range(2):
        src = vZR + 4 * p + t // 2
        a(f"v_lshlrev_b32 v{32+2*t+p}, 16, v{src}" if t % 2 == 0 else f"v_and_b32 v{32+2*t+p}, 0xffff0000, v{src}")
for t in range(8): a(f"v_pk_mul_f32 {v(32+2*t,2)}, {v(32+2*t,2)}, {v(16+2*t,2)}")
for t in range(8): a(f"v_cvt_pk_bf16_f32 v{56+t}, v{32+2*t}, v{33+2*t}")
def gate_st():
    for t in range(8):
        a(f"buffer_store_dword v{56+t}, v{vGO}, {srd(OUT)}, s{sT5} offen offset:{1792*(t&1)}")
        if t & 1 and t < 7: a(f"s_add_u32 s{sT5}, s{sT5}, 3584")
GO = OPT.get("go", 0)
a.c("waves 0-3 have read the partial sums and sent O"); a("s_barrier")
if OPT.get("gp"): a(f"s_setprio {OPT['gp']}")
if not OPT.get("gl") and not GO: gate_st()
if OPT.get("dl"): a(f"s_sleep {OPT['dl']}" if OPT["dl"] > 1 else "s_waitcnt vmcnt(0)")
stamp(11)
a.c("O fragments: every word differs from the all-ones mark once its producer's store has landed")
OL = 64
a(f"""
s_lshl_b32 s{sT0}, s{sRT}, 15
s_lshl_b32 s{sT1}, s{sG}, 11
s_add_u32 s{sT0}, s{sT0}, s{sT1}
s_add_u32 s{sT0}, s{sT0}, {OF}
s_add_u32 s{sT1}, s{sT0}, 8192
s_add_u32 s{sT2}, s{sT0}, 16384
s_add_u32 s{sT3}, s{sT0}, 24576
s_mov_b32 s{sSP}, {SPIN}
""")
def o_issue(k0):
    for k in range(k0, 4):
        for i in range(2): a(f"buffer_load_dwordx4 {v(OL+8*k+4*i,4)}, v1, {srd(WS)}, s{sT0+k} offen offset:{1024*i} sc1")
o_issue(0)
if GO: gate_st()
for k in range(4):
    r = OL + 8 * k
    a(f"""
s_waitcnt vmcnt({6-2*k+8*GO})
L_ochk{k}:
v_max3_u32 v96, v{r}, v{r+1}, v{r+2}
v_max3_u32 v97, v{r+3}, v{r+4}, v{r+5}
v_max3_u32 v96, v{r+6}, v{r+7}, v96
v_max_u32 v96, v96, v97
v_cmp_eq_u32 vcc, -1, v96
s_cbranch_vccnz L_oretry{k}
L_ogo{k}:
ds_write_b128 v{vQA}, {v(r,4)} offset:{8192*k}
ds_write_b128 v{vQA}, {v(r+4,4)} offset:{8192*k+1024}
""")
    a("s_waitcnt lgkmcnt(0)\ns_barrier" if k == 0 and OPT.get("fb") else f"ds_write_b8 v{vFW}, v108 offset:{60+4*k}")
    if k == 0: stamp(12)
a("s_waitcnt lgkmcnt(0)")
stamp(13)
if DIAG and OPT.get("cyc"): a(f"s_sub_u32 s{sST+2}, {SPIN}, s{sSP}\ns_mul_i32 s{sST+2}, s{sST+2}, 100\ns_add_u32 s{sST+2}, s{sST+2}, s98\ns_add_u32 s{sST+2}, s{sST+2}, 1")
a.label("L_fin")
if DIAG:
    a(f"s_mov_b64 exec, -1\ns_mov_b32 s{sST+15}, s98")
    a(f"s_lshl_b32 s{sT0}, s2, 3\ns_add_u32 s{sT0}, s{sT0}, s{sW}\ns_lshl_b32 s{sT0}, s{sT0}, 6\ns_add_u32 s{sT0}, s{sT0}, {DG}\nv_lshlrev_b32 v96, 2, v0")
    for k in range(16): a(f"v_writelane_b32 v97, s{sST+k}, {k}")
    a(f"s_mov_b64 exec, 0xffff\nbuffer_store_dword v97, v96, {srd(WS)}, s{sT0} offen")
if "probe" in OPT:
    a(f"""
s_cmp_lg_u32 s2, {OPT.get("pwg", 100)}
s_cbranch_scc1 L_end
s_cmp_lg_u32 s{sW}, {OPT.get("pw", 0)}
s_cbranch_scc1 L_end
s_sub_u32 s{sT0}, s{sST+OPT["probe"]}, s{sST+OPT["pb"] if "pb" in OPT else 98}
s_lshl_b32 s{sT0}, s{sT0}, {3 if "pb" in OPT else 2}
s_add_u32 s{sT0}, s{sT0}, 4000
s_min_u32 s{sT0}, s{sT0}, 20000
L_probe:
s_memrealtime s[96:97]
s_waitcnt lgkmcnt(0)
s_sub_u32 s96, s96, s98
s_cmp_lt_u32 s96, s{sT0}
s_cbranch_scc1 L_probe
""")
a.label("L_end")
a("s_endpgm")

for k in range(4):
    a(f"L_oretry{k}:\ns_sub_u32 s{sSP}, s{sSP}, 1\ns_cbranch_scc1 L_ogo{k}".replace(f"s_cbranch_scc1 L_ogo{k}", f"s_cselect_b32 s{sSP}, 0, s{sSP}\ns_cbranch_scc1 L_ogo{k}"))
    o_issue(k)
    a(f"s_waitcnt vmcnt({0 if GO else 6-2*k})\ns_branch L_ochk{k}")

for i in range(1, 9):
    if i == 8 or not OPT.get("spi", 0): a(f"L_sp{i}:\n{fl_read(i)}\ns_waitcnt lgkmcnt(0)\nv_cmp_eq_u32 vcc, 0, v{vFT}\ns_cbranch_vccnz L_sp{i}\ns_branch L_spr{i}")
a(f"""
L_chkc3:
s_sub_u32 s{sSP}, s{sSP}, 1
s_cbranch_scc1 L_chkc2
buffer_load_dwordx4 {v(vFC,4)}, v1, {srd(WS)}, s{sT0} offen sc1
s_waitcnt vmcnt(0)
s_branch L_chkc1
L_epoch:
""")
a.c("workgroup 0 advances the epoch word: every workgroup is known to have read it")
signal("0")
a("s_branch L_chkc_r")

a.label("L_fallback")
a(f"""
s_mov_b32 s{sTRY}, -1
s_setprio 0
s_waitcnt lgkmcnt(0)
s_barrier
s_mov_b64 exec, 0xffff
ds_write_b64 v130, v[128:129]
s_mov_b64 exec, -1
s_waitcnt lgkmcnt(0)
""")
kv_stage(0); kv_stage(1)
a(f"""
s_mov_b32 exec_lo, 0
v_mov_b32 v{vQ+6}, 0
v_mov_b32 v{vQ+7}, 0
v_mov_b32 v{QQ[0]+6}, 0
v_mov_b32 v{QQ[0]+7}, 0
s_mov_b32 exec_lo, -1
v_mov_b32 v{vM}, 0xff800000
v_mov_b32 v{MM[0]}, 0xff800000
s_mov_b32 s{sT3}, s{sKVB}
s_mov_b32 s{sI}, 0
L_fb1:
buffer_load_dwordx4 {v(vK,4)}, v1, {srd(WS)}, s{sT3} offen sc1
buffer_load_dwordx4 {v(vK+4,4)}, v1, {srd(WS)}, s{sT3} offen offset:1024 sc1
s_waitcnt vmcnt(0)
{mfma32(vSb, vK, vQ, "0")}
{mfma32(vSb, vK+4, vQ+4, vSb)}
{mfma32(vSa, vK, QQ[0], "0")}
{mfma32(vSa, vK+4, QQ[0]+4, vSa)}
s_add_u32 s{sT3}, s{sT3}, 4096
s_add_u32 s{sI}, s{sI}, 1
""")
maxtree(vSb, vM, True)
maxtree(vSa, MM[0], True)
a(f"""
s_cmp_lt_u32 s{sI}, 64
s_cbranch_scc1 L_fb1
s_branch L_att
L_codeend:
""")

import subprocess
body0 = pad(a.l, verbose="v" in sys.argv)
def emit(pfs, fill):
    body = [l.replace("@@PFS@@", str(pfs)) for l in body0]
    hdr = open("cdna_kernels/" + NAME + ".s.ref").read().split("; Override launch")[0]
    return hdr + f"""; One persistent launch, one workgroup per CU; phases hand data over through d_ws with tagged flags.
; @launch grid=(256,1,1) block=(512,1,1) lds=163840
.amdgcn_target "amdgcn-amd-amdhsa--gfx950"
.text
.globl {NAME}_kernel
.p2align 8
.type {NAME}_kernel,@function
""" + "\n".join(body) + f"""
    .fill {fill}, 4, 0xbf810000
.section .rodata,"a"
.p2align 6
.amdhsa_kernel {NAME}_kernel
  .amdhsa_next_free_vgpr 256
  .amdhsa_next_free_sgpr 102
  .amdhsa_accum_offset 256
  .amdhsa_group_segment_fixed_size 0
  .amdhsa_kernarg_size 96
  .amdhsa_user_sgpr_count 2
  .amdhsa_user_sgpr_kernarg_segment_ptr 1
  .amdhsa_system_sgpr_workgroup_id_x 1
.end_amdhsa_kernel
"""
def size_of(txt):
    open("_sz.s", "w").write(txt)
    subprocess.run(["clang", "-x", "assembler", "-target", "amdgcn-amd-amdhsa", "-mcpu=gfx950", "-c", "_sz.s", "-o", "_sz.o"], check=True)
    o = subprocess.run(["llvm-objdump", "-t", "_sz.o"], capture_output=True, text=True).stdout
    return [int(l.split()[0], 16) for l in o.splitlines() if l.endswith("L_codeend")][0]
sz = size_of(emit(40, 1))
pfs = OPT.get("pfs", (sz + 2047) // 2048 * 4)
assert pfs <= 64
print("code bytes", sz, "prefetch stride", pfs)
open(sys.argv[1], "w").write(emit(pfs, max(1, (pfs * 512 - sz + 3) // 4)))
```

```python
import sys, struct, math
from asmlib import *

NAME = "concat_heads__softmax_full_mha__ssm_conv_h3__prompt"
DIAG = "diag" in sys.argv
SOPT = dict(a.split("=") for a in sys.argv[2:] if "=" in a)
OPT = {k: int(x) for k, x in SOPT.items() if x.isdigit()}
OPT.setdefault("rt", 40404040)
SPIN = 1 << 16

FA, FB, FC = 0x40000, 0x60000, 0x3000
FS = OPT.get('fs', 4)
QF, KV, UU, ZZ, OF, WSEND = 0x100000, 0x300000, 0x700000, 0x900000, 0xB00000, 0xD00000
DG = 0x10000
LX, LA, LB, LP, LR = 0, 32768, 65536, 98304, 131072
HP, UOFF = 4160, 16640
MERGE, BADF = LP + 16384, LP + 3968
ONES = 0x3f803f80
def fbits(x): return struct.unpack("<I", struct.pack("<f", x))[0]
QSCALE = fbits(28 ** -0.5 * math.log2(math.e))

X_, WQ, WO, Q_, K_, V_, SK, HK, OUT, WS = 4, 8, 12, 16, 20, 24, 28, 32, 36, 40
sDP, sNON, sW = 44, 46, 47
sJ, sTT, sRT, sCG, sC, sH, sQT, sG = 48, 49, 50, 51, 52, 53, 54, 55
sED, sT0, sT1, sT2, sT3, sT4, sT5, sT6, sT7 = 56, 57, 58, 59, 60, 61, 62, 63, 64
sI, sSO, sSO2, sLW, sLX, sTRY, sSP, sCB = 65, 66, 67, 68, 69, 70, 71, 72
sDV, sM1, sM2 = 73, 74, 76
sKVB, sWM = 78, 79
sFL, sE0, sE1, sE2, sKP, sZO, sOO, sKL, sUO, sQO, sUT, sKS = 20, 21, 22, 23, 24, 26, 27, 28, 29, 30, 31, 3
sUS, sCL, sK0 = 29, 44, 45
sQS = 34
sST = 80
def srd(b): return s(b, 4)

a = Asm()
def stamp(k, st=None):
    if not DIAG: return
    if st is None and k >= 9: st = 0
    if st is not None and st != OPT.get("set", 0): return
    a(f"{'s_memtime' if OPT.get('cyc') else 's_memrealtime'} s[96:97]\ns_waitcnt lgkmcnt(0)\ns_mov_b32 s{sST+k}, s96")

npoll = [0]
def poll(vaddr, vtmp):
    n = npoll[0]; npoll[0] += 1
    a(f"""
s_mov_b32 s{sSP}, {SPIN}
L_poll{n}:
buffer_load_dword v{vtmp}, v{vaddr}, {srd(WS)}, 0 offen sc1
s_waitcnt vmcnt(0)
v_cmp_ne_u32 vcc, s{sNON}, v{vtmp}
s_cbranch_vccz L_pollok{n}
s_sub_u32 s{sSP}, s{sSP}, 1
s_cbranch_scc0 L_poll{n}
L_pollok{n}:
""")
vNON = 15
def signal(soff):
    a(f"s_mov_b64 exec, 1\nbuffer_store_dword v{vNON}, v1, {srd(WS)}, {soff} offen sc1\ns_mov_b64 exec, -1")

def mfma32(d, A, B, C): return f"v_mfma_f32_32x32x16_bf16 {v(d,16)}, {v(A,4)}, {v(B,4)}, {C if isinstance(C,str) else v(C,16)}"
def mfma16(d, A, B, C): return f"v_mfma_f32_16x16x32_bf16 {v(d,4)}, {v(A,4)}, {v(B,4)}, {C if isinstance(C,str) else v(C,4)}"

class LQ:
    def __init__(self): self.q = []
    def __call__(self, txt):
        for t in txt.strip("\n").split("\n"):
            i = Ins(t)
            if not i.mn: a(t); continue
            last = max([k for k, w in enumerate(self.q) if w & (i.rd | (i.wr if not i.ds else set()))], default=-1)
            if last >= 0:
                n = min(15, len(self.q) - 1 - last)
                a(f"s_waitcnt lgkmcnt({n})"); self.q = self.q[len(self.q) - n:]
            a(t)
            if i.ds: self.q.append(vset(i.wr))
    def drain(self, n=0):
        if len(self.q) > n:
            a(f"s_waitcnt lgkmcnt({n})"); self.q = self.q[len(self.q) - n:]

vXD, vWD, vXR, vWR, vXB = 2, 6, 9, 13, 14
ACC, RS = 16, 64
vCA, vCB, vCW, vCR, vCU, vZ, vD = 192, 193, 194, 195, 196, 197, 198
vB0, vB1, vQA, vWOA, vMG, vBW, vBR = 199, 200, 201, 202, 203, 204, 205
vPA, vUD, vPB, vZL, vGO, vGA = 206, 207, 208, 209, 210, 211
vHO, vCP = 10, 129
KR, VR, SR, KF, WF, UA, VF, UP = 140, 152, 160, 164, 212, 220, 64, 236
H0, QR = 112, 240
def srdc(lst): return "\n".join(f"s_mov_b32 s{b+2}, {n}\ns_mov_b32 s{b+3}, 0x20000" for b, n in lst)
def karg(lst): return "\n".join(f"s_load_dwordx2 s[{b}:{b+1}], s[0:1], {o}" for b, o in lst)
a.label(NAME + "_kernel")
if DIAG: a(f"{'s_memtime' if OPT.get('cyc') else 's_memrealtime'} s[98:99]")
a(f"""
s_cmp_ge_u32 s2, 256
s_cbranch_scc1 L_end
{karg(((K_, 32), (X_, 0), (V_, 40), (SK, 48), (WQ, 8), (WS, 88), (sDP, 64)))}
s_getpc_b64 s[{sT5}:{sT6}]
L_pc:
v_lshrrev_b32 v1, 6, v0
v_and_b32 v0, 63, v0
s_bfe_u32 s{sT0}, s2, 0x30003
v_lshl_add_u32 v2, s{sT0}, 6, v0
s_sub_u32 s{sT5}, s{sT5}, L_pc-{NAME}_kernel
s_subb_u32 s{sT6}, s{sT6}, 0
v_mul_u32_u24 v2, @@PFS@@, v2
v_mov_b32 v3, s{sT6}
v_add_co_u32 v2, vcc, s{sT5}, v2
v_readfirstlane_b32 s{sW}, v1
v_lshrrev_b32 v130, 4, v0
v_addc_co_u32 v3, vcc, 0, v3, vcc
global_load_dword v255, v[2:3], off
s_and_b32 s{sG}, s{sW}, 3
s_cmp_lt_u32 s{sW}, 4
s_cbranch_scc1 L_uprep
""")
IDS_U = f"""
s_and_b32 s{sT2}, s2, 7
s_lshr_b32 s{sT3}, s2, 5
s_lshl3_add_u32 s{sRT}, s{sT2}, s{sT3}
s_bfe_u32 s{sCG}, s2, 0x20003
v_and_b32 v{vCP}, 15, v0
v_min_u32 v{vCP}, 13, v{vCP}
s_lshl2_add_u32 s{sT0}, s{sCG}, s{sG}
s_mul_i32 s{sT1}, s{sT0}, 56
s_mul_i32 s{sT2}, s{sRT}, {32*896}
s_add_u32 s{sT2}, s{sT2}, s{sT1}
v_mul_u32_u24 v{vGO}, {8*896}, v130
v_lshl_add_u32 v132, v{vCP}, 2, v{vGO}
v_add_u32 v{vGA}, s{sT2}, v132
"""
IDS_G = f"""
s_and_b32 s{sT2}, s2, 1
s_bfe_u32 s{sT3}, s2, 0x30003
s_lshl3_add_u32 s{sJ}, s{sT2}, s{sT3}
s_bfe_u32 s{sT2}, s2, 0x20001
s_lshr_b32 s{sT3}, s2, 6
s_lshl2_add_u32 s{sT2}, s{sT2}, s{sT3}
s_lshl2_add_u32 s{sTT}, s{sT2}, s{sG}
s_and_b32 s{sT2}, s{sG}, 1
s_lshr_b32 s{sT3}, s{sG}, 1
s_lshl2_add_u32 s{sT2}, s{sT3}, s{sT2}
s_add_u32 s{sT2}, s{sT2}, 4
s_lshl_b32 s{sLX}, s{sT2}, 14
"""
COMMON = f"""
v_lshlrev_b32 v1, 4, v0
s_sub_u32 s{sT2}, s2, 32
s_cmp_lt_u32 s2, 224 | s_cselect_b32 s{sC}, s2, s{sT2}
s_load_dword s{sED}, s[{WS}:{WS+1}], 0
s_lshl_b32 s{sT0}, s{sC}, 2
s_load_dword s{sDV}, s[{sDP}:{sDP+1}], s{sT0}
{karg(((HK, 56), (WO, 16), (Q_, 24), (OUT, 72)))}
{srdc(((WO, 401408), (Q_, 1835008), (OUT, 3670016), (WS, WSEND)))}
v_add_u32 v{vGO}, v{vGO}, v{vGA}
v_lshlrev_b32 v133, 7, v{vCP}
v_lshl_add_u32 v{vZL}, v130, 4, v133
s_lshl2_add_u32 s{sT4}, s{sCG}, s{sG}
s_mul_i32 s{sT1}, s{sT4}, 1792
s_mul_i32 s{sT3}, s{sRT}, 28672
s_add_u32 s{sUT}, s{sT1}, s{sT3}
s_add_u32 s{sUT}, s{sUT}, {ZZ}
s_and_b32 s{sT2}, s2, 7
s_lshr_b32 s{sT3}, s2, 7
s_lshl1_add_u32 s{sQT if OPT.get("xq", 0) else sH}, s{sT2}, s{sT3}
s_bfe_u32 s{sH if OPT.get("xq", 0) else sQT}, s2, 0x40003
s_mov_b32 s{sTRY}, 0
s_lshr_b32 s{sT7}, s{sW}, 2
s_mul_i32 s{sCB}, s{sT7}, {LP}
v_and_b32 v132, 3, v0
v_sub_u32 v133, 3, v132
v_mul_u32_u24 v133, {HP}, v133
v_and_b32 v134, 12, v0
v_lshl_add_u32 v133, v134, 1, v133
v_and_b32 v134, 0x30, v0
v_sub_u32 v133, v133, v134
s_lshl_b32 s{sT0}, s{sG}, 7
s_add_u32 s{sT1}, s{sT0}, s{sCB}
s_add_u32 s{sT1}, s{sT1}, 56
v_add_u32 v{vCA}, s{sT1}, v133
v_and_b32 v139, 15, v0
v_lshl_add_u32 v133, v139, 5, v134
s_sub_u32 s{sT1}, s{sCB}, s{sT0}
s_add_u32 s{sT1}, s{sT1}, {UOFF+512-96}
v_add_u32 v{vCB}, s{sT1}, v133
v_lshrrev_b32 v131, 5, v0
v_lshlrev_b32 v133, 7, v131
v_xor_b32 v133, v133, v1
s_lshl_b32 s{sT0}, s{sG}, 13
s_add_u32 s{sT0}, s{sT0}, s{sCB}
v_add_u32 v{vCW}, s{sT0}, v133
v_bfe_u32 v135, v0, 2, 1
v_mul_u32_u24 v136, {LP}, v135
v_lshrrev_b32 v137, 3, v0
v_lshl_add_u32 v138, v137, 2, v132
v_lshrrev_b32 v133, 1, v138
v_and_b32 v134, 1, v0
v_mul_u32_u24 v134, 40, v134
v_xor_b32 v133, v133, v134
v_lshl_add_u32 v133, v133, 4, v136
s_lshl_b32 s{sT0}, s{sW}, 10
v_add_u32 v{vCR}, s{sT0}, v133
v_lshl_add_u32 v133, v138, 4, v136
s_lshl_b32 s{sT0}, s{sW}, 9
s_add_u32 s{sT0}, s{sT0}, {UOFF+512}
v_add_u32 v{vCU}, s{sT0}, v133
v_mul_u32_u24 v133, 28672, v137
v_and_b32 v134, 7, v0
v_lshl_add_u32 v{vZ}, v134, 4, v133
v_lshlrev_b32 v134, 2, v134
v_add_u32 v{vBR}, {BADF}, v134
s_mul_i32 s{sT0}, s{sW}, {8*28672}
s_lshl_b32 s{sT1}, s{sC}, 7
s_add_u32 s{sT0}, s{sT0}, s{sT1}
s_add_u32 s{sZO}, s{sT0}, {ZZ}
s_lshl_b32 s{sKVB}, s{sH}, 18
s_add_u32 s{sKVB}, s{sKVB}, {KV}
s_lshl_b32 s{sKL}, s{sW}, 12
s_add_u32 s{sKS}, s{sKVB}, s{sKL}
s_min_u32 s{sT0}, s{sW}, 6
s_lshl_b32 s{sWM}, s{sT0}, 10
s_lshl_b32 s{sT1}, s{sT0}, 6
v_add_u32 v133, s{sT1}, v0
v_mul_u32_u24 v134, 4682, v133
v_lshrrev_b32 v134, 16, v134
v_mul_u32_u24 v136, 14, v134
v_sub_u32 v133, v133, v136
v_bfe_u32 v136, v134, 1, 2
v_and_b32 v138, 1, v134
v_lshl_add_u32 v136, v138, 2, v136
v_and_or_b32 v134, v134, 24, v136
v_mul_u32_u24 v134, 896, v134
v_lshl_add_u32 v133, v133, 4, v134
s_mul_i32 s{sT1}, s{sCG}, 224
v_add_u32 v{vWOA}, s{sT1}, v133
s_and_b32 s{sT0}, s{sW}, 1
s_lshl1_add_u32 s{sT0}, s{sT7}, s{sT0}
s_lshl_b32 s{sT0}, s{sT0}, 13
s_add_u32 s{sT0}, s{sT0}, {LA}
v_add_u32 v{vB0}, s{sT0}, v1
v_add_u32 v{vB1}, 0x10000, v{vB0}
s_lshl_b32 s{sT0}, s{sG}, 11
s_add_u32 s{sT0}, s{sT0}, {LR}
v_add_u32 v{vQA}, s{sT0}, v1
s_lshl_b32 s{sT0}, s{sG}, 12
s_add_u32 s{sT0}, s{sT0}, {MERGE}
v_add_u32 v{vMG}, s{sT0}, v1
s_lshl_b32 s{sT1}, s{sW}, 2
s_add_u32 s{sT1}, s{sT1}, {BADF}
v_mov_b32 v{vBW}, s{sT1}
s_lshl_b32 s{sT3}, s{sQT}, 2
s_add_u32 s{sT3}, s{sT3}, s{sG}
s_lshl_b32 s{sT0}, s{sT3}, 4
s_add_u32 s{sT0}, s{sT0}, s{sH}
s_lshl_b32 s{sT0}, s{sT0}, 11
s_add_u32 s{sOO}, s{sT0}, {OF}
s_lshl4_add_u32 s{sT0}, s{sH}, s{sQT}
s_lshl3_add_u32 s{sT0}, s{sT0}, s{sW}
s_lshl_b32 s{sT0}, s{sT0}, 10
s_add_u32 s{sQO}, s{sT0}, {QF}
v_cmp_eq_u32 vcc, 0, v135
s_waitcnt lgkmcnt(0)
s_mul_i32 s{sNON}, s{sED}, 1664525
s_add_u32 s{sNON}, s{sNON}, 1013904223
s_lshl_b32 s{sT0}, s{sDV}, 16
s_and_b32 s{sT1}, s{sDV}, 0xffff0000
v_mov_b32 v133, s{sT0}
v_mov_b32 v134, s{sT1}
v_cndmask_b32 v{vD}, v134, v133, vcc
v_mov_b32 v{vNON}, s{sNON}
s_lshl_b32 s{sT0}, s{sT7}, 10
s_add_u32 s{sCL}, s{sOO}, s{sT0}
s_and_b32 s{sT0}, s{sW}, 6
s_add_u32 s{sT0}, s{sT0}, s{sW}
s_lshl_b32 s{sK0}, s{sT0}, 11
"""
CNT = 65520

a(IDS_G + srdc(((X_, 1835008), (WQ, 1204224))) + f"""
v_lshrrev_b32 v128, 3, v0
s_lshl_b32 s{sT0}, s{sTT}, 5
v_add_u32 v128, s{sT0}, v128
v_mul_u32_u24 v128, 896, v128
v_and_b32 v129, 7, v0
v_xor_b32 v129, v129, v130
v_lshl_add_u32 v{vXD}, v129, 4, v128
v_xor_b32 v129, 4, v129
v_lshl_add_u32 v{vXD+1}, v129, 4, v128
v_add_u32 v{vXD+1}, {7168-1024}, v{vXD+1}
v_add_u32 v{vXD+2}, {14336-2048}, v{vXD}
v_add_u32 v{vXD+3}, {14336-2048}, v{vXD+1}
""")
if OPT.get("rt"): a(f"""
s_lshr_b32 s{sT3}, s2, 6
s_mul_i32 s{sT3}, s{sT3}, {OPT.get("rc", 1)}
s_add_u32 s{sT3}, s{sT3}, s{sJ}
s_and_b32 s{sT3}, s{sT3}, 7
s_lshl_b32 s{sT3}, s{sT3}, 2
s_lshr_b32 s{sI}, {int(str(OPT["rt"]), 16):#x}, s{sT3}
s_and_b32 s{sI}, s{sI}, 7
""")
a("s_waitcnt lgkmcnt(0)")
stamp(0)
def wbase(st): return LP + 12288 * st if st < 2 else 12288 * (st - 2)
RT = OPT["rt"]
def rot(dst, st, mul):
    if not RT: return f"s_mov_b32 s{dst}, {st*mul}\n"
    return f"s_add_u32 s{dst}, s{sI}, {st}\ns_cmp_ge_u32 s{dst}, 7\ns_cselect_b32 s{sSP}, 7, 0\ns_sub_u32 s{dst}, s{dst}, s{sSP}\ns_mul_i32 s{dst}, s{dst}, {mul}\n"
def dma_x(st):
    p = [f"buffer_load_dwordx4 v{vXD+i}, {srd(X_)}, s{sSO} offen offset:{1024*i} lds" for i in range(4)]
    p[0] = f"s_add_u32 m0, s{sLX}, {4096*(st&3)}\n" + rot(sSO, st, 128) + p[0]
    return p
def dma_w(st):
    p = [f"buffer_load_dwordx4 v{vWD+q}, {srd(WQ)}, s{sSO2} offen offset:{1024*q} lds" for q in range(3)]
    p[0] = f"s_add_u32 m0, s{sLW}, {wbase(st)}\n" + rot(sSO2, st, 64*2688) + p[0]
    return p
def sprinkle(pieces, text):
    L = [x.replace(" | ", "\n") for x in text.strip().split("\n") if x.strip()]
    n = len(pieces)
    for k, p in enumerate(pieces):
        a(p)
        for x in L[len(L) * k // n: len(L) * (k + 1) // n]: a(x)
WADDR = f"""
s_mul_i32 s{sT0}, s{sJ}, 168
s_and_b32 s{sT0}, s{sT0}, -16
s_mul_i32 s{sT2}, s{sG}, {16*2688}
s_add_u32 s{sT0}, s{sT0}, s{sT2}
s_mul_i32 s{sLW}, s{sG}, 3072
"""
for q in range(3):
    WADDR += f"""
v_add_u32 v128, {64*q}, v0
v_mul_u32_u24 v129, 43691, v128
v_lshrrev_b32 v129, 19, v129
v_mul_u32_u24 v131, 12, v129
v_sub_u32 v128, v128, v131
v_min_u32 v128, 10, v128
v_mul_u32_u24 v129, 2688, v129
v_lshl_add_u32 v128, v128, 4, v129
v_add_u32 v{vWD+q}, s{sT0}, v128
""" + (f"s_sub_u32 s{sT0}, s{sT0}, 1024" if q < 2 else "")
for p in dma_x(0): a(p)
a("s_branch L_loader\nL_uprep:")
a("s_setprio 3\n" + IDS_U + srdc(((K_, 1835008), (V_, 1835008), (SK, 3584))) + f"""
v_subrev_u32 v135, 2688, v{vGA}
s_lshl_b32 s{sT1}, s{sT1}, 2
v_lshl_add_u32 v137, v{vCP}, 4, s{sT1}
s_movk_i32 s{sT5}, 3584
s_waitcnt lgkmcnt(0)
""")
stamp(0)
a(f"buffer_load_dwordx4 {v(SR,4)}, v137, {srd(SK)}, 0 offen")
for i in range(3): a(f"buffer_load_dword v{KR+i}, v135, {srd(K_)}, 0 offen offset:{896*i}")
for i in range(8): a(f"buffer_load_dword v{KR+3+i}, v{vGA}, {srd(K_)}, {'0' if i<4 else s(sT5)} offen offset:{896*(i&3)}")
for i in range(8): a(f"buffer_load_dword v{VR+i}, v{vGA}, {srd(V_)}, {'0' if i<4 else s(sT5)} offen offset:{896*(i&3)}")
a("s_setprio 0\n" + IDS_G + COMMON.replace(" | ", "\n") + f"""
s_sub_u32 s{sUS}, s{sUT}, {ZZ-UU}
s_lshl_b32 s{sT4}, s{sG}, 11
s_add_u32 s{sT4}, s{sT4}, {LP+24576}
v_and_b32 v136, 7, v{vCP}
v_lshlrev_b32 v136, 4, v136
v_xor_b32 v136, v136, v{vZL}
v_add_u32 v136, s{sT4}, v136
v_xor_b32 v138, 64, v136
v_lshlrev_b32 v137, 4, v137
v_xor_b32 v137, v137, v1
v_add_u32 v137, s{sT4}, v137
s_and_b32 s{sT6}, s{sJ}, 1
s_lshl_b32 s{sT6}, s{sT6}, 3
""")
a.c("---- QKV projection: 32 tokens x 3 head blocks per wave")
a(f"""
v_and_b32 v128, 31, v0
v_bfe_u32 v129, v0, 1, 3
v_xor_b32 v129, v129, v131
v_lshlrev_b32 v128, 7, v128
v_lshl_add_u32 v128, v129, 4, v128
v_add_u32 v{vXB}, s{sLX}, v128
v_bfe_u32 v128, v0, 2, 2
v_lshl_add_u32 v128, v131, 3, v128
v_mul_u32_u24 v128, 192, v128
v_and_b32 v129, 1, v130
v_lshl_add_u32 v128, v129, 5, v128
v_lshl_add_u32 v128, v132, 3, v128
s_add_u32 s{sT6}, s{sT6}, {LP}
v_add_u32 v{vWR}, s{sT6}, v128
v_mov_b32 v{vXR}, v{vXB}
v_mov_b32 v{vPB}, 0
v_xor_b32 v{vXR+1}, 32, v{vXB}
v_xor_b32 v{vXR+2}, 64, v{vXB}
v_xor_b32 v{vXR+3}, 0x60, v{vXB}
""")
a(f"s_lshr_b32 s{sT0}, s{sTT}, 2\ns_lshl4_add_u32 s{sT0}, s{sJ}, s{sT0}\ns_lshl_b32 s{sT0}, s{sT0}, {FS}\ns_add_u32 s{sFL}, s{sT0}, {FB}")
a(f"s_mul_i32 s{sT7}, s{sJ}, 3")
for b in range(3):
    a(f"""
s_add_u32 s{sT3}, s{sT7}, {b}
s_and_b32 s{sT0}, s{sT3}, 15
s_lshl_b32 s{sT0}, s{sT0}, 6
s_add_u32 s{sT0}, s{sT0}, s{sTT}
s_cmp_lt_u32 s{sT3}, 16
s_cselect_b32 s{sT1}, 11, 12
s_mov_b32 s{sT2}, {KV}
s_cselect_b32 s{sT2}, {QF}, s{sT2}
s_lshl_b32 s{sT0}, s{sT0}, s{sT1}
s_add_u32 s{sE0+b}, s{sT0}, s{sT2}
""")
a(f"""
s_mov_b32 s{sKP}, {ONES}
s_movk_i32 s{sKP+1}, 0x3f80
s_mov_b32 s{sQS}, {QSCALE:#x}
s_mov_b32 s{sQS+1}, {QSCALE:#x}
s_mov_b32 s{sM1}, 0xf0000000
s_mov_b32 s{sM1+1}, 0xf0000000
s_mov_b32 s{sM2}, {ONES}
s_mov_b32 s{sM2+1}, {ONES}
""")
for r in list(range(ACC, ACC + 48, 2)) + list(range(RS + 16, RS + 64, 2)): a(f"v_mov_b64 {v(r,2)}, 0")
a(f"s_mov_b32 s{sI}, 0\ns_setprio 2\ns_waitcnt vmcnt(8)")
stamp(2)
for j in range(4):
    for p in range(2):
        src = SR + 2 * p + (j >> 1)
        a(f"v_lshlrev_b32 v{WF+2*j+p}, 16, v{src}" if j % 2 == 0 else f"v_and_b32 v{WF+2*j+p}, 0xffff0000, v{src}")
for i in range(11): a(f"v_lshlrev_b32 v{KF+2*i}, 16, v{KR+i}\nv_and_b32 v{KF+2*i+1}, 0xffff0000, v{KR+i}")
for t in range(8): a(f"v_pk_mul_f32 {v(UA+2*t,2)}, {v(KF+2*t,2)}, {v(WF+6,2)}")
for j in (2, 1, 0):
    for t in range(8): a(f"v_pk_fma_f32 {v(UA+2*t,2)}, {v(KF+2*(t+3-j),2)}, {v(WF+2*j,2)}, {v(UA+2*t,2)}")
a("s_waitcnt vmcnt(0)")
for i in range(8): a(f"v_lshlrev_b32 v{VF+2*i}, 16, v{VR+i}\nv_and_b32 v{VF+2*i+1}, 0xffff0000, v{VR+i}")
for t in range(8): a(f"v_pk_mul_f32 {v(UA+2*t,2)}, {v(UA+2*t,2)}, {v(VF+2*t,2)}")
for p in range(2):
    for m in range(4): a(f"v_cvt_pk_bf16_f32 v{UP+4*p+m}, v{UA+2*(7-2*m)+p}, v{UA+2*(6-2*m)+p}")
    a(f"ds_write_b128 v{136+2*p}, {v(UP+4*p,4)}")
a(f"""
s_waitcnt lgkmcnt(0)
ds_read_b128 {v(UP,4)}, v137
ds_read_b128 {v(UP+4,4)}, v137 offset:1024
s_waitcnt lgkmcnt(1)
buffer_store_dwordx4 {v(UP,4)}, v1, {srd(WS)}, s{sUS} offen sc1
s_mov_b32 exec_hi, 0xffff
s_waitcnt lgkmcnt(0)
buffer_store_dwordx4 {v(UP+4,4)}, v1, {srd(WS)}, s{sUS} offen offset:1024 sc1
s_mov_b32 exec_hi, -1
""")
stamp(3)
a(f"""
s_cmp_eq_u32 s{sJ}, 10
s_cbranch_scc1 L_gemm1
s_cmp_gt_u32 s{sJ}, 10
s_cbranch_scc1 L_gemm2
""")
def g_reads(ks):
    r = RS + 16 * ks
    out = [f"ds_read_b128 {v(r,4)}, v{vXR+ks}"]
    for b in range(3):
        for t in range(2):
            out.append(f"ds_read_b64_tr_b16 {v(r+4+4*b+2*t,2)}, v{vWR} offset:{(16*ks+4*t)*192+56*b}")
    return out
def g_mfma(ks, isv):
    r = RS + 16 * ks
    return [mfma32(ACC+16*b, r, r+4+4*b, ACC+16*b) if isv[b] else mfma32(ACC+16*b, r+4+4*b, r, ACC+16*b) for b in range(3)]
for var, isv in enumerate(((0,0,0), (0,0,1), (1,1,1))):
    m = [g_mfma(k, isv) for k in range(4)]
    rd = g_reads(0) + g_reads(1) + g_reads(2) + g_reads(3)
    a(f"L_gemm{var}:\n{m[1][2]}\ns_barrier")
    seq = m[2] + m[3] + m[0] + m[1][:1]
    for k, x in enumerate(seq):
        if k == 6: a("s_waitcnt lgkmcnt(11)")
        if k == 9: a("s_waitcnt lgkmcnt(13)")
        a("\n".join([x] + rd[3*k:3*k+3]))
    a(f"""
s_cmp_eq_u32 s{sI}, 1
s_movk_i32 s{sT1}, 12288
s_cselect_b32 s{sT1}, {(-LP-12288) & 0xffffffff}, s{sT1}
s_add_u32 s{sI}, s{sI}, 1
s_and_b32 s{sT0}, s{sI}, 3
s_lshl_b32 s{sT0}, s{sT0}, 12
{m[1][1]}
v_add_u32 v{vWR}, s{sT1}, v{vWR}
v_xor_b32 v{vXR}, s{sT0}, v{vXB}
v_xor_b32 v{vXR+1}, 32, v{vXR}
v_xor_b32 v{vXR+2}, 64, v{vXR}
v_xor_b32 v{vXR+3}, 0x60, v{vXR}
s_cmp_lt_u32 s{sI}, 7
s_waitcnt vmcnt(0) lgkmcnt(0)
s_cbranch_scc1 L_gemm{var}
""")
    a("\n".join([m[2][0], m[1][2], m[3][0], m[2][1], m[2][2], m[3][1], m[3][2]]))
    stamp(1)
    a.c("epilogue: scale Q, pack to bf16 fragments, patch the pad slots, publish")
    for b in range(3):
        pk = 128 + 8 * b
        padp = sKP
        if var == 0:
            padp = sM1
            a(f"s_cmp_lt_u32 s{sT7}, {16-b}\ns_cselect_b64 {s(sM1,2)}, 0, {s(sKP,2)}\ns_cbranch_scc0 L_nosc{b}")
            for r in range(0, 16, 2): a(f"v_pk_mul_f32 {v(ACC+16*b+r,2)}, {v(ACC+16*b+r,2)}, {s(sQS,2)}")
            a.label(f"L_nosc{b}")
        for r in range(8): a(f"v_cvt_pk_bf16_f32 v{pk+r}, v{ACC+16*b+2*r}, v{ACC+16*b+2*r+1}")
        if isv[b]:
            a(f"s_mov_b64 exec, {s(sM1,2)}")
            for r in range(0, 8, 2): a(f"v_mov_b64 {v(pk+r,2)}, {s(sM2,2)}")
        else: a(f"s_mov_b32 exec_lo, 0\nv_mov_b64 {v(pk+6,2)}, {s(padp,2)}")
        o = 2048 * isv[b]
        a(f"""
s_mov_b64 exec, -1
buffer_store_dwordx4 {v(pk,4)}, v1, {srd(WS)}, s{sE0+b} offen offset:{o} sc1
buffer_store_dwordx4 {v(pk+4,4)}, v1, {srd(WS)}, s{sE0+b} offen offset:{o+1024} sc1
""")
    a("s_branch L_conv")

a.label("L_loader")
HELP = f"""
v_mov_b32 v133, {CNT}
v_mov_b32 v134, 0
ds_write_b32 v133, v134
v_min_u32 v133, 2, v130
v_lshl_add_u32 v133, v133, 4, s{sH}
v_mul_u32_u24 v133, 21846, v133
v_lshrrev_b32 v133, 16, v133
v_mov_b32 v134, s{sQT}
v_cmp_gt_u32 vcc, 16, v0
s_lshl_b32 s{sT0}, s{sCG}, 6
s_add_u32 s{sT0}, s{sT0}, s{sRT}
s_lshl_b32 s{sT0}, s{sT0}, {FS}
s_add_u32 s{sFL}, s{sT0}, {FA}
v_cndmask_b32 v134, v139, v134, vcc
v_lshl_add_u32 v133, v133, 4, v134
v_lshlrev_b32 v133, {FS}, v133
v_add_u32 v{vPB}, {FB}, v133
s_mul_i32 s{sT0}, s{sC}, 1171
s_lshr_b32 s{sT0}, s{sT0}, 16
s_lshl2_add_u32 s{sT0}, s{sT0}, s{sG}
s_lshl_b32 s{sT0}, s{sT0}, {4+FS}
s_add_u32 s{sT0}, s{sT0}, {FA}
v_lshl_add_u32 v{vPA}, v139, {FS}, s{sT0}
v_lshrrev_b32 v133, 2, v0
v_mul_u32_u24 v133, 28672, v133
v_lshl_add_u32 v{vUD}, v132, 4, v133
s_mul_i32 s{sT0}, s{sG}, {16*28672}
s_lshl_b32 s{sT1}, s{sC}, 7
s_add_u32 s{sT0}, s{sT0}, s{sT1}
s_add_u32 s{sUO}, s{sT0}, {UU}
v_bfe_u32 v138, v0, 1, 2
v_mul_u32_u24 v138, {HP}, v138
v_and_b32 v139, 1, v0
v_lshl_add_u32 v138, v139, 4, v138
v_add_u32 v139, {UOFF}, v1
v_cmp_gt_u32 vcc, 32, v0
v_mov_b64 v[140:141], 0
v_mov_b64 v[142:143], 0
v_cndmask_b32 v138, v138, v139, vcc
v_add_u32 v139, {LP}, v138
{srdc(((HK, 1835008),))}
s_lshl_b32 s{sT3}, s{sC}, 13
s_lshl_b32 s{sT4}, s{sG}, 10
s_add_u32 s{sT3}, s{sT3}, s{sT4}
v_add_u32 v11, s{sT3}, v1
v_add_u32 v{vHO}, s{sT4}, v1
v_subrev_u32 v12, 8, v11
v_cmp_eq_u32 vcc, 0, v{vHO}
v_mov_b32 v136, 0xffffe000
s_movk_i32 s{sT7}, 4096
v_cndmask_b32 v12, v12, v136, vcc
"""
def hprep(p):
    R = H0 + 8 * p; T = 40 + 12 * p
    a(f"v_add_u32 v{134+p}, {(LP if p else LX)+32}, v{vHO}")
    for i in range(4): a(f"v_alignbit_b32 v{T+i}, v{R+2+i}, v{R+1+i}, 16")
    for i in range(4): a(f"v_mov_b32 v{T+4+i}, v{R+1+i}")
    for i in range(4): a(f"v_alignbit_b32 v{T+8+i}, v{R+1+i}, v{R+i}, 16")
def hwrite(p):
    R = H0 + 8 * p; T = 40 + 12 * p
    a(f"ds_write_b128 v{134+p}, {v(R+2,4)}")
    for c in range(1, 4): a(f"ds_write_b128 v{134+p}, {v(T+4*(c-1),4)} offset:{HP*c}")
    a.c("zero pads: lanes 0-31 the u pad, lanes 32-39 the h pads")
    a(f"ds_write_b128 v{138+p}, {v(140,4)}")
def u_dma():
    a(f"""
s_lshl_b32 s{sT2}, s{sG}, 10
s_add_u32 m0, s{sT2}, {LX+UOFF+512}
s_add_u32 s{sT1}, s{sUO}, 64
buffer_load_dwordx4 v{vUD}, {srd(WS)}, s{sUO} offen sc1 lds
s_add_u32 m0, s{sT2}, {LP+UOFF+512}
s_nop 0
buffer_load_dwordx4 v{vUD}, {srd(WS)}, s{sT1} offen sc1 lds
""")

a(WADDR)
HL = [f"buffer_load_dwordx{2+2*k} {v(H0+8*p+2*k,2+2*k)}, v{12-k}, {srd(HK)}, {s(sT7) if p else 0} offen" for p in range(2) for k in range(2)]
rest = [(0, p) for p in dma_w(0)] + [(st, p) for st in range(1, 7) for p in dma_w(st) + dma_x(st)]
HPOS = 3 + 7 * OPT.get("hst", 4)
rest[HPOS:HPOS] = [(9, x) for x in HL]
rest.append((8, f"buffer_load_dword v144, v{vPA}, {srd(WS)}, 0 offen sc1"))
calc = [x.replace(" | ", "\n") for x in (IDS_U + COMMON + HELP).strip().split("\n") if x.strip()]
NC = min(HPOS, 17); LAGS = [int(x, 36) for x in SOPT.get("lags", "eedc97")]
issued = [0] * 4; n = 0
def bar(n):
    young = len(issued) - 1 - max(k for k, st in enumerate(issued) if st == n)
    if n == 0: stamp(1)
    a(f"s_waitcnt vmcnt({young})\ns_barrier")
    if n < 6: stamp(9 + n, 2)
    if n == 1:
        assert len(issued) >= NC + 4
        a.c("waves 0-3 waited for their u stores before this barrier")
        a(f"s_cmp_lg_u32 s{sW}, 4\ns_cbranch_scc1 L_nsa")
        signal(f"s{sFL}")
        a.label("L_nsa")
for k, (st, p) in enumerate(rest):
    assert st > 7 or "s[8:11]" in p or st - 4 < n - 1
    a(p); issued.append(st)
    if k < NC:
        for x in calc[len(calc) * k // NC: len(calc) * (k + 1) // NC]: a(x)
    if n < 6 and issued.count(n) == 7 and len(issued) - 1 - max(q for q, s_ in enumerate(issued) if s_ == n) >= LAGS[n]:
        bar(n); n += 1
while n < 6: bar(n); n += 1
EARLYH = OPT.get("hst", 4) < 5
if EARLYH: hprep(1); hwrite(1)
bar(6)
a(f"s_waitcnt vmcnt(0)\nv_cmp_ne_u32 vcc, s{sNON}, v144\ns_cbranch_vccz L_uok")
poll(vPA, 144)
a("L_uok:")
u_dma()
stamp(4)
if not EARLYH: hprep(1); hwrite(1)
hprep(0); hwrite(0)
a("s_setprio 1\ns_waitcnt vmcnt(0) lgkmcnt(0)")
def ldq():
    for i in range(8): a(f"buffer_load_dword v{QR+i}, v{vGA}, {srd(Q_)}, {'0' if i<4 else s(sT5)} offen offset:{896*(i&3)}")

a.label("L_conv")
CAC, CU, FA_, FB_ = 16, 48, 64, 128
a.c("---- long causal conv as block-Toeplitz MFMA: channel = wave>>2, lag phases split over wave&3")
a("s_barrier")
stamp(5)
def c_readA(i, r): return [f"ds_read_b64 {v(FA_+32*i+4*r+2*t,2)}, v{vCA} offset:{512*r+64*i+8*t}" for t in range(2)]
def c_readB(i, x): return [f"ds_read_b128 {v(FB_+32*i+4*x,4)}, v{vCB} offset:{512*x+64*(1-i)}"]
def c_m(i, nt, r, first=False): return mfma16(CAC+4*nt, FA_+32*i+4*r, FB_+32*i+4*(nt-r), "0" if first else CAC+4*nt)
lq = LQ()
rds = [x for i in range(2) for k in range(8) for x in c_readA(i, k) + c_readB(i, k)] + [f"ds_read_b128 {v(CU,4)}, v{vCU}"]
for x in rds[:15]: lq(x)
rds = rds[15:]
seen = set(); prev = -1
for k in range(8):
    grp = [(r, x) for r in range(k + 1) for x in range(k + 1) if max(r, x) == k and r + x <= 7]
    while grp:
        r, x = next((p for p in grp if p[0] + p[1] != prev), grp[0]); grp.remove((r, x))
        lq(c_m(0, r + x, r, first=(r + x) not in seen)); seen.add(r + x); prev = r + x
        if rds: lq(rds.pop(0))
assert not rds
stamp(9, 3)
a(f"""
s_cmp_ge_u32 s{sW}, 4
s_cbranch_scc1 L_cm
s_setprio 0
v_mov_b32 v52, {CNT}
v_mov_b32 v53, 1
s_mov_b64 exec, 1
s_waitcnt vmcnt(0)
ds_add_rtn_u32 v53, v52, v53
s_waitcnt lgkmcnt(0)
v_cmp_eq_u32 vcc, 3, v53
s_cbranch_vccz L_cnl
buffer_store_dword v{vNON}, v1, {srd(WS)}, s{sFL} offen sc1
L_cnl:
s_mov_b64 exec, -1
""")
stamp(4)
a.label("L_cm")
lq.drain()
a("s_barrier")
stamp(10, 3)
pend = []; cnt = 0; PP = ((36,), (25, 36), (14, 25, 36))[OPT.get("pp", 3) - 1]
for n0 in range(0, 8, 2):
    ms = []
    for r in range(n0 + 2):
        ms.append(c_m(1, n0 + 1, r))
        if r <= n0: ms.append(c_m(1, n0, r))
    for m_ in ms:
        a(m_); cnt += 1
        pend = [(w, n + 1) for w, n in pend]
        if pend and pend[0][1] >= 8: a(pend.pop(0)[0])
    for nt in (n0, n0 + 1): pend.append((f"ds_write_b128 v{vCW}, {v(CAC+4*nt,4)} offset:{1024*nt}", 0))
for t in range(8):
    m = (7 - t) // 2
    a(f"v_lshlrev_b32 v{56+t}, 16, v{CU+m}" if t % 2 else f"v_and_b32 v{56+t}, 0xffff0000, v{CU+m}")
a("v_and_b32 v126, 7, v0\nv_lshlrev_b32 v130, 3, v0\nv_mov_b64 v[128:129], 0")
for w, n in pend: a(w)
stamp(6)
a(f"s_cmp_lg_u32 s{sW}, 4\ns_cbranch_scc1 L_cred")
poll(vPB, 52)
a.label("L_cred")
a("s_waitcnt lgkmcnt(0)\ns_barrier")
stamp(7)
def kv_stage(n):
    a(f"s_add_u32 m0, s{sKL}, {LA+32768*n}\ns_add_u32 s{sSO}, s{sKS}, {32768*n}")
    for i in range(4): a(f"buffer_load_dwordx4 v1, {srd(WS)}, s{sSO} offen offset:{1024*i} sc1 lds")
a.c("behind that barrier every wave knows the QKV flags matched: Q and the first tiles go first")
a(f"""
s_setprio 0
s_lshl_b32 s{sT5}, s{sW}, 10
s_add_u32 m0, s{sT5}, {LR}
s_add_u32 s{sSO}, s{sKVB}, s{sK0}
buffer_load_dwordx4 v1, {srd(WS)}, s{sQO} offen sc1 lds
s_add_u32 m0, s{sK0}, {LA}
s_add_u32 s{sSO2}, s{sSO}, 4096
buffer_load_dwordx4 v1, {srd(WS)}, s{sSO} offen sc1 lds
buffer_load_dwordx4 v1, {srd(WS)}, s{sSO} offen offset:1024 sc1 lds
s_add_u32 m0, s{sK0}, {LA+4096}
""")
for q in range(4):
    for i in range(2): a(f"ds_read_b128 {v(64+8*q+4*i,4)}, v{vCR} offset:{8192*q+256*i}")
a(f"""
buffer_load_dwordx4 v1, {srd(WS)}, s{sSO2} offen sc1 lds
buffer_load_dwordx4 v1, {srd(WS)}, s{sSO2} offen offset:1024 sc1 lds
""")
stamp(11, 3)
a("s_waitcnt lgkmcnt(4)")
for t in range(8): a(f"v_fma_f32 v{56+t}, v{56+t}, v{vD}, v{64+t}")
for t in range(0, 8, 2): a(f"v_pk_add_f32 {v(56+t,2)}, {v(56+t,2)}, {v(72+t,2)}")
a("s_waitcnt lgkmcnt(0)")
a.c("wave 0 alone reads the first 128 bytes: it clears the progress bytes of the key loop behind its reads")
a(f"""
s_cmp_lg_u32 s{sW}, 0
s_cbranch_scc1 L_nclr
s_mov_b64 exec, 0xffff
ds_write_b64 v130, v[128:129]
s_mov_b64 exec, -1
L_nclr:
""")
for t in range(0, 8, 2): a(f"v_pk_add_f32 {v(80+t,2)}, {v(80+t,2)}, {v(88+t,2)}")
for t in range(0, 8, 2): a(f"v_pk_add_f32 {v(56+t,2)}, {v(56+t,2)}, {v(80+t,2)}")
for m in range(4): a(f"v_cvt_pk_bf16_f32 v{104+m}, v{56+2*m}, v{57+2*m}")
a("v_mov_b64 v[108:109], -1\nv_mov_b64 v[110:111], -1")
stamp(12, 3)
kv_stage(1)
a(f"""
v_mov_b32 v124, s{sW}
s_and_b32 s{sT0}, s{sW}, 4
v_and_or_b32 v125, v0, 3, s{sT0}
s_lshr_b32 s{sT0}, s2, 3
s_mul_i32 s{sT0}, s{sT0}, 3
s_add_u32 s{sT0}, s{sT0}, s{sG}
s_lshl_b32 s{sT0}, s{sT0}, 12
s_add_u32 s{sT0}, s{sT0}, {128*896 if OPT.get("wp", 1) else 1<<20}
v_lshl_add_u32 v131, v0, 6, s{sT0}
v_xor_b32 v180, 2048, v{vQA}
s_add_u32 s{sT0}, s{sKL}, {LR}
v_add_u32 v181, s{sT0}, v1
v_xor_b32 v182, 4096, v181
""")
stamp(13, 3)
a("s_waitcnt vmcnt(6)")
stamp(14, 3)

MODS = ("", " sc1", " nt", " sc0 sc1", " sc1 nt"); GS, OS = MODS[OPT.get("gs", 0)], MODS[OPT.get("os", 0)]
WS0 = 128
vFW, vFG, vF8, vFT = 124, 125, 126, 127
vQ, vK, vV, vP, vSa, vSb, vO, vM, vKC, vZR, vFC = 16, 24, 32, 40, 48, 64, 80, 14, 96, 248, 120
a.c("---- attention: S^T = K Q^T - m (m rides in the pad slots), P = exp2, O^T += V^T P^T (row 28 = sum)")
a(f"""
L_att:
s_cmp_lg_u32 s{sTRY}, 0
s_barrier
""")
stamp(8)
QQ, OO, MM, vVL, vQB, vW0, vR0 = (132, vQ), (148, vO), (183, vM), 164, 180, 181, 182
def kvaddr(T, f):
    o = 32768 * ((T >> 1) & 3) + 4096 * (T & 1) + 1024 * f
    return f"v{vB0 if o < 65536 else vB1} offset:{o & 65535}"
def rdK(T, f): return f"ds_read_b128 {v(vK+4*f,4)}, {kvaddr(T, f)}"
def rdV(T, f): return f"ds_read_b128 {v(vV+4*f,4)}, {kvaddr(T, 2+f)}"
def wo_piece(g): return [f"s_add_u32 m0, s{sWM}, {WS0+7168*g}", f"s_mov_b32 s{sSO2}, {28672*g}", f"buffer_load_dwordx4 v{vWOA}, {srd(WO)}, s{sSO2} offen lds"]
def pieces(n):
    out = []
    if n == 1:
        out += [[f"buffer_store_dwordx4 {v(104,4)}, v{vZ}, {srd(WS)}, s{sZO} offen sc1"], [f"buffer_store_dwordx4 {v(108,4)}, v1, {srd(WS)}, s{sCL} offen sc1"]]
    if n < 6:
        for i in range(4):
            p = [f"buffer_load_dwordx4 v1, {srd(WS)}, s{sSO} offen offset:{1024*i} sc1 lds"]
            if i == 0: p = [f"s_add_u32 m0, s{sKL}, {LA+32768*((n+2)&3)}", f"s_add_u32 s{sSO}, s{sKS}, {32768*(n+2)}"] + p
            out.append(p)
        if n >= 2: out.append(wo_piece(n - 2))
    elif n < 8: out = [wo_piece(4 + 5 * (n - 6) + i) for i in range(5)]
    return out
def maxtree(S, dst, have):
    a(f"v_max3_f32 v{dst}, v{S}, v{S+1}, v{dst}" if have else f"v_max_f32 v{dst}, v{S}, v{S+1}")
    for i in range(2, 16, 2): a(f"v_max3_f32 v{dst}, v{S+i}, v{S+i+1}, v{dst}")
p0 = pieces(0)
a(f"""
s_cbranch_scc1 L_haveq
ds_read_b128 {v(QQ[0],4)}, v{vQB}
ds_read_b128 {v(vKC,4)}, v1 offset:{LA}
ds_read_b128 {v(QQ[0]+4,4)}, v{vQB} offset:1024
ds_read_b128 {v(vKC+4,4)}, v1 offset:{LA+1024}
ds_read_b128 {v(vQ,4)}, v{vQA}
ds_read_b128 {v(vQ+4,4)}, v{vQA} offset:1024
L_haveq:
{rdK(0,0)}
{rdK(0,1)}
{rdV(0,0)}
s_cbranch_scc1 L_havem
s_waitcnt lgkmcnt(7)
{mfma32(vSb, vKC, QQ[0], "0")}
s_waitcnt lgkmcnt(5)
{mfma32(vSb, vKC+4, QQ[0]+4, vSb)}
s_waitcnt lgkmcnt(3)
{mfma32(vO, vKC, vQ, "0")}
{mfma32(vO, vKC+4, vQ+4, vO)}
L_havem:
s_waitcnt lgkmcnt(0)
{mfma32(vSa, vK, QQ[0], "0")}
""")
NM = OPT.get("nm", 2)
a("s_cbranch_scc1 L_hm")
for i in range(NM):
    for S_, m in ((vSb, MM[0]), (vO, MM[1])): a(f"v_max3_f32 v{m}, v{S_+2*i+1}, v{S_+(2*i+2)%16}, v{m if i else S_}")
a.c("lanes 0-31 split the shift of tile 0, lanes 32-63 that of tile 1, into three bf16 parts")
a(f"""
L_hm:
v_permlane32_swap_b32 v{MM[0]}, v{MM[1]}
v_max_f32 v96, v{MM[0]}, v{MM[1]}
v_xor_b32 v96, 0x80000000, v96
v_and_b32 v97, 0xffff0000, v96
v_sub_f32 v96, v96, v97
v_and_b32 v98, 0xffff0000, v96
v_sub_f32 v96, v96, v98
v_lshrrev_b32 v97, 16, v97
v_lshrrev_b32 v99, 16, v96
v_or_b32 v98, v97, v98
s_mov_b32 exec_lo, 0
v_mov_b64 {v(vQ+6,2)}, v[98:99]
s_mov_b32 exec_lo, -1
v_permlane32_swap_b32 v{QQ[0]+6}, v98
v_permlane32_swap_b32 v{QQ[0]+7}, v99
{mfma32(vSa, vK+4, QQ[0]+4, vSa)}
""")
lq = LQ()
a("s_waitcnt vmcnt(4)\ns_barrier")
stamp(9)
stamp(1, 4)
PRIO = {int(x, 16): 3 - i for i, x in enumerate(SOPT.get("pr", "07cf"))}
DSL = [int(x, 16) for x in SOPT.get("dsl", "89abc")]; DSL6 = [int(x, 16) for x in SOPT.get("dsl6", "0189ab")]; DSL7 = [int(x, 16) for x in SOPT.get("dsl7", "01234")]; S7 = OPT.get("s7", 14); DSL0 = [int(x, 16) for x in SOPT.get("dsl0", "89ab")]
todo = dict(zip(DSL0, p0)); since = 0
def sub(T): return T & 1 if T < 28 else (T >> 1) & 1
def fr(T, f): return (vVL if T in (29, 31) else vK) + 4 * f
LAST = {(27, 0): 0, (27, 1): 1, (27, 2): 2, (28, 0): 3}
RS_ = OPT.get("rs", 13); QS = OPT.get("qs", 14); CW = OPT.get("cw", 2); BP = OPT.get("bp", 120)
def fl_read(i): return f"ds_read_u8 v{vFT}, v{vF8 if i in (3, 6, 7) else vFG} offset:{8*(i-1)}"
a.c("no barriers in the loop: a wave posts a byte once its DMA of the next stage landed and it left the stage before; readers check half a stage later")
for T in range(32):
    S, Sn = (vSa, vSb) if T % 2 == 0 else (vSb, vSa)
    n = (T + 2) >> 2
    if T & 3 == 2:
        if n == 8: pass
        elif OPT.get("spi", 0): a(f"s_cbranch_vccz L_spr{n}\nL_sp{n}:\n{fl_read(n)}\ns_waitcnt lgkmcnt(0)\nv_cmp_eq_u32 vcc, 0, v{vFT}\ns_cbranch_vccnz L_sp{n}\nL_spr{n}:")
        else: a(f"s_cbranch_vccnz L_sp{n}\nL_spr{n}:")
        if DIAG and OPT.get("set") == 4:
            if n > 1: a(f"s_mov_b32 s{sST+(7+n if n < 8 else 2)}, s96")
            if n < 8: a("s_memtime s[96:97]")
        pc = pieces(n); assert not todo
        todo = dict(zip(DSL7 if n == 7 else [x + 2 for x in DSL] if n == 6 else DSL if len(pc) < 6 else DSL6, pc)); since = 0
    for k in range(4):
        sl = (4 * T + k + 8) & 15
        if 4 * T + k == BP: a(f"s_setprio 0\ns_cmp_lt_u32 s{sW}, 4\ns_cbranch_scc1 L_np\ns_setprio 3\nL_np:")
        if 4 * T + k == OPT.get("s8", 115): assert 4 * T + k >= 115; lq(f"ds_write_b8 v{vFW}, v108 offset:56")
        if sl in PRIO and 4 * T + k < BP or (T, k) == (0, 0): a(f"s_setprio {PRIO.get(sl, 2 if PRIO else 0)}")
        j = T >> 1
        if T == 31:
            if k == 0: a("s_cbranch_vccnz L_sp8\nL_spr8:")
            lq(f"ds_write_b128 v{vW0}, {v(OO[0]+4*k,4)} offset:{1024*k}")
        if k < 2:
            if T < 31: lq(mfma32(Sn, fr(T+1, k), QQ[sub(T+1)]+4*k, Sn if k else "0"))
            if T % 2 == 0 and j < 14: lq(rdK(j + 1, k))
        elif k == 2:
            if T > 0: lq(mfma32(OO[sub(T-1)], fr(T-1, 3), vP+4, OO[sub(T-1)]))
            if T % 2 == 0 and j < 15: lq(rdV(j, 1))
        else:
            lq(mfma32(OO[sub(T)], fr(T, 2), vP, "0" if T < 2 else OO[sub(T)]))
            if T % 2 and j < 14: lq(rdV(j + 1, 0))
        if (T, k) in LAST: lq(f"ds_read_b128 {v(vVL+4*LAST[T, k],4)}, {kvaddr(15, LAST[T, k])}")
        if sl == {0: 12, 6: 10, 7: -1}.get(n, 8):
            if n == 4: assert since == 0; a(f"s_cmp_ge_u32 s{sW}, 4\ns_cbranch_scc1 L_w4\ns_waitcnt vmcnt(1)\nL_w4:\ns_waitcnt vmcnt(8)")
            elif n < 7: a(f"s_waitcnt vmcnt({since})")
            if n == 6: a(f"""
s_cmp_lg_u32 s{sW}, {CW}
s_cbranch_scc1 L_chkc_r
s_mov_b32 s{sSP}, {SPIN}
L_chkc1:
v_cmp_ne_u32 vcc, s{sNON}, v{vFC}
v_cmp_ne_u32 s[{sM1}:{sM1+1}], s{sNON}, v{vFC+1}
s_or_b64 s[{sM1}:{sM1+1}], vcc, s[{sM1}:{sM1+1}]
v_cmp_ne_u32 vcc, s{sNON}, v{vFC+2}
s_or_b64 s[{sM1}:{sM1+1}], vcc, s[{sM1}:{sM1+1}]
v_cmp_ne_u32 vcc, s{sNON}, v{vFC+3}
s_or_b64 vcc, vcc, s[{sM1}:{sM1+1}]
s_cbranch_scc1 L_chkc3
L_chkc2:
s_cmp_eq_u32 s2, 0
s_cbranch_scc1 L_epoch
L_chkc_r:
""")
            lq(f"ds_write_b8 v{vFW}, v108 offset:{8*n}" if OPT.get("nox", 1) else f"s_mov_b64 exec, 1\nds_write_b8 v{vFW}, v108 offset:{8*n}\ns_mov_b64 exec, -1")
        if sl == {0: 14, 6: 14, 7: -1, 8: 2}.get(n, RS_): lq(fl_read(min(n + 1, 8)))
        ex = [f"v_exp_f32 v{S+r}, v{S+r}" for r in range(4 * k, 4 * k + 4)]
        cv = [f"v_cvt_pk_bf16_f32 v{vP+r}, v{S+2*r}, v{S+2*r+1}" for r in range(2 * k, 2 * k + 2)]
        p = todo.pop(sl, []); since += len(p) > 0
        body = []
        for e in range(4):
            body.append(ex[e])
            if e < len(p): body.append(p[e])
        a("\n".join(body))
        if sl == {7: -1, 8: 3}.get(n, 15): lq(f"v_cmp_eq_u32 vcc, 0, v{vFT}")
        a("\n".join(cv))
        if sl == QS and n == 3:
            a.c("z and the slot marks are out (all waves posted): wave 3 raises the flag; waves 4-7 fetch the gate inputs")
            a(f"s_movk_i32 s{sT5}, 3584\ns_cmp_ge_u32 s{sW}, 4\ns_cbranch_scc1 L_ldq\ns_cmp_lg_u32 s{sW}, 3\ns_cbranch_scc1 L_wpf\ns_lshl_b32 s{sT0}, s2, 2\ns_add_u32 s{sT0}, s{sT0}, {FC}")
            signal(f"s{sT0}")
            a("s_branch L_ldq_r\nL_ldq:")
            ldq()
            a.c("waves 0-2 pull a slice of the wo rows that are staged last towards the cache")
            a(f"s_branch L_ldq_r\nL_wpf:\nbuffer_load_dword v{QR}, v131, {srd(WO)}, 0 offen\nL_ldq_r:")
            assert not todo
        if sl == 8 and n == 5:
            a.c("flags of all workgroups' z and slot marks (one word each)")
            a(f"s_cmp_lg_u32 s{sW}, {CW}\ns_cbranch_scc1 L_nfc\ns_movk_i32 s{sT0}, {FC}\nbuffer_load_dwordx4 {v(vFC,4)}, v1, {srd(WS)}, s{sT0} offen sc1\nL_nfc:")
        if sl == OPT.get("zs", 5) and n == 7:
            a(f"""
s_cmp_lt_u32 s{sW}, 4
s_cbranch_scc1 L_nz
buffer_load_dwordx4 {v(vZR,4)}, v{vZL}, {srd(WS)}, s{sUT} offen sc1
buffer_load_dwordx4 {v(vZR+4,4)}, v{vZL}, {srd(WS)}, s{sUT} offen offset:64 sc1
L_nz:
""")
lq(mfma32(vO, fr(31, 3), vP+4, vO))
a("s_setprio 0")
stamp(10)
stamp(3, 4)
a(f"""
s_mov_b32 s{sT2}, 0x5f800000
v_mov_b64 v[100:101], 0
v_mov_b64 v[102:103], 0
s_and_b32 s{sT1}, s{sW}, 1
s_mul_i32 s{sT1}, s{sT1}, 768
s_add_u32 s{sT1}, s{sT1}, {WS0+448*224}
v_add_u32 v99, s{sT1}, v1
s_cmp_lt_u32 s{sW}, 4
s_cbranch_scc1 L_mA
ds_write_b128 v99, {v(100,4)}
""")
for i in range(4): a(f"ds_write_b128 v{vMG}, {v(vO+4*i,4)} offset:{1024*i}")
a(f"""
L_mA:
v_add_f32 v98, v{vO+12}, v{OO[0]+12}
v_cmp_nle_f32 vcc, v98, s{sT2}
v_mov_b32 v98, vcc_hi
ds_write_b32 v{vBW}, v98
s_waitcnt vmcnt(0) lgkmcnt(0)
s_barrier
ds_read_b32 v98, v{vBR}
s_cbranch_scc0 L_mB
""")
lq = LQ(); lq.q = [{("v", 98)}]
PB = (vSa, vSb, 164)
for i in (3, 0, 1, 2):
    for b, ad in zip(PB, (f"v{vMG} offset:{1024*i}", f"v{vR0} offset:{1024*i}", f"v{vR0} offset:{16384+1024*i}")): lq(f"ds_read_b128 {v(b+4*i,4)}, {ad}")
a(f"s_setprio 3\ns_waitcnt lgkmcnt(12)\nv_cmp_lt_u32 vcc, s{sTRY}, v98\ns_cbranch_vccnz L_fallback"); lq.q = lq.q[1:]
for i in (3, 0, 1, 2):
    for d, s_ in ((vO, PB[0]), (PB[1], PB[2]), (vO, PB[1])):
        for r in (4*i, 4*i+2): lq(f"v_pk_add_f32 {v(d+r,2)}, {v(d+r,2)}, {v(s_+r,2)}")
    if i == 3: a(f"v_mov_b32 v96, v{vO+12}\nv_mov_b32 v97, v{vO+12}")
    if i == 0: a(f"v_permlane32_swap_b32 v96, v97\nv_rcp_f32 v96, v97")
for hf in range(2):
    for r in range(8*hf, 8*hf+8, 2): a(f"v_pk_mul_f32 {v(vO+r,2)}, {v(vO+r,2)}, v[96:97] op_sel_hi:[1,0]")
    for r in range(4*hf, 4*hf+4): a(f"v_cvt_pk_bf16_f32 v{vP+r}, v{vO+2*r}, v{vO+2*r+1}")
    if hf: a(f"s_mov_b32 exec_lo, 0\nv_mov_b64 {v(vP+6,2)}, 0\ns_mov_b32 exec_lo, -1")
    a(f"buffer_store_dwordx4 {v(vP+4*hf,4)}, v1, {srd(WS)}, s{sOO} offen offset:{1024*hf} sc1")
a("s_setprio 0\ns_barrier")
stamp(11)
WFR, OB, OA = 112, 16, 48
a(f"""
v_bfe_u32 v96, v0, 2, 2
v_lshrrev_b32 v97, 5, v0
v_lshl_add_u32 v96, v96, 1, v97
v_mul_u32_u24 v96, 224, v96
v_bfe_u32 v98, v0, 4, 1
v_lshl_add_u32 v96, v98, 5, v96
v_and_b32 v98, 3, v0
v_lshl_add_u32 v96, v98, 3, v96
s_lshl_b32 s{sT2}, s{sG}, 6
v_add_u32 v2, s{sT2}, v96
v_mul_u32_u24 v99, {6*224}, v97
v_add_u32 v3, v99, v2
v_add_u32 v9, {8*28*224}, v2
v_add_u32 v10, {8*28*224}, v3
""")
for h in range(16):
    for s_ in range(2):
        for t in range(2):
            Qd = 7 * (h & 7) + 4 * s_ + 2 * t
            a(f"ds_read_b64_tr_b16 {v(WFR+8*h+4*s_+2*t,2)}, v{(2, 3, 9, 10)[(h&1) + 2*(h>>3)]} offset:{WS0+(8*(Qd>>1) + (Qd&1))*224}")
a(f"""
v_mov_b32 v4, 0
v_add_u32 v5, {LR}, v1
v_and_b32 v99, 31, v0
v_mul_u32_u24 v99, 1792, v99
v_lshl_add_u32 v8, v97, 4, v99
s_mul_i32 s{sT0}, s{sRT}, {32*1792}
s_mul_i32 s{sT1}, s{sCG}, 224
s_add_u32 s{sT0}, s{sT0}, s{sT1}
s_add_u32 s{sT0}, s{sT0}, s{sT2}
""")
if OPT.get("ep"): a(f"""
v_and_b32 v99, 31, v0
v_mul_u32_u24 v99, 80, v99
v_lshl_add_u32 v99, v97, 3, v99
s_mul_i32 s{sT1}, s{sG}, 4096
s_add_u32 s{sT1}, s{sT1}, {MERGE}
v_add_u32 v6, s{sT1}, v99
v_lshrrev_b32 v99, 2, v0
v_mul_u32_u24 v100, 80, v99
v_lshl_add_u32 v100, v98, 4, v100
v_add_u32 v7, s{sT1}, v100
v_mul_u32_u24 v100, 1792, v99
v_lshl_add_u32 v8, v98, 4, v100
s_add_u32 s{sT1}, s{sT0}, {16*1792}
s_cmp_eq_u32 s{sG}, 3
s_cselect_b32 s{sM1}, 0x33333333, -1
s_mov_b32 s{sM1+1}, s{sM1}
""")
a("s_waitcnt lgkmcnt(0)")
stamp(12)
a.c("waves 4-7 post one byte per staged head; chunk k+1 (4 heads) is checked and read while chunk k multiplies")
def ob(k): return OB if k % 2 == 0 else 64
def o_rd(k, f): return f"ds_read_b128 {v(ob(k)+4*f,4)}, v5 offset:{8192*k+1024*f}"
def o_fl(k): return f"ds_read_b32 v96, v4 offset:{64+4*k}"
def o_spin(k): return f"L_os{k}:\n{o_fl(k)}\ns_waitcnt lgkmcnt(0)\nv_cmp_ne_u32 vcc, -1, v96\ns_cbranch_vccnz L_os{k}"
a("s_barrier" if OPT.get("fb") else o_spin(0))
stamp(13)
lq = LQ()
for f in range(8): lq(o_rd(0, f))
CK = OPT.get("ck", 3)
for k in range(4):
    rd = [o_rd(k + 1, f) for f in range(8)] if k < 3 else []
    if rd: lq(o_fl(k + 1))
    for f in range(8):
        lq(mfma32(OA, WFR+32*k+4*f, ob(k)+4*f, "0" if k == 0 and f == 0 else OA))
        if rd and f == CK:
            lq(f"v_cmp_ne_u32 vcc, -1, v96\ns_cbranch_vccz L_or{k+1}")
            a(o_spin(k + 1) + f"\nL_or{k+1}:")
        if f >= CK:
            for x in rd[:2]: lq(x)
            rd = rd[2:]
if OPT.get("ep"):
    for r in range(8): a(f"v_cvt_pk_bf16_f32 v{16+r}, v{OA+2*r}, v{OA+2*r+1}")
    for m in range(4): a(f"ds_write_b64 v6, {v(16+2*m,2)} offset:{16*m}")
    a(f"""
s_waitcnt lgkmcnt(0)
ds_read_b128 {v(24,4)}, v7
ds_read_b128 {v(28,4)}, v7 offset:{16*80}
s_mov_b64 exec, s[{sM1}:{sM1+1}]
s_waitcnt lgkmcnt(1)
buffer_store_dwordx4 {v(24,4)}, v8, {srd(OUT)}, s{sT0} offen{OS}
s_waitcnt lgkmcnt(0)
buffer_store_dwordx4 {v(28,4)}, v8, {srd(OUT)}, s{sT1} offen{OS}
""")
for hf in range(0 if OPT.get("ep") else 2):
    if hf: a(f"s_cmp_eq_u32 s{sG}, 3\ns_cbranch_scc1 L_ost")
    for r in range(4*hf, 4*hf+4): a(f"v_cvt_pk_bf16_f32 v{16+r}, v{OA+2*r}, v{OA+2*r+1}")
    for d in range(2): a(f"v_permlane32_swap_b32 v{16+4*hf+d}, v{18+4*hf+d}")
    a(f"buffer_store_dwordx4 {v(16+4*hf,4)}, v8, {srd(OUT)}, s{sT0} offen offset:{32*hf}{OS}")
a("L_ost:")
stamp(14)
a("s_branch L_fin" if DIAG else "s_endpgm")

a(f"L_mB:\ns_waitcnt lgkmcnt(0)\nv_cmp_lt_u32 vcc, s{sTRY}, v98\ns_cbranch_vccnz L_fallback")
a(f"""
s_mul_i32 s{sT5}, s{sRT}, {32*896}
s_add_u32 s{sT5}, s{sT5}, 896
""")
for i in range(8): a(f"v_lshlrev_b32 v{16+2*i}, 16, v{QR+i}\nv_and_b32 v{17+2*i}, 0xffff0000, v{QR+i}")
for t in range(8):
    for p in range(2):
        src = vZR + 4 * p + t // 2
        a(f"v_lshlrev_b32 v{32+2*t+p}, 16, v{src}" if t % 2 == 0 else f"v_and_b32 v{32+2*t+p}, 0xffff0000, v{src}")
for t in range(8): a(f"v_pk_mul_f32 {v(32+2*t,2)}, {v(32+2*t,2)}, {v(16+2*t,2)}")
for t in range(8): a(f"v_cvt_pk_bf16_f32 v{56+t}, v{32+2*t}, v{33+2*t}")
def gate_st():
    for t in range(8):
        a(f"buffer_store_dword v{56+t}, v{vGO}, {srd(OUT)}, s{sT5} offen offset:{1792*(t&1)}{GS}")
        if t & 1 and t < 7: a(f"s_add_u32 s{sT5}, s{sT5}, 3584")
GO = OPT.get("go", 0)
a.c("waves 0-3 have read the partial sums and sent O"); a("s_barrier")
if OPT.get("gp"): a(f"s_setprio {OPT['gp']}")
if not OPT.get("gl") and not GO: gate_st()
if OPT.get("dl"): a(f"s_sleep {OPT['dl']}" if OPT["dl"] > 1 else "s_waitcnt vmcnt(0)")
stamp(11)
a.c("O fragments: every word differs from the all-ones mark once its producer's store has landed")
OL = 64
a(f"""
s_lshl_b32 s{sT0}, s{sRT}, 15
s_lshl_b32 s{sT1}, s{sG}, 11
s_add_u32 s{sT0}, s{sT0}, s{sT1}
s_add_u32 s{sT0}, s{sT0}, {OF}
s_add_u32 s{sT1}, s{sT0}, 8192
s_add_u32 s{sT2}, s{sT0}, 16384
s_add_u32 s{sT3}, s{sT0}, 24576
s_mov_b32 s{sSP}, {SPIN}
""")
def o_issue(k0):
    for k in range(k0, 4):
        for i in range(2): a(f"buffer_load_dwordx4 {v(OL+8*k+4*i,4)}, v1, {srd(WS)}, s{sT0+k} offen offset:{1024*i} sc1")
o_issue(0)
if GO: gate_st()
for k in range(4):
    r = OL + 8 * k
    a(f"""
s_waitcnt vmcnt({6-2*k+8*GO})
L_ochk{k}:
v_max3_u32 v96, v{r}, v{r+1}, v{r+2}
v_max3_u32 v97, v{r+3}, v{r+4}, v{r+5}
v_max3_u32 v96, v{r+6}, v{r+7}, v96
v_max_u32 v96, v96, v97
v_cmp_eq_u32 vcc, -1, v96
s_cbranch_vccnz L_oretry{k}
L_ogo{k}:
ds_write_b128 v{vQA}, {v(r,4)} offset:{8192*k}
ds_write_b128 v{vQA}, {v(r+4,4)} offset:{8192*k+1024}
""")
    a("s_waitcnt lgkmcnt(0)\ns_barrier" if k == 0 and OPT.get("fb") else f"ds_write_b8 v{vFW}, v108 offset:{60+4*k}")
    if k == 0: stamp(12)
a("s_waitcnt lgkmcnt(0)")
stamp(13)
if DIAG and OPT.get("cyc"): a(f"s_sub_u32 s{sST+2}, {SPIN}, s{sSP}\ns_mul_i32 s{sST+2}, s{sST+2}, 100\ns_add_u32 s{sST+2}, s{sST+2}, s98\ns_add_u32 s{sST+2}, s{sST+2}, 1")
if OPT.get("wb"):
    a.c("start writing the gated half of the output back while the projection finishes")
    a(f"s_bfe_u32 s{sT0}, s2, {(0, 0, 0x30003, 0x50003)[OPT['wb']]}\ns_add_u32 s{sT0}, s{sT0}, s{sG}\ns_cmp_lg_u32 s{sT0}, 0\ns_cbranch_scc1 L_fin\nbuffer_wbl2 sc1\ns_waitcnt vmcnt(0)")
a.label("L_fin")
if DIAG:
    a(f"s_mov_b64 exec, -1\ns_mov_b32 s{sST+15}, s98")
    a(f"s_lshl_b32 s{sT0}, s2, 3\ns_add_u32 s{sT0}, s{sT0}, s{sW}\ns_lshl_b32 s{sT0}, s{sT0}, 6\ns_add_u32 s{sT0}, s{sT0}, {DG}\nv_lshlrev_b32 v96, 2, v0")
    for k in range(16): a(f"v_writelane_b32 v97, s{sST+k}, {k}")
    a(f"s_mov_b64 exec, 0xffff\nbuffer_store_dword v97, v96, {srd(WS)}, s{sT0} offen")
if "probe" in OPT:
    a(f"""
s_cmp_lg_u32 s2, {OPT.get("pwg", 100)}
s_cbranch_scc1 L_end
s_cmp_lg_u32 s{sW}, {OPT.get("pw", 0)}
s_cbranch_scc1 L_end
s_sub_u32 s{sT0}, s{sST+OPT["probe"]}, s{sST+OPT["pb"] if "pb" in OPT else 98}
s_lshl_b32 s{sT0}, s{sT0}, {3 if "pb" in OPT else 2}
s_add_u32 s{sT0}, s{sT0}, 4000
s_min_u32 s{sT0}, s{sT0}, 20000
L_probe:
s_memrealtime s[96:97]
s_waitcnt lgkmcnt(0)
s_sub_u32 s96, s96, s98
s_cmp_lt_u32 s96, s{sT0}
s_cbranch_scc1 L_probe
""")
a.label("L_end")
a("s_endpgm")

for k in range(4):
    a(f"L_oretry{k}:\ns_sub_u32 s{sSP}, s{sSP}, 1\ns_cbranch_scc1 L_ogo{k}".replace(f"s_cbranch_scc1 L_ogo{k}", f"s_cselect_b32 s{sSP}, 0, s{sSP}\ns_cbranch_scc1 L_ogo{k}"))
    o_issue(k)
    a(f"s_waitcnt vmcnt({0 if GO else 6-2*k})\ns_branch L_ochk{k}")

for i in range(1, 9):
    if i == 8 or not OPT.get("spi", 0): a(f"L_sp{i}:\n{fl_read(i)}\ns_waitcnt lgkmcnt(0)\nv_cmp_eq_u32 vcc, 0, v{vFT}\ns_cbranch_vccnz L_sp{i}\ns_branch L_spr{i}")
a(f"""
L_chkc3:
s_sub_u32 s{sSP}, s{sSP}, 1
s_cbranch_scc1 L_chkc2
buffer_load_dwordx4 {v(vFC,4)}, v1, {srd(WS)}, s{sT0} offen sc1
s_waitcnt vmcnt(0)
s_branch L_chkc1
L_epoch:
""")
a.c("workgroup 0 advances the epoch word: every workgroup is known to have read it")
signal("0")
a("s_branch L_chkc_r")

a.label("L_fallback")
a(f"""
s_mov_b32 s{sTRY}, -1
s_setprio 0
s_waitcnt lgkmcnt(0)
s_barrier
s_mov_b64 exec, 0xffff
ds_write_b64 v130, v[128:129]
s_mov_b64 exec, -1
s_waitcnt lgkmcnt(0)
""")
kv_stage(0); kv_stage(1)
a(f"""
s_mov_b32 exec_lo, 0
v_mov_b32 v{vQ+6}, 0
v_mov_b32 v{vQ+7}, 0
v_mov_b32 v{QQ[0]+6}, 0
v_mov_b32 v{QQ[0]+7}, 0
s_mov_b32 exec_lo, -1
v_mov_b32 v{vM}, 0xff800000
v_mov_b32 v{MM[0]}, 0xff800000
s_mov_b32 s{sT3}, s{sKVB}
s_mov_b32 s{sI}, 0
L_fb1:
buffer_load_dwordx4 {v(vK,4)}, v1, {srd(WS)}, s{sT3} offen sc1
buffer_load_dwordx4 {v(vK+4,4)}, v1, {srd(WS)}, s{sT3} offen offset:1024 sc1
s_waitcnt vmcnt(0)
{mfma32(vSb, vK, vQ, "0")}
{mfma32(vSb, vK+4, vQ+4, vSb)}
{mfma32(vSa, vK, QQ[0], "0")}
{mfma32(vSa, vK+4, QQ[0]+4, vSa)}
s_add_u32 s{sT3}, s{sT3}, 4096
s_add_u32 s{sI}, s{sI}, 1
""")
maxtree(vSb, vM, True)
maxtree(vSa, MM[0], True)
a(f"""
s_cmp_lt_u32 s{sI}, 64
s_cbranch_scc1 L_fb1
s_branch L_att
L_codeend:
""")

import subprocess
body0 = pad(a.l, verbose="v" in sys.argv)
def emit(pfs, fill):
    body = [l.replace("@@PFS@@", str(pfs)) for l in body0]
    hdr = open("cdna_kernels/" + NAME + ".s.ref").read().split("; Override launch")[0]
    return hdr + f"""; One persistent launch, one workgroup per CU; phases hand data over through d_ws with tagged flags.
; @launch grid=(256,1,1) block=(512,1,1) lds=163840
.amdgcn_target "amdgcn-amd-amdhsa--gfx950"
.text
.globl {NAME}_kernel
.p2align 8
.type {NAME}_kernel,@function
""" + "\n".join(body) + f"""
    .fill {fill}, 4, 0xbf810000
.section .rodata,"a"
.p2align 6
.amdhsa_kernel {NAME}_kernel
  .amdhsa_next_free_vgpr 256
  .amdhsa_next_free_sgpr 102
  .amdhsa_accum_offset 256
  .amdhsa_group_segment_fixed_size 0
  .amdhsa_kernarg_size 96
  .amdhsa_user_sgpr_count 2
  .amdhsa_user_sgpr_kernarg_segment_ptr 1
  .amdhsa_system_sgpr_workgroup_id_x 1
.end_amdhsa_kernel
"""
def size_of(txt):
    open("_sz.s", "w").write(txt)
    subprocess.run(["clang", "-x", "assembler", "-target", "amdgcn-amd-amdhsa", "-mcpu=gfx950", "-c", "_sz.s", "-o", "_sz.o"], check=True)
    o = subprocess.run(["llvm-objdump", "-t", "_sz.o"], capture_output=True, text=True).stdout
    return [int(l.split()[0], 16) for l in o.splitlines() if l.endswith("L_codeend")][0]
sz = size_of(emit(40, 1))
pfs = OPT.get("pfs", (sz + 2047) // 2048 * 4)
assert pfs <= 64
print("code bytes", sz, "prefetch stride", pfs)
open(sys.argv[1], "w").write(emit(pfs, max(1, (pfs * 512 - sz + 3) // 4)))
```

```python
import sys, struct, math
from asmlib import *

NAME = "concat_heads__softmax_full_mha__ssm_conv_h3__prompt"
DIAG = "diag" in sys.argv
SOPT = dict(a.split("=") for a in sys.argv[2:] if "=" in a)
OPT = {k: int(x) for k, x in SOPT.items() if x.isdigit()}
OPT.setdefault("rt", 40404040)
SPIN = 1 << 16

FA, FB, FC = 0x40000, 0x60000, 0x3000
FS = OPT.get('fs', 4)
QF, KV, UU, ZZ, OF, WSEND = 0x100000, 0x300000, 0x700000, 0x900000, 0xB00000, 0xD00000
DG = 0x10000
LX, LA, LB, LP, LR = 0, 32768, 65536, 98304, 131072
HP, UOFF = 4160, 16640
MERGE, BADF = LP + 16384, LP + 3968
ONES = 0x3f803f80
def fbits(x): return struct.unpack("<I", struct.pack("<f", x))[0]
QSCALE = fbits(28 ** -0.5 * math.log2(math.e))

X_, WQ, WO, Q_, K_, V_, SK, HK, OUT, WS = 4, 8, 12, 16, 20, 24, 28, 32, 36, 40
sDP, sNON, sW = 44, 46, 47
sJ, sTT, sRT, sCG, sC, sH, sQT, sG = 48, 49, 50, 51, 52, 53, 54, 55
sED, sT0, sT1, sT2, sT3, sT4, sT5, sT6, sT7 = 56, 57, 58, 59, 60, 61, 62, 63, 64
sI, sSO, sSO2, sLW, sLX, sTRY, sSP, sCB = 65, 66, 67, 68, 69, 70, 71, 72
sDV, sM1, sM2 = 73, 74, 76
sKVB, sWM = 78, 79
sFL, sE0, sE1, sE2, sKP, sZO, sOO, sKL, sUO, sQO, sUT, sKS = 20, 21, 22, 23, 24, 26, 27, 28, 29, 30, 31, 3
sUS, sCL, sK0 = 29, 44, 45
sQS = 34
sST = 80
def srd(b): return s(b, 4)

a = Asm()
def stamp(k, st=None):
    if not DIAG: return
    if st is None and k >= 9: st = 0
    if st is not None and st != OPT.get("set", 0): return
    a(f"{'s_memtime' if OPT.get('cyc') else 's_memrealtime'} s[96:97]\ns_waitcnt lgkmcnt(0)\ns_mov_b32 s{sST+k}, s96")

npoll = [0]
def poll(vaddr, vtmp):
    n = npoll[0]; npoll[0] += 1
    a(f"""
s_mov_b32 s{sSP}, {SPIN}
L_poll{n}:
buffer_load_dword v{vtmp}, v{vaddr}, {srd(WS)}, 0 offen sc1
s_waitcnt vmcnt(0)
v_cmp_ne_u32 vcc, s{sNON}, v{vtmp}
s_cbranch_vccz L_pollok{n}
s_sub_u32 s{sSP}, s{sSP}, 1
s_cbranch_scc0 L_poll{n}
L_pollok{n}:
""")
vNON = 15
def signal(soff):
    a(f"s_mov_b64 exec, 1\nbuffer_store_dword v{vNON}, v1, {srd(WS)}, {soff} offen sc1\ns_mov_b64 exec, -1")

def mfma32(d, A, B, C): return f"v_mfma_f32_32x32x16_bf16 {v(d,16)}, {v(A,4)}, {v(B,4)}, {C if isinstance(C,str) else v(C,16)}"
def mfma16(d, A, B, C): return f"v_mfma_f32_16x16x32_bf16 {v(d,4)}, {v(A,4)}, {v(B,4)}, {C if isinstance(C,str) else v(C,4)}"

class LQ:
    def __init__(self): self.q = []
    def __call__(self, txt):
        for t in txt.strip("\n").split("\n"):
            i = Ins(t)
            if not i.mn: a(t); continue
            last = max([k for k, w in enumerate(self.q) if w & (i.rd | (i.wr if not i.ds else set()))], default=-1)
            if last >= 0:
                n = min(15, len(self.q) - 1 - last)
                a(f"s_waitcnt lgkmcnt({n})"); self.q = self.q[len(self.q) - n:]
            a(t)
            if i.ds: self.q.append(vset(i.wr))
    def drain(self, n=0):
        if len(self.q) > n:
            a(f"s_waitcnt lgkmcnt({n})"); self.q = self.q[len(self.q) - n:]

vXD, vWD, vXR, vWR, vXB = 2, 6, 9, 13, 14
ACC, RS = 16, 64
vCA, vCB, vCW, vCR, vCU, vZ, vD = 192, 193, 194, 195, 196, 197, 198
vB0, vB1, vQA, vWOA, vMG, vBW, vBR = 199, 200, 201, 202, 203, 204, 205
vPA, vUD, vPB, vZL, vGO, vGA = 206, 207, 208, 209, 210, 211
vHO, vCP = 10, 129
KR, VR, SR, KF, WF, UA, VF, UP = 140, 152, 160, 164, 212, 220, 64, 236
H0, QR = 112, 240
def srdc(lst): return "\n".join(f"s_mov_b32 s{b+2}, {n}\ns_mov_b32 s{b+3}, 0x20000" for b, n in lst)
def karg(lst): return "\n".join(f"s_load_dwordx2 s[{b}:{b+1}], s[0:1], {o}" for b, o in lst)
a.label(NAME + "_kernel")
if DIAG: a(f"{'s_memtime' if OPT.get('cyc') else 's_memrealtime'} s[98:99]")
a(f"""
s_cmp_ge_u32 s2, 256
s_cbranch_scc1 L_end
{karg(((K_, 32), (X_, 0), (V_, 40), (SK, 48), (WQ, 8), (WS, 88), (sDP, 64)))}
s_getpc_b64 s[{sT5}:{sT6}]
L_pc:
v_lshrrev_b32 v1, 6, v0
v_and_b32 v0, 63, v0
s_bfe_u32 s{sT0}, s2, 0x30003
v_lshl_add_u32 v2, s{sT0}, 6, v0
s_sub_u32 s{sT5}, s{sT5}, L_pc-{NAME}_kernel
s_subb_u32 s{sT6}, s{sT6}, 0
v_mul_u32_u24 v2, @@PFS@@, v2
v_mov_b32 v3, s{sT6}
v_add_co_u32 v2, vcc, s{sT5}, v2
v_readfirstlane_b32 s{sW}, v1
v_lshrrev_b32 v130, 4, v0
v_addc_co_u32 v3, vcc, 0, v3, vcc
global_load_dword v255, v[2:3], off
s_and_b32 s{sG}, s{sW}, 3
s_cmp_lt_u32 s{sW}, 4
s_cbranch_scc1 L_uprep
""")
IDS_U = f"""
s_and_b32 s{sT2}, s2, 7
s_lshr_b32 s{sT3}, s2, 5
s_lshl3_add_u32 s{sRT}, s{sT2}, s{sT3}
s_bfe_u32 s{sCG}, s2, 0x20003
v_and_b32 v{vCP}, 15, v0
v_min_u32 v{vCP}, 13, v{vCP}
s_lshl2_add_u32 s{sT0}, s{sCG}, s{sG}
s_mul_i32 s{sT1}, s{sT0}, 56
s_mul_i32 s{sT2}, s{sRT}, {32*896}
s_add_u32 s{sT2}, s{sT2}, s{sT1}
v_mul_u32_u24 v{vGO}, {8*896}, v130
v_lshl_add_u32 v132, v{vCP}, 2, v{vGO}
v_add_u32 v{vGA}, s{sT2}, v132
"""
IDS_G = f"""
s_and_b32 s{sT2}, s2, 1
s_bfe_u32 s{sT3}, s2, 0x30003
s_lshl3_add_u32 s{sJ}, s{sT2}, s{sT3}
s_bfe_u32 s{sT2}, s2, 0x20001
s_lshr_b32 s{sT3}, s2, 6
s_lshl2_add_u32 s{sT2}, s{sT2}, s{sT3}
s_lshl2_add_u32 s{sTT}, s{sT2}, s{sG}
s_and_b32 s{sT2}, s{sG}, 1
s_lshr_b32 s{sT3}, s{sG}, 1
s_lshl2_add_u32 s{sT2}, s{sT3}, s{sT2}
s_add_u32 s{sT2}, s{sT2}, 4
s_lshl_b32 s{sLX}, s{sT2}, 14
"""
COMMON = f"""
v_lshlrev_b32 v1, 4, v0
s_sub_u32 s{sT2}, s2, 32
s_cmp_lt_u32 s2, 224 | s_cselect_b32 s{sC}, s2, s{sT2}
s_load_dword s{sED}, s[{WS}:{WS+1}], 0
s_lshl_b32 s{sT0}, s{sC}, 2
s_load_dword s{sDV}, s[{sDP}:{sDP+1}], s{sT0}
{karg(((HK, 56), (WO, 16), (Q_, 24), (OUT, 72)))}
{srdc(((WO, 401408), (Q_, 1835008), (OUT, 3670016), (WS, WSEND)))}
v_add_u32 v{vGO}, v{vGO}, v{vGA}
v_lshlrev_b32 v133, 7, v{vCP}
v_lshl_add_u32 v{vZL}, v130, 4, v133
s_lshl2_add_u32 s{sT4}, s{sCG}, s{sG}
s_mul_i32 s{sT1}, s{sT4}, 1792
s_mul_i32 s{sT3}, s{sRT}, 28672
s_add_u32 s{sUT}, s{sT1}, s{sT3}
s_add_u32 s{sUT}, s{sUT}, {ZZ}
s_and_b32 s{sT2}, s2, 7
s_lshr_b32 s{sT3}, s2, 7
s_lshl1_add_u32 s{sQT if OPT.get("xq", 0) else sH}, s{sT2}, s{sT3}
s_bfe_u32 s{sH if OPT.get("xq", 0) else sQT}, s2, 0x40003
s_mov_b32 s{sTRY}, 0
s_lshr_b32 s{sT7}, s{sW}, 2
s_mul_i32 s{sCB}, s{sT7}, {LP}
v_and_b32 v132, 3, v0
v_sub_u32 v133, 3, v132
v_mul_u32_u24 v133, {HP}, v133
v_and_b32 v134, 12, v0
v_lshl_add_u32 v133, v134, 1, v133
v_and_b32 v134, 0x30, v0
v_sub_u32 v133, v133, v134
s_lshl_b32 s{sT0}, s{sG}, 7
s_add_u32 s{sT1}, s{sT0}, s{sCB}
s_add_u32 s{sT1}, s{sT1}, 56
v_add_u32 v{vCA}, s{sT1}, v133
v_and_b32 v139, 15, v0
v_lshl_add_u32 v133, v139, 5, v134
s_sub_u32 s{sT1}, s{sCB}, s{sT0}
s_add_u32 s{sT1}, s{sT1}, {UOFF+512-96}
v_add_u32 v{vCB}, s{sT1}, v133
v_lshrrev_b32 v131, 5, v0
v_lshlrev_b32 v133, 7, v131
v_xor_b32 v133, v133, v1
s_lshl_b32 s{sT0}, s{sG}, 13
s_add_u32 s{sT0}, s{sT0}, s{sCB}
v_add_u32 v{vCW}, s{sT0}, v133
v_bfe_u32 v135, v0, 2, 1
v_mul_u32_u24 v136, {LP}, v135
v_lshrrev_b32 v137, 3, v0
v_lshl_add_u32 v138, v137, 2, v132
v_lshrrev_b32 v133, 1, v138
v_and_b32 v134, 1, v0
v_mul_u32_u24 v134, 40, v134
v_xor_b32 v133, v133, v134
v_lshl_add_u32 v133, v133, 4, v136
s_lshl_b32 s{sT0}, s{sW}, 10
v_add_u32 v{vCR}, s{sT0}, v133
v_lshl_add_u32 v133, v138, 4, v136
s_lshl_b32 s{sT0}, s{sW}, 9
s_add_u32 s{sT0}, s{sT0}, {UOFF+512}
v_add_u32 v{vCU}, s{sT0}, v133
v_mul_u32_u24 v133, 28672, v137
v_and_b32 v134, 7, v0
v_lshl_add_u32 v{vZ}, v134, 4, v133
v_lshlrev_b32 v134, 2, v134
v_add_u32 v{vBR}, {BADF}, v134
s_mul_i32 s{sT0}, s{sW}, {8*28672}
s_lshl_b32 s{sT1}, s{sC}, 7
s_add_u32 s{sT0}, s{sT0}, s{sT1}
s_add_u32 s{sZO}, s{sT0}, {ZZ}
s_lshl_b32 s{sKVB}, s{sH}, 18
s_add_u32 s{sKVB}, s{sKVB}, {KV}
s_lshl_b32 s{sKL}, s{sW}, 12
s_add_u32 s{sKS}, s{sKVB}, s{sKL}
s_min_u32 s{sT0}, s{sW}, 6
s_lshl_b32 s{sWM}, s{sT0}, 10
s_lshl_b32 s{sT1}, s{sT0}, 6
v_add_u32 v133, s{sT1}, v0
v_mul_u32_u24 v134, 4682, v133
v_lshrrev_b32 v134, 16, v134
v_mul_u32_u24 v136, 14, v134
v_sub_u32 v133, v133, v136
v_bfe_u32 v136, v134, 1, 2
v_and_b32 v138, 1, v134
v_lshl_add_u32 v136, v138, 2, v136
v_and_or_b32 v134, v134, 24, v136
v_mul_u32_u24 v134, 896, v134
v_lshl_add_u32 v133, v133, 4, v134
s_mul_i32 s{sT1}, s{sCG}, 224
v_add_u32 v{vWOA}, s{sT1}, v133
s_and_b32 s{sT0}, s{sW}, 1
s_lshl1_add_u32 s{sT0}, s{sT7}, s{sT0}
s_lshl_b32 s{sT0}, s{sT0}, 13
s_add_u32 s{sT0}, s{sT0}, {LA}
v_add_u32 v{vB0}, s{sT0}, v1
v_add_u32 v{vB1}, 0x10000, v{vB0}
s_lshl_b32 s{sT0}, s{sG}, 11
s_add_u32 s{sT0}, s{sT0}, {LR}
v_add_u32 v{vQA}, s{sT0}, v1
s_lshl_b32 s{sT0}, s{sG}, 12
s_add_u32 s{sT0}, s{sT0}, {MERGE}
v_add_u32 v{vMG}, s{sT0}, v1
s_lshl_b32 s{sT1}, s{sW}, 2
s_add_u32 s{sT1}, s{sT1}, {BADF}
v_mov_b32 v{vBW}, s{sT1}
s_lshl_b32 s{sT3}, s{sQT}, 2
s_add_u32 s{sT3}, s{sT3}, s{sG}
s_lshl_b32 s{sT0}, s{sT3}, 4
s_add_u32 s{sT0}, s{sT0}, s{sH}
s_lshl_b32 s{sT0}, s{sT0}, 11
s_add_u32 s{sOO}, s{sT0}, {OF}
s_lshl4_add_u32 s{sT0}, s{sH}, s{sQT}
s_lshl3_add_u32 s{sT0}, s{sT0}, s{sW}
s_lshl_b32 s{sT0}, s{sT0}, 10
s_add_u32 s{sQO}, s{sT0}, {QF}
v_cmp_eq_u32 vcc, 0, v135
s_waitcnt lgkmcnt(0)
s_mul_i32 s{sNON}, s{sED}, 1664525
s_add_u32 s{sNON}, s{sNON}, 1013904223
s_lshl_b32 s{sT0}, s{sDV}, 16
s_and_b32 s{sT1}, s{sDV}, 0xffff0000
v_mov_b32 v133, s{sT0}
v_mov_b32 v134, s{sT1}
v_cndmask_b32 v{vD}, v134, v133, vcc
v_mov_b32 v{vNON}, s{sNON}
s_lshl_b32 s{sT0}, s{sT7}, 10
s_add_u32 s{sCL}, s{sOO}, s{sT0}
s_and_b32 s{sT0}, s{sW}, 6
s_add_u32 s{sT0}, s{sT0}, s{sW}
s_lshl_b32 s{sK0}, s{sT0}, 11
"""
CNT = 65520

a(IDS_G + srdc(((X_, 1835008), (WQ, 1204224))) + f"""
v_lshrrev_b32 v128, 3, v0
s_lshl_b32 s{sT0}, s{sTT}, 5
v_add_u32 v128, s{sT0}, v128
v_mul_u32_u24 v128, 896, v128
v_and_b32 v129, 7, v0
v_xor_b32 v129, v129, v130
v_lshl_add_u32 v{vXD}, v129, 4, v128
v_xor_b32 v129, 4, v129
v_lshl_add_u32 v{vXD+1}, v129, 4, v128
v_add_u32 v{vXD+1}, {7168-1024}, v{vXD+1}
v_add_u32 v{vXD+2}, {14336-2048}, v{vXD}
v_add_u32 v{vXD+3}, {14336-2048}, v{vXD+1}
""")
if OPT.get("rt"): a(f"""
s_lshr_b32 s{sT3}, s2, 6
s_mul_i32 s{sT3}, s{sT3}, {OPT.get("rc", 1)}
s_add_u32 s{sT3}, s{sT3}, s{sJ}
s_and_b32 s{sT3}, s{sT3}, 7
s_lshl_b32 s{sT3}, s{sT3}, 2
s_lshr_b32 s{sI}, {int(str(OPT["rt"]), 16):#x}, s{sT3}
s_and_b32 s{sI}, s{sI}, 7
""")
a("s_waitcnt lgkmcnt(0)")
stamp(0)
def wbase(st): return LP + 12288 * st if st < 2 else 12288 * (st - 2)
RT = OPT["rt"]
def rot(dst, st, mul):
    if not RT: return f"s_mov_b32 s{dst}, {st*mul}\n"
    return f"s_add_u32 s{dst}, s{sI}, {st}\ns_cmp_ge_u32 s{dst}, 7\ns_cselect_b32 s{sSP}, 7, 0\ns_sub_u32 s{dst}, s{dst}, s{sSP}\ns_mul_i32 s{dst}, s{dst}, {mul}\n"
def dma_x(st):
    p = [f"buffer_load_dwordx4 v{vXD+i}, {srd(X_)}, s{sSO} offen offset:{1024*i} lds" for i in range(4)]
    p[0] = f"s_add_u32 m0, s{sLX}, {4096*(st&3)}\n" + rot(sSO, st, 128) + p[0]
    return p
def dma_w(st):
    p = [f"buffer_load_dwordx4 v{vWD+q}, {srd(WQ)}, s{sSO2} offen offset:{1024*q} lds" for q in range(3)]
    p[0] = f"s_add_u32 m0, s{sLW}, {wbase(st)}\n" + rot(sSO2, st, 64*2688) + p[0]
    return p
def sprinkle(pieces, text):
    L = [x.replace(" | ", "\n") for x in text.strip().split("\n") if x.strip()]
    n = len(pieces)
    for k, p in enumerate(pieces):
        a(p)
        for x in L[len(L) * k // n: len(L) * (k + 1) // n]: a(x)
WADDR = f"""
s_mul_i32 s{sT0}, s{sJ}, 168
s_and_b32 s{sT0}, s{sT0}, -16
s_mul_i32 s{sT2}, s{sG}, {16*2688}
s_add_u32 s{sT0}, s{sT0}, s{sT2}
s_mul_i32 s{sLW}, s{sG}, 3072
"""
for q in range(3):
    WADDR += f"""
v_add_u32 v128, {64*q}, v0
v_mul_u32_u24 v129, 43691, v128
v_lshrrev_b32 v129, 19, v129
v_mul_u32_u24 v131, 12, v129
v_sub_u32 v128, v128, v131
v_min_u32 v128, 10, v128
v_mul_u32_u24 v129, 2688, v129
v_lshl_add_u32 v128, v128, 4, v129
v_add_u32 v{vWD+q}, s{sT0}, v128
""" + (f"s_sub_u32 s{sT0}, s{sT0}, 1024" if q < 2 else "")
for p in dma_x(0): a(p)
a("s_branch L_loader\nL_uprep:")
a("s_setprio 3\n" + IDS_U + srdc(((K_, 1835008), (V_, 1835008), (SK, 3584))) + f"""
v_subrev_u32 v135, 2688, v{vGA}
s_lshl_b32 s{sT1}, s{sT1}, 2
v_lshl_add_u32 v137, v{vCP}, 4, s{sT1}
s_movk_i32 s{sT5}, 3584
s_waitcnt lgkmcnt(0)
""")
stamp(0)
a(f"buffer_load_dwordx4 {v(SR,4)}, v137, {srd(SK)}, 0 offen")
for i in range(3): a(f"buffer_load_dword v{KR+i}, v135, {srd(K_)}, 0 offen offset:{896*i}")
for i in range(8): a(f"buffer_load_dword v{KR+3+i}, v{vGA}, {srd(K_)}, {'0' if i<4 else s(sT5)} offen offset:{896*(i&3)}")
for i in range(8): a(f"buffer_load_dword v{VR+i}, v{vGA}, {srd(V_)}, {'0' if i<4 else s(sT5)} offen offset:{896*(i&3)}")
a("s_setprio 0\n" + IDS_G + COMMON.replace(" | ", "\n") + f"""
s_sub_u32 s{sUS}, s{sUT}, {ZZ-UU}
s_lshl_b32 s{sT4}, s{sG}, 11
s_add_u32 s{sT4}, s{sT4}, {LP+24576}
v_and_b32 v136, 7, v{vCP}
v_lshlrev_b32 v136, 4, v136
v_xor_b32 v136, v136, v{vZL}
v_add_u32 v136, s{sT4}, v136
v_xor_b32 v138, 64, v136
v_lshlrev_b32 v137, 4, v137
v_xor_b32 v137, v137, v1
v_add_u32 v137, s{sT4}, v137
s_and_b32 s{sT6}, s{sJ}, 1
s_lshl_b32 s{sT6}, s{sT6}, 3
""")
a.c("---- QKV projection: 32 tokens x 3 head blocks per wave")
a(f"""
v_and_b32 v128, 31, v0
v_bfe_u32 v129, v0, 1, 3
v_xor_b32 v129, v129, v131
v_lshlrev_b32 v128, 7, v128
v_lshl_add_u32 v128, v129, 4, v128
v_add_u32 v{vXB}, s{sLX}, v128
v_bfe_u32 v128, v0, 2, 2
v_lshl_add_u32 v128, v131, 3, v128
v_mul_u32_u24 v128, 192, v128
v_and_b32 v129, 1, v130
v_lshl_add_u32 v128, v129, 5, v128
v_lshl_add_u32 v128, v132, 3, v128
s_add_u32 s{sT6}, s{sT6}, {LP}
v_add_u32 v{vWR}, s{sT6}, v128
v_mov_b32 v{vXR}, v{vXB}
v_mov_b32 v{vPB}, 0
v_xor_b32 v{vXR+1}, 32, v{vXB}
v_xor_b32 v{vXR+2}, 64, v{vXB}
v_xor_b32 v{vXR+3}, 0x60, v{vXB}
""")
a(f"s_lshr_b32 s{sT0}, s{sTT}, 2\ns_lshl4_add_u32 s{sT0}, s{sJ}, s{sT0}\ns_lshl_b32 s{sT0}, s{sT0}, {FS}\ns_add_u32 s{sFL}, s{sT0}, {FB}")
a(f"s_mul_i32 s{sT7}, s{sJ}, 3")
for b in range(3):
    a(f"""
s_add_u32 s{sT3}, s{sT7}, {b}
s_and_b32 s{sT0}, s{sT3}, 15
s_lshl_b32 s{sT0}, s{sT0}, 6
s_add_u32 s{sT0}, s{sT0}, s{sTT}
s_cmp_lt_u32 s{sT3}, 16
s_cselect_b32 s{sT1}, 11, 12
s_mov_b32 s{sT2}, {KV}
s_cselect_b32 s{sT2}, {QF}, s{sT2}
s_lshl_b32 s{sT0}, s{sT0}, s{sT1}
s_add_u32 s{sE0+b}, s{sT0}, s{sT2}
""")
a(f"""
s_mov_b32 s{sKP}, {ONES}
s_movk_i32 s{sKP+1}, 0x3f80
s_mov_b32 s{sQS}, {QSCALE:#x}
s_mov_b32 s{sQS+1}, {QSCALE:#x}
s_mov_b32 s{sM1}, 0xf0000000
s_mov_b32 s{sM1+1}, 0xf0000000
s_mov_b32 s{sM2}, {ONES}
s_mov_b32 s{sM2+1}, {ONES}
""")
for r in list(range(ACC, ACC + 48, 2)) + list(range(RS + 16, RS + 64, 2)): a(f"v_mov_b64 {v(r,2)}, 0")
a(f"s_mov_b32 s{sI}, 0\ns_setprio 2\ns_waitcnt vmcnt(8)")
stamp(2)
for j in range(4):
    for p in range(2):
        src = SR + 2 * p + (j >> 1)
        a(f"v_lshlrev_b32 v{WF+2*j+p}, 16, v{src}" if j % 2 == 0 else f"v_and_b32 v{WF+2*j+p}, 0xffff0000, v{src}")
for i in range(11): a(f"v_lshlrev_b32 v{KF+2*i}, 16, v{KR+i}\nv_and_b32 v{KF+2*i+1}, 0xffff0000, v{KR+i}")
for t in range(8): a(f"v_pk_mul_f32 {v(UA+2*t,2)}, {v(KF+2*t,2)}, {v(WF+6,2)}")
for j in (2, 1, 0):
    for t in range(8): a(f"v_pk_fma_f32 {v(UA+2*t,2)}, {v(KF+2*(t+3-j),2)}, {v(WF+2*j,2)}, {v(UA+2*t,2)}")
a("s_waitcnt vmcnt(0)")
for i in range(8): a(f"v_lshlrev_b32 v{VF+2*i}, 16, v{VR+i}\nv_and_b32 v{VF+2*i+1}, 0xffff0000, v{VR+i}")
for t in range(8): a(f"v_pk_mul_f32 {v(UA+2*t,2)}, {v(UA+2*t,2)}, {v(VF+2*t,2)}")
for p in range(2):
    for m in range(4): a(f"v_cvt_pk_bf16_f32 v{UP+4*p+m}, v{UA+2*(7-2*m)+p}, v{UA+2*(6-2*m)+p}")
    a(f"ds_write_b128 v{136+2*p}, {v(UP+4*p,4)}")
a(f"""
s_waitcnt lgkmcnt(0)
ds_read_b128 {v(UP,4)}, v137
ds_read_b128 {v(UP+4,4)}, v137 offset:1024
s_waitcnt lgkmcnt(1)
buffer_store_dwordx4 {v(UP,4)}, v1, {srd(WS)}, s{sUS} offen sc1
s_mov_b32 exec_hi, 0xffff
s_waitcnt lgkmcnt(0)
buffer_store_dwordx4 {v(UP+4,4)}, v1, {srd(WS)}, s{sUS} offen offset:1024 sc1
s_mov_b32 exec_hi, -1
""")
stamp(3)
a(f"""
s_cmp_eq_u32 s{sJ}, 10
s_cbranch_scc1 L_gemm1
s_cmp_gt_u32 s{sJ}, 10
s_cbranch_scc1 L_gemm2
""")
def g_reads(ks):
    r = RS + 16 * ks
    out = [f"ds_read_b128 {v(r,4)}, v{vXR+ks}"]
    for b in range(3):
        for t in range(2):
            out.append(f"ds_read_b64_tr_b16 {v(r+4+4*b+2*t,2)}, v{vWR} offset:{(16*ks+4*t)*192+56*b}")
    return out
def g_mfma(ks, isv):
    r = RS + 16 * ks
    return [mfma32(ACC+16*b, r, r+4+4*b, ACC+16*b) if isv[b] else mfma32(ACC+16*b, r+4+4*b, r, ACC+16*b) for b in range(3)]
for var, isv in enumerate(((0,0,0), (0,0,1), (1,1,1))):
    m = [g_mfma(k, isv) for k in range(4)]
    rd = g_reads(0) + g_reads(1) + g_reads(2) + g_reads(3)
    a(f"L_gemm{var}:\n{m[1][2]}\ns_barrier")
    seq = m[2] + m[3] + m[0] + m[1][:1]
    for k, x in enumerate(seq):
        if k == 6: a("s_waitcnt lgkmcnt(11)")
        if k == 9: a("s_waitcnt lgkmcnt(13)")
        a("\n".join([x] + rd[3*k:3*k+3]))
    a(f"""
s_cmp_eq_u32 s{sI}, 1
s_movk_i32 s{sT1}, 12288
s_cselect_b32 s{sT1}, {(-LP-12288) & 0xffffffff}, s{sT1}
s_add_u32 s{sI}, s{sI}, 1
s_and_b32 s{sT0}, s{sI}, 3
s_lshl_b32 s{sT0}, s{sT0}, 12
{m[1][1]}
v_add_u32 v{vWR}, s{sT1}, v{vWR}
v_xor_b32 v{vXR}, s{sT0}, v{vXB}
v_xor_b32 v{vXR+1}, 32, v{vXR}
v_xor_b32 v{vXR+2}, 64, v{vXR}
v_xor_b32 v{vXR+3}, 0x60, v{vXR}
s_cmp_lt_u32 s{sI}, 7
s_waitcnt vmcnt(0) lgkmcnt(0)
s_cbranch_scc1 L_gemm{var}
""")
    a("\n".join([m[2][0], m[1][2], m[3][0], m[2][1], m[2][2], m[3][1], m[3][2]]))
    stamp(1)
    a.c("epilogue: scale Q, pack to bf16 fragments, patch the pad slots, publish")
    for b in range(3):
        pk = 128 + 8 * b
        padp = sKP
        if var == 0:
            padp = sM1
            a(f"s_cmp_lt_u32 s{sT7}, {16-b}\ns_cselect_b64 {s(sM1,2)}, 0, {s(sKP,2)}\ns_cbranch_scc0 L_nosc{b}")
            for r in range(0, 16, 2): a(f"v_pk_mul_f32 {v(ACC+16*b+r,2)}, {v(ACC+16*b+r,2)}, {s(sQS,2)}")
            a.label(f"L_nosc{b}")
        for r in range(8): a(f"v_cvt_pk_bf16_f32 v{pk+r}, v{ACC+16*b+2*r}, v{ACC+16*b+2*r+1}")
        if isv[b]:
            a(f"s_mov_b64 exec, {s(sM1,2)}")
            for r in range(0, 8, 2): a(f"v_mov_b64 {v(pk+r,2)}, {s(sM2,2)}")
        else: a(f"s_mov_b32 exec_lo, 0\nv_mov_b64 {v(pk+6,2)}, {s(padp,2)}")
        o = 2048 * isv[b]
        a(f"""
s_mov_b64 exec, -1
buffer_store_dwordx4 {v(pk,4)}, v1, {srd(WS)}, s{sE0+b} offen offset:{o} sc1
buffer_store_dwordx4 {v(pk+4,4)}, v1, {srd(WS)}, s{sE0+b} offen offset:{o+1024} sc1
""")
    a("s_branch L_conv")

a.label("L_loader")
HELP = f"""
v_mov_b32 v133, {CNT}
v_mov_b32 v134, 0
ds_write_b32 v133, v134
v_min_u32 v133, 2, v130
v_lshl_add_u32 v133, v133, 4, s{sH}
v_mul_u32_u24 v133, 21846, v133
v_lshrrev_b32 v133, 16, v133
v_mov_b32 v134, s{sQT}
v_cmp_gt_u32 vcc, 16, v0
s_lshl_b32 s{sT0}, s{sCG}, 6
s_add_u32 s{sT0}, s{sT0}, s{sRT}
s_lshl_b32 s{sT0}, s{sT0}, {FS}
s_add_u32 s{sFL}, s{sT0}, {FA}
v_cndmask_b32 v134, v139, v134, vcc
v_lshl_add_u32 v133, v133, 4, v134
v_lshlrev_b32 v133, {FS}, v133
v_add_u32 v{vPB}, {FB}, v133
s_mul_i32 s{sT0}, s{sC}, 1171
s_lshr_b32 s{sT0}, s{sT0}, 16
s_lshl2_add_u32 s{sT0}, s{sT0}, s{sG}
s_lshl_b32 s{sT0}, s{sT0}, {4+FS}
s_add_u32 s{sT0}, s{sT0}, {FA}
v_lshl_add_u32 v{vPA}, v139, {FS}, s{sT0}
v_lshrrev_b32 v133, 2, v0
v_mul_u32_u24 v133, 28672, v133
v_lshl_add_u32 v{vUD}, v132, 4, v133
s_mul_i32 s{sT0}, s{sG}, {16*28672}
s_lshl_b32 s{sT1}, s{sC}, 7
s_add_u32 s{sT0}, s{sT0}, s{sT1}
s_add_u32 s{sUO}, s{sT0}, {UU}
v_bfe_u32 v138, v0, 1, 2
v_mul_u32_u24 v138, {HP}, v138
v_and_b32 v139, 1, v0
v_lshl_add_u32 v138, v139, 4, v138
v_add_u32 v139, {UOFF}, v1
v_cmp_gt_u32 vcc, 32, v0
v_mov_b64 v[140:141], 0
v_mov_b64 v[142:143], 0
v_cndmask_b32 v138, v138, v139, vcc
v_add_u32 v139, {LP}, v138
{srdc(((HK, 1835008),))}
s_lshl_b32 s{sT3}, s{sC}, 13
s_lshl_b32 s{sT4}, s{sG}, 10
s_add_u32 s{sT3}, s{sT3}, s{sT4}
v_add_u32 v11, s{sT3}, v1
v_add_u32 v{vHO}, s{sT4}, v1
v_subrev_u32 v12, 8, v11
v_cmp_eq_u32 vcc, 0, v{vHO}
v_mov_b32 v136, 0xffffe000
s_movk_i32 s{sT7}, 4096
v_cndmask_b32 v12, v12, v136, vcc
"""
def hprep(p):
    R = H0 + 8 * p; T = 40 + 12 * p
    a(f"v_add_u32 v{134+p}, {(LP if p else LX)+32}, v{vHO}")
    for i in range(4): a(f"v_alignbit_b32 v{T+i}, v{R+2+i}, v{R+1+i}, 16")
    for i in range(4): a(f"v_mov_b32 v{T+4+i}, v{R+1+i}")
    for i in range(4): a(f"v_alignbit_b32 v{T+8+i}, v{R+1+i}, v{R+i}, 16")
def hwrite(p):
    R = H0 + 8 * p; T = 40 + 12 * p
    a(f"ds_write_b128 v{134+p}, {v(R+2,4)}")
    for c in range(1, 4): a(f"ds_write_b128 v{134+p}, {v(T+4*(c-1),4)} offset:{HP*c}")
    a.c("zero pads: lanes 0-31 the u pad, lanes 32-39 the h pads")
    a(f"ds_write_b128 v{138+p}, {v(140,4)}")
def u_dma():
    a(f"""
s_lshl_b32 s{sT2}, s{sG}, 10
s_add_u32 m0, s{sT2}, {LX+UOFF+512}
s_add_u32 s{sT1}, s{sUO}, 64
buffer_load_dwordx4 v{vUD}, {srd(WS)}, s{sUO} offen sc1 lds
s_add_u32 m0, s{sT2}, {LP+UOFF+512}
s_nop 0
buffer_load_dwordx4 v{vUD}, {srd(WS)}, s{sT1} offen sc1 lds
""")

a(WADDR)
HL = [f"buffer_load_dwordx{2+2*k} {v(H0+8*p+2*k,2+2*k)}, v{12-k}, {srd(HK)}, {s(sT7) if p else 0} offen" for p in range(2) for k in range(2)]
rest = [(0, p) for p in dma_w(0)] + [(st, p) for st in range(1, 7) for p in dma_w(st) + dma_x(st)]
HPOS = 3 + 7 * OPT.get("hst", 4)
rest[HPOS:HPOS] = [(9, x) for x in HL]
rest.append((8, f"buffer_load_dword v144, v{vPA}, {srd(WS)}, 0 offen sc1"))
calc = [x.replace(" | ", "\n") for x in (IDS_U + COMMON + HELP).strip().split("\n") if x.strip()]
NC = min(HPOS, 17); LAGS = [int(x, 36) for x in SOPT.get("lags", "eedc97")]
issued = [0] * 4; n = 0
def bar(n):
    young = len(issued) - 1 - max(k for k, st in enumerate(issued) if st == n)
    if n == 0: stamp(1)
    a(f"s_waitcnt vmcnt({young})\ns_barrier")
    if n < 6: stamp(9 + n, 2)
    if n == 1:
        assert len(issued) >= NC + 4
        a.c("waves 0-3 waited for their u stores before this barrier")
        a(f"s_cmp_lg_u32 s{sW}, 4\ns_cbranch_scc1 L_nsa")
        signal(f"s{sFL}")
        a.label("L_nsa")
for k, (st, p) in enumerate(rest):
    assert st > 7 or "s[8:11]" in p or st - 4 < n - 1
    a(p); issued.append(st)
    if k < NC:
        for x in calc[len(calc) * k // NC: len(calc) * (k + 1) // NC]: a(x)
    if n < 6 and issued.count(n) == 7 and len(issued) - 1 - max(q for q, s_ in enumerate(issued) if s_ == n) >= LAGS[n]:
        bar(n); n += 1
while n < 6: bar(n); n += 1
EARLYH = OPT.get("hst", 4) < 5
if EARLYH: hprep(1); hwrite(1)
bar(6)
a(f"s_waitcnt vmcnt(0)\nv_cmp_ne_u32 vcc, s{sNON}, v144\ns_cbranch_vccz L_uok")
poll(vPA, 144)
a("L_uok:")
u_dma()
stamp(4)
if not EARLYH: hprep(1); hwrite(1)
hprep(0); hwrite(0)
a("s_setprio 1\ns_waitcnt vmcnt(0) lgkmcnt(0)")
def ldq():
    for i in range(8): a(f"buffer_load_dword v{QR+i}, v{vGA}, {srd(Q_)}, {'0' if i<4 else s(sT5)} offen offset:{896*(i&3)}")

a.label("L_conv")
CAC, CU, FA_, FB_ = 16, 48, 64, 128
a.c("---- long causal conv as block-Toeplitz MFMA: channel = wave>>2, lag phases split over wave&3")
a("s_barrier")
stamp(5)
def c_readA(i, r): return [f"ds_read_b64 {v(FA_+32*i+4*r+2*t,2)}, v{vCA} offset:{512*r+64*i+8*t}" for t in range(2)]
def c_readB(i, x): return [f"ds_read_b128 {v(FB_+32*i+4*x,4)}, v{vCB} offset:{512*x+64*(1-i)}"]
def c_m(i, nt, r, first=False): return mfma16(CAC+4*nt, FA_+32*i+4*r, FB_+32*i+4*(nt-r), "0" if first else CAC+4*nt)
lq = LQ()
rds = [x for i in range(2) for k in range(8) for x in c_readA(i, k) + c_readB(i, k)] + [f"ds_read_b128 {v(CU,4)}, v{vCU}"]
for x in rds[:15]: lq(x)
rds = rds[15:]
seen = set(); prev = -1
for k in range(8):
    grp = [(r, x) for r in range(k + 1) for x in range(k + 1) if max(r, x) == k and r + x <= 7]
    while grp:
        r, x = next((p for p in grp if p[0] + p[1] != prev), grp[0]); grp.remove((r, x))
        lq(c_m(0, r + x, r, first=(r + x) not in seen)); seen.add(r + x); prev = r + x
        if rds: lq(rds.pop(0))
assert not rds
stamp(9, 3)
a(f"""
s_cmp_ge_u32 s{sW}, 4
s_cbranch_scc1 L_cm
s_setprio 0
v_mov_b32 v52, {CNT}
v_mov_b32 v53, 1
s_mov_b64 exec, 1
s_waitcnt vmcnt(0)
ds_add_rtn_u32 v53, v52, v53
s_waitcnt lgkmcnt(0)
v_cmp_eq_u32 vcc, 3, v53
s_cbranch_vccz L_cnl
buffer_store_dword v{vNON}, v1, {srd(WS)}, s{sFL} offen sc1
L_cnl:
s_mov_b64 exec, -1
""")
stamp(4)
a.label("L_cm")
lq.drain()
a("s_barrier")
stamp(10, 3)
pend = []; cnt = 0; PP = ((36,), (25, 36), (14, 25, 36))[OPT.get("pp", 3) - 1]
for n0 in range(0, 8, 2):
    ms = []
    for r in range(n0 + 2):
        ms.append(c_m(1, n0 + 1, r))
        if r <= n0: ms.append(c_m(1, n0, r))
    for m_ in ms:
        a(m_); cnt += 1
        pend = [(w, n + 1) for w, n in pend]
        if pend and pend[0][1] >= 8: a(pend.pop(0)[0])
    for nt in (n0, n0 + 1): pend.append((f"ds_write_b128 v{vCW}, {v(CAC+4*nt,4)} offset:{1024*nt}", 0))
for t in range(8):
    m = (7 - t) // 2
    a(f"v_lshlrev_b32 v{56+t}, 16, v{CU+m}" if t % 2 else f"v_and_b32 v{56+t}, 0xffff0000, v{CU+m}")
a("v_and_b32 v126, 7, v0\nv_lshlrev_b32 v130, 3, v0\nv_mov_b64 v[128:129], 0")
for w, n in pend: a(w)
stamp(6)
a(f"s_cmp_lg_u32 s{sW}, 4\ns_cbranch_scc1 L_cred")
poll(vPB, 52)
a.label("L_cred")
a("s_waitcnt lgkmcnt(0)\ns_barrier")
stamp(7)
def kv_stage(n):
    a(f"s_add_u32 m0, s{sKL}, {LA+32768*n}\ns_add_u32 s{sSO}, s{sKS}, {32768*n}")
    for i in range(4): a(f"buffer_load_dwordx4 v1, {srd(WS)}, s{sSO} offen offset:{1024*i} sc1 lds")
a.c("behind that barrier every wave knows the QKV flags matched: Q and the first tiles go first")
a(f"""
s_setprio 0
s_lshl_b32 s{sT5}, s{sW}, 10
s_add_u32 m0, s{sT5}, {LR}
s_add_u32 s{sSO}, s{sKVB}, s{sK0}
buffer_load_dwordx4 v1, {srd(WS)}, s{sQO} offen sc1 lds
s_add_u32 m0, s{sK0}, {LA}
s_add_u32 s{sSO2}, s{sSO}, 4096
buffer_load_dwordx4 v1, {srd(WS)}, s{sSO} offen sc1 lds
buffer_load_dwordx4 v1, {srd(WS)}, s{sSO} offen offset:1024 sc1 lds
s_add_u32 m0, s{sK0}, {LA+4096}
""")
for q in range(4):
    for i in range(2): a(f"ds_read_b128 {v(64+8*q+4*i,4)}, v{vCR} offset:{8192*q+256*i}")
a(f"""
buffer_load_dwordx4 v1, {srd(WS)}, s{sSO2} offen sc1 lds
buffer_load_dwordx4 v1, {srd(WS)}, s{sSO2} offen offset:1024 sc1 lds
""")
stamp(11, 3)
a("s_waitcnt lgkmcnt(4)")
for t in range(8): a(f"v_fma_f32 v{56+t}, v{56+t}, v{vD}, v{64+t}")
for t in range(0, 8, 2): a(f"v_pk_add_f32 {v(56+t,2)}, {v(56+t,2)}, {v(72+t,2)}")
a("s_waitcnt lgkmcnt(0)")
a.c("wave 0 alone reads the first 128 bytes: it clears the progress bytes of the key loop behind its reads")
a(f"""
s_cmp_lg_u32 s{sW}, 0
s_cbranch_scc1 L_nclr
s_mov_b64 exec, 0xffff
ds_write_b64 v130, v[128:129]
s_mov_b64 exec, -1
L_nclr:
""")
for t in range(0, 8, 2): a(f"v_pk_add_f32 {v(80+t,2)}, {v(80+t,2)}, {v(88+t,2)}")
for t in range(0, 8, 2): a(f"v_pk_add_f32 {v(56+t,2)}, {v(56+t,2)}, {v(80+t,2)}")
for m in range(4): a(f"v_cvt_pk_bf16_f32 v{104+m}, v{56+2*m}, v{57+2*m}")
a("v_mov_b64 v[108:109], -1\nv_mov_b64 v[110:111], -1")
stamp(12, 3)
kv_stage(1)
a(f"""
v_mov_b32 v124, s{sW}
s_and_b32 s{sT0}, s{sW}, 4
v_and_or_b32 v125, v0, 3, s{sT0}
s_lshr_b32 s{sT0}, s2, 3
s_mul_i32 s{sT0}, s{sT0}, 3
s_add_u32 s{sT0}, s{sT0}, s{sG}
s_lshl_b32 s{sT0}, s{sT0}, 12
s_add_u32 s{sT0}, s{sT0}, {128*896 if OPT.get("wp", 1) else 1<<20}
v_lshl_add_u32 v131, v0, 6, s{sT0}
v_xor_b32 v180, 2048, v{vQA}
s_add_u32 s{sT0}, s{sKL}, {LR}
v_add_u32 v181, s{sT0}, v1
v_xor_b32 v182, 4096, v181
""")
stamp(13, 3)
a("s_waitcnt vmcnt(6)")
stamp(14, 3)

MODS = ("", " sc1", " nt", " sc0 sc1", " sc1 nt"); GS, OS = MODS[OPT.get("gs", 0)], MODS[OPT.get("os", 0)]
WS0 = 128
vFW, vFG, vF8, vFT = 124, 125, 126, 127
vQ, vK, vV, vP, vSa, vSb, vO, vM, vKC, vZR, vFC = 16, 24, 32, 40, 48, 64, 80, 14, 96, 248, 120
a.c("---- attention: S^T = K Q^T - m (m rides in the pad slots), P = exp2, O^T += V^T P^T (row 28 = sum)")
a(f"""
L_att:
s_cmp_lg_u32 s{sTRY}, 0
s_barrier
""")
stamp(8)
QQ, OO, MM, vVL, vQB, vW0, vR0 = (132, vQ), (148, vO), (183, vM), 164, 180, 181, 182
def kvaddr(T, f):
    o = 32768 * ((T >> 1) & 3) + 4096 * (T & 1) + 1024 * f
    return f"v{vB0 if o < 65536 else vB1} offset:{o & 65535}"
def rdK(T, f): return f"ds_read_b128 {v(vK+4*f,4)}, {kvaddr(T, f)}"
def rdV(T, f): return f"ds_read_b128 {v(vV+4*f,4)}, {kvaddr(T, 2+f)}"
def wo_piece(g): return [f"s_add_u32 m0, s{sWM}, {WS0+7168*g}", f"s_mov_b32 s{sSO2}, {28672*g}", f"buffer_load_dwordx4 v{vWOA}, {srd(WO)}, s{sSO2} offen lds"]
def pieces(n):
    out = []
    if n == 1:
        out += [[f"buffer_store_dwordx4 {v(104,4)}, v{vZ}, {srd(WS)}, s{sZO} offen sc1"], [f"buffer_store_dwordx4 {v(108,4)}, v1, {srd(WS)}, s{sCL} offen sc1"]]
    if n < 6:
        for i in range(4):
            p = [f"buffer_load_dwordx4 v1, {srd(WS)}, s{sSO} offen offset:{1024*i} sc1 lds"]
            if i == 0: p = [f"s_add_u32 m0, s{sKL}, {LA+32768*((n+2)&3)}", f"s_add_u32 s{sSO}, s{sKS}, {32768*(n+2)}"] + p
            out.append(p)
        if n >= 2: out.append(wo_piece(n - 2))
    elif n < 8: out = [wo_piece(4 + 5 * (n - 6) + i) for i in range(5)]
    return out
def maxtree(S, dst, have):
    a(f"v_max3_f32 v{dst}, v{S}, v{S+1}, v{dst}" if have else f"v_max_f32 v{dst}, v{S}, v{S+1}")
    for i in range(2, 16, 2): a(f"v_max3_f32 v{dst}, v{S+i}, v{S+i+1}, v{dst}")
p0 = pieces(0)
a(f"""
s_cbranch_scc1 L_haveq
ds_read_b128 {v(QQ[0],4)}, v{vQB}
ds_read_b128 {v(vKC,4)}, v1 offset:{LA}
ds_read_b128 {v(QQ[0]+4,4)}, v{vQB} offset:1024
ds_read_b128 {v(vKC+4,4)}, v1 offset:{LA+1024}
ds_read_b128 {v(vQ,4)}, v{vQA}
ds_read_b128 {v(vQ+4,4)}, v{vQA} offset:1024
L_haveq:
{rdK(0,0)}
{rdK(0,1)}
{rdV(0,0)}
s_cbranch_scc1 L_havem
s_waitcnt lgkmcnt(7)
{mfma32(vSb, vKC, QQ[0], "0")}
s_waitcnt lgkmcnt(5)
{mfma32(vSb, vKC+4, QQ[0]+4, vSb)}
s_waitcnt lgkmcnt(3)
{mfma32(vO, vKC, vQ, "0")}
{mfma32(vO, vKC+4, vQ+4, vO)}
L_havem:
s_waitcnt lgkmcnt(0)
{mfma32(vSa, vK, QQ[0], "0")}
""")
NM = OPT.get("nm", 2)
a("s_cbranch_scc1 L_hm")
for i in range(NM):
    for S_, m in ((vSb, MM[0]), (vO, MM[1])): a(f"v_max3_f32 v{m}, v{S_+2*i+1}, v{S_+(2*i+2)%16}, v{m if i else S_}")
a.c("lanes 0-31 split the shift of tile 0, lanes 32-63 that of tile 1, into three bf16 parts")
a(f"""
L_hm:
v_permlane32_swap_b32 v{MM[0]}, v{MM[1]}
v_max_f32 v96, v{MM[0]}, v{MM[1]}
v_xor_b32 v96, 0x80000000, v96
v_and_b32 v97, 0xffff0000, v96
v_sub_f32 v96, v96, v97
v_and_b32 v98, 0xffff0000, v96
v_sub_f32 v96, v96, v98
v_lshrrev_b32 v97, 16, v97
v_lshrrev_b32 v99, 16, v96
v_or_b32 v98, v97, v98
s_mov_b32 exec_lo, 0
v_mov_b64 {v(vQ+6,2)}, v[98:99]
s_mov_b32 exec_lo, -1
v_permlane32_swap_b32 v{QQ[0]+6}, v98
v_permlane32_swap_b32 v{QQ[0]+7}, v99
{mfma32(vSa, vK+4, QQ[0]+4, vSa)}
""")
lq = LQ()
a("s_waitcnt vmcnt(4)\ns_barrier")
stamp(9)
stamp(1, 4)
PRIO = {int(x, 16): 3 - i for i, x in enumerate(SOPT.get("pr", "07cf"))}
DSL = [int(x, 16) for x in SOPT.get("dsl", "89abc")]; DSL6 = [int(x, 16) for x in SOPT.get("dsl6", "0189ab")]; DSL7 = [int(x, 16) for x in SOPT.get("dsl7", "01234")]; S7 = OPT.get("s7", 14); DSL0 = [int(x, 16) for x in SOPT.get("dsl0", "89ab")]
todo = dict(zip(DSL0, p0)); since = 0
def sub(T): return T & 1 if T < 28 else (T >> 1) & 1
def fr(T, f): return (vVL if T in (29, 31) else vK) + 4 * f
LAST = {(27, 0): 0, (27, 1): 1, (27, 2): 2, (28, 0): 3}
RS_ = OPT.get("rs", 13); QS = OPT.get("qs", 14); CW = OPT.get("cw", 2); BP = OPT.get("bp", 120)
def fl_read(i): return f"ds_read_u8 v{vFT}, v{vF8 if i in (3, 6, 7) else vFG} offset:{8*(i-1)}"
a.c("no barriers in the loop: a wave posts a byte once its DMA of the next stage landed and it left the stage before; readers check half a stage later")
for T in range(32):
    S, Sn = (vSa, vSb) if T % 2 == 0 else (vSb, vSa)
    n = (T + 2) >> 2
    if T & 3 == 2:
        if n == 8: pass
        elif OPT.get("spi", 0): a(f"s_cbranch_vccz L_spr{n}\nL_sp{n}:\n{fl_read(n)}\ns_waitcnt lgkmcnt(0)\nv_cmp_eq_u32 vcc, 0, v{vFT}\ns_cbranch_vccnz L_sp{n}\nL_spr{n}:")
        else: a(f"s_cbranch_vccnz L_sp{n}\nL_spr{n}:")
        if DIAG and OPT.get("set") == 4:
            if n > 1: a(f"s_mov_b32 s{sST+(7+n if n < 8 else 2)}, s96")
            if n < 8: a("s_memtime s[96:97]")
        pc = pieces(n); assert not todo
        todo = dict(zip(DSL7 if n == 7 else [x + 2 for x in DSL] if n == 6 else DSL if len(pc) < 6 else DSL6, pc)); since = 0
    for k in range(4):
        sl = (4 * T + k + 8) & 15
        if 4 * T + k == BP: a(f"s_setprio 0\ns_cmp_lt_u32 s{sW}, 4\ns_cbranch_scc1 L_np\ns_setprio 3\nL_np:")
        if 4 * T + k == OPT.get("s8", 115): assert 4 * T + k >= 115; lq(f"ds_write_b8 v{vFW}, v108 offset:56")
        if sl in PRIO and 4 * T + k < BP or (T, k) == (0, 0): a(f"s_setprio {PRIO.get(sl, 2 if PRIO else 0)}")
        j = T >> 1
        if T == 31:
            if k == 0: a("s_cbranch_vccnz L_sp8\nL_spr8:")
            lq(f"ds_write_b128 v{vW0}, {v(OO[0]+4*k,4)} offset:{1024*k}")
        if k < 2:
            if T < 31: lq(mfma32(Sn, fr(T+1, k), QQ[sub(T+1)]+4*k, Sn if k else "0"))
            if T % 2 == 0 and j < 14: lq(rdK(j + 1, k))
        elif k == 2:
            if T > 0: lq(mfma32(OO[sub(T-1)], fr(T-1, 3), vP+4, OO[sub(T-1)]))
            if T % 2 == 0 and j < 15: lq(rdV(j, 1))
        else:
            lq(mfma32(OO[sub(T)], fr(T, 2), vP, "0" if T < 2 else OO[sub(T)]))
            if T % 2 and j < 14: lq(rdV(j + 1, 0))
        if (T, k) in LAST: lq(f"ds_read_b128 {v(vVL+4*LAST[T, k],4)}, {kvaddr(15, LAST[T, k])}")
        if sl == {0: 12, 6: 10, 7: -1}.get(n, 8):
            if n == 4: assert since == 0; a(f"s_cmp_ge_u32 s{sW}, 4\ns_cbranch_scc1 L_w4\ns_waitcnt vmcnt(1)\nL_w4:\ns_waitcnt vmcnt(8)")
            elif n < 7: a(f"s_waitcnt vmcnt({since})")
            if n == 6: a(f"""
s_cmp_lg_u32 s{sW}, {CW}
s_cbranch_scc1 L_chkc_r
s_mov_b32 s{sSP}, {SPIN}
L_chkc1:
v_cmp_ne_u32 vcc, s{sNON}, v{vFC}
v_cmp_ne_u32 s[{sM1}:{sM1+1}], s{sNON}, v{vFC+1}
s_or_b64 s[{sM1}:{sM1+1}], vcc, s[{sM1}:{sM1+1}]
v_cmp_ne_u32 vcc, s{sNON}, v{vFC+2}
s_or_b64 s[{sM1}:{sM1+1}], vcc, s[{sM1}:{sM1+1}]
v_cmp_ne_u32 vcc, s{sNON}, v{vFC+3}
s_or_b64 vcc, vcc, s[{sM1}:{sM1+1}]
s_cbranch_scc1 L_chkc3
L_chkc2:
s_cmp_eq_u32 s2, 0
s_cbranch_scc1 L_epoch
L_chkc_r:
""")
            lq(f"ds_write_b8 v{vFW}, v108 offset:{8*n}" if OPT.get("nox", 1) else f"s_mov_b64 exec, 1\nds_write_b8 v{vFW}, v108 offset:{8*n}\ns_mov_b64 exec, -1")
        if sl == {0: 14, 6: 14, 7: -1, 8: 2}.get(n, RS_): lq(fl_read(min(n + 1, 8)))
        ex = [f"v_exp_f32 v{S+r}, v{S+r}" for r in range(4 * k, 4 * k + 4)]
        cv = [f"v_cvt_pk_bf16_f32 v{vP+r}, v{S+2*r}, v{S+2*r+1}" for r in range(2 * k, 2 * k + 2)]
        p = todo.pop(sl, []); since += len(p) > 0
        body = []
        for e in range(4):
            body.append(ex[e])
            if e < len(p): body.append(p[e])
        a("\n".join(body))
        if sl == {7: -1, 8: 3}.get(n, 15): lq(f"v_cmp_eq_u32 vcc, 0, v{vFT}")
        a("\n".join(cv))
        if sl == QS and n == 3:
            a.c("z and the slot marks are out (all waves posted): wave 3 raises the flag; waves 4-7 fetch the gate inputs")
            a(f"s_movk_i32 s{sT5}, 3584\ns_cmp_ge_u32 s{sW}, 4\ns_cbranch_scc1 L_ldq\ns_cmp_lg_u32 s{sW}, 3\ns_cbranch_scc1 L_wpf\ns_lshl_b32 s{sT0}, s2, 2\ns_add_u32 s{sT0}, s{sT0}, {FC}")
            signal(f"s{sT0}")
            a("s_branch L_ldq_r\nL_ldq:")
            ldq()
            a.c("waves 0-2 pull a slice of the wo rows that are staged last towards the cache")
            a(f"s_branch L_ldq_r\nL_wpf:\nbuffer_load_dword v{QR}, v131, {srd(WO)}, 0 offen\nL_ldq_r:")
            assert not todo
        if sl == 8 and n == 5:
            a.c("flags of all workgroups' z and slot marks (one word each)")
            a(f"s_cmp_lg_u32 s{sW}, {CW}\ns_cbranch_scc1 L_nfc\ns_movk_i32 s{sT0}, {FC}\nbuffer_load_dwordx4 {v(vFC,4)}, v1, {srd(WS)}, s{sT0} offen sc1\nL_nfc:")
        if sl == OPT.get("zs", 5) and n == 7:
            a(f"""
s_cmp_lt_u32 s{sW}, 4
s_cbranch_scc1 L_nz
buffer_load_dwordx4 {v(vZR,4)}, v{vZL}, {srd(WS)}, s{sUT} offen sc1
buffer_load_dwordx4 {v(vZR+4,4)}, v{vZL}, {srd(WS)}, s{sUT} offen offset:64 sc1
L_nz:
""")
lq(mfma32(vO, fr(31, 3), vP+4, vO))
a("s_setprio 0")
stamp(10)
stamp(3, 4)
a(f"""
s_mov_b32 s{sT2}, 0x5f800000
v_mov_b64 v[100:101], 0
v_mov_b64 v[102:103], 0
s_and_b32 s{sT1}, s{sW}, 1
s_mul_i32 s{sT1}, s{sT1}, 768
s_add_u32 s{sT1}, s{sT1}, {WS0+448*224}
v_add_u32 v99, s{sT1}, v1
s_cmp_lt_u32 s{sW}, 4
s_cbranch_scc1 L_mA
ds_write_b128 v99, {v(100,4)}
""")
for i in range(4): a(f"ds_write_b128 v{vMG}, {v(vO+4*i,4)} offset:{1024*i}")
a(f"""
L_mA:
v_add_f32 v98, v{vO+12}, v{OO[0]+12}
v_cmp_nle_f32 vcc, v98, s{sT2}
v_mov_b32 v98, vcc_hi
ds_write_b32 v{vBW}, v98
s_waitcnt vmcnt(0) lgkmcnt(0)
s_barrier
ds_read_b32 v98, v{vBR}
s_cbranch_scc0 L_mB
""")
lq = LQ(); lq.q = [{("v", 98)}]
PB = (vSa, vSb, 164)
for i in (3, 0, 1, 2):
    for b, ad in zip(PB, (f"v{vMG} offset:{1024*i}", f"v{vR0} offset:{1024*i}", f"v{vR0} offset:{16384+1024*i}")): lq(f"ds_read_b128 {v(b+4*i,4)}, {ad}")
a(f"s_setprio 3\ns_waitcnt lgkmcnt(12)\nv_cmp_lt_u32 vcc, s{sTRY}, v98\ns_cbranch_vccnz L_fallback"); lq.q = lq.q[1:]
for i in (3, 0, 1, 2):
    for d, s_ in ((vO, PB[0]), (PB[1], PB[2]), (vO, PB[1])):
        for r in (4*i, 4*i+2): lq(f"v_pk_add_f32 {v(d+r,2)}, {v(d+r,2)}, {v(s_+r,2)}")
    if i == 3: a(f"v_mov_b32 v96, v{vO+12}\nv_mov_b32 v97, v{vO+12}")
    if i == 0: a(f"v_permlane32_swap_b32 v96, v97\nv_rcp_f32 v96, v97")
for hf in range(2):
    for r in range(8*hf, 8*hf+8, 2): a(f"v_pk_mul_f32 {v(vO+r,2)}, {v(vO+r,2)}, v[96:97] op_sel_hi:[1,0]")
    for r in range(4*hf, 4*hf+4): a(f"v_cvt_pk_bf16_f32 v{vP+r}, v{vO+2*r}, v{vO+2*r+1}")
    if hf: a(f"s_mov_b32 exec_lo, 0\nv_mov_b64 {v(vP+6,2)}, 0\ns_mov_b32 exec_lo, -1")
    a(f"buffer_store_dwordx4 {v(vP+4*hf,4)}, v1, {srd(WS)}, s{sOO} offen offset:{1024*hf} sc1")
a("s_setprio 0\ns_barrier")
stamp(11)
WFR, OB, OA = 112, 16, 48
a(f"""
v_bfe_u32 v96, v0, 2, 2
v_lshrrev_b32 v97, 5, v0
v_lshl_add_u32 v96, v96, 1, v97
v_mul_u32_u24 v96, 224, v96
v_bfe_u32 v98, v0, 4, 1
v_lshl_add_u32 v96, v98, 5, v96
v_and_b32 v98, 3, v0
v_lshl_add_u32 v96, v98, 3, v96
s_lshl_b32 s{sT2}, s{sG}, 6
v_add_u32 v2, s{sT2}, v96
v_mul_u32_u24 v99, {6*224}, v97
v_add_u32 v3, v99, v2
v_add_u32 v9, {8*28*224}, v2
v_add_u32 v10, {8*28*224}, v3
""")
for h in range(16):
    for s_ in range(2):
        for t in range(2):
            Qd = 7 * (h & 7) + 4 * s_ + 2 * t
            a(f"ds_read_b64_tr_b16 {v(WFR+8*h+4*s_+2*t,2)}, v{(2, 3, 9, 10)[(h&1) + 2*(h>>3)]} offset:{WS0+(8*(Qd>>1) + (Qd&1))*224}")
a(f"""
v_mov_b32 v4, 0
v_add_u32 v5, {LR}, v1
v_and_b32 v99, 31, v0
v_mul_u32_u24 v99, 1792, v99
v_lshl_add_u32 v8, v97, 4, v99
s_mul_i32 s{sT0}, s{sRT}, {32*1792}
s_mul_i32 s{sT1}, s{sCG}, 224
s_add_u32 s{sT0}, s{sT0}, s{sT1}
s_add_u32 s{sT0}, s{sT0}, s{sT2}
""")
if OPT.get("ep"): a(f"""
v_and_b32 v99, 31, v0
v_mul_u32_u24 v99, 80, v99
v_lshl_add_u32 v99, v97, 3, v99
s_mul_i32 s{sT1}, s{sG}, 4096
s_add_u32 s{sT1}, s{sT1}, {MERGE}
v_add_u32 v6, s{sT1}, v99
v_lshrrev_b32 v99, 2, v0
v_mul_u32_u24 v100, 80, v99
v_lshl_add_u32 v100, v98, 4, v100
v_add_u32 v7, s{sT1}, v100
v_mul_u32_u24 v100, 1792, v99
v_lshl_add_u32 v8, v98, 4, v100
s_add_u32 s{sT1}, s{sT0}, {16*1792}
s_cmp_eq_u32 s{sG}, 3
s_cselect_b32 s{sM1}, 0x33333333, -1
s_mov_b32 s{sM1+1}, s{sM1}
""")
a("s_waitcnt lgkmcnt(0)")
stamp(12)
a.c("waves 4-7 post one byte per staged head; chunk k+1 (4 heads) is checked and read while chunk k multiplies")
def ob(k): return OB if k % 2 == 0 else 64
def o_rd(k, f): return f"ds_read_b128 {v(ob(k)+4*f,4)}, v5 offset:{8192*k+1024*f}"
def o_fl(k): return f"ds_read_b32 v96, v4 offset:{64+4*k}"
def o_spin(k): return f"L_os{k}:\n{o_fl(k)}\ns_waitcnt lgkmcnt(0)\nv_cmp_ne_u32 vcc, -1, v96\ns_cbranch_vccnz L_os{k}"
def early_wb():
    a.c("start writing the gated half of the output back while the projection runs")
    a(f"s_lshr_b32 s{sT3}, s2, 3\ns_add_u32 s{sT3}, s{sT3}, s{sG}\ns_cmp_lg_u32 s{sT3}, 0\ns_cbranch_scc1 L_nwb\nbuffer_wbl2 sc1\nL_nwb:")
if OPT.get("wb") == 4: early_wb()
a("s_barrier" if OPT.get("fb") else o_spin(0))
stamp(13)
lq = LQ()
for f in range(8): lq(o_rd(0, f))
if OPT.get("wb") == 5: early_wb()
CK = OPT.get("ck", 3)
for k in range(4):
    rd = [o_rd(k + 1, f) for f in range(8)] if k < 3 else []
    if rd: lq(o_fl(k + 1))
    for f in range(8):
        lq(mfma32(OA, WFR+32*k+4*f, ob(k)+4*f, "0" if k == 0 and f == 0 else OA))
        if rd and f == CK:
            lq(f"v_cmp_ne_u32 vcc, -1, v96\ns_cbranch_vccz L_or{k+1}")
            a(o_spin(k + 1) + f"\nL_or{k+1}:")
        if f >= CK:
            for x in rd[:2]: lq(x)
            rd = rd[2:]
if OPT.get("ep"):
    for r in range(8): a(f"v_cvt_pk_bf16_f32 v{16+r}, v{OA+2*r}, v{OA+2*r+1}")
    for m in range(4): a(f"ds_write_b64 v6, {v(16+2*m,2)} offset:{16*m}")
    a(f"""
s_waitcnt lgkmcnt(0)
ds_read_b128 {v(24,4)}, v7
ds_read_b128 {v(28,4)}, v7 offset:{16*80}
s_mov_b64 exec, s[{sM1}:{sM1+1}]
s_waitcnt lgkmcnt(1)
buffer_store_dwordx4 {v(24,4)}, v8, {srd(OUT)}, s{sT0} offen{OS}
s_waitcnt lgkmcnt(0)
buffer_store_dwordx4 {v(28,4)}, v8, {srd(OUT)}, s{sT1} offen{OS}
""")
for hf in range(0 if OPT.get("ep") else 2):
    if hf: a(f"s_cmp_eq_u32 s{sG}, 3\ns_cbranch_scc1 L_ost")
    for r in range(4*hf, 4*hf+4): a(f"v_cvt_pk_bf16_f32 v{16+r}, v{OA+2*r}, v{OA+2*r+1}")
    for d in range(2): a(f"v_permlane32_swap_b32 v{16+4*hf+d}, v{18+4*hf+d}")
    a(f"buffer_store_dwordx4 {v(16+4*hf,4)}, v8, {srd(OUT)}, s{sT0} offen offset:{32*hf}{OS}")
a("L_ost:")
stamp(14)
a("s_branch L_fin" if DIAG else "s_endpgm")

a(f"L_mB:\ns_waitcnt lgkmcnt(0)\nv_cmp_lt_u32 vcc, s{sTRY}, v98\ns_cbranch_vccnz L_fallback")
a(f"""
s_mul_i32 s{sT5}, s{sRT}, {32*896}
s_add_u32 s{sT5}, s{sT5}, 896
""")
for i in range(8): a(f"v_lshlrev_b32 v{16+2*i}, 16, v{QR+i}\nv_and_b32 v{17+2*i}, 0xffff0000, v{QR+i}")
for t in range(8):
    for p in range(2):
        src = vZR + 4 * p + t // 2
        a(f"v_lshlrev_b32 v{32+2*t+p}, 16, v{src}" if t % 2 == 0 else f"v_and_b32 v{32+2*t+p}, 0xffff0000, v{src}")
for t in range(8): a(f"v_pk_mul_f32 {v(32+2*t,2)}, {v(32+2*t,2)}, {v(16+2*t,2)}")
for t in range(8): a(f"v_cvt_pk_bf16_f32 v{56+t}, v{32+2*t}, v{33+2*t}")
def gate_st():
    for t in range(8):
        a(f"buffer_store_dword v{56+t}, v{vGO}, {srd(OUT)}, s{sT5} offen offset:{1792*(t&1)}{GS}")
        if t & 1 and t < 7: a(f"s_add_u32 s{sT5}, s{sT5}, 3584")
GO = OPT.get("go", 0)
a.c("waves 0-3 have read the partial sums and sent O"); a("s_barrier")
if OPT.get("gp"): a(f"s_setprio {OPT['gp']}")
if not OPT.get("gl") and not GO: gate_st()
if OPT.get("dl"): a(f"s_sleep {OPT['dl']}" if OPT["dl"] > 1 else "s_waitcnt vmcnt(0)")
stamp(11)
a.c("O fragments: every word differs from the all-ones mark once its producer's store has landed")
OL = 64
a(f"""
s_lshl_b32 s{sT0}, s{sRT}, 15
s_lshl_b32 s{sT1}, s{sG}, 11
s_add_u32 s{sT0}, s{sT0}, s{sT1}
s_add_u32 s{sT0}, s{sT0}, {OF}
s_add_u32 s{sT1}, s{sT0}, 8192
s_add_u32 s{sT2}, s{sT0}, 16384
s_add_u32 s{sT3}, s{sT0}, 24576
s_mov_b32 s{sSP}, {SPIN}
""")
def o_issue(k0):
    for k in range(k0, 4):
        for i in range(2): a(f"buffer_load_dwordx4 {v(OL+8*k+4*i,4)}, v1, {srd(WS)}, s{sT0+k} offen offset:{1024*i} sc1")
o_issue(0)
if GO: gate_st()
for k in range(4):
    r = OL + 8 * k
    a(f"""
s_waitcnt vmcnt({6-2*k+8*GO})
L_ochk{k}:
v_max3_u32 v96, v{r}, v{r+1}, v{r+2}
v_max3_u32 v97, v{r+3}, v{r+4}, v{r+5}
v_max3_u32 v96, v{r+6}, v{r+7}, v96
v_max_u32 v96, v96, v97
v_cmp_eq_u32 vcc, -1, v96
s_cbranch_vccnz L_oretry{k}
L_ogo{k}:
ds_write_b128 v{vQA}, {v(r,4)} offset:{8192*k}
ds_write_b128 v{vQA}, {v(r+4,4)} offset:{8192*k+1024}
""")
    a("s_waitcnt lgkmcnt(0)\ns_barrier" if k == 0 and OPT.get("fb") else f"ds_write_b8 v{vFW}, v108 offset:{60+4*k}")
    if k == 0: stamp(12)
a("s_waitcnt lgkmcnt(0)")
stamp(13)
if DIAG and OPT.get("cyc"): a(f"s_sub_u32 s{sST+2}, {SPIN}, s{sSP}\ns_mul_i32 s{sST+2}, s{sST+2}, 100\ns_add_u32 s{sST+2}, s{sST+2}, s98\ns_add_u32 s{sST+2}, s{sST+2}, 1")
if 0 < OPT.get("wb", 0) < 4:
    a.c("start writing the gated half of the output back while the projection finishes")
    a(f"s_bfe_u32 s{sT0}, s2, {(0, 0, 0x30003, 0x50003)[OPT['wb']]}\ns_add_u32 s{sT0}, s{sT0}, s{sG}\ns_cmp_lg_u32 s{sT0}, 0\ns_cbranch_scc1 L_fin\nbuffer_wbl2 sc1\ns_waitcnt vmcnt(0)")
a.label("L_fin")
if DIAG:
    a(f"s_mov_b64 exec, -1\ns_mov_b32 s{sST+15}, s98")
    a(f"s_lshl_b32 s{sT0}, s2, 3\ns_add_u32 s{sT0}, s{sT0}, s{sW}\ns_lshl_b32 s{sT0}, s{sT0}, 6\ns_add_u32 s{sT0}, s{sT0}, {DG}\nv_lshlrev_b32 v96, 2, v0")
    for k in range(16): a(f"v_writelane_b32 v97, s{sST+k}, {k}")
    a(f"s_mov_b64 exec, 0xffff\nbuffer_store_dword v97, v96, {srd(WS)}, s{sT0} offen")
if DIAG and OPT.get("wbx"): a("s_waitcnt vmcnt(0)\nbuffer_wbl2 sc1\ns_waitcnt vmcnt(0)")
if "probe" in OPT:
    a(f"""
s_cmp_lg_u32 s2, {OPT.get("pwg", 100)}
s_cbranch_scc1 L_end
s_cmp_lg_u32 s{sW}, {OPT.get("pw", 0)}
s_cbranch_scc1 L_end
s_sub_u32 s{sT0}, s{sST+OPT["probe"]}, s{sST+OPT["pb"] if "pb" in OPT else 98}
s_lshl_b32 s{sT0}, s{sT0}, {3 if "pb" in OPT else 2}
s_add_u32 s{sT0}, s{sT0}, 4000
s_min_u32 s{sT0}, s{sT0}, 20000
L_probe:
s_memrealtime s[96:97]
s_waitcnt lgkmcnt(0)
s_sub_u32 s96, s96, s98
s_cmp_lt_u32 s96, s{sT0}
s_cbranch_scc1 L_probe
""")
a.label("L_end")
a("s_endpgm")

for k in range(4):
    a(f"L_oretry{k}:\ns_sub_u32 s{sSP}, s{sSP}, 1\ns_cbranch_scc1 L_ogo{k}".replace(f"s_cbranch_scc1 L_ogo{k}", f"s_cselect_b32 s{sSP}, 0, s{sSP}\ns_cbranch_scc1 L_ogo{k}"))
    o_issue(k)
    a(f"s_waitcnt vmcnt({0 if GO else 6-2*k})\ns_branch L_ochk{k}")

for i in range(1, 9):
    if i == 8 or not OPT.get("spi", 0): a(f"L_sp{i}:\n{fl_read(i)}\ns_waitcnt lgkmcnt(0)\nv_cmp_eq_u32 vcc, 0, v{vFT}\ns_cbranch_vccnz L_sp{i}\ns_branch L_spr{i}")
a(f"""
L_chkc3:
s_sub_u32 s{sSP}, s{sSP}, 1
s_cbranch_scc1 L_chkc2
buffer_load_dwordx4 {v(vFC,4)}, v1, {srd(WS)}, s{sT0} offen sc1
s_waitcnt vmcnt(0)
s_branch L_chkc1
L_epoch:
""")
a.c("workgroup 0 advances the epoch word: every workgroup is known to have read it")
signal("0")
a("s_branch L_chkc_r")

a.label("L_fallback")
a(f"""
s_mov_b32 s{sTRY}, -1
s_setprio 0
s_waitcnt lgkmcnt(0)
s_barrier
s_mov_b64 exec, 0xffff
ds_write_b64 v130, v[128:129]
s_mov_b64 exec, -1
s_waitcnt lgkmcnt(0)
""")
kv_stage(0); kv_stage(1)
a(f"""
s_mov_b32 exec_lo, 0
v_mov_b32 v{vQ+6}, 0
v_mov_b32 v{vQ+7}, 0
v_mov_b32 v{QQ[0]+6}, 0
v_mov_b32 v{QQ[0]+7}, 0
s_mov_b32 exec_lo, -1
v_mov_b32 v{vM}, 0xff800000
v_mov_b32 v{MM[0]}, 0xff800000
s_mov_b32 s{sT3}, s{sKVB}
s_mov_b32 s{sI}, 0
L_fb1:
buffer_load_dwordx4 {v(vK,4)}, v1, {srd(WS)}, s{sT3} offen sc1
buffer_load_dwordx4 {v(vK+4,4)}, v1, {srd(WS)}, s{sT3} offen offset:1024 sc1
s_waitcnt vmcnt(0)
{mfma32(vSb, vK, vQ, "0")}
{mfma32(vSb, vK+4, vQ+4, vSb)}
{mfma32(vSa, vK, QQ[0], "0")}
{mfma32(vSa, vK+4, QQ[0]+4, vSa)}
s_add_u32 s{sT3}, s{sT3}, 4096
s_add_u32 s{sI}, s{sI}, 1
""")
maxtree(vSb, vM, True)
maxtree(vSa, MM[0], True)
a(f"""
s_cmp_lt_u32 s{sI}, 64
s_cbranch_scc1 L_fb1
s_branch L_att
L_codeend:
""")

import subprocess
body0 = pad(a.l, verbose="v" in sys.argv)
def emit(pfs, fill):
    body = [l.replace("@@PFS@@", str(pfs)) for l in body0]
    hdr = open("cdna_kernels/" + NAME + ".s.ref").read().split("; Override launch")[0]
    return hdr + f"""; One persistent launch, one workgroup per CU; phases hand data over through d_ws with tagged flags.
; @launch grid=(256,1,1) block=(512,1,1) lds=163840
.amdgcn_target "amdgcn-amd-amdhsa--gfx950"
.text
.globl {NAME}_kernel
.p2align 8
.type {NAME}_kernel,@function
""" + "\n".join(body) + f"""
    .fill {fill}, 4, 0xbf810000
.section .rodata,"a"
.p2align 6
.amdhsa_kernel {NAME}_kernel
  .amdhsa_next_free_vgpr 256
  .amdhsa_next_free_sgpr 102
  .amdhsa_accum_offset 256
  .amdhsa_group_segment_fixed_size 0
  .amdhsa_kernarg_size 96
  .amdhsa_user_sgpr_count 2
  .amdhsa_user_sgpr_kernarg_segment_ptr 1
  .amdhsa_system_sgpr_workgroup_id_x 1
.end_amdhsa_kernel
"""
def size_of(txt):
    open("_sz.s", "w").write(txt)
    subprocess.run(["clang", "-x", "assembler", "-target", "amdgcn-amd-amdhsa", "-mcpu=gfx950", "-c", "_sz.s", "-o", "_sz.o"], check=True)
    o = subprocess.run(["llvm-objdump", "-t", "_sz.o"], capture_output=True, text=True).stdout
    return [int(l.split()[0], 16) for l in o.splitlines() if l.endswith("L_codeend")][0]
sz = size_of(emit(40, 1))
pfs = OPT.get("pfs", (sz + 2047) // 2048 * 4)
assert pfs <= 64
print("code bytes", sz, "prefetch stride", pfs)
open(sys.argv[1], "w").write(emit(pfs, max(1, (pfs * 512 - sz + 3) // 4)))
```

```python
import sys, struct, math
from asmlib import *

NAME = "concat_heads__softmax_full_mha__ssm_conv_h3__prompt"
DIAG = "diag" in sys.argv
SOPT = dict(a.split("=") for a in sys.argv[2:] if "=" in a)
OPT = {k: int(x) for k, x in SOPT.items() if x.isdigit()}
OPT.setdefault("rt", 40404040)
SPIN = 1 << 16

FA, FB, FC = 0x40000, 0x60000, 0x3000
FS = OPT.get('fs', 4)
QF, KV, UU, ZZ, OF, WSEND = 0x100000, 0x300000, 0x700000, 0x900000, 0xB00000, 0xD00000
DG = 0x10000
LX, LA, LB, LP, LR = 0, 32768, 65536, 98304, 131072
HP, UOFF = 4160, 16640
MERGE, BADF = LP + 16384, LP + 3968
ONES = 0x3f803f80
def fbits(x): return struct.unpack("<I", struct.pack("<f", x))[0]
QSCALE = fbits(28 ** -0.5 * math.log2(math.e))

X_, WQ, WO, Q_, K_, V_, SK, HK, OUT, WS = 4, 8, 12, 16, 20, 24, 28, 32, 36, 40
sDP, sNON, sW = 44, 46, 47
sJ, sTT, sRT, sCG, sC, sH, sQT, sG = 48, 49, 50, 51, 52, 53, 54, 55
sED, sT0, sT1, sT2, sT3, sT4, sT5, sT6, sT7 = 56, 57, 58, 59, 60, 61, 62, 63, 64
sI, sSO, sSO2, sLW, sLX, sTRY, sSP, sCB = 65, 66, 67, 68, 69, 70, 71, 72
sDV, sM1, sM2 = 73, 74, 76
sKVB, sWM = 78, 79
sFL, sE0, sE1, sE2, sKP, sZO, sOO, sKL, sUO, sQO, sUT, sKS = 20, 21, 22, 23, 24, 26, 27, 28, 29, 30, 31, 3
sUS, sCL, sK0 = 29, 44, 45
sQS = 34
sST = 80
def srd(b): return s(b, 4)

a = Asm()
def stamp(k, st=None):
    if not DIAG: return
    if st is None and k >= 9: st = 0
    if st is not None and st != OPT.get("set", 0): return
    a(f"{'s_memtime' if OPT.get('cyc') else 's_memrealtime'} s[96:97]\ns_waitcnt lgkmcnt(0)\ns_mov_b32 s{sST+k}, s96")

npoll = [0]
def poll(vaddr, vtmp):
    n = npoll[0]; npoll[0] += 1
    a(f"""
s_mov_b32 s{sSP}, {SPIN}
L_poll{n}:
buffer_load_dword v{vtmp}, v{vaddr}, {srd(WS)}, 0 offen sc1
s_waitcnt vmcnt(0)
v_cmp_ne_u32 vcc, s{sNON}, v{vtmp}
s_cbranch_vccz L_pollok{n}
s_sub_u32 s{sSP}, s{sSP}, 1
s_cbranch_scc0 L_poll{n}
L_pollok{n}:
""")
vNON = 15
def signal(soff):
    a(f"s_mov_b64 exec, 1\nbuffer_store_dword v{vNON}, v1, {srd(WS)}, {soff} offen sc1\ns_mov_b64 exec, -1")

def mfma32(d, A, B, C): return f"v_mfma_f32_32x32x16_bf16 {v(d,16)}, {v(A,4)}, {v(B,4)}, {C if isinstance(C,str) else v(C,16)}"
def mfma16(d, A, B, C): return f"v_mfma_f32_16x16x32_bf16 {v(d,4)}, {v(A,4)}, {v(B,4)}, {C if isinstance(C,str) else v(C,4)}"

class LQ:
    def __init__(self): self.q = []
    def __call__(self, txt):
        for t in txt.strip("\n").split("\n"):
            i = Ins(t)
            if not i.mn: a(t); continue
            last = max([k for k, w in enumerate(self.q) if w & (i.rd | (i.wr if not i.ds else set()))], default=-1)
            if last >= 0:
                n = min(15, len(self.q) - 1 - last)
                a(f"s_waitcnt lgkmcnt({n})"); self.q = self.q[len(self.q) - n:]
            a(t)
            if i.ds: self.q.append(vset(i.wr))
    def drain(self, n=0):
        if len(self.q) > n:
            a(f"s_waitcnt lgkmcnt({n})"); self.q = self.q[len(self.q) - n:]

vXD, vWD, vXR, vWR, vXB = 2, 6, 9, 13, 14
ACC, RS = 16, 64
vCA, vCB, vCW, vCR, vCU, vZ, vD = 192, 193, 194, 195, 196, 197, 198
vB0, vB1, vQA, vWOA, vMG, vBW, vBR = 199, 200, 201, 202, 203, 204, 205
vPA, vUD, vPB, vZL, vGO, vGA = 206, 207, 208, 209, 210, 211
vHO, vCP = 10, 129
KR, VR, SR, KF, WF, UA, VF, UP = 140, 152, 160, 164, 212, 220, 64, 236
H0, QR = 112, 240
def srdc(lst): return "\n".join(f"s_mov_b32 s{b+2}, {n}\ns_mov_b32 s{b+3}, 0x20000" for b, n in lst)
def karg(lst): return "\n".join(f"s_load_dwordx2 s[{b}:{b+1}], s[0:1], {o}" for b, o in lst)
a.label(NAME + "_kernel")
if DIAG: a(f"{'s_memtime' if OPT.get('cyc') else 's_memrealtime'} s[98:99]")
a(f"""
s_cmp_ge_u32 s2, 256
s_cbranch_scc1 L_end
{karg(((K_, 32), (X_, 0), (V_, 40), (SK, 48), (WQ, 8), (WS, 88), (sDP, 64)))}
s_getpc_b64 s[{sT5}:{sT6}]
L_pc:
v_lshrrev_b32 v1, 6, v0
v_and_b32 v0, 63, v0
s_bfe_u32 s{sT0}, s2, 0x30003
v_lshl_add_u32 v2, s{sT0}, 6, v0
s_sub_u32 s{sT5}, s{sT5}, L_pc-{NAME}_kernel
s_subb_u32 s{sT6}, s{sT6}, 0
v_mul_u32_u24 v2, @@PFS@@, v2
v_mov_b32 v3, s{sT6}
v_add_co_u32 v2, vcc, s{sT5}, v2
v_readfirstlane_b32 s{sW}, v1
v_lshrrev_b32 v130, 4, v0
v_addc_co_u32 v3, vcc, 0, v3, vcc
global_load_dword v255, v[2:3], off
s_and_b32 s{sG}, s{sW}, 3
s_cmp_lt_u32 s{sW}, 4
s_cbranch_scc1 L_uprep
""")
IDS_U = f"""
s_and_b32 s{sT2}, s2, 7
s_lshr_b32 s{sT3}, s2, 5
s_lshl3_add_u32 s{sRT}, s{sT2}, s{sT3}
s_bfe_u32 s{sCG}, s2, 0x20003
v_and_b32 v{vCP}, 15, v0
v_min_u32 v{vCP}, 13, v{vCP}
s_lshl2_add_u32 s{sT0}, s{sCG}, s{sG}
s_mul_i32 s{sT1}, s{sT0}, 56
s_mul_i32 s{sT2}, s{sRT}, {32*896}
s_add_u32 s{sT2}, s{sT2}, s{sT1}
v_mul_u32_u24 v{vGO}, {8*896}, v130
v_lshl_add_u32 v132, v{vCP}, 2, v{vGO}
v_add_u32 v{vGA}, s{sT2}, v132
"""
IDS_G = f"""
s_and_b32 s{sT2}, s2, 1
s_bfe_u32 s{sT3}, s2, 0x30003
s_lshl3_add_u32 s{sJ}, s{sT2}, s{sT3}
s_bfe_u32 s{sT2}, s2, 0x20001
s_lshr_b32 s{sT3}, s2, 6
s_lshl2_add_u32 s{sT2}, s{sT2}, s{sT3}
s_lshl2_add_u32 s{sTT}, s{sT2}, s{sG}
s_and_b32 s{sT2}, s{sG}, 1
s_lshr_b32 s{sT3}, s{sG}, 1
s_lshl2_add_u32 s{sT2}, s{sT3}, s{sT2}
s_add_u32 s{sT2}, s{sT2}, 4
s_lshl_b32 s{sLX}, s{sT2}, 14
"""
COMMON = f"""
v_lshlrev_b32 v1, 4, v0
s_sub_u32 s{sT2}, s2, 32
s_cmp_lt_u32 s2, 224 | s_cselect_b32 s{sC}, s2, s{sT2}
s_load_dword s{sED}, s[{WS}:{WS+1}], 0
s_lshl_b32 s{sT0}, s{sC}, 2
s_load_dword s{sDV}, s[{sDP}:{sDP+1}], s{sT0}
{karg(((HK, 56), (WO, 16), (Q_, 24), (OUT, 72)))}
{srdc(((WO, 401408), (Q_, 1835008), (OUT, 3670016), (WS, WSEND)))}
v_add_u32 v{vGO}, v{vGO}, v{vGA}
v_lshlrev_b32 v133, 7, v{vCP}
v_lshl_add_u32 v{vZL}, v130, 4, v133
s_lshl2_add_u32 s{sT4}, s{sCG}, s{sG}
s_mul_i32 s{sT1}, s{sT4}, 1792
s_mul_i32 s{sT3}, s{sRT}, 28672
s_add_u32 s{sUT}, s{sT1}, s{sT3}
s_add_u32 s{sUT}, s{sUT}, {ZZ}
s_and_b32 s{sT2}, s2, 7
s_lshr_b32 s{sT3}, s2, 7
s_lshl1_add_u32 s{sQT if OPT.get("xq", 0) else sH}, s{sT2}, s{sT3}
s_bfe_u32 s{sH if OPT.get("xq", 0) else sQT}, s2, 0x40003
s_mov_b32 s{sTRY}, 0
s_lshr_b32 s{sT7}, s{sW}, 2
s_mul_i32 s{sCB}, s{sT7}, {LP}
v_and_b32 v132, 3, v0
v_sub_u32 v133, 3, v132
v_mul_u32_u24 v133, {HP}, v133
v_and_b32 v134, 12, v0
v_lshl_add_u32 v133, v134, 1, v133
v_and_b32 v134, 0x30, v0
v_sub_u32 v133, v133, v134
s_lshl_b32 s{sT0}, s{sG}, 7
s_add_u32 s{sT1}, s{sT0}, s{sCB}
s_add_u32 s{sT1}, s{sT1}, 56
v_add_u32 v{vCA}, s{sT1}, v133
v_and_b32 v139, 15, v0
v_lshl_add_u32 v133, v139, 5, v134
s_sub_u32 s{sT1}, s{sCB}, s{sT0}
s_add_u32 s{sT1}, s{sT1}, {UOFF+512-96}
v_add_u32 v{vCB}, s{sT1}, v133
v_lshrrev_b32 v131, 5, v0
v_lshlrev_b32 v133, 7, v131
v_xor_b32 v133, v133, v1
s_lshl_b32 s{sT0}, s{sG}, 13
s_add_u32 s{sT0}, s{sT0}, s{sCB}
v_add_u32 v{vCW}, s{sT0}, v133
v_bfe_u32 v135, v0, 2, 1
v_mul_u32_u24 v136, {LP}, v135
v_lshrrev_b32 v137, 3, v0
v_lshl_add_u32 v138, v137, 2, v132
v_lshrrev_b32 v133, 1, v138
v_and_b32 v134, 1, v0
v_mul_u32_u24 v134, 40, v134
v_xor_b32 v133, v133, v134
v_lshl_add_u32 v133, v133, 4, v136
s_lshl_b32 s{sT0}, s{sW}, 10
v_add_u32 v{vCR}, s{sT0}, v133
v_lshl_add_u32 v133, v138, 4, v136
s_lshl_b32 s{sT0}, s{sW}, 9
s_add_u32 s{sT0}, s{sT0}, {UOFF+512}
v_add_u32 v{vCU}, s{sT0}, v133
v_mul_u32_u24 v133, 28672, v137
v_and_b32 v134, 7, v0
v_lshl_add_u32 v{vZ}, v134, 4, v133
v_lshlrev_b32 v134, 2, v134
v_add_u32 v{vBR}, {BADF}, v134
s_mul_i32 s{sT0}, s{sW}, {8*28672}
s_lshl_b32 s{sT1}, s{sC}, 7
s_add_u32 s{sT0}, s{sT0}, s{sT1}
s_add_u32 s{sZO}, s{sT0}, {ZZ}
s_lshl_b32 s{sKVB}, s{sH}, 18
s_add_u32 s{sKVB}, s{sKVB}, {KV}
s_lshl_b32 s{sKL}, s{sW}, 12
s_add_u32 s{sKS}, s{sKVB}, s{sKL}
s_min_u32 s{sT0}, s{sW}, 6
s_lshl_b32 s{sWM}, s{sT0}, 10
s_lshl_b32 s{sT1}, s{sT0}, 6
v_add_u32 v133, s{sT1}, v0
v_mul_u32_u24 v134, 4682, v133
v_lshrrev_b32 v134, 16, v134
v_mul_u32_u24 v136, 14, v134
v_sub_u32 v133, v133, v136
v_bfe_u32 v136, v134, 1, 2
v_and_b32 v138, 1, v134
v_lshl_add_u32 v136, v138, 2, v136
v_and_or_b32 v134, v134, 24, v136
v_mul_u32_u24 v134, 896, v134
v_lshl_add_u32 v133, v133, 4, v134
s_mul_i32 s{sT1}, s{sCG}, 224
v_add_u32 v{vWOA}, s{sT1}, v133
s_and_b32 s{sT0}, s{sW}, 1
s_lshl1_add_u32 s{sT0}, s{sT7}, s{sT0}
s_lshl_b32 s{sT0}, s{sT0}, 13
s_add_u32 s{sT0}, s{sT0}, {LA}
v_add_u32 v{vB0}, s{sT0}, v1
v_add_u32 v{vB1}, 0x10000, v{vB0}
s_lshl_b32 s{sT0}, s{sG}, 11
s_add_u32 s{sT0}, s{sT0}, {LR}
v_add_u32 v{vQA}, s{sT0}, v1
s_lshl_b32 s{sT0}, s{sG}, 12
s_add_u32 s{sT0}, s{sT0}, {MERGE}
v_add_u32 v{vMG}, s{sT0}, v1
s_lshl_b32 s{sT1}, s{sW}, 2
s_add_u32 s{sT1}, s{sT1}, {BADF}
v_mov_b32 v{vBW}, s{sT1}
s_lshl_b32 s{sT3}, s{sQT}, 2
s_add_u32 s{sT3}, s{sT3}, s{sG}
s_lshl_b32 s{sT0}, s{sT3}, 4
s_add_u32 s{sT0}, s{sT0}, s{sH}
s_lshl_b32 s{sT0}, s{sT0}, 11
s_add_u32 s{sOO}, s{sT0}, {OF}
s_lshl4_add_u32 s{sT0}, s{sH}, s{sQT}
s_lshl3_add_u32 s{sT0}, s{sT0}, s{sW}
s_lshl_b32 s{sT0}, s{sT0}, 10
s_add_u32 s{sQO}, s{sT0}, {QF}
v_cmp_eq_u32 vcc, 0, v135
s_waitcnt lgkmcnt(0)
s_mul_i32 s{sNON}, s{sED}, 1664525
s_add_u32 s{sNON}, s{sNON}, 1013904223
s_lshl_b32 s{sT0}, s{sDV}, 16
s_and_b32 s{sT1}, s{sDV}, 0xffff0000
v_mov_b32 v133, s{sT0}
v_mov_b32 v134, s{sT1}
v_cndmask_b32 v{vD}, v134, v133, vcc
v_mov_b32 v{vNON}, s{sNON}
s_lshl_b32 s{sT0}, s{sT7}, 10
s_add_u32 s{sCL}, s{sOO}, s{sT0}
s_and_b32 s{sT0}, s{sW}, 6
s_add_u32 s{sT0}, s{sT0}, s{sW}
s_lshl_b32 s{sK0}, s{sT0}, 11
"""
CNT = 65520

a(IDS_G + srdc(((X_, 1835008), (WQ, 1204224))) + f"""
v_lshrrev_b32 v128, 3, v0
s_lshl_b32 s{sT0}, s{sTT}, 5
v_add_u32 v128, s{sT0}, v128
v_mul_u32_u24 v128, 896, v128
v_and_b32 v129, 7, v0
v_xor_b32 v129, v129, v130
v_lshl_add_u32 v{vXD}, v129, 4, v128
v_xor_b32 v129, 4, v129
v_lshl_add_u32 v{vXD+1}, v129, 4, v128
v_add_u32 v{vXD+1}, {7168-1024}, v{vXD+1}
v_add_u32 v{vXD+2}, {14336-2048}, v{vXD}
v_add_u32 v{vXD+3}, {14336-2048}, v{vXD+1}
""")
if OPT.get("rt"): a(f"""
s_lshr_b32 s{sT3}, s2, 6
s_mul_i32 s{sT3}, s{sT3}, {OPT.get("rc", 1)}
s_add_u32 s{sT3}, s{sT3}, s{sJ}
s_and_b32 s{sT3}, s{sT3}, 7
s_lshl_b32 s{sT3}, s{sT3}, 2
s_lshr_b32 s{sI}, {int(str(OPT["rt"]), 16):#x}, s{sT3}
s_and_b32 s{sI}, s{sI}, 7
""")
a("s_waitcnt lgkmcnt(0)")
stamp(0)
def wbase(st): return LP + 12288 * st if st < 2 else 12288 * (st - 2)
RT = OPT["rt"]
def rot(dst, st, mul):
    if not RT: return f"s_mov_b32 s{dst}, {st*mul}\n"
    return f"s_add_u32 s{dst}, s{sI}, {st}\ns_cmp_ge_u32 s{dst}, 7\ns_cselect_b32 s{sSP}, 7, 0\ns_sub_u32 s{dst}, s{dst}, s{sSP}\ns_mul_i32 s{dst}, s{dst}, {mul}\n"
def dma_x(st):
    p = [f"buffer_load_dwordx4 v{vXD+i}, {srd(X_)}, s{sSO} offen offset:{1024*i} lds" for i in range(4)]
    p[0] = f"s_add_u32 m0, s{sLX}, {4096*(st&3)}\n" + rot(sSO, st, 128) + p[0]
    return p
def dma_w(st):
    p = [f"buffer_load_dwordx4 v{vWD+q}, {srd(WQ)}, s{sSO2} offen offset:{1024*q} lds" for q in range(3)]
    p[0] = f"s_add_u32 m0, s{sLW}, {wbase(st)}\n" + rot(sSO2, st, 64*2688) + p[0]
    return p
def sprinkle(pieces, text):
    L = [x.replace(" | ", "\n") for x in text.strip().split("\n") if x.strip()]
    n = len(pieces)
    for k, p in enumerate(pieces):
        a(p)
        for x in L[len(L) * k // n: len(L) * (k + 1) // n]: a(x)
WADDR = f"""
s_mul_i32 s{sT0}, s{sJ}, 168
s_and_b32 s{sT0}, s{sT0}, -16
s_mul_i32 s{sT2}, s{sG}, {16*2688}
s_add_u32 s{sT0}, s{sT0}, s{sT2}
s_mul_i32 s{sLW}, s{sG}, 3072
"""
for q in range(3):
    WADDR += f"""
v_add_u32 v128, {64*q}, v0
v_mul_u32_u24 v129, 43691, v128
v_lshrrev_b32 v129, 19, v129
v_mul_u32_u24 v131, 12, v129
v_sub_u32 v128, v128, v131
v_min_u32 v128, 10, v128
v_mul_u32_u24 v129, 2688, v129
v_lshl_add_u32 v128, v128, 4, v129
v_add_u32 v{vWD+q}, s{sT0}, v128
""" + (f"s_sub_u32 s{sT0}, s{sT0}, 1024" if q < 2 else "")
for p in dma_x(0): a(p)
a("s_branch L_loader\nL_uprep:")
a("s_setprio 3\n" + IDS_U + srdc(((K_, 1835008), (V_, 1835008), (SK, 3584))) + f"""
v_subrev_u32 v135, 2688, v{vGA}
s_lshl_b32 s{sT1}, s{sT1}, 2
v_lshl_add_u32 v137, v{vCP}, 4, s{sT1}
s_movk_i32 s{sT5}, 3584
s_waitcnt lgkmcnt(0)
""")
stamp(0)
a(f"buffer_load_dwordx4 {v(SR,4)}, v137, {srd(SK)}, 0 offen")
for i in range(3): a(f"buffer_load_dword v{KR+i}, v135, {srd(K_)}, 0 offen offset:{896*i}")
for i in range(8): a(f"buffer_load_dword v{KR+3+i}, v{vGA}, {srd(K_)}, {'0' if i<4 else s(sT5)} offen offset:{896*(i&3)}")
for i in range(8): a(f"buffer_load_dword v{VR+i}, v{vGA}, {srd(V_)}, {'0' if i<4 else s(sT5)} offen offset:{896*(i&3)}")
a("s_setprio 0\n" + IDS_G + COMMON.replace(" | ", "\n") + f"""
s_sub_u32 s{sUS}, s{sUT}, {ZZ-UU}
s_lshl_b32 s{sT4}, s{sG}, 11
s_add_u32 s{sT4}, s{sT4}, {LP+24576}
v_and_b32 v136, 7, v{vCP}
v_lshlrev_b32 v136, 4, v136
v_xor_b32 v136, v136, v{vZL}
v_add_u32 v136, s{sT4}, v136
v_xor_b32 v138, 64, v136
v_lshlrev_b32 v137, 4, v137
v_xor_b32 v137, v137, v1
v_add_u32 v137, s{sT4}, v137
s_and_b32 s{sT6}, s{sJ}, 1
s_lshl_b32 s{sT6}, s{sT6}, 3
""")
a.c("---- QKV projection: 32 tokens x 3 head blocks per wave")
a(f"""
v_and_b32 v128, 31, v0
v_bfe_u32 v129, v0, 1, 3
v_xor_b32 v129, v129, v131
v_lshlrev_b32 v128, 7, v128
v_lshl_add_u32 v128, v129, 4, v128
v_add_u32 v{vXB}, s{sLX}, v128
v_bfe_u32 v128, v0, 2, 2
v_lshl_add_u32 v128, v131, 3, v128
v_mul_u32_u24 v128, 192, v128
v_and_b32 v129, 1, v130
v_lshl_add_u32 v128, v129, 5, v128
v_lshl_add_u32 v128, v132, 3, v128
s_add_u32 s{sT6}, s{sT6}, {LP}
v_add_u32 v{vWR}, s{sT6}, v128
v_mov_b32 v{vXR}, v{vXB}
v_mov_b32 v{vPB}, 0
v_xor_b32 v{vXR+1}, 32, v{vXB}
v_xor_b32 v{vXR+2}, 64, v{vXB}
v_xor_b32 v{vXR+3}, 0x60, v{vXB}
""")
a(f"s_lshr_b32 s{sT0}, s{sTT}, 2\ns_lshl4_add_u32 s{sT0}, s{sJ}, s{sT0}\ns_lshl_b32 s{sT0}, s{sT0}, {FS}\ns_add_u32 s{sFL}, s{sT0}, {FB}")
a(f"s_mul_i32 s{sT7}, s{sJ}, 3")
for b in range(3):
    a(f"""
s_add_u32 s{sT3}, s{sT7}, {b}
s_and_b32 s{sT0}, s{sT3}, 15
s_lshl_b32 s{sT0}, s{sT0}, 6
s_add_u32 s{sT0}, s{sT0}, s{sTT}
s_cmp_lt_u32 s{sT3}, 16
s_cselect_b32 s{sT1}, 11, 12
s_mov_b32 s{sT2}, {KV}
s_cselect_b32 s{sT2}, {QF}, s{sT2}
s_lshl_b32 s{sT0}, s{sT0}, s{sT1}
s_add_u32 s{sE0+b}, s{sT0}, s{sT2}
""")
a(f"""
s_mov_b32 s{sKP}, {ONES}
s_movk_i32 s{sKP+1}, 0x3f80
s_mov_b32 s{sQS}, {QSCALE:#x}
s_mov_b32 s{sQS+1}, {QSCALE:#x}
s_mov_b32 s{sM1}, 0xf0000000
s_mov_b32 s{sM1+1}, 0xf0000000
s_mov_b32 s{sM2}, {ONES}
s_mov_b32 s{sM2+1}, {ONES}
""")
for r in list(range(ACC, ACC + 48, 2)) + list(range(RS + 16, RS + 64, 2)): a(f"v_mov_b64 {v(r,2)}, 0")
a(f"s_mov_b32 s{sI}, 0\ns_setprio 2\ns_waitcnt vmcnt(8)")
stamp(2)
for j in range(4):
    for p in range(2):
        src = SR + 2 * p + (j >> 1)
        a(f"v_lshlrev_b32 v{WF+2*j+p}, 16, v{src}" if j % 2 == 0 else f"v_and_b32 v{WF+2*j+p}, 0xffff0000, v{src}")
for i in range(11): a(f"v_lshlrev_b32 v{KF+2*i}, 16, v{KR+i}\nv_and_b32 v{KF+2*i+1}, 0xffff0000, v{KR+i}")
for t in range(8): a(f"v_pk_mul_f32 {v(UA+2*t,2)}, {v(KF+2*t,2)}, {v(WF+6,2)}")
for j in (2, 1, 0):
    for t in range(8): a(f"v_pk_fma_f32 {v(UA+2*t,2)}, {v(KF+2*(t+3-j),2)}, {v(WF+2*j,2)}, {v(UA+2*t,2)}")
a("s_waitcnt vmcnt(0)")
for i in range(8): a(f"v_lshlrev_b32 v{VF+2*i}, 16, v{VR+i}\nv_and_b32 v{VF+2*i+1}, 0xffff0000, v{VR+i}")
for t in range(8): a(f"v_pk_mul_f32 {v(UA+2*t,2)}, {v(UA+2*t,2)}, {v(VF+2*t,2)}")
for p in range(2):
    for m in range(4): a(f"v_cvt_pk_bf16_f32 v{UP+4*p+m}, v{UA+2*(7-2*m)+p}, v{UA+2*(6-2*m)+p}")
    a(f"ds_write_b128 v{136+2*p}, {v(UP+4*p,4)}")
a(f"""
s_waitcnt lgkmcnt(0)
ds_read_b128 {v(UP,4)}, v137
ds_read_b128 {v(UP+4,4)}, v137 offset:1024
s_waitcnt lgkmcnt(1)
buffer_store_dwordx4 {v(UP,4)}, v1, {srd(WS)}, s{sUS} offen sc1
s_mov_b32 exec_hi, 0xffff
s_waitcnt lgkmcnt(0)
buffer_store_dwordx4 {v(UP+4,4)}, v1, {srd(WS)}, s{sUS} offen offset:1024 sc1
s_mov_b32 exec_hi, -1
""")
stamp(3)
a(f"""
s_cmp_eq_u32 s{sJ}, 10
s_cbranch_scc1 L_gemm1
s_cmp_gt_u32 s{sJ}, 10
s_cbranch_scc1 L_gemm2
""")
def g_reads(ks):
    r = RS + 16 * ks
    out = [f"ds_read_b128 {v(r,4)}, v{vXR+ks}"]
    for b in range(3):
        for t in range(2):
            out.append(f"ds_read_b64_tr_b16 {v(r+4+4*b+2*t,2)}, v{vWR} offset:{(16*ks+4*t)*192+56*b}")
    return out
def g_mfma(ks, isv):
    r = RS + 16 * ks
    return [mfma32(ACC+16*b, r, r+4+4*b, ACC+16*b) if isv[b] else mfma32(ACC+16*b, r+4+4*b, r, ACC+16*b) for b in range(3)]
for var, isv in enumerate(((0,0,0), (0,0,1), (1,1,1))):
    m = [g_mfma(k, isv) for k in range(4)]
    rd = g_reads(0) + g_reads(1) + g_reads(2) + g_reads(3)
    a(f"L_gemm{var}:\n{m[1][2]}\ns_barrier")
    seq = m[2] + m[3] + m[0] + m[1][:1]
    for k, x in enumerate(seq):
        if k == 6: a("s_waitcnt lgkmcnt(11)")
        if k == 9: a("s_waitcnt lgkmcnt(13)")
        a("\n".join([x] + rd[3*k:3*k+3]))
    a(f"""
s_cmp_eq_u32 s{sI}, 1
s_movk_i32 s{sT1}, 12288
s_cselect_b32 s{sT1}, {(-LP-12288) & 0xffffffff}, s{sT1}
s_add_u32 s{sI}, s{sI}, 1
s_and_b32 s{sT0}, s{sI}, 3
s_lshl_b32 s{sT0}, s{sT0}, 12
{m[1][1]}
v_add_u32 v{vWR}, s{sT1}, v{vWR}
v_xor_b32 v{vXR}, s{sT0}, v{vXB}
v_xor_b32 v{vXR+1}, 32, v{vXR}
v_xor_b32 v{vXR+2}, 64, v{vXR}
v_xor_b32 v{vXR+3}, 0x60, v{vXR}
s_cmp_lt_u32 s{sI}, 7
s_waitcnt vmcnt(0) lgkmcnt(0)
s_cbranch_scc1 L_gemm{var}
""")
    a("\n".join([m[2][0], m[1][2], m[3][0], m[2][1], m[2][2], m[3][1], m[3][2]]))
    stamp(1)
    a.c("epilogue: scale Q, pack to bf16 fragments, patch the pad slots, publish")
    for b in range(3):
        pk = 128 + 8 * b
        padp = sKP
        if var == 0:
            padp = sM1
            a(f"s_cmp_lt_u32 s{sT7}, {16-b}\ns_cselect_b64 {s(sM1,2)}, 0, {s(sKP,2)}\ns_cbranch_scc0 L_nosc{b}")
            for r in range(0, 16, 2): a(f"v_pk_mul_f32 {v(ACC+16*b+r,2)}, {v(ACC+16*b+r,2)}, {s(sQS,2)}")
            a.label(f"L_nosc{b}")
        for r in range(8): a(f"v_cvt_pk_bf16_f32 v{pk+r}, v{ACC+16*b+2*r}, v{ACC+16*b+2*r+1}")
        if isv[b]:
            a(f"s_mov_b64 exec, {s(sM1,2)}")
            for r in range(0, 8, 2): a(f"v_mov_b64 {v(pk+r,2)}, {s(sM2,2)}")
        else: a(f"s_mov_b32 exec_lo, 0\nv_mov_b64 {v(pk+6,2)}, {s(padp,2)}")
        o = 2048 * isv[b]
        a(f"""
s_mov_b64 exec, -1
buffer_store_dwordx4 {v(pk,4)}, v1, {srd(WS)}, s{sE0+b} offen offset:{o} sc1
buffer_store_dwordx4 {v(pk+4,4)}, v1, {srd(WS)}, s{sE0+b} offen offset:{o+1024} sc1
""")
    a("s_branch L_conv")

a.label("L_loader")
HELP = f"""
v_mov_b32 v133, {CNT}
v_mov_b32 v134, 0
ds_write_b32 v133, v134
v_min_u32 v133, 2, v130
v_lshl_add_u32 v133, v133, 4, s{sH}
v_mul_u32_u24 v133, 21846, v133
v_lshrrev_b32 v133, 16, v133
v_mov_b32 v134, s{sQT}
v_cmp_gt_u32 vcc, 16, v0
s_lshl_b32 s{sT0}, s{sCG}, 6
s_add_u32 s{sT0}, s{sT0}, s{sRT}
s_lshl_b32 s{sT0}, s{sT0}, {FS}
s_add_u32 s{sFL}, s{sT0}, {FA}
v_cndmask_b32 v134, v139, v134, vcc
v_lshl_add_u32 v133, v133, 4, v134
v_lshlrev_b32 v133, {FS}, v133
v_add_u32 v{vPB}, {FB}, v133
s_mul_i32 s{sT0}, s{sC}, 1171
s_lshr_b32 s{sT0}, s{sT0}, 16
s_lshl2_add_u32 s{sT0}, s{sT0}, s{sG}
s_lshl_b32 s{sT0}, s{sT0}, {4+FS}
s_add_u32 s{sT0}, s{sT0}, {FA}
v_lshl_add_u32 v{vPA}, v139, {FS}, s{sT0}
v_lshrrev_b32 v133, 2, v0
v_mul_u32_u24 v133, 28672, v133
v_lshl_add_u32 v{vUD}, v132, 4, v133
s_mul_i32 s{sT0}, s{sG}, {16*28672}
s_lshl_b32 s{sT1}, s{sC}, 7
s_add_u32 s{sT0}, s{sT0}, s{sT1}
s_add_u32 s{sUO}, s{sT0}, {UU}
v_bfe_u32 v138, v0, 1, 2
v_mul_u32_u24 v138, {HP}, v138
v_and_b32 v139, 1, v0
v_lshl_add_u32 v138, v139, 4, v138
v_add_u32 v139, {UOFF}, v1
v_cmp_gt_u32 vcc, 32, v0
v_mov_b64 v[140:141], 0
v_mov_b64 v[142:143], 0
v_cndmask_b32 v138, v138, v139, vcc
v_add_u32 v139, {LP}, v138
{srdc(((HK, 1835008),))}
s_lshl_b32 s{sT3}, s{sC}, 13
s_lshl_b32 s{sT4}, s{sG}, 10
s_add_u32 s{sT3}, s{sT3}, s{sT4}
v_add_u32 v11, s{sT3}, v1
v_add_u32 v{vHO}, s{sT4}, v1
v_subrev_u32 v12, 8, v11
v_cmp_eq_u32 vcc, 0, v{vHO}
v_mov_b32 v136, 0xffffe000
s_movk_i32 s{sT7}, 4096
v_cndmask_b32 v12, v12, v136, vcc
"""
def hprep(p):
    R = H0 + 8 * p; T = 40 + 12 * p
    a(f"v_add_u32 v{134+p}, {(LP if p else LX)+32}, v{vHO}")
    for i in range(4): a(f"v_alignbit_b32 v{T+i}, v{R+2+i}, v{R+1+i}, 16")
    for i in range(4): a(f"v_mov_b32 v{T+4+i}, v{R+1+i}")
    for i in range(4): a(f"v_alignbit_b32 v{T+8+i}, v{R+1+i}, v{R+i}, 16")
def hwrite(p):
    R = H0 + 8 * p; T = 40 + 12 * p
    a(f"ds_write_b128 v{134+p}, {v(R+2,4)}")
    for c in range(1, 4): a(f"ds_write_b128 v{134+p}, {v(T+4*(c-1),4)} offset:{HP*c}")
    a.c("zero pads: lanes 0-31 the u pad, lanes 32-39 the h pads")
    a(f"ds_write_b128 v{138+p}, {v(140,4)}")
def u_dma():
    a(f"""
s_lshl_b32 s{sT2}, s{sG}, 10
s_add_u32 m0, s{sT2}, {LX+UOFF+512}
s_add_u32 s{sT1}, s{sUO}, 64
buffer_load_dwordx4 v{vUD}, {srd(WS)}, s{sUO} offen sc1 lds
s_add_u32 m0, s{sT2}, {LP+UOFF+512}
s_nop 0
buffer_load_dwordx4 v{vUD}, {srd(WS)}, s{sT1} offen sc1 lds
""")

a(WADDR)
HL = [f"buffer_load_dwordx{2+2*k} {v(H0+8*p+2*k,2+2*k)}, v{12-k}, {srd(HK)}, {s(sT7) if p else 0} offen" for p in range(2) for k in range(2)]
rest = [(0, p) for p in dma_w(0)] + [(st, p) for st in range(1, 7) for p in dma_w(st) + dma_x(st)]
HPOS = 3 + 7 * OPT.get("hst", 4)
rest[HPOS:HPOS] = [(9, x) for x in HL]
rest.append((8, f"buffer_load_dword v144, v{vPA}, {srd(WS)}, 0 offen sc1"))
calc = [x.replace(" | ", "\n") for x in (IDS_U + COMMON + HELP).strip().split("\n") if x.strip()]
NC = min(HPOS, 17); LAGS = [int(x, 36) for x in SOPT.get("lags", "eedc97")]
issued = [0] * 4; n = 0
def bar(n):
    young = len(issued) - 1 - max(k for k, st in enumerate(issued) if st == n)
    if n == 0: stamp(1)
    a(f"s_waitcnt vmcnt({young})\ns_barrier")
    if n < 6: stamp(9 + n, 2)
    if n == 1:
        assert len(issued) >= NC + 4
        a.c("waves 0-3 waited for their u stores before this barrier")
        a(f"s_cmp_lg_u32 s{sW}, 4\ns_cbranch_scc1 L_nsa")
        signal(f"s{sFL}")
        a.label("L_nsa")
for k, (st, p) in enumerate(rest):
    assert st > 7 or "s[8:11]" in p or st - 4 < n - 1
    a(p); issued.append(st)
    if k < NC:
        for x in calc[len(calc) * k // NC: len(calc) * (k + 1) // NC]: a(x)
    if n < 6 and issued.count(n) == 7 and len(issued) - 1 - max(q for q, s_ in enumerate(issued) if s_ == n) >= LAGS[n]:
        bar(n); n += 1
while n < 6: bar(n); n += 1
EARLYH = OPT.get("hst", 4) < 5
HW = OPT.get("hw", 0)
if EARLYH: hprep(1); hwrite(1)
if HW: hprep(0)
bar(6)
if HW: hwrite(0)
a(f"s_waitcnt vmcnt(0)\nv_cmp_ne_u32 vcc, s{sNON}, v144\ns_cbranch_vccz L_uok")
poll(vPA, 144)
a("L_uok:")
u_dma()
stamp(4)
if not EARLYH: hprep(1); hwrite(1)
if not HW: hprep(0); hwrite(0)
a("s_setprio 1\ns_waitcnt vmcnt(0) lgkmcnt(0)")
def ldq():
    for i in range(8): a(f"buffer_load_dword v{QR+i}, v{vGA}, {srd(Q_)}, {'0' if i<4 else s(sT5)} offen offset:{896*(i&3)}")

a.label("L_conv")
CAC, CU, FA_, FB_ = 16, 48, 64, 128
a.c("---- long causal conv as block-Toeplitz MFMA: channel = wave>>2, lag phases split over wave&3")
a("s_barrier")
stamp(5)
def c_readA(i, r): return [f"ds_read_b64 {v(FA_+32*i+4*r+2*t,2)}, v{vCA} offset:{512*r+64*i+8*t}" for t in range(2)]
def c_readB(i, x): return [f"ds_read_b128 {v(FB_+32*i+4*x,4)}, v{vCB} offset:{512*x+64*(1-i)}"]
def c_m(i, nt, r, first=False): return mfma16(CAC+4*nt, FA_+32*i+4*r, FB_+32*i+4*(nt-r), "0" if first else CAC+4*nt)
lq = LQ()
rds = [x for i in range(2) for k in range(8) for x in c_readA(i, k) + c_readB(i, k)] + [f"ds_read_b128 {v(CU,4)}, v{vCU}"]
for x in rds[:15]: lq(x)
rds = rds[15:]
seen = set(); prev = -1
for k in range(8):
    grp = [(r, x) for r in range(k + 1) for x in range(k + 1) if max(r, x) == k and r + x <= 7]
    while grp:
        r, x = next((p for p in grp if p[0] + p[1] != prev), grp[0]); grp.remove((r, x))
        lq(c_m(0, r + x, r, first=(r + x) not in seen)); seen.add(r + x); prev = r + x
        if rds: lq(rds.pop(0))
assert not rds
stamp(9, 3)
a(f"""
s_cmp_ge_u32 s{sW}, 4
s_cbranch_scc1 L_cm
s_setprio 0
v_mov_b32 v52, {CNT}
v_mov_b32 v53, 1
s_mov_b64 exec, 1
s_waitcnt vmcnt(0)
ds_add_rtn_u32 v53, v52, v53
s_waitcnt lgkmcnt(0)
v_cmp_eq_u32 vcc, 3, v53
s_cbranch_vccz L_cnl
buffer_store_dword v{vNON}, v1, {srd(WS)}, s{sFL} offen sc1
L_cnl:
s_mov_b64 exec, -1
""")
stamp(4)
a.label("L_cm")
lq.drain()
a("s_barrier")
stamp(10, 3)
pend = []; cnt = 0; PP = ((36,), (25, 36), (14, 25, 36))[OPT.get("pp", 3) - 1]
for n0 in range(0, 8, 2):
    ms = []
    for r in range(n0 + 2):
        ms.append(c_m(1, n0 + 1, r))
        if r <= n0: ms.append(c_m(1, n0, r))
    for m_ in ms:
        a(m_); cnt += 1
        pend = [(w, n + 1) for w, n in pend]
        if pend and pend[0][1] >= 8: a(pend.pop(0)[0])
    for nt in (n0, n0 + 1): pend.append((f"ds_write_b128 v{vCW}, {v(CAC+4*nt,4)} offset:{1024*nt}", 0))
for t in range(8):
    m = (7 - t) // 2
    a(f"v_lshlrev_b32 v{56+t}, 16, v{CU+m}" if t % 2 else f"v_and_b32 v{56+t}, 0xffff0000, v{CU+m}")
a("v_and_b32 v126, 7, v0\nv_lshlrev_b32 v130, 3, v0\nv_mov_b64 v[128:129], 0")
for w, n in pend: a(w)
stamp(6)
a(f"s_cmp_lg_u32 s{sW}, 4\ns_cbranch_scc1 L_cred")
poll(vPB, 52)
a.label("L_cred")
a("s_waitcnt lgkmcnt(0)\ns_barrier")
stamp(7)
S1 = [int(x) for x in SOPT.get("s1", "400")]
def kvp(i): return f"buffer_load_dwordx4 v1, {srd(WS)}, s{sSO} offen offset:{1024*i} sc1 lds"
def kv_stage(n, cnt=4):
    a(f"s_add_u32 m0, s{sKL}, {LA+32768*n}\ns_add_u32 s{sSO}, s{sKS}, {32768*n}")
    for i in range(cnt): a(kvp(i))
a.c("behind that barrier every wave knows the QKV flags matched: Q and the first tiles go first")
a(f"""
s_setprio 0
s_lshl_b32 s{sT5}, s{sW}, 10
s_add_u32 m0, s{sT5}, {LR}
s_add_u32 s{sSO}, s{sKVB}, s{sK0}
buffer_load_dwordx4 v1, {srd(WS)}, s{sQO} offen sc1 lds
s_add_u32 m0, s{sK0}, {LA}
s_add_u32 s{sSO2}, s{sSO}, 4096
buffer_load_dwordx4 v1, {srd(WS)}, s{sSO} offen sc1 lds
buffer_load_dwordx4 v1, {srd(WS)}, s{sSO} offen offset:1024 sc1 lds
s_add_u32 m0, s{sK0}, {LA+4096}
""")
for q in range(4):
    for i in range(2): a(f"ds_read_b128 {v(64+8*q+4*i,4)}, v{vCR} offset:{8192*q+256*i}")
a(f"""
buffer_load_dwordx4 v1, {srd(WS)}, s{sSO2} offen sc1 lds
buffer_load_dwordx4 v1, {srd(WS)}, s{sSO2} offen offset:1024 sc1 lds
""")
stamp(11, 3)
a("s_waitcnt lgkmcnt(4)")
for t in range(8): a(f"v_fma_f32 v{56+t}, v{56+t}, v{vD}, v{64+t}")
for t in range(0, 8, 2): a(f"v_pk_add_f32 {v(56+t,2)}, {v(56+t,2)}, {v(72+t,2)}")
a("s_waitcnt lgkmcnt(0)")
a.c("wave 0 alone reads the first 128 bytes: it clears the progress bytes of the key loop behind its reads")
a(f"""
s_cmp_lg_u32 s{sW}, 0
s_cbranch_scc1 L_nclr
s_mov_b64 exec, 0xffff
ds_write_b64 v130, v[128:129]
s_mov_b64 exec, -1
L_nclr:
""")
for t in range(0, 8, 2): a(f"v_pk_add_f32 {v(80+t,2)}, {v(80+t,2)}, {v(88+t,2)}")
for t in range(0, 8, 2): a(f"v_pk_add_f32 {v(56+t,2)}, {v(56+t,2)}, {v(80+t,2)}")
for m in range(4): a(f"v_cvt_pk_bf16_f32 v{104+m}, v{56+2*m}, v{57+2*m}")
a("v_mov_b64 v[108:109], -1\nv_mov_b64 v[110:111], -1")
stamp(12, 3)
kv_stage(1, S1[0])
a(f"""
v_mov_b32 v124, s{sW}
s_and_b32 s{sT0}, s{sW}, 4
v_and_or_b32 v125, v0, 3, s{sT0}
s_lshr_b32 s{sT0}, s2, 3
s_mul_i32 s{sT0}, s{sT0}, 3
s_add_u32 s{sT0}, s{sT0}, s{sG}
s_lshl_b32 s{sT0}, s{sT0}, 12
s_add_u32 s{sT0}, s{sT0}, {128*896 if OPT.get("wp", 1) else 1<<20}
v_lshl_add_u32 v131, v0, 6, s{sT0}
v_xor_b32 v180, 2048, v{vQA}
s_add_u32 s{sT0}, s{sKL}, {LR}
v_add_u32 v181, s{sT0}, v1
v_xor_b32 v182, 4096, v181
""")
stamp(13, 3)
a(f"s_waitcnt vmcnt({2+S1[0]})")
stamp(14, 3)

MODS = ("", " sc1", " nt", " sc0 sc1", " sc1 nt"); GS, OS = MODS[OPT.get("gs", 0)], MODS[OPT.get("os", 0)]
WS0 = 128
vFW, vFG, vF8, vFT = 124, 125, 126, 127
vQ, vK, vV, vP, vSa, vSb, vO, vM, vKC, vZR, vFC = 16, 24, 32, 40, 48, 64, 80, 14, 96, 248, 120
a.c("---- attention: S^T = K Q^T - m (m rides in the pad slots), P = exp2, O^T += V^T P^T (row 28 = sum)")
a(f"""
L_att:
s_cmp_lg_u32 s{sTRY}, 0
s_barrier
""")
stamp(8)
QQ, OO, MM, vVL, vQB, vW0, vR0 = (132, vQ), (148, vO), (183, vM), 164, 180, 181, 182
def kvaddr(T, f):
    o = 32768 * ((T >> 1) & 3) + 4096 * (T & 1) + 1024 * f
    return f"v{vB0 if o < 65536 else vB1} offset:{o & 65535}"
def rdK(T, f): return f"ds_read_b128 {v(vK+4*f,4)}, {kvaddr(T, f)}"
def rdV(T, f): return f"ds_read_b128 {v(vV+4*f,4)}, {kvaddr(T, 2+f)}"
def wo_piece(g): return [f"s_add_u32 m0, s{sWM}, {WS0+7168*g}", f"s_mov_b32 s{sSO2}, {28672*g}", f"buffer_load_dwordx4 v{vWOA}, {srd(WO)}, s{sSO2} offen lds"]
def pieces(n):
    out = []
    if n == 1:
        out += [[f"buffer_store_dwordx4 {v(104,4)}, v{vZ}, {srd(WS)}, s{sZO} offen sc1"], [f"buffer_store_dwordx4 {v(108,4)}, v1, {srd(WS)}, s{sCL} offen sc1"]]
    if n < 6:
        for i in range(4):
            p = [f"buffer_load_dwordx4 v1, {srd(WS)}, s{sSO} offen offset:{1024*i} sc1 lds"]
            if i == 0: p = [f"s_add_u32 m0, s{sKL}, {LA+32768*((n+2)&3)}", f"s_add_u32 s{sSO}, s{sKS}, {32768*(n+2)}"] + p
            out.append(p)
        if n >= 2: out.append(wo_piece(n - 2))
    elif n < 8: out = [wo_piece(4 + 5 * (n - 6) + i) for i in range(5)]
    return out
def maxtree(S, dst, have):
    a(f"v_max3_f32 v{dst}, v{S}, v{S+1}, v{dst}" if have else f"v_max_f32 v{dst}, v{S}, v{S+1}")
    for i in range(2, 16, 2): a(f"v_max3_f32 v{dst}, v{S+i}, v{S+i+1}, v{dst}")
p0 = pieces(0)
a(f"""
s_cbranch_scc1 L_haveq
ds_read_b128 {v(QQ[0],4)}, v{vQB}
ds_read_b128 {v(vKC,4)}, v1 offset:{LA}
ds_read_b128 {v(QQ[0]+4,4)}, v{vQB} offset:1024
ds_read_b128 {v(vKC+4,4)}, v1 offset:{LA+1024}
ds_read_b128 {v(vQ,4)}, v{vQA}
ds_read_b128 {v(vQ+4,4)}, v{vQA} offset:1024
L_haveq:
{rdK(0,0)}
{rdK(0,1)}
{rdV(0,0)}
{chr(10).join(kvp(i) for i in range(S1[0], S1[0]+S1[1]))}
s_cbranch_scc1 L_havem
s_waitcnt lgkmcnt(7)
{mfma32(vSb, vKC, QQ[0], "0")}
s_waitcnt lgkmcnt(5)
{mfma32(vSb, vKC+4, QQ[0]+4, vSb)}
s_waitcnt lgkmcnt(3)
{mfma32(vO, vKC, vQ, "0")}
{mfma32(vO, vKC+4, vQ+4, vO)}
L_havem:
s_waitcnt lgkmcnt(0)
{mfma32(vSa, vK, QQ[0], "0")}
{chr(10).join(kvp(i) for i in range(S1[0]+S1[1], 4))}
""")
NM = OPT.get("nm", 2)
a("s_cbranch_scc1 L_hm")
for i in range(NM):
    for S_, m in ((vSb, MM[0]), (vO, MM[1])): a(f"v_max3_f32 v{m}, v{S_+2*i+1}, v{S_+(2*i+2)%16}, v{m if i else S_}")
a.c("lanes 0-31 split the shift of tile 0, lanes 32-63 that of tile 1, into three bf16 parts")
a(f"""
L_hm:
v_permlane32_swap_b32 v{MM[0]}, v{MM[1]}
v_max_f32 v96, v{MM[0]}, v{MM[1]}
v_xor_b32 v96, 0x80000000, v96
v_and_b32 v97, 0xffff0000, v96
v_sub_f32 v96, v96, v97
v_and_b32 v98, 0xffff0000, v96
v_sub_f32 v96, v96, v98
v_lshrrev_b32 v97, 16, v97
v_lshrrev_b32 v99, 16, v96
v_or_b32 v98, v97, v98
s_mov_b32 exec_lo, 0
v_mov_b64 {v(vQ+6,2)}, v[98:99]
s_mov_b32 exec_lo, -1
v_permlane32_swap_b32 v{QQ[0]+6}, v98
v_permlane32_swap_b32 v{QQ[0]+7}, v99
{mfma32(vSa, vK+4, QQ[0]+4, vSa)}
""")
lq = LQ()
a("s_waitcnt vmcnt(4)\ns_barrier")
stamp(9)
stamp(1, 4)
PRIO = {int(x, 16): 3 - i for i, x in enumerate(SOPT.get("pr", "07cf"))}
DSL = [int(x, 16) for x in SOPT.get("dsl", "89abc")]; DSL6 = [int(x, 16) for x in SOPT.get("dsl6", "0189ab")]; DSL7 = [int(x, 16) for x in SOPT.get("dsl7", "01234")]; S7 = OPT.get("s7", 14); DSL0 = [int(x, 16) for x in SOPT.get("dsl0", "89ab")]
todo = dict(zip(DSL0, p0)); since = 0
def sub(T): return T & 1 if T < 28 else (T >> 1) & 1
def fr(T, f): return (vVL if T in (29, 31) else vK) + 4 * f
LAST = {(27, 0): 0, (27, 1): 1, (27, 2): 2, (28, 0): 3}
RS_ = OPT.get("rs", 13); QS = OPT.get("qs", 14); CW = OPT.get("cw", 2); BP = OPT.get("bp", 120)
def fl_read(i): return f"ds_read_u8 v{vFT}, v{vF8 if i in (3, 6, 7) else vFG} offset:{8*(i-1)}"
a.c("no barriers in the loop: a wave posts a byte once its DMA of the next stage landed and it left the stage before; readers check half a stage later")
for T in range(32):
    S, Sn = (vSa, vSb) if T % 2 == 0 else (vSb, vSa)
    n = (T + 2) >> 2
    if T & 3 == 2:
        if n == 8: pass
        elif OPT.get("spi", 0): a(f"s_cbranch_vccz L_spr{n}\nL_sp{n}:\n{fl_read(n)}\ns_waitcnt lgkmcnt(0)\nv_cmp_eq_u32 vcc, 0, v{vFT}\ns_cbranch_vccnz L_sp{n}\nL_spr{n}:")
        else: a(f"s_cbranch_vccnz L_sp{n}\nL_spr{n}:")
        if DIAG and OPT.get("set") == 4:
            if n > 1: a(f"s_mov_b32 s{sST+(7+n if n < 8 else 2)}, s96")
            if n < 8: a("s_memtime s[96:97]")
        pc = pieces(n); assert not todo
        todo = dict(zip(DSL7 if n == 7 else [x + 2 for x in DSL] if n == 6 else DSL if len(pc) < 6 else DSL6, pc)); since = 0
    for k in range(4):
        sl = (4 * T + k + 8) & 15
        if 4 * T + k == BP: a(f"s_setprio 0\ns_cmp_lt_u32 s{sW}, 4\ns_cbranch_scc1 L_np\ns_setprio 3\nL_np:")
        if 4 * T + k == OPT.get("s8", 115): assert 4 * T + k >= 115; lq(f"ds_write_b8 v{vFW}, v108 offset:56")
        if sl in PRIO and 4 * T + k < BP or (T, k) == (0, 0): a(f"s_setprio {PRIO.get(sl, 2 if PRIO else 0)}")
        j = T >> 1
        if T == 31:
            if k == 0: a("s_cbranch_vccnz L_sp8\nL_spr8:")
            lq(f"ds_write_b128 v{vW0}, {v(OO[0]+4*k,4)} offset:{1024*k}")
        if k < 2:
            if T < 31: lq(mfma32(Sn, fr(T+1, k), QQ[sub(T+1)]+4*k, Sn if k else "0"))
            if T % 2 == 0 and j < 14: lq(rdK(j + 1, k))
        elif k == 2:
            if T > 0: lq(mfma32(OO[sub(T-1)], fr(T-1, 3), vP+4, OO[sub(T-1)]))
            if T % 2 == 0 and j < 15: lq(rdV(j, 1))
        else:
            lq(mfma32(OO[sub(T)], fr(T, 2), vP, "0" if T < 2 else OO[sub(T)]))
            if T % 2 and j < 14: lq(rdV(j + 1, 0))
        if (T, k) in LAST: lq(f"ds_read_b128 {v(vVL+4*LAST[T, k],4)}, {kvaddr(15, LAST[T, k])}")
        if sl == {0: OPT.get("s0", 12), 6: 10, 7: -1}.get(n, 8):
            if n == 4: assert since == 0; a(f"s_cmp_ge_u32 s{sW}, 4\ns_cbranch_scc1 L_w4\ns_waitcnt vmcnt(1)\nL_w4:\ns_waitcnt vmcnt(8)")
            elif n < 7: a(f"s_waitcnt vmcnt({since})")
            if n == 6: a(f"""
s_cmp_lg_u32 s{sW}, {CW}
s_cbranch_scc1 L_chkc_r
s_mov_b32 s{sSP}, {SPIN}
L_chkc1:
v_cmp_ne_u32 vcc, s{sNON}, v{vFC}
v_cmp_ne_u32 s[{sM1}:{sM1+1}], s{sNON}, v{vFC+1}
s_or_b64 s[{sM1}:{sM1+1}], vcc, s[{sM1}:{sM1+1}]
v_cmp_ne_u32 vcc, s{sNON}, v{vFC+2}
s_or_b64 s[{sM1}:{sM1+1}], vcc, s[{sM1}:{sM1+1}]
v_cmp_ne_u32 vcc, s{sNON}, v{vFC+3}
s_or_b64 vcc, vcc, s[{sM1}:{sM1+1}]
s_cbranch_scc1 L_chkc3
L_chkc2:
s_cmp_eq_u32 s2, 0
s_cbranch_scc1 L_epoch
L_chkc_r:
""")
            lq(f"ds_write_b8 v{vFW}, v108 offset:{8*n}" if OPT.get("nox", 1) else f"s_mov_b64 exec, 1\nds_write_b8 v{vFW}, v108 offset:{8*n}\ns_mov_b64 exec, -1")
        if sl == {0: 14, 6: 14, 7: -1, 8: 2}.get(n, RS_): lq(fl_read(min(n + 1, 8)))
        ex = [f"v_exp_f32 v{S+r}, v{S+r}" for r in range(4 * k, 4 * k + 4)]
        cv = [f"v_cvt_pk_bf16_f32 v{vP+r}, v{S+2*r}, v{S+2*r+1}" for r in range(2 * k, 2 * k + 2)]
        p = todo.pop(sl, []); since += len(p) > 0
        body = []
        for e in range(4):
            body.append(ex[e])
            if e < len(p): body.append(p[e])
        a("\n".join(body))
        if sl == {7: -1, 8: 3}.get(n, 15): lq(f"v_cmp_eq_u32 vcc, 0, v{vFT}")
        a("\n".join(cv))
        if sl == QS and n == 3:
            a.c("z and the slot marks are out (all waves posted): wave 3 raises the flag; waves 4-7 fetch the gate inputs")
            a(f"s_movk_i32 s{sT5}, 3584\ns_cmp_ge_u32 s{sW}, 4\ns_cbranch_scc1 L_ldq\ns_cmp_lg_u32 s{sW}, 3\ns_cbranch_scc1 L_wpf\ns_lshl_b32 s{sT0}, s2, 2\ns_add_u32 s{sT0}, s{sT0}, {FC}")
            signal(f"s{sT0}")
            a("s_branch L_ldq_r\nL_ldq:")
            ldq()
            a.c("waves 0-2 pull a slice of the wo rows that are staged last towards the cache")
            a(f"s_branch L_ldq_r\nL_wpf:\nbuffer_load_dword v{QR}, v131, {srd(WO)}, 0 offen\nL_ldq_r:")
            assert not todo
        if sl == 8 and n == 5:
            a.c("flags of all workgroups' z and slot marks (one word each)")
            a(f"s_cmp_lg_u32 s{sW}, {CW}\ns_cbranch_scc1 L_nfc\ns_movk_i32 s{sT0}, {FC}\nbuffer_load_dwordx4 {v(vFC,4)}, v1, {srd(WS)}, s{sT0} offen sc1\nL_nfc:")
        if sl == OPT.get("zs", 5) and n == 7:
            a(f"""
s_cmp_lt_u32 s{sW}, 4
s_cbranch_scc1 L_nz
buffer_load_dwordx4 {v(vZR,4)}, v{vZL}, {srd(WS)}, s{sUT} offen sc1
buffer_load_dwordx4 {v(vZR+4,4)}, v{vZL}, {srd(WS)}, s{sUT} offen offset:64 sc1
L_nz:
""")
lq(mfma32(vO, fr(31, 3), vP+4, vO))
a("s_setprio 0")
stamp(10)
stamp(3, 4)
a(f"""
s_mov_b32 s{sT2}, 0x5f800000
v_mov_b64 v[100:101], 0
v_mov_b64 v[102:103], 0
s_and_b32 s{sT1}, s{sW}, 1
s_mul_i32 s{sT1}, s{sT1}, 768
s_add_u32 s{sT1}, s{sT1}, {WS0+448*224}
v_add_u32 v99, s{sT1}, v1
s_cmp_lt_u32 s{sW}, 4
s_cbranch_scc1 L_mA
ds_write_b128 v99, {v(100,4)}
""")
for i in range(4): a(f"ds_write_b128 v{vMG}, {v(vO+4*i,4)} offset:{1024*i}")
a(f"""
L_mA:
v_add_f32 v98, v{vO+12}, v{OO[0]+12}
v_cmp_nle_f32 vcc, v98, s{sT2}
v_mov_b32 v98, vcc_hi
ds_write_b32 v{vBW}, v98
s_waitcnt vmcnt(0) lgkmcnt(0)
s_barrier
ds_read_b32 v98, v{vBR}
s_cbranch_scc0 L_mB
""")
lq = LQ(); lq.q = [{("v", 98)}]
PB = (vSa, vSb, 164)
for i in (3, 0, 1, 2):
    for b, ad in zip(PB, (f"v{vMG} offset:{1024*i}", f"v{vR0} offset:{1024*i}", f"v{vR0} offset:{16384+1024*i}")): lq(f"ds_read_b128 {v(b+4*i,4)}, {ad}")
a(f"s_setprio 3\ns_waitcnt lgkmcnt(12)\nv_cmp_lt_u32 vcc, s{sTRY}, v98\ns_cbranch_vccnz L_fallback"); lq.q = lq.q[1:]
for i in (3, 0, 1, 2):
    for d, s_ in ((vO, PB[0]), (PB[1], PB[2]), (vO, PB[1])):
        for r in (4*i, 4*i+2): lq(f"v_pk_add_f32 {v(d+r,2)}, {v(d+r,2)}, {v(s_+r,2)}")
    if i == 3: a(f"v_mov_b32 v96, v{vO+12}\nv_mov_b32 v97, v{vO+12}")
    if i == 0: a(f"v_permlane32_swap_b32 v96, v97\nv_rcp_f32 v96, v97")
for hf in range(2):
    for r in range(8*hf, 8*hf+8, 2): a(f"v_pk_mul_f32 {v(vO+r,2)}, {v(vO+r,2)}, v[96:97] op_sel_hi:[1,0]")
    for r in range(4*hf, 4*hf+4): a(f"v_cvt_pk_bf16_f32 v{vP+r}, v{vO+2*r}, v{vO+2*r+1}")
    if hf: a(f"s_mov_b32 exec_lo, 0\nv_mov_b64 {v(vP+6,2)}, 0\ns_mov_b32 exec_lo, -1")
    a(f"buffer_store_dwordx4 {v(vP+4*hf,4)}, v1, {srd(WS)}, s{sOO} offen offset:{1024*hf} sc1")
a("s_setprio 0\ns_barrier")
stamp(11)
WFR, OB, OA = 112, 16, 48
a(f"""
v_bfe_u32 v96, v0, 2, 2
v_lshrrev_b32 v97, 5, v0
v_lshl_add_u32 v96, v96, 1, v97
v_mul_u32_u24 v96, 224, v96
v_bfe_u32 v98, v0, 4, 1
v_lshl_add_u32 v96, v98, 5, v96
v_and_b32 v98, 3, v0
v_lshl_add_u32 v96, v98, 3, v96
s_lshl_b32 s{sT2}, s{sG}, 6
v_add_u32 v2, s{sT2}, v96
v_mul_u32_u24 v99, {6*224}, v97
v_add_u32 v3, v99, v2
v_add_u32 v9, {8*28*224}, v2
v_add_u32 v10, {8*28*224}, v3
""")
for h in range(16):
    for s_ in range(2):
        for t in range(2):
            Qd = 7 * (h & 7) + 4 * s_ + 2 * t
            a(f"ds_read_b64_tr_b16 {v(WFR+8*h+4*s_+2*t,2)}, v{(2, 3, 9, 10)[(h&1) + 2*(h>>3)]} offset:{WS0+(8*(Qd>>1) + (Qd&1))*224}")
a(f"""
v_mov_b32 v4, 0
v_add_u32 v5, {LR}, v1
v_and_b32 v99, 31, v0
v_mul_u32_u24 v99, 1792, v99
v_lshl_add_u32 v8, v97, 4, v99
s_mul_i32 s{sT0}, s{sRT}, {32*1792}
s_mul_i32 s{sT1}, s{sCG}, 224
s_add_u32 s{sT0}, s{sT0}, s{sT1}
s_add_u32 s{sT0}, s{sT0}, s{sT2}
""")
if OPT.get("ep"): a(f"""
v_and_b32 v99, 31, v0
v_mul_u32_u24 v99, 80, v99
v_lshl_add_u32 v99, v97, 3, v99
s_mul_i32 s{sT1}, s{sG}, 4096
s_add_u32 s{sT1}, s{sT1}, {MERGE}
v_add_u32 v6, s{sT1}, v99
v_lshrrev_b32 v99, 2, v0
v_mul_u32_u24 v100, 80, v99
v_lshl_add_u32 v100, v98, 4, v100
v_add_u32 v7, s{sT1}, v100
v_mul_u32_u24 v100, 1792, v99
v_lshl_add_u32 v8, v98, 4, v100
s_add_u32 s{sT1}, s{sT0}, {16*1792}
s_cmp_eq_u32 s{sG}, 3
s_cselect_b32 s{sM1}, 0x33333333, -1
s_mov_b32 s{sM1+1}, s{sM1}
""")
a("s_waitcnt lgkmcnt(0)")
stamp(12)
a.c("waves 4-7 post one byte per staged head; chunk k+1 (4 heads) is checked and read while chunk k multiplies")
def ob(k): return OB if k % 2 == 0 else 64
def o_rd(k, f): return f"ds_read_b128 {v(ob(k)+4*f,4)}, v5 offset:{8192*k+1024*f}"
def o_fl(k): return f"ds_read_b32 v96, v4 offset:{64+4*k}"
def o_spin(k): return f"L_os{k}:\n{o_fl(k)}\ns_waitcnt lgkmcnt(0)\nv_cmp_ne_u32 vcc, -1, v96\ns_cbranch_vccnz L_os{k}"
def early_wb():
    a.c("start writing the gated half of the output back while the projection runs")
    a(f"s_lshr_b32 s{sT3}, s2, 3\ns_add_u32 s{sT3}, s{sT3}, s{sG}\ns_cmp_lg_u32 s{sT3}, 0\ns_cbranch_scc1 L_nwb\nbuffer_wbl2 sc1\nL_nwb:")
if OPT.get("wb") == 4: early_wb()
a("s_barrier" if OPT.get("fb") else o_spin(0))
stamp(13)
lq = LQ()
for f in range(8): lq(o_rd(0, f))
if OPT.get("wb") == 5: early_wb()
CK = OPT.get("ck", 3)
for k in range(4):
    rd = [o_rd(k + 1, f) for f in range(8)] if k < 3 else []
    if rd: lq(o_fl(k + 1))
    for f in range(8):
        lq(mfma32(OA, WFR+32*k+4*f, ob(k)+4*f, "0" if k == 0 and f == 0 else OA))
        if rd and f == CK:
            lq(f"v_cmp_ne_u32 vcc, -1, v96\ns_cbranch_vccz L_or{k+1}")
            a(o_spin(k + 1) + f"\nL_or{k+1}:")
        if f >= CK:
            for x in rd[:2]: lq(x)
            rd = rd[2:]
if OPT.get("ep"):
    for r in range(8): a(f"v_cvt_pk_bf16_f32 v{16+r}, v{OA+2*r}, v{OA+2*r+1}")
    for m in range(4): a(f"ds_write_b64 v6, {v(16+2*m,2)} offset:{16*m}")
    a(f"""
s_waitcnt lgkmcnt(0)
ds_read_b128 {v(24,4)}, v7
ds_read_b128 {v(28,4)}, v7 offset:{16*80}
s_mov_b64 exec, s[{sM1}:{sM1+1}]
s_waitcnt lgkmcnt(1)
buffer_store_dwordx4 {v(24,4)}, v8, {srd(OUT)}, s{sT0} offen{OS}
s_waitcnt lgkmcnt(0)
buffer_store_dwordx4 {v(28,4)}, v8, {srd(OUT)}, s{sT1} offen{OS}
""")
for hf in range(0 if OPT.get("ep") else 2):
    if hf: a(f"s_cmp_eq_u32 s{sG}, 3\ns_cbranch_scc1 L_ost")
    for r in range(4*hf, 4*hf+4): a(f"v_cvt_pk_bf16_f32 v{16+r}, v{OA+2*r}, v{OA+2*r+1}")
    for d in range(2): a(f"v_permlane32_swap_b32 v{16+4*hf+d}, v{18+4*hf+d}")
    a(f"buffer_store_dwordx4 {v(16+4*hf,4)}, v8, {srd(OUT)}, s{sT0} offen offset:{32*hf}{OS}")
a("L_ost:")
stamp(14)
a("s_branch L_fin" if DIAG else "s_endpgm")

a(f"L_mB:\ns_waitcnt lgkmcnt(0)\nv_cmp_lt_u32 vcc, s{sTRY}, v98\ns_cbranch_vccnz L_fallback")
a(f"""
s_mul_i32 s{sT5}, s{sRT}, {32*896}
s_add_u32 s{sT5}, s{sT5}, 896
""")
for i in range(8): a(f"v_lshlrev_b32 v{16+2*i}, 16, v{QR+i}\nv_and_b32 v{17+2*i}, 0xffff0000, v{QR+i}")
for t in range(8):
    for p in range(2):
        src = vZR + 4 * p + t // 2
        a(f"v_lshlrev_b32 v{32+2*t+p}, 16, v{src}" if t % 2 == 0 else f"v_and_b32 v{32+2*t+p}, 0xffff0000, v{src}")
for t in range(8): a(f"v_pk_mul_f32 {v(32+2*t,2)}, {v(32+2*t,2)}, {v(16+2*t,2)}")
for t in range(8): a(f"v_cvt_pk_bf16_f32 v{56+t}, v{32+2*t}, v{33+2*t}")
def gate_st():
    for t in range(8):
        a(f"buffer_store_dword v{56+t}, v{vGO}, {srd(OUT)}, s{sT5} offen offset:{1792*(t&1)}{GS}")
        if t & 1 and t < 7: a(f"s_add_u32 s{sT5}, s{sT5}, 3584")
GO = OPT.get("go", 0)
a.c("waves 0-3 have read the partial sums and sent O"); a("s_barrier")
if OPT.get("gp"): a(f"s_setprio {OPT['gp']}")
if not OPT.get("gl") and not GO: gate_st()
if OPT.get("dl"): a(f"s_sleep {OPT['dl']}" if OPT["dl"] > 1 else "s_waitcnt vmcnt(0)")
stamp(11)
a.c("O fragments: every word differs from the all-ones mark once its producer's store has landed")
OL = 64
a(f"""
s_lshl_b32 s{sT0}, s{sRT}, 15
s_lshl_b32 s{sT1}, s{sG}, 11
s_add_u32 s{sT0}, s{sT0}, s{sT1}
s_add_u32 s{sT0}, s{sT0}, {OF}
s_add_u32 s{sT1}, s{sT0}, 8192
s_add_u32 s{sT2}, s{sT0}, 16384
s_add_u32 s{sT3}, s{sT0}, 24576
s_mov_b32 s{sSP}, {SPIN}
""")
def o_issue(k0):
    for k in range(k0, 4):
        for i in range(2): a(f"buffer_load_dwordx4 {v(OL+8*k+4*i,4)}, v1, {srd(WS)}, s{sT0+k} offen offset:{1024*i} sc1")
o_issue(0)
if GO: gate_st()
for k in range(4):
    r = OL + 8 * k
    a(f"""
s_waitcnt vmcnt({6-2*k+8*GO})
L_ochk{k}:
v_max3_u32 v96, v{r}, v{r+1}, v{r+2}
v_max3_u32 v97, v{r+3}, v{r+4}, v{r+5}
v_max3_u32 v96, v{r+6}, v{r+7}, v96
v_max_u32 v96, v96, v97
v_cmp_eq_u32 vcc, -1, v96
s_cbranch_vccnz L_oretry{k}
L_ogo{k}:
ds_write_b128 v{vQA}, {v(r,4)} offset:{8192*k}
ds_write_b128 v{vQA}, {v(r+4,4)} offset:{8192*k+1024}
""")
    a("s_waitcnt lgkmcnt(0)\ns_barrier" if k == 0 and OPT.get("fb") else f"ds_write_b8 v{vFW}, v108 offset:{60+4*k}")
    if k == 0: stamp(12)
a("s_waitcnt lgkmcnt(0)")
stamp(13)
if DIAG and OPT.get("cyc"): a(f"s_sub_u32 s{sST+2}, {SPIN}, s{sSP}\ns_mul_i32 s{sST+2}, s{sST+2}, 100\ns_add_u32 s{sST+2}, s{sST+2}, s98\ns_add_u32 s{sST+2}, s{sST+2}, 1")
if 0 < OPT.get("wb", 0) < 4:
    a.c("start writing the gated half of the output back while the projection finishes")
    a(f"s_bfe_u32 s{sT0}, s2, {(0, 0, 0x30003, 0x50003)[OPT['wb']]}\ns_add_u32 s{sT0}, s{sT0}, s{sG}\ns_cmp_lg_u32 s{sT0}, 0\ns_cbranch_scc1 L_fin\nbuffer_wbl2 sc1\ns_waitcnt vmcnt(0)")
a.label("L_fin")
if DIAG:
    a(f"s_mov_b64 exec, -1\ns_mov_b32 s{sST+15}, s98")
    a(f"s_lshl_b32 s{sT0}, s2, 3\ns_add_u32 s{sT0}, s{sT0}, s{sW}\ns_lshl_b32 s{sT0}, s{sT0}, 6\ns_add_u32 s{sT0}, s{sT0}, {DG}\nv_lshlrev_b32 v96, 2, v0")
    for k in range(16): a(f"v_writelane_b32 v97, s{sST+k}, {k}")
    a(f"s_mov_b64 exec, 0xffff\nbuffer_store_dword v97, v96, {srd(WS)}, s{sT0} offen")
if DIAG and OPT.get("wbx"): a("s_waitcnt vmcnt(0)\nbuffer_wbl2 sc1\ns_waitcnt vmcnt(0)")
if "probe" in OPT:
    a(f"""
s_cmp_lg_u32 s2, {OPT.get("pwg", 100)}
s_cbranch_scc1 L_end
s_cmp_lg_u32 s{sW}, {OPT.get("pw", 0)}
s_cbranch_scc1 L_end
s_sub_u32 s{sT0}, s{sST+OPT["probe"]}, s{sST+OPT["pb"] if "pb" in OPT else 98}
s_lshl_b32 s{sT0}, s{sT0}, {3 if "pb" in OPT else 2}
s_add_u32 s{sT0}, s{sT0}, 4000
s_min_u32 s{sT0}, s{sT0}, 20000
L_probe:
s_memrealtime s[96:97]
s_waitcnt lgkmcnt(0)
s_sub_u32 s96, s96, s98
s_cmp_lt_u32 s96, s{sT0}
s_cbranch_scc1 L_probe
""")
a.label("L_end")
a("s_endpgm")

for k in range(4):
    a(f"L_oretry{k}:\ns_sub_u32 s{sSP}, s{sSP}, 1\ns_cbranch_scc1 L_ogo{k}".replace(f"s_cbranch_scc1 L_ogo{k}", f"s_cselect_b32 s{sSP}, 0, s{sSP}\ns_cbranch_scc1 L_ogo{k}"))
    o_issue(k)
    a(f"s_waitcnt vmcnt({0 if GO else 6-2*k})\ns_branch L_ochk{k}")

for i in range(1, 9):
    if i == 8 or not OPT.get("spi", 0): a(f"L_sp{i}:\n{fl_read(i)}\ns_waitcnt lgkmcnt(0)\nv_cmp_eq_u32 vcc, 0, v{vFT}\ns_cbranch_vccnz L_sp{i}\ns_branch L_spr{i}")
a(f"""
L_chkc3:
s_sub_u32 s{sSP}, s{sSP}, 1
s_cbranch_scc1 L_chkc2
buffer_load_dwordx4 {v(vFC,4)}, v1, {srd(WS)}, s{sT0} offen sc1
s_waitcnt vmcnt(0)
s_branch L_chkc1
L_epoch:
""")
a.c("workgroup 0 advances the epoch word: every workgroup is known to have read it")
signal("0")
a("s_branch L_chkc_r")

a.label("L_fallback")
a(f"""
s_mov_b32 s{sTRY}, -1
s_setprio 0
s_waitcnt lgkmcnt(0)
s_barrier
s_mov_b64 exec, 0xffff
ds_write_b64 v130, v[128:129]
s_mov_b64 exec, -1
s_waitcnt lgkmcnt(0)
""")
kv_stage(0); kv_stage(1)
a(f"""
s_mov_b32 exec_lo, 0
v_mov_b32 v{vQ+6}, 0
v_mov_b32 v{vQ+7}, 0
v_mov_b32 v{QQ[0]+6}, 0
v_mov_b32 v{QQ[0]+7}, 0
s_mov_b32 exec_lo, -1
v_mov_b32 v{vM}, 0xff800000
v_mov_b32 v{MM[0]}, 0xff800000
s_mov_b32 s{sT3}, s{sKVB}
s_mov_b32 s{sI}, 0
L_fb1:
buffer_load_dwordx4 {v(vK,4)}, v1, {srd(WS)}, s{sT3} offen sc1
buffer_load_dwordx4 {v(vK+4,4)}, v1, {srd(WS)}, s{sT3} offen offset:1024 sc1
s_waitcnt vmcnt(0)
{mfma32(vSb, vK, vQ, "0")}
{mfma32(vSb, vK+4, vQ+4, vSb)}
{mfma32(vSa, vK, QQ[0], "0")}
{mfma32(vSa, vK+4, QQ[0]+4, vSa)}
s_add_u32 s{sT3}, s{sT3}, 4096
s_add_u32 s{sI}, s{sI}, 1
""")
maxtree(vSb, vM, True)
maxtree(vSa, MM[0], True)
a(f"""
s_cmp_lt_u32 s{sI}, 64
s_cbranch_scc1 L_fb1
s_branch L_att
L_codeend:
""")

import subprocess
body0 = pad(a.l, verbose="v" in sys.argv)
def emit(pfs, fill):
    body = [l.replace("@@PFS@@", str(pfs)) for l in body0]
    hdr = open("cdna_kernels/" + NAME + ".s.ref").read().split("; Override launch")[0]
    return hdr + f"""; One persistent launch, one workgroup per CU; phases hand data over through d_ws with tagged flags.
; @launch grid=(256,1,1) block=(512,1,1) lds=163840
.amdgcn_target "amdgcn-amd-amdhsa--gfx950"
.text
.globl {NAME}_kernel
.p2align 8
.type {NAME}_kernel,@function
""" + "\n".join(body) + f"""
    .fill {fill}, 4, 0xbf810000
.section .rodata,"a"
.p2align 6
.amdhsa_kernel {NAME}_kernel
  .amdhsa_next_free_vgpr 256
  .amdhsa_next_free_sgpr 102
  .amdhsa_accum_offset 256
  .amdhsa_group_segment_fixed_size 0
  .amdhsa_kernarg_size 96
  .amdhsa_user_sgpr_count 2
  .amdhsa_user_sgpr_kernarg_segment_ptr 1
  .amdhsa_system_sgpr_workgroup_id_x 1
.end_amdhsa_kernel
"""
def size_of(txt):
    open("_sz.s", "w").write(txt)
    subprocess.run(["clang", "-x", "assembler", "-target", "amdgcn-amd-amdhsa", "-mcpu=gfx950", "-c", "_sz.s", "-o", "_sz.o"], check=True)
    o = subprocess.run(["llvm-objdump", "-t", "_sz.o"], capture_output=True, text=True).stdout
    return [int(l.split()[0], 16) for l in o.splitlines() if l.endswith("L_codeend")][0]
sz = size_of(emit(40, 1))
pfs = OPT.get("pfs", (sz + 2047) // 2048 * 4)
assert pfs <= 64
print("code bytes", sz, "prefetch stride", pfs)
open(sys.argv[1], "w").write(emit(pfs, max(1, (pfs * 512 - sz + 3) // 4)))
```

```python
import sys, struct, math
from asmlib import *

NAME = "concat_heads__softmax_full_mha__ssm_conv_h3__prompt"
DIAG = "diag" in sys.argv
SOPT = dict(a.split("=") for a in sys.argv[2:] if "=" in a)
OPT = {k: int(x) for k, x in SOPT.items() if x.isdigit()}
OPT.setdefault("rt", 40404040)
SPIN = 1 << 16

FA, FB, FC = 0x40000, 0x60000, 0x3000
FS = OPT.get('fs', 4)
QF, KV, UU, ZZ, OF, WSEND = 0x100000, 0x300000, 0x700000, 0x900000, 0xB00000, 0xD00000
DG = 0x10000
LX, LA, LB, LP, LR = 0, 32768, 65536, 98304, 131072
HP, UOFF = 4160, 16640
MERGE, BADF = LP + 16384, LP + 3968
ONES = 0x3f803f80
def fbits(x): return struct.unpack("<I", struct.pack("<f", x))[0]
QSCALE = fbits(28 ** -0.5 * math.log2(math.e))

X_, WQ, WO, Q_, K_, V_, SK, HK, OUT, WS = 4, 8, 12, 16, 20, 24, 28, 32, 36, 40
sDP, sNON, sW = 44, 46, 47
sJ, sTT, sRT, sCG, sC, sH, sQT, sG = 48, 49, 50, 51, 52, 53, 54, 55
sED, sT0, sT1, sT2, sT3, sT4, sT5, sT6, sT7 = 56, 57, 58, 59, 60, 61, 62, 63, 64
sI, sSO, sSO2, sLW, sLX, sTRY, sSP, sCB = 65, 66, 67, 68, 69, 70, 71, 72
sDV, sM1, sM2 = 73, 74, 76
sKVB, sWM = 78, 79
sFL, sE0, sE1, sE2, sKP, sZO, sOO, sKL, sUO, sQO, sUT, sKS = 20, 21, 22, 23, 24, 26, 27, 28, 29, 30, 31, 3
sUS, sCL, sK0 = 29, 44, 45
sQS = 34
sST = 80
def srd(b): return s(b, 4)

a = Asm()
def stamp(k, st=None):
    if not DIAG: return
    if st is None and k >= 9: st = 0
    if st is not None and st != OPT.get("set", 0): return
    a(f"{'s_memtime' if OPT.get('cyc') else 's_memrealtime'} s[96:97]\ns_waitcnt lgkmcnt(0)\ns_mov_b32 s{sST+k}, s96")

npoll = [0]
def poll(vaddr, vtmp):
    n = npoll[0]; npoll[0] += 1
    a(f"""
s_mov_b32 s{sSP}, {SPIN}
L_poll{n}:
buffer_load_dword v{vtmp}, v{vaddr}, {srd(WS)}, 0 offen sc1
s_waitcnt vmcnt(0)
v_cmp_ne_u32 vcc, s{sNON}, v{vtmp}
s_cbranch_vccz L_pollok{n}
s_sub_u32 s{sSP}, s{sSP}, 1
s_cbranch_scc0 L_poll{n}
L_pollok{n}:
""")
vNON = 15
def signal(soff):
    a(f"s_mov_b64 exec, 1\nbuffer_store_dword v{vNON}, v1, {srd(WS)}, {soff} offen sc1\ns_mov_b64 exec, -1")

def mfma32(d, A, B, C): return f"v_mfma_f32_32x32x16_bf16 {v(d,16)}, {v(A,4)}, {v(B,4)}, {C if isinstance(C,str) else v(C,16)}"
def mfma16(d, A, B, C): return f"v_mfma_f32_16x16x32_bf16 {v(d,4)}, {v(A,4)}, {v(B,4)}, {C if isinstance(C,str) else v(C,4)}"

class LQ:
    def __init__(self): self.q = []
    def __call__(self, txt):
        for t in txt.strip("\n").split("\n"):
            i = Ins(t)
            if not i.mn: a(t); continue
            last = max([k for k, w in enumerate(self.q) if w & (i.rd | (i.wr if not i.ds else set()))], default=-1)
            if last >= 0:
                n = min(15, len(self.q) - 1 - last)
                a(f"s_waitcnt lgkmcnt({n})"); self.q = self.q[len(self.q) - n:]
            a(t)
            if i.ds: self.q.append(vset(i.wr))
    def drain(self, n=0):
        if len(self.q) > n:
            a(f"s_waitcnt lgkmcnt({n})"); self.q = self.q[len(self.q) - n:]

vXD, vWD, vXR, vWR, vXB = 2, 6, 9, 13, 14
ACC, RS = 16, 64
vCA, vCB, vCW, vCR, vCU, vZ, vD = 192, 193, 194, 195, 196, 197, 198
vB0, vB1, vQA, vWOA, vMG, vBW, vBR = 199, 200, 201, 202, 203, 204, 205
vPA, vUD, vPB, vZL, vGO, vGA = 206, 207, 208, 209, 210, 211
vHO, vCP = 10, 129
KR, VR, SR, KF, WF, UA, VF, UP = 140, 152, 160, 164, 212, 220, 64, 236
H0, QR = 112, 240
def srdc(lst): return "\n".join(f"s_mov_b32 s{b+2}, {n}\ns_mov_b32 s{b+3}, 0x20000" for b, n in lst)
def karg(lst): return "\n".join(f"s_load_dwordx2 s[{b}:{b+1}], s[0:1], {o}" for b, o in lst)
a.label(NAME + "_kernel")
if DIAG: a(f"{'s_memtime' if OPT.get('cyc') else 's_memrealtime'} s[98:99]")
a(f"""
s_cmp_ge_u32 s2, 256
s_cbranch_scc1 L_end
{karg(((K_, 32), (X_, 0), (V_, 40), (SK, 48), (WQ, 8), (WS, 88), (sDP, 64)))}
s_getpc_b64 s[{sT5}:{sT6}]
L_pc:
v_lshrrev_b32 v1, 6, v0
v_and_b32 v0, 63, v0
s_bfe_u32 s{sT0}, s2, 0x30003
v_lshl_add_u32 v2, s{sT0}, 6, v0
s_sub_u32 s{sT5}, s{sT5}, L_pc-{NAME}_kernel
s_subb_u32 s{sT6}, s{sT6}, 0
v_mul_u32_u24 v2, @@PFS@@, v2
v_mov_b32 v3, s{sT6}
v_add_co_u32 v2, vcc, s{sT5}, v2
v_readfirstlane_b32 s{sW}, v1
v_lshrrev_b32 v130, 4, v0
v_addc_co_u32 v3, vcc, 0, v3, vcc
global_load_dword v255, v[2:3], off
s_and_b32 s{sG}, s{sW}, 3
s_cmp_lt_u32 s{sW}, 4
s_cbranch_scc1 L_uprep
""")
IDS_U = f"""
s_and_b32 s{sT2}, s2, 7
s_lshr_b32 s{sT3}, s2, 5
s_lshl3_add_u32 s{sRT}, s{sT2}, s{sT3}
s_bfe_u32 s{sCG}, s2, 0x20003
v_and_b32 v{vCP}, 15, v0
v_min_u32 v{vCP}, 13, v{vCP}
s_lshl2_add_u32 s{sT0}, s{sCG}, s{sG}
s_mul_i32 s{sT1}, s{sT0}, 56
s_mul_i32 s{sT2}, s{sRT}, {32*896}
s_add_u32 s{sT2}, s{sT2}, s{sT1}
v_mul_u32_u24 v{vGO}, {8*896}, v130
v_lshl_add_u32 v132, v{vCP}, 2, v{vGO}
v_add_u32 v{vGA}, s{sT2}, v132
"""
IDS_G = f"""
s_and_b32 s{sT2}, s2, 1
s_bfe_u32 s{sT3}, s2, 0x30003
s_lshl3_add_u32 s{sJ}, s{sT2}, s{sT3}
s_bfe_u32 s{sT2}, s2, 0x20001
s_lshr_b32 s{sT3}, s2, 6
s_lshl2_add_u32 s{sT2}, s{sT2}, s{sT3}
s_lshl2_add_u32 s{sTT}, s{sT2}, s{sG}
s_and_b32 s{sT2}, s{sG}, 1
s_lshr_b32 s{sT3}, s{sG}, 1
s_lshl2_add_u32 s{sT2}, s{sT3}, s{sT2}
s_add_u32 s{sT2}, s{sT2}, 4
s_lshl_b32 s{sLX}, s{sT2}, 14
"""
COMMON = f"""
v_lshlrev_b32 v1, 4, v0
s_sub_u32 s{sT2}, s2, 32
s_cmp_lt_u32 s2, 224 | s_cselect_b32 s{sC}, s2, s{sT2}
s_load_dword s{sED}, s[{WS}:{WS+1}], 0
s_lshl_b32 s{sT0}, s{sC}, 2
s_load_dword s{sDV}, s[{sDP}:{sDP+1}], s{sT0}
{karg(((HK, 56), (WO, 16), (Q_, 24), (OUT, 72)))}
{srdc(((WO, 401408), (Q_, 1835008), (OUT, 3670016), (WS, WSEND)))}
v_add_u32 v{vGO}, v{vGO}, v{vGA}
v_lshlrev_b32 v133, 7, v{vCP}
v_lshl_add_u32 v{vZL}, v130, 4, v133
s_lshl2_add_u32 s{sT4}, s{sCG}, s{sG}
s_mul_i32 s{sT1}, s{sT4}, 1792
s_mul_i32 s{sT3}, s{sRT}, 28672
s_add_u32 s{sUT}, s{sT1}, s{sT3}
s_add_u32 s{sUT}, s{sUT}, {ZZ}
s_and_b32 s{sT2}, s2, 7
s_lshr_b32 s{sT3}, s2, 7
s_lshl1_add_u32 s{sQT if OPT.get("xq", 0) else sH}, s{sT2}, s{sT3}
s_bfe_u32 s{sH if OPT.get("xq", 0) else sQT}, s2, 0x40003
s_mov_b32 s{sTRY}, 0
s_lshr_b32 s{sT7}, s{sW}, 2
s_mul_i32 s{sCB}, s{sT7}, {LP}
v_and_b32 v132, 3, v0
v_sub_u32 v133, 3, v132
v_mul_u32_u24 v133, {HP}, v133
v_and_b32 v134, 12, v0
v_lshl_add_u32 v133, v134, 1, v133
v_and_b32 v134, 0x30, v0
v_sub_u32 v133, v133, v134
s_lshl_b32 s{sT0}, s{sG}, 7
s_add_u32 s{sT1}, s{sT0}, s{sCB}
s_add_u32 s{sT1}, s{sT1}, 56
v_add_u32 v{vCA}, s{sT1}, v133
v_and_b32 v139, 15, v0
v_lshl_add_u32 v133, v139, 5, v134
s_sub_u32 s{sT1}, s{sCB}, s{sT0}
s_add_u32 s{sT1}, s{sT1}, {UOFF+512-96}
v_add_u32 v{vCB}, s{sT1}, v133
v_lshrrev_b32 v131, 5, v0
v_lshlrev_b32 v133, 7, v131
v_xor_b32 v133, v133, v1
s_lshl_b32 s{sT0}, s{sG}, 13
s_add_u32 s{sT0}, s{sT0}, s{sCB}
v_add_u32 v{vCW}, s{sT0}, v133
v_bfe_u32 v135, v0, 2, 1
v_mul_u32_u24 v136, {LP}, v135
v_lshrrev_b32 v137, 3, v0
v_lshl_add_u32 v138, v137, 2, v132
v_lshrrev_b32 v133, 1, v138
v_and_b32 v134, 1, v0
v_mul_u32_u24 v134, 40, v134
v_xor_b32 v133, v133, v134
v_lshl_add_u32 v133, v133, 4, v136
s_lshl_b32 s{sT0}, s{sW}, 10
v_add_u32 v{vCR}, s{sT0}, v133
v_lshl_add_u32 v133, v138, 4, v136
s_lshl_b32 s{sT0}, s{sW}, 9
s_add_u32 s{sT0}, s{sT0}, {UOFF+512}
v_add_u32 v{vCU}, s{sT0}, v133
v_mul_u32_u24 v133, 28672, v137
v_and_b32 v134, 7, v0
v_lshl_add_u32 v{vZ}, v134, 4, v133
v_lshlrev_b32 v134, 2, v134
v_add_u32 v{vBR}, {BADF}, v134
s_mul_i32 s{sT0}, s{sW}, {8*28672}
s_lshl_b32 s{sT1}, s{sC}, 7
s_add_u32 s{sT0}, s{sT0}, s{sT1}
s_add_u32 s{sZO}, s{sT0}, {ZZ}
s_lshl_b32 s{sKVB}, s{sH}, 18
s_add_u32 s{sKVB}, s{sKVB}, {KV}
s_lshl_b32 s{sKL}, s{sW}, 12
s_add_u32 s{sKS}, s{sKVB}, s{sKL}
s_min_u32 s{sT0}, s{sW}, 6
s_lshl_b32 s{sWM}, s{sT0}, 10
s_lshl_b32 s{sT1}, s{sT0}, 6
v_add_u32 v133, s{sT1}, v0
v_mul_u32_u24 v134, 4682, v133
v_lshrrev_b32 v134, 16, v134
v_mul_u32_u24 v136, 14, v134
v_sub_u32 v133, v133, v136
v_bfe_u32 v136, v134, 1, 2
v_and_b32 v138, 1, v134
v_lshl_add_u32 v136, v138, 2, v136
v_and_or_b32 v134, v134, 24, v136
v_mul_u32_u24 v134, 896, v134
v_lshl_add_u32 v133, v133, 4, v134
s_mul_i32 s{sT1}, s{sCG}, 224
v_add_u32 v{vWOA}, s{sT1}, v133
s_and_b32 s{sT0}, s{sW}, 1
s_lshl1_add_u32 s{sT0}, s{sT7}, s{sT0}
s_lshl_b32 s{sT0}, s{sT0}, 13
s_add_u32 s{sT0}, s{sT0}, {LA}
v_add_u32 v{vB0}, s{sT0}, v1
v_add_u32 v{vB1}, 0x10000, v{vB0}
s_lshl_b32 s{sT0}, s{sG}, 11
s_add_u32 s{sT0}, s{sT0}, {LR}
v_add_u32 v{vQA}, s{sT0}, v1
s_lshl_b32 s{sT0}, s{sG}, 12
s_add_u32 s{sT0}, s{sT0}, {MERGE}
v_add_u32 v{vMG}, s{sT0}, v1
s_lshl_b32 s{sT1}, s{sW}, 2
s_add_u32 s{sT1}, s{sT1}, {BADF}
v_mov_b32 v{vBW}, s{sT1}
s_lshl_b32 s{sT3}, s{sQT}, 2
s_add_u32 s{sT3}, s{sT3}, s{sG}
s_lshl_b32 s{sT0}, s{sT3}, 4
s_add_u32 s{sT0}, s{sT0}, s{sH}
s_lshl_b32 s{sT0}, s{sT0}, 11
s_add_u32 s{sOO}, s{sT0}, {OF}
s_lshl4_add_u32 s{sT0}, s{sH}, s{sQT}
s_lshl3_add_u32 s{sT0}, s{sT0}, s{sW}
s_lshl_b32 s{sT0}, s{sT0}, 10
s_add_u32 s{sQO}, s{sT0}, {QF}
v_cmp_eq_u32 vcc, 0, v135
s_waitcnt lgkmcnt(0)
s_mul_i32 s{sNON}, s{sED}, 1664525
s_add_u32 s{sNON}, s{sNON}, 1013904223
s_lshl_b32 s{sT0}, s{sDV}, 16
s_and_b32 s{sT1}, s{sDV}, 0xffff0000
v_mov_b32 v133, s{sT0}
v_mov_b32 v134, s{sT1}
v_cndmask_b32 v{vD}, v134, v133, vcc
v_mov_b32 v{vNON}, s{sNON}
s_lshl_b32 s{sT0}, s{sT7}, 10
s_add_u32 s{sCL}, s{sOO}, s{sT0}
s_and_b32 s{sT0}, s{sW}, 6
s_add_u32 s{sT0}, s{sT0}, s{sW}
s_lshl_b32 s{sK0}, s{sT0}, 11
"""
CNT = 65520

a(IDS_G + srdc(((X_, 1835008), (WQ, 1204224))) + f"""
v_lshrrev_b32 v128, 3, v0
s_lshl_b32 s{sT0}, s{sTT}, 5
v_add_u32 v128, s{sT0}, v128
v_mul_u32_u24 v128, 896, v128
v_and_b32 v129, 7, v0
v_xor_b32 v129, v129, v130
v_lshl_add_u32 v{vXD}, v129, 4, v128
v_xor_b32 v129, 4, v129
v_lshl_add_u32 v{vXD+1}, v129, 4, v128
v_add_u32 v{vXD+1}, {7168-1024}, v{vXD+1}
v_add_u32 v{vXD+2}, {14336-2048}, v{vXD}
v_add_u32 v{vXD+3}, {14336-2048}, v{vXD+1}
""")
if OPT.get("rt"): a(f"""
s_lshr_b32 s{sT3}, s2, 6
s_mul_i32 s{sT3}, s{sT3}, {OPT.get("rc", 1)}
s_add_u32 s{sT3}, s{sT3}, s{sJ}
s_and_b32 s{sT3}, s{sT3}, 7
s_lshl_b32 s{sT3}, s{sT3}, 2
s_lshr_b32 s{sI}, {int(str(OPT["rt"]), 16):#x}, s{sT3}
s_and_b32 s{sI}, s{sI}, 7
""")
a("s_waitcnt lgkmcnt(0)")
stamp(0)
def wbase(st): return LP + 12288 * st if st < 2 else 12288 * (st - 2)
RT = OPT["rt"]
def rot(dst, st, mul):
    if not RT: return f"s_mov_b32 s{dst}, {st*mul}\n"
    return f"s_add_u32 s{dst}, s{sI}, {st}\ns_cmp_ge_u32 s{dst}, 7\ns_cselect_b32 s{sSP}, 7, 0\ns_sub_u32 s{dst}, s{dst}, s{sSP}\ns_mul_i32 s{dst}, s{dst}, {mul}\n"
def dma_x(st):
    p = [f"buffer_load_dwordx4 v{vXD+i}, {srd(X_)}, s{sSO} offen offset:{1024*i} lds" for i in range(4)]
    p[0] = f"s_add_u32 m0, s{sLX}, {4096*(st&3)}\n" + rot(sSO, st, 128) + p[0]
    return p
def dma_w(st):
    p = [f"buffer_load_dwordx4 v{vWD+q}, {srd(WQ)}, s{sSO2} offen offset:{1024*q} lds" for q in range(3)]
    p[0] = f"s_add_u32 m0, s{sLW}, {wbase(st)}\n" + rot(sSO2, st, 64*2688) + p[0]
    return p
def sprinkle(pieces, text):
    L = [x.replace(" | ", "\n") for x in text.strip().split("\n") if x.strip()]
    n = len(pieces)
    for k, p in enumerate(pieces):
        a(p)
        for x in L[len(L) * k // n: len(L) * (k + 1) // n]: a(x)
WADDR = f"""
s_mul_i32 s{sT0}, s{sJ}, 168
s_and_b32 s{sT0}, s{sT0}, -16
s_mul_i32 s{sT2}, s{sG}, {16*2688}
s_add_u32 s{sT0}, s{sT0}, s{sT2}
s_mul_i32 s{sLW}, s{sG}, 3072
"""
for q in range(3):
    WADDR += f"""
v_add_u32 v128, {64*q}, v0
v_mul_u32_u24 v129, 43691, v128
v_lshrrev_b32 v129, 19, v129
v_mul_u32_u24 v131, 12, v129
v_sub_u32 v128, v128, v131
v_min_u32 v128, 10, v128
v_mul_u32_u24 v129, 2688, v129
v_lshl_add_u32 v128, v128, 4, v129
v_add_u32 v{vWD+q}, s{sT0}, v128
""" + (f"s_sub_u32 s{sT0}, s{sT0}, 1024" if q < 2 else "")
for p in dma_x(0): a(p)
a("s_branch L_loader\nL_uprep:")
a("s_setprio 3\n" + IDS_U + srdc(((K_, 1835008), (V_, 1835008), (SK, 3584))) + f"""
v_subrev_u32 v135, 2688, v{vGA}
s_lshl_b32 s{sT1}, s{sT1}, 2
v_lshl_add_u32 v137, v{vCP}, 4, s{sT1}
s_movk_i32 s{sT5}, 3584
s_waitcnt lgkmcnt(0)
""")
stamp(0)
a(f"buffer_load_dwordx4 {v(SR,4)}, v137, {srd(SK)}, 0 offen")
for i in range(3): a(f"buffer_load_dword v{KR+i}, v135, {srd(K_)}, 0 offen offset:{896*i}")
for i in range(8): a(f"buffer_load_dword v{KR+3+i}, v{vGA}, {srd(K_)}, {'0' if i<4 else s(sT5)} offen offset:{896*(i&3)}")
for i in range(8): a(f"buffer_load_dword v{VR+i}, v{vGA}, {srd(V_)}, {'0' if i<4 else s(sT5)} offen offset:{896*(i&3)}")
a("s_setprio 0\n" + IDS_G + COMMON.replace(" | ", "\n") + f"""
s_sub_u32 s{sUS}, s{sUT}, {ZZ-UU}
s_lshl_b32 s{sT4}, s{sG}, 11
s_add_u32 s{sT4}, s{sT4}, {LP+24576}
v_and_b32 v136, 7, v{vCP}
v_lshlrev_b32 v136, 4, v136
v_xor_b32 v136, v136, v{vZL}
v_add_u32 v136, s{sT4}, v136
v_xor_b32 v138, 64, v136
v_lshlrev_b32 v137, 4, v137
v_xor_b32 v137, v137, v1
v_add_u32 v137, s{sT4}, v137
s_and_b32 s{sT6}, s{sJ}, 1
s_lshl_b32 s{sT6}, s{sT6}, 3
""")
a.c("---- QKV projection: 32 tokens x 3 head blocks per wave")
a(f"""
v_and_b32 v128, 31, v0
v_bfe_u32 v129, v0, 1, 3
v_xor_b32 v129, v129, v131
v_lshlrev_b32 v128, 7, v128
v_lshl_add_u32 v128, v129, 4, v128
v_add_u32 v{vXB}, s{sLX}, v128
v_bfe_u32 v128, v0, 2, 2
v_lshl_add_u32 v128, v131, 3, v128
v_mul_u32_u24 v128, 192, v128
v_and_b32 v129, 1, v130
v_lshl_add_u32 v128, v129, 5, v128
v_lshl_add_u32 v128, v132, 3, v128
s_add_u32 s{sT6}, s{sT6}, {LP}
v_add_u32 v{vWR}, s{sT6}, v128
v_mov_b32 v{vXR}, v{vXB}
v_mov_b32 v{vPB}, 0
v_xor_b32 v{vXR+1}, 32, v{vXB}
v_xor_b32 v{vXR+2}, 64, v{vXB}
v_xor_b32 v{vXR+3}, 0x60, v{vXB}
""")
a(f"s_lshr_b32 s{sT0}, s{sTT}, 2\ns_lshl4_add_u32 s{sT0}, s{sJ}, s{sT0}\ns_lshl_b32 s{sT0}, s{sT0}, {FS}\ns_add_u32 s{sFL}, s{sT0}, {FB}")
a(f"s_mul_i32 s{sT7}, s{sJ}, 3")
for b in range(3):
    a(f"""
s_add_u32 s{sT3}, s{sT7}, {b}
s_and_b32 s{sT0}, s{sT3}, 15
s_lshl_b32 s{sT0}, s{sT0}, 6
s_add_u32 s{sT0}, s{sT0}, s{sTT}
s_cmp_lt_u32 s{sT3}, 16
s_cselect_b32 s{sT1}, 11, 12
s_mov_b32 s{sT2}, {KV}
s_cselect_b32 s{sT2}, {QF}, s{sT2}
s_lshl_b32 s{sT0}, s{sT0}, s{sT1}
s_add_u32 s{sE0+b}, s{sT0}, s{sT2}
""")
a(f"""
s_mov_b32 s{sKP}, {ONES}
s_movk_i32 s{sKP+1}, 0x3f80
s_mov_b32 s{sQS}, {QSCALE:#x}
s_mov_b32 s{sQS+1}, {QSCALE:#x}
s_mov_b32 s{sM1}, 0xf0000000
s_mov_b32 s{sM1+1}, 0xf0000000
s_mov_b32 s{sM2}, {ONES}
s_mov_b32 s{sM2+1}, {ONES}
""")
for r in list(range(ACC, ACC + 48, 2)) + list(range(RS + 16, RS + 64, 2)): a(f"v_mov_b64 {v(r,2)}, 0")
a(f"s_mov_b32 s{sI}, 0\ns_setprio 2\ns_waitcnt vmcnt(8)")
stamp(2)
for j in range(4):
    for p in range(2):
        src = SR + 2 * p + (j >> 1)
        a(f"v_lshlrev_b32 v{WF+2*j+p}, 16, v{src}" if j % 2 == 0 else f"v_and_b32 v{WF+2*j+p}, 0xffff0000, v{src}")
for i in range(11): a(f"v_lshlrev_b32 v{KF+2*i}, 16, v{KR+i}\nv_and_b32 v{KF+2*i+1}, 0xffff0000, v{KR+i}")
for t in range(8): a(f"v_pk_mul_f32 {v(UA+2*t,2)}, {v(KF+2*t,2)}, {v(WF+6,2)}")
for j in (2, 1, 0):
    for t in range(8): a(f"v_pk_fma_f32 {v(UA+2*t,2)}, {v(KF+2*(t+3-j),2)}, {v(WF+2*j,2)}, {v(UA+2*t,2)}")
a("s_waitcnt vmcnt(0)")
for i in range(8): a(f"v_lshlrev_b32 v{VF+2*i}, 16, v{VR+i}\nv_and_b32 v{VF+2*i+1}, 0xffff0000, v{VR+i}")
for t in range(8): a(f"v_pk_mul_f32 {v(UA+2*t,2)}, {v(UA+2*t,2)}, {v(VF+2*t,2)}")
for p in range(2):
    for m in range(4): a(f"v_cvt_pk_bf16_f32 v{UP+4*p+m}, v{UA+2*(7-2*m)+p}, v{UA+2*(6-2*m)+p}")
    a(f"ds_write_b128 v{136+2*p}, {v(UP+4*p,4)}")
a(f"""
s_waitcnt lgkmcnt(0)
ds_read_b128 {v(UP,4)}, v137
ds_read_b128 {v(UP+4,4)}, v137 offset:1024
s_waitcnt lgkmcnt(1)
buffer_store_dwordx4 {v(UP,4)}, v1, {srd(WS)}, s{sUS} offen sc1
s_mov_b32 exec_hi, 0xffff
s_waitcnt lgkmcnt(0)
buffer_store_dwordx4 {v(UP+4,4)}, v1, {srd(WS)}, s{sUS} offen offset:1024 sc1
s_mov_b32 exec_hi, -1
""")
stamp(3)
a(f"""
s_cmp_eq_u32 s{sJ}, 10
s_cbranch_scc1 L_gemm1
s_cmp_gt_u32 s{sJ}, 10
s_cbranch_scc1 L_gemm2
""")
def g_reads(ks):
    r = RS + 16 * ks
    out = [f"ds_read_b128 {v(r,4)}, v{vXR+ks}"]
    for b in range(3):
        for t in range(2):
            out.append(f"ds_read_b64_tr_b16 {v(r+4+4*b+2*t,2)}, v{vWR} offset:{(16*ks+4*t)*192+56*b}")
    return out
def g_mfma(ks, isv):
    r = RS + 16 * ks
    return [mfma32(ACC+16*b, r, r+4+4*b, ACC+16*b) if isv[b] else mfma32(ACC+16*b, r+4+4*b, r, ACC+16*b) for b in range(3)]
for var, isv in enumerate(((0,0,0), (0,0,1), (1,1,1))):
    m = [g_mfma(k, isv) for k in range(4)]
    rd = g_reads(0) + g_reads(1) + g_reads(2) + g_reads(3)
    a(f"L_gemm{var}:\n{m[1][2]}\ns_barrier")
    seq = m[2] + m[3] + m[0] + m[1][:1]
    for k, x in enumerate(seq):
        if k == 6: a("s_waitcnt lgkmcnt(11)")
        if k == 9: a("s_waitcnt lgkmcnt(13)")
        a("\n".join([x] + rd[3*k:3*k+3]))
    a(f"""
s_cmp_eq_u32 s{sI}, 1
s_movk_i32 s{sT1}, 12288
s_cselect_b32 s{sT1}, {(-LP-12288) & 0xffffffff}, s{sT1}
s_add_u32 s{sI}, s{sI}, 1
s_and_b32 s{sT0}, s{sI}, 3
s_lshl_b32 s{sT0}, s{sT0}, 12
{m[1][1]}
v_add_u32 v{vWR}, s{sT1}, v{vWR}
v_xor_b32 v{vXR}, s{sT0}, v{vXB}
v_xor_b32 v{vXR+1}, 32, v{vXR}
v_xor_b32 v{vXR+2}, 64, v{vXR}
v_xor_b32 v{vXR+3}, 0x60, v{vXR}
s_cmp_lt_u32 s{sI}, 7
s_waitcnt vmcnt(0) lgkmcnt(0)
s_cbranch_scc1 L_gemm{var}
""")
    a("\n".join([m[2][0], m[1][2], m[3][0], m[2][1], m[2][2], m[3][1], m[3][2]]))
    stamp(1)
    a.c("epilogue: scale Q, pack to bf16 fragments, patch the pad slots, publish")
    for b in range(3):
        pk = 128 + 8 * b
        padp = sKP
        if var == 0:
            padp = sM1
            a(f"s_cmp_lt_u32 s{sT7}, {16-b}\ns_cselect_b64 {s(sM1,2)}, 0, {s(sKP,2)}\ns_cbranch_scc0 L_nosc{b}")
            for r in range(0, 16, 2): a(f"v_pk_mul_f32 {v(ACC+16*b+r,2)}, {v(ACC+16*b+r,2)}, {s(sQS,2)}")
            a.label(f"L_nosc{b}")
        for r in range(8): a(f"v_cvt_pk_bf16_f32 v{pk+r}, v{ACC+16*b+2*r}, v{ACC+16*b+2*r+1}")
        if isv[b]:
            a(f"s_mov_b64 exec, {s(sM1,2)}")
            for r in range(0, 8, 2): a(f"v_mov_b64 {v(pk+r,2)}, {s(sM2,2)}")
        else: a(f"s_mov_b32 exec_lo, 0\nv_mov_b64 {v(pk+6,2)}, {s(padp,2)}")
        o = 2048 * isv[b]
        a(f"""
s_mov_b64 exec, -1
buffer_store_dwordx4 {v(pk,4)}, v1, {srd(WS)}, s{sE0+b} offen offset:{o} sc1
buffer_store_dwordx4 {v(pk+4,4)}, v1, {srd(WS)}, s{sE0+b} offen offset:{o+1024} sc1
""")
    a("s_branch L_conv")

a.label("L_loader")
HELP = f"""
v_mov_b32 v133, {CNT}
v_mov_b32 v134, 0
ds_write_b32 v133, v134
v_min_u32 v133, 2, v130
v_lshl_add_u32 v133, v133, 4, s{sH}
v_mul_u32_u24 v133, 21846, v133
v_lshrrev_b32 v133, 16, v133
v_mov_b32 v134, s{sQT}
v_cmp_gt_u32 vcc, 16, v0
s_lshl_b32 s{sT0}, s{sCG}, 6
s_add_u32 s{sT0}, s{sT0}, s{sRT}
s_lshl_b32 s{sT0}, s{sT0}, {FS}
s_add_u32 s{sFL}, s{sT0}, {FA}
v_cndmask_b32 v134, v139, v134, vcc
v_lshl_add_u32 v133, v133, 4, v134
v_lshlrev_b32 v133, {FS}, v133
v_add_u32 v{vPB}, {FB}, v133
s_mul_i32 s{sT0}, s{sC}, 1171
s_lshr_b32 s{sT0}, s{sT0}, 16
s_lshl2_add_u32 s{sT0}, s{sT0}, s{sG}
s_lshl_b32 s{sT0}, s{sT0}, {4+FS}
s_add_u32 s{sT0}, s{sT0}, {FA}
v_lshl_add_u32 v{vPA}, v139, {FS}, s{sT0}
v_lshrrev_b32 v133, 2, v0
v_mul_u32_u24 v133, 28672, v133
v_lshl_add_u32 v{vUD}, v132, 4, v133
s_mul_i32 s{sT0}, s{sG}, {16*28672}
s_lshl_b32 s{sT1}, s{sC}, 7
s_add_u32 s{sT0}, s{sT0}, s{sT1}
s_add_u32 s{sUO}, s{sT0}, {UU}
v_bfe_u32 v138, v0, 1, 2
v_mul_u32_u24 v138, {HP}, v138
v_and_b32 v139, 1, v0
v_lshl_add_u32 v138, v139, 4, v138
v_add_u32 v139, {UOFF}, v1
v_cmp_gt_u32 vcc, 32, v0
v_mov_b64 v[140:141], 0
v_mov_b64 v[142:143], 0
v_cndmask_b32 v138, v138, v139, vcc
v_add_u32 v139, {LP}, v138
{srdc(((HK, 1835008),))}
s_lshl_b32 s{sT3}, s{sC}, 13
s_lshl_b32 s{sT4}, s{sG}, 10
s_add_u32 s{sT3}, s{sT3}, s{sT4}
v_add_u32 v11, s{sT3}, v1
v_add_u32 v{vHO}, s{sT4}, v1
v_subrev_u32 v12, 8, v11
v_cmp_eq_u32 vcc, 0, v{vHO}
v_mov_b32 v136, 0xffffe000
s_movk_i32 s{sT7}, 4096
v_cndmask_b32 v12, v12, v136, vcc
"""
def hprep(p):
    R = H0 + 8 * p; T = 40 + 12 * p
    a(f"v_add_u32 v{134+p}, {(LP if p else LX)+32}, v{vHO}")
    for i in range(4): a(f"v_alignbit_b32 v{T+i}, v{R+2+i}, v{R+1+i}, 16")
    for i in range(4): a(f"v_mov_b32 v{T+4+i}, v{R+1+i}")
    for i in range(4): a(f"v_alignbit_b32 v{T+8+i}, v{R+1+i}, v{R+i}, 16")
def hwrite(p):
    R = H0 + 8 * p; T = 40 + 12 * p
    a(f"ds_write_b128 v{134+p}, {v(R+2,4)}")
    for c in range(1, 4): a(f"ds_write_b128 v{134+p}, {v(T+4*(c-1),4)} offset:{HP*c}")
    a.c("zero pads: lanes 0-31 the u pad, lanes 32-39 the h pads")
    a(f"ds_write_b128 v{138+p}, {v(140,4)}")
def u_dma():
    a(f"""
s_lshl_b32 s{sT2}, s{sG}, 10
s_add_u32 m0, s{sT2}, {LX+UOFF+512}
s_add_u32 s{sT1}, s{sUO}, 64
buffer_load_dwordx4 v{vUD}, {srd(WS)}, s{sUO} offen sc1 lds
s_add_u32 m0, s{sT2}, {LP+UOFF+512}
s_nop 0
buffer_load_dwordx4 v{vUD}, {srd(WS)}, s{sT1} offen sc1 lds
""")

a(WADDR)
HL = [f"buffer_load_dwordx{2+2*k} {v(H0+8*p+2*k,2+2*k)}, v{12-k}, {srd(HK)}, {s(sT7) if p else 0} offen" for p in range(2) for k in range(2)]
rest = [(0, p) for p in dma_w(0)] + [(st, p) for st in range(1, 7) for p in dma_w(st) + dma_x(st)]
HPOS = 3 + 7 * OPT.get("hst", 4)
rest[HPOS:HPOS] = [(9, x) for x in HL]
rest.append((8, f"buffer_load_dword v144, v{vPA}, {srd(WS)}, 0 offen sc1"))
calc = [x.replace(" | ", "\n") for x in (IDS_U + COMMON + HELP).strip().split("\n") if x.strip()]
NC = min(HPOS, 17); LAGS = [int(x, 36) for x in SOPT.get("lags", "eedc97")]
issued = [0] * 4; n = 0
def bar(n):
    young = len(issued) - 1 - max(k for k, st in enumerate(issued) if st == n)
    if n == 0: stamp(1)
    a(f"s_waitcnt vmcnt({young})\ns_barrier")
    if n < 6: stamp(9 + n, 2)
    if n == 1:
        assert len(issued) >= NC + 4
        a.c("waves 0-3 waited for their u stores before this barrier")
        a(f"s_cmp_lg_u32 s{sW}, 4\ns_cbranch_scc1 L_nsa")
        signal(f"s{sFL}")
        a.label("L_nsa")
for k, (st, p) in enumerate(rest):
    assert st > 7 or "s[8:11]" in p or st - 4 < n - 1
    a(p); issued.append(st)
    if k < NC:
        for x in calc[len(calc) * k // NC: len(calc) * (k + 1) // NC]: a(x)
    if n < 6 and issued.count(n) == 7 and len(issued) - 1 - max(q for q, s_ in enumerate(issued) if s_ == n) >= LAGS[n]:
        bar(n); n += 1
while n < 6: bar(n); n += 1
EARLYH = OPT.get("hst", 4) < 5
HW = OPT.get("hw", 0)
if EARLYH: hprep(1); hwrite(1)
if HW: hprep(0)
bar(6)
if HW: hwrite(0)
a(f"s_waitcnt vmcnt(0)\nv_cmp_ne_u32 vcc, s{sNON}, v144\ns_cbranch_vccz L_uok")
poll(vPA, 144)
a("L_uok:")
u_dma()
stamp(4)
if not EARLYH: hprep(1); hwrite(1)
if not HW: hprep(0); hwrite(0)
a("s_setprio 1\ns_waitcnt vmcnt(0) lgkmcnt(0)")
def ldq():
    for i in range(8): a(f"buffer_load_dword v{QR+i}, v{vGA}, {srd(Q_)}, {'0' if i<4 else s(sT5)} offen offset:{896*(i&3)}")

a.label("L_conv")
CAC, CU, FA_, FB_ = 16, 48, 64, 128
a.c("---- long causal conv as block-Toeplitz MFMA: channel = wave>>2, lag phases split over wave&3")
a("s_barrier")
stamp(5)
def c_readA(i, r): return [f"ds_read_b64 {v(FA_+32*i+4*r+2*t,2)}, v{vCA} offset:{512*r+64*i+8*t}" for t in range(2)]
def c_readB(i, x): return [f"ds_read_b128 {v(FB_+32*i+4*x,4)}, v{vCB} offset:{512*x+64*(1-i)}"]
def c_m(i, nt, r, first=False): return mfma16(CAC+4*nt, FA_+32*i+4*r, FB_+32*i+4*(nt-r), "0" if first else CAC+4*nt)
lq = LQ()
rds = [x for i in range(2) for k in range(8) for x in c_readA(i, k) + c_readB(i, k)] + [f"ds_read_b128 {v(CU,4)}, v{vCU}"]
for x in rds[:15]: lq(x)
rds = rds[15:]
seen = set(); prev = -1
for k in range(8):
    grp = [(r, x) for r in range(k + 1) for x in range(k + 1) if max(r, x) == k and r + x <= 7]
    while grp:
        r, x = next((p for p in grp if p[0] + p[1] != prev), grp[0]); grp.remove((r, x))
        lq(c_m(0, r + x, r, first=(r + x) not in seen)); seen.add(r + x); prev = r + x
        if rds: lq(rds.pop(0))
assert not rds
stamp(9, 3)
a(f"""
s_cmp_ge_u32 s{sW}, 4
s_cbranch_scc1 L_cm
s_setprio 0
v_mov_b32 v52, {CNT}
v_mov_b32 v53, 1
s_mov_b64 exec, 1
s_waitcnt vmcnt(0)
ds_add_rtn_u32 v53, v52, v53
s_waitcnt lgkmcnt(0)
v_cmp_eq_u32 vcc, 3, v53
s_cbranch_vccz L_cnl
buffer_store_dword v{vNON}, v1, {srd(WS)}, s{sFL} offen sc1
L_cnl:
s_mov_b64 exec, -1
""")
stamp(4)
a.label("L_cm")
lq.drain()
a("s_barrier")
stamp(10, 3)
pend = []; cnt = 0; PP = ((36,), (25, 36), (14, 25, 36))[OPT.get("pp", 3) - 1]
for n0 in range(0, 8, 2):
    ms = []
    for r in range(n0 + 2):
        ms.append(c_m(1, n0 + 1, r))
        if r <= n0: ms.append(c_m(1, n0, r))
    for m_ in ms:
        a(m_); cnt += 1
        pend = [(w, n + 1) for w, n in pend]
        if pend and pend[0][1] >= 8: a(pend.pop(0)[0])
    for nt in (n0, n0 + 1): pend.append((f"ds_write_b128 v{vCW}, {v(CAC+4*nt,4)} offset:{1024*nt}", 0))
for t in range(8):
    m = (7 - t) // 2
    a(f"v_lshlrev_b32 v{56+t}, 16, v{CU+m}" if t % 2 else f"v_and_b32 v{56+t}, 0xffff0000, v{CU+m}")
a("v_and_b32 v126, 7, v0\nv_lshlrev_b32 v130, 3, v0\nv_mov_b64 v[128:129], 0")
for w, n in pend: a(w)
stamp(6)
a(f"s_cmp_lg_u32 s{sW}, 4\ns_cbranch_scc1 L_cred")
poll(vPB, 52)
a.label("L_cred")
a("s_waitcnt lgkmcnt(0)\ns_barrier")
stamp(7)
S1 = [int(x) for x in SOPT.get("s1", "310")]
def kvp(i): return f"buffer_load_dwordx4 v1, {srd(WS)}, s{sSO} offen offset:{1024*i} sc1 lds"
def kv_stage(n, cnt=4):
    a(f"s_add_u32 m0, s{sKL}, {LA+32768*n}\ns_add_u32 s{sSO}, s{sKS}, {32768*n}")
    for i in range(cnt): a(kvp(i))
a.c("behind that barrier every wave knows the QKV flags matched: Q and the first tiles go first")
a(f"""
s_setprio 0
s_lshl_b32 s{sT5}, s{sW}, 10
s_add_u32 m0, s{sT5}, {LR}
s_add_u32 s{sSO}, s{sKVB}, s{sK0}
buffer_load_dwordx4 v1, {srd(WS)}, s{sQO} offen sc1 lds
s_add_u32 m0, s{sK0}, {LA}
s_add_u32 s{sSO2}, s{sSO}, 4096
buffer_load_dwordx4 v1, {srd(WS)}, s{sSO} offen sc1 lds
buffer_load_dwordx4 v1, {srd(WS)}, s{sSO} offen offset:1024 sc1 lds
s_add_u32 m0, s{sK0}, {LA+4096}
""")
for q in range(4):
    for i in range(2): a(f"ds_read_b128 {v(64+8*q+4*i,4)}, v{vCR} offset:{8192*q+256*i}")
a(f"""
buffer_load_dwordx4 v1, {srd(WS)}, s{sSO2} offen sc1 lds
buffer_load_dwordx4 v1, {srd(WS)}, s{sSO2} offen offset:1024 sc1 lds
""")
stamp(11, 3)
a("s_waitcnt lgkmcnt(4)")
for t in range(8): a(f"v_fma_f32 v{56+t}, v{56+t}, v{vD}, v{64+t}")
for t in range(0, 8, 2): a(f"v_pk_add_f32 {v(56+t,2)}, {v(56+t,2)}, {v(72+t,2)}")
a("s_waitcnt lgkmcnt(0)")
a.c("wave 0 alone reads the first 128 bytes: it clears the progress bytes of the key loop behind its reads")
a(f"""
s_cmp_lg_u32 s{sW}, 0
s_cbranch_scc1 L_nclr
s_mov_b64 exec, 0xffff
ds_write_b64 v130, v[128:129]
s_mov_b64 exec, -1
L_nclr:
""")
for t in range(0, 8, 2): a(f"v_pk_add_f32 {v(80+t,2)}, {v(80+t,2)}, {v(88+t,2)}")
for t in range(0, 8, 2): a(f"v_pk_add_f32 {v(56+t,2)}, {v(56+t,2)}, {v(80+t,2)}")
for m in range(4): a(f"v_cvt_pk_bf16_f32 v{104+m}, v{56+2*m}, v{57+2*m}")
a("v_mov_b64 v[108:109], -1\nv_mov_b64 v[110:111], -1")
stamp(12, 3)
kv_stage(1, S1[0])
a(f"""
v_mov_b32 v124, s{sW}
s_and_b32 s{sT0}, s{sW}, 4
v_and_or_b32 v125, v0, 3, s{sT0}
s_lshr_b32 s{sT0}, s2, 3
s_mul_i32 s{sT0}, s{sT0}, 3
s_add_u32 s{sT0}, s{sT0}, s{sG}
s_lshl_b32 s{sT0}, s{sT0}, 12
s_add_u32 s{sT0}, s{sT0}, {128*896 if OPT.get("wp", 0) else 1<<20}
v_lshl_add_u32 v131, v0, 6, s{sT0}
v_xor_b32 v180, 2048, v{vQA}
s_add_u32 s{sT0}, s{sKL}, {LR}
v_add_u32 v181, s{sT0}, v1
v_xor_b32 v182, 4096, v181
""")
stamp(13, 3)
a(f"s_waitcnt vmcnt({2+S1[0]})")
stamp(14, 3)

MODS = ("", " sc1", " nt", " sc0 sc1", " sc1 nt"); GS, OS = MODS[OPT.get("gs", 0)], MODS[OPT.get("os", 0)]
WS0 = 128
vFW, vFG, vF8, vFT = 124, 125, 126, 127
vQ, vK, vV, vP, vSa, vSb, vO, vM, vKC, vZR, vFC = 16, 24, 32, 40, 48, 64, 80, 14, 96, 248, 120
a.c("---- attention: S^T = K Q^T - m (m rides in the pad slots), P = exp2, O^T += V^T P^T (row 28 = sum)")
a(f"""
L_att:
s_cmp_lg_u32 s{sTRY}, 0
s_barrier
""")
stamp(8)
QQ, OO, MM, vVL, vQB, vW0, vR0 = (132, vQ), (148, vO), (183, vM), 164, 180, 181, 182
def kvaddr(T, f):
    o = 32768 * ((T >> 1) & 3) + 4096 * (T & 1) + 1024 * f
    return f"v{vB0 if o < 65536 else vB1} offset:{o & 65535}"
def rdK(T, f): return f"ds_read_b128 {v(vK+4*f,4)}, {kvaddr(T, f)}"
def rdV(T, f): return f"ds_read_b128 {v(vV+4*f,4)}, {kvaddr(T, 2+f)}"
def wo_piece(g): return [f"s_add_u32 m0, s{sWM}, {WS0+7168*g}", f"s_mov_b32 s{sSO2}, {28672*g}", f"buffer_load_dwordx4 v{vWOA}, {srd(WO)}, s{sSO2} offen lds"]
def pieces(n):
    out = []
    if n == 1:
        out += [[f"buffer_store_dwordx4 {v(104,4)}, v{vZ}, {srd(WS)}, s{sZO} offen sc1"], [f"buffer_store_dwordx4 {v(108,4)}, v1, {srd(WS)}, s{sCL} offen sc1"]]
    if n < 6:
        for i in range(4):
            p = [f"buffer_load_dwordx4 v1, {srd(WS)}, s{sSO} offen offset:{1024*i} sc1 lds"]
            if i == 0: p = [f"s_add_u32 m0, s{sKL}, {LA+32768*((n+2)&3)}", f"s_add_u32 s{sSO}, s{sKS}, {32768*(n+2)}"] + p
            out.append(p)
        if n >= 2: out.append(wo_piece(n - 2))
    elif n < 8: out = [wo_piece(4 + 5 * (n - 6) + i) for i in range(5)]
    return out
def maxtree(S, dst, have):
    a(f"v_max3_f32 v{dst}, v{S}, v{S+1}, v{dst}" if have else f"v_max_f32 v{dst}, v{S}, v{S+1}")
    for i in range(2, 16, 2): a(f"v_max3_f32 v{dst}, v{S+i}, v{S+i+1}, v{dst}")
p0 = pieces(0)
a(f"""
s_cbranch_scc1 L_haveq
ds_read_b128 {v(QQ[0],4)}, v{vQB}
ds_read_b128 {v(vKC,4)}, v1 offset:{LA}
ds_read_b128 {v(QQ[0]+4,4)}, v{vQB} offset:1024
ds_read_b128 {v(vKC+4,4)}, v1 offset:{LA+1024}
ds_read_b128 {v(vQ,4)}, v{vQA}
ds_read_b128 {v(vQ+4,4)}, v{vQA} offset:1024
L_haveq:
{rdK(0,0)}
{rdK(0,1)}
{rdV(0,0)}
{chr(10).join(kvp(i) for i in range(S1[0], S1[0]+S1[1]))}
s_cbranch_scc1 L_havem
s_waitcnt lgkmcnt(7)
{mfma32(vSb, vKC, QQ[0], "0")}
s_waitcnt lgkmcnt(5)
{mfma32(vSb, vKC+4, QQ[0]+4, vSb)}
s_waitcnt lgkmcnt(3)
{mfma32(vO, vKC, vQ, "0")}
{mfma32(vO, vKC+4, vQ+4, vO)}
L_havem:
s_waitcnt lgkmcnt(0)
{mfma32(vSa, vK, QQ[0], "0")}
{chr(10).join(kvp(i) for i in range(S1[0]+S1[1], 4))}
""")
NM = OPT.get("nm", 2)
a("s_cbranch_scc1 L_hm")
for i in range(NM):
    for S_, m in ((vSb, MM[0]), (vO, MM[1])): a(f"v_max3_f32 v{m}, v{S_+2*i+1}, v{S_+(2*i+2)%16}, v{m if i else S_}")
a.c("lanes 0-31 split the shift of tile 0, lanes 32-63 that of tile 1, into three bf16 parts")
a(f"""
L_hm:
v_permlane32_swap_b32 v{MM[0]}, v{MM[1]}
v_max_f32 v96, v{MM[0]}, v{MM[1]}
v_xor_b32 v96, 0x80000000, v96
v_and_b32 v97, 0xffff0000, v96
v_sub_f32 v96, v96, v97
v_and_b32 v98, 0xffff0000, v96
v_sub_f32 v96, v96, v98
v_lshrrev_b32 v97, 16, v97
v_lshrrev_b32 v99, 16, v96
v_or_b32 v98, v97, v98
s_mov_b32 exec_lo, 0
v_mov_b64 {v(vQ+6,2)}, v[98:99]
s_mov_b32 exec_lo, -1
v_permlane32_swap_b32 v{QQ[0]+6}, v98
v_permlane32_swap_b32 v{QQ[0]+7}, v99
{mfma32(vSa, vK+4, QQ[0]+4, vSa)}
""")
lq = LQ()
a("s_waitcnt vmcnt(4)\ns_barrier")
stamp(9)
stamp(1, 4)
PRIO = {int(x, 16): 3 - i for i, x in enumerate(SOPT.get("pr", "07cf"))}
DSL = [int(x, 16) for x in SOPT.get("dsl", "89abc")]; DSL6 = [int(x, 16) for x in SOPT.get("dsl6", "0189ab")]; DSL7 = [int(x, 16) for x in SOPT.get("dsl7", "01234")]; S7 = OPT.get("s7", 14); DSL0 = [int(x, 16) for x in SOPT.get("dsl0", "abcd")]
todo = dict(zip(DSL0, p0)); since = 0
def sub(T): return T & 1 if T < 28 else (T >> 1) & 1
def fr(T, f): return (vVL if T in (29, 31) else vK) + 4 * f
LAST = {(27, 0): 0, (27, 1): 1, (27, 2): 2, (28, 0): 3}
RS_ = OPT.get("rs", 13); QS = OPT.get("qs", 14); CW = OPT.get("cw", 2); BP = OPT.get("bp", 120)
def fl_read(i): return f"ds_read_u8 v{vFT}, v{vF8 if i in (3, 6, 7) else vFG} offset:{8*(i-1)}"
a.c("no barriers in the loop: a wave posts a byte once its DMA of the next stage landed and it left the stage before; readers check half a stage later")
for T in range(32):
    S, Sn = (vSa, vSb) if T % 2 == 0 else (vSb, vSa)
    n = (T + 2) >> 2
    if T & 3 == 2:
        if n == 8: pass
        elif OPT.get("spi", 0): a(f"s_cbranch_vccz L_spr{n}\nL_sp{n}:\n{fl_read(n)}\ns_waitcnt lgkmcnt(0)\nv_cmp_eq_u32 vcc, 0, v{vFT}\ns_cbranch_vccnz L_sp{n}\nL_spr{n}:")
        else: a(f"s_cbranch_vccnz L_sp{n}\nL_spr{n}:")
        if DIAG and OPT.get("set") == 4:
            if n > 1: a(f"s_mov_b32 s{sST+(7+n if n < 8 else 2)}, s96")
            if n < 8: a("s_memtime s[96:97]")
        pc = pieces(n); assert not todo
        todo = dict(zip(DSL7 if n == 7 else [x + 2 for x in DSL] if n == 6 else DSL if len(pc) < 6 else DSL6, pc)); since = 0
    for k in range(4):
        sl = (4 * T + k + 8) & 15
        if 4 * T + k == BP: a(f"s_setprio 0\ns_cmp_lt_u32 s{sW}, 4\ns_cbranch_scc1 L_np\ns_setprio 3\nL_np:")
        if 4 * T + k == OPT.get("s8", 115): assert 4 * T + k >= 115; lq(f"ds_write_b8 v{vFW}, v108 offset:56")
        if sl in PRIO and 4 * T + k < BP or (T, k) == (0, 0): a(f"s_setprio {PRIO.get(sl, 2 if PRIO else 0)}")
        j = T >> 1
        if T == 31:
            if k == 0: a("s_cbranch_vccnz L_sp8\nL_spr8:")
            lq(f"ds_write_b128 v{vW0}, {v(OO[0]+4*k,4)} offset:{1024*k}")
        if k < 2:
            if T < 31: lq(mfma32(Sn, fr(T+1, k), QQ[sub(T+1)]+4*k, Sn if k else "0"))
            if T % 2 == 0 and j < 14: lq(rdK(j + 1, k))
        elif k == 2:
            if T > 0: lq(mfma32(OO[sub(T-1)], fr(T-1, 3), vP+4, OO[sub(T-1)]))
            if T % 2 == 0 and j < 15: lq(rdV(j, 1))
        else:
            lq(mfma32(OO[sub(T)], fr(T, 2), vP, "0" if T < 2 else OO[sub(T)]))
            if T % 2 and j < 14: lq(rdV(j + 1, 0))
        if (T, k) in LAST: lq(f"ds_read_b128 {v(vVL+4*LAST[T, k],4)}, {kvaddr(15, LAST[T, k])}")
        if sl == {0: OPT.get("s0", 10), 6: 10, 7: -1}.get(n, 8):
            if n == 4: assert since == 0; a(f"s_cmp_ge_u32 s{sW}, 4\ns_cbranch_scc1 L_w4\ns_waitcnt vmcnt(1)\nL_w4:\ns_waitcnt vmcnt(8)")
            elif n < 7: a(f"s_waitcnt vmcnt({since})")
            if n == 6: a(f"""
s_cmp_lg_u32 s{sW}, {CW}
s_cbranch_scc1 L_chkc_r
s_mov_b32 s{sSP}, {SPIN}
L_chkc1:
v_cmp_ne_u32 vcc, s{sNON}, v{vFC}
v_cmp_ne_u32 s[{sM1}:{sM1+1}], s{sNON}, v{vFC+1}
s_or_b64 s[{sM1}:{sM1+1}], vcc, s[{sM1}:{sM1+1}]
v_cmp_ne_u32 vcc, s{sNON}, v{vFC+2}
s_or_b64 s[{sM1}:{sM1+1}], vcc, s[{sM1}:{sM1+1}]
v_cmp_ne_u32 vcc, s{sNON}, v{vFC+3}
s_or_b64 vcc, vcc, s[{sM1}:{sM1+1}]
s_cbranch_scc1 L_chkc3
L_chkc2:
s_cmp_eq_u32 s2, 0
s_cbranch_scc1 L_epoch
L_chkc_r:
""")
            lq(f"ds_write_b8 v{vFW}, v108 offset:{8*n}" if OPT.get("nox", 1) else f"s_mov_b64 exec, 1\nds_write_b8 v{vFW}, v108 offset:{8*n}\ns_mov_b64 exec, -1")
        if sl == {0: 14, 6: 14, 7: -1, 8: 2}.get(n, RS_): lq(fl_read(min(n + 1, 8)))
        ex = [f"v_exp_f32 v{S+r}, v{S+r}" for r in range(4 * k, 4 * k + 4)]
        cv = [f"v_cvt_pk_bf16_f32 v{vP+r}, v{S+2*r}, v{S+2*r+1}" for r in range(2 * k, 2 * k + 2)]
        p = todo.pop(sl, []); since += len(p) > 0
        body = []
        for e in range(4):
            body.append(ex[e])
            if e < len(p): body.append(p[e])
        a("\n".join(body))
        if sl == {7: -1, 8: 3}.get(n, 15): lq(f"v_cmp_eq_u32 vcc, 0, v{vFT}")
        a("\n".join(cv))
        if sl == QS and n == 3:
            a.c("z and the slot marks are out (all waves posted): wave 3 raises the flag; waves 4-7 fetch the gate inputs")
            a(f"s_movk_i32 s{sT5}, 3584\ns_cmp_ge_u32 s{sW}, 4\ns_cbranch_scc1 L_ldq\ns_cmp_lg_u32 s{sW}, 3\ns_cbranch_scc1 L_wpf\ns_lshl_b32 s{sT0}, s2, 2\ns_add_u32 s{sT0}, s{sT0}, {FC}")
            signal(f"s{sT0}")
            a("s_branch L_ldq_r\nL_ldq:")
            ldq()
            a.c("waves 0-2 pull a slice of the wo rows that are staged last towards the cache")
            a(f"s_branch L_ldq_r\nL_wpf:\nbuffer_load_dword v{QR}, v131, {srd(WO)}, 0 offen\nL_ldq_r:")
            assert not todo
        if sl == 8 and n == 5:
            a.c("flags of all workgroups' z and slot marks (one word each)")
            a(f"s_cmp_lg_u32 s{sW}, {CW}\ns_cbranch_scc1 L_nfc\ns_movk_i32 s{sT0}, {FC}\nbuffer_load_dwordx4 {v(vFC,4)}, v1, {srd(WS)}, s{sT0} offen sc1\nL_nfc:")
        if sl == OPT.get("zs", 5) and n == 7:
            a(f"""
s_cmp_lt_u32 s{sW}, 4
s_cbranch_scc1 L_nz
buffer_load_dwordx4 {v(vZR,4)}, v{vZL}, {srd(WS)}, s{sUT} offen sc1
buffer_load_dwordx4 {v(vZR+4,4)}, v{vZL}, {srd(WS)}, s{sUT} offen offset:64 sc1
L_nz:
""")
lq(mfma32(vO, fr(31, 3), vP+4, vO))
a("s_setprio 0")
stamp(10)
stamp(3, 4)
a(f"""
s_mov_b32 s{sT2}, 0x5f800000
v_mov_b64 v[100:101], 0
v_mov_b64 v[102:103], 0
s_and_b32 s{sT1}, s{sW}, 1
s_mul_i32 s{sT1}, s{sT1}, 768
s_add_u32 s{sT1}, s{sT1}, {WS0+448*224}
v_add_u32 v99, s{sT1}, v1
s_cmp_lt_u32 s{sW}, 4
s_cbranch_scc1 L_mA
ds_write_b128 v99, {v(100,4)}
""")
for i in range(4): a(f"ds_write_b128 v{vMG}, {v(vO+4*i,4)} offset:{1024*i}")
a(f"""
L_mA:
v_add_f32 v98, v{vO+12}, v{OO[0]+12}
v_cmp_nle_f32 vcc, v98, s{sT2}
v_mov_b32 v98, vcc_hi
ds_write_b32 v{vBW}, v98
s_waitcnt vmcnt(0) lgkmcnt(0)
s_barrier
ds_read_b32 v98, v{vBR}
s_cbranch_scc0 L_mB
""")
lq = LQ(); lq.q = [{("v", 98)}]
PB = (vSa, vSb, 164)
for i in (3, 0, 1, 2):
    for b, ad in zip(PB, (f"v{vMG} offset:{1024*i}", f"v{vR0} offset:{1024*i}", f"v{vR0} offset:{16384+1024*i}")): lq(f"ds_read_b128 {v(b+4*i,4)}, {ad}")
a(f"s_setprio 3\ns_waitcnt lgkmcnt(12)\nv_cmp_lt_u32 vcc, s{sTRY}, v98\ns_cbranch_vccnz L_fallback"); lq.q = lq.q[1:]
for i in (3, 0, 1, 2):
    for d, s_ in ((vO, PB[0]), (PB[1], PB[2]), (vO, PB[1])):
        for r in (4*i, 4*i+2): lq(f"v_pk_add_f32 {v(d+r,2)}, {v(d+r,2)}, {v(s_+r,2)}")
    if i == 3: a(f"v_mov_b32 v96, v{vO+12}\nv_mov_b32 v97, v{vO+12}")
    if i == 0: a(f"v_permlane32_swap_b32 v96, v97\nv_rcp_f32 v96, v97")
for hf in range(2):
    for r in range(8*hf, 8*hf+8, 2): a(f"v_pk_mul_f32 {v(vO+r,2)}, {v(vO+r,2)}, v[96:97] op_sel_hi:[1,0]")
    for r in range(4*hf, 4*hf+4): a(f"v_cvt_pk_bf16_f32 v{vP+r}, v{vO+2*r}, v{vO+2*r+1}")
    if hf: a(f"s_mov_b32 exec_lo, 0\nv_mov_b64 {v(vP+6,2)}, 0\ns_mov_b32 exec_lo, -1")
    a(f"buffer_store_dwordx4 {v(vP+4*hf,4)}, v1, {srd(WS)}, s{sOO} offen offset:{1024*hf} sc1")
a("s_setprio 0\ns_barrier")
stamp(11)
WFR, OB, OA = 112, 16, 48
a(f"""
v_bfe_u32 v96, v0, 2, 2
v_lshrrev_b32 v97, 5, v0
v_lshl_add_u32 v96, v96, 1, v97
v_mul_u32_u24 v96, 224, v96
v_bfe_u32 v98, v0, 4, 1
v_lshl_add_u32 v96, v98, 5, v96
v_and_b32 v98, 3, v0
v_lshl_add_u32 v96, v98, 3, v96
s_lshl_b32 s{sT2}, s{sG}, 6
v_add_u32 v2, s{sT2}, v96
v_mul_u32_u24 v99, {6*224}, v97
v_add_u32 v3, v99, v2
v_add_u32 v9, {8*28*224}, v2
v_add_u32 v10, {8*28*224}, v3
""")
for h in range(16):
    for s_ in range(2):
        for t in range(2):
            Qd = 7 * (h & 7) + 4 * s_ + 2 * t
            a(f"ds_read_b64_tr_b16 {v(WFR+8*h+4*s_+2*t,2)}, v{(2, 3, 9, 10)[(h&1) + 2*(h>>3)]} offset:{WS0+(8*(Qd>>1) + (Qd&1))*224}")
a(f"""
v_mov_b32 v4, 0
v_add_u32 v5, {LR}, v1
v_and_b32 v99, 31, v0
v_mul_u32_u24 v99, 1792, v99
v_lshl_add_u32 v8, v97, 4, v99
s_mul_i32 s{sT0}, s{sRT}, {32*1792}
s_mul_i32 s{sT1}, s{sCG}, 224
s_add_u32 s{sT0}, s{sT0}, s{sT1}
s_add_u32 s{sT0}, s{sT0}, s{sT2}
""")
if OPT.get("ep"): a(f"""
v_and_b32 v99, 31, v0
v_mul_u32_u24 v99, 80, v99
v_lshl_add_u32 v99, v97, 3, v99
s_mul_i32 s{sT1}, s{sG}, 4096
s_add_u32 s{sT1}, s{sT1}, {MERGE}
v_add_u32 v6, s{sT1}, v99
v_lshrrev_b32 v99, 2, v0
v_mul_u32_u24 v100, 80, v99
v_lshl_add_u32 v100, v98, 4, v100
v_add_u32 v7, s{sT1}, v100
v_mul_u32_u24 v100, 1792, v99
v_lshl_add_u32 v8, v98, 4, v100
s_add_u32 s{sT1}, s{sT0}, {16*1792}
s_cmp_eq_u32 s{sG}, 3
s_cselect_b32 s{sM1}, 0x33333333, -1
s_mov_b32 s{sM1+1}, s{sM1}
""")
a("s_waitcnt lgkmcnt(0)")
stamp(12)
a.c("waves 4-7 post one byte per staged head; chunk k+1 (4 heads) is checked and read while chunk k multiplies")
def ob(k): return OB if k % 2 == 0 else 64
def o_rd(k, f): return f"ds_read_b128 {v(ob(k)+4*f,4)}, v5 offset:{8192*k+1024*f}"
def o_fl(k): return f"ds_read_b32 v96, v4 offset:{64+4*k}"
def o_spin(k): return f"L_os{k}:\n{o_fl(k)}\ns_waitcnt lgkmcnt(0)\nv_cmp_ne_u32 vcc, -1, v96\ns_cbranch_vccnz L_os{k}"
def early_wb():
    a.c("start writing the gated half of the output back while the projection runs")
    a(f"s_lshr_b32 s{sT3}, s2, 3\ns_add_u32 s{sT3}, s{sT3}, s{sG}\ns_cmp_lg_u32 s{sT3}, 0\ns_cbranch_scc1 L_nwb\nbuffer_wbl2 sc1\nL_nwb:")
if OPT.get("wb") == 4: early_wb()
a("s_barrier" if OPT.get("fb", 1) else o_spin(0))
stamp(13)
lq = LQ()
for f in range(8): lq(o_rd(0, f))
if OPT.get("wb") == 5: early_wb()
CK = OPT.get("ck", 3)
for k in range(4):
    rd = [o_rd(k + 1, f) for f in range(8)] if k < 3 else []
    if rd: lq(o_fl(k + 1))
    for f in range(8):
        lq(mfma32(OA, WFR+32*k+4*f, ob(k)+4*f, "0" if k == 0 and f == 0 else OA))
        if rd and f == CK:
            lq(f"v_cmp_ne_u32 vcc, -1, v96\ns_cbranch_vccz L_or{k+1}")
            a(o_spin(k + 1) + f"\nL_or{k+1}:")
        if f >= CK:
            for x in rd[:2]: lq(x)
            rd = rd[2:]
if OPT.get("ep"):
    for r in range(8): a(f"v_cvt_pk_bf16_f32 v{16+r}, v{OA+2*r}, v{OA+2*r+1}")
    for m in range(4): a(f"ds_write_b64 v6, {v(16+2*m,2)} offset:{16*m}")
    a(f"""
s_waitcnt lgkmcnt(0)
ds_read_b128 {v(24,4)}, v7
ds_read_b128 {v(28,4)}, v7 offset:{16*80}
s_mov_b64 exec, s[{sM1}:{sM1+1}]
s_waitcnt lgkmcnt(1)
buffer_store_dwordx4 {v(24,4)}, v8, {srd(OUT)}, s{sT0} offen{OS}
s_waitcnt lgkmcnt(0)
buffer_store_dwordx4 {v(28,4)}, v8, {srd(OUT)}, s{sT1} offen{OS}
""")
for hf in range(0 if OPT.get("ep") else 2):
    if hf: a(f"s_cmp_eq_u32 s{sG}, 3\ns_cbranch_scc1 L_ost")
    for r in range(4*hf, 4*hf+4): a(f"v_cvt_pk_bf16_f32 v{16+r}, v{OA+2*r}, v{OA+2*r+1}")
    for d in range(2): a(f"v_permlane32_swap_b32 v{16+4*hf+d}, v{18+4*hf+d}")
    a(f"buffer_store_dwordx4 {v(16+4*hf,4)}, v8, {srd(OUT)}, s{sT0} offen offset:{32*hf}{OS}")
a("L_ost:")
stamp(14)
a("s_branch L_fin" if DIAG else "s_endpgm")

a(f"L_mB:\ns_waitcnt lgkmcnt(0)\nv_cmp_lt_u32 vcc, s{sTRY}, v98\ns_cbranch_vccnz L_fallback")
a(f"""
s_mul_i32 s{sT5}, s{sRT}, {32*896}
s_add_u32 s{sT5}, s{sT5}, 896
""")
for i in range(8): a(f"v_lshlrev_b32 v{16+2*i}, 16, v{QR+i}\nv_and_b32 v{17+2*i}, 0xffff0000, v{QR+i}")
for t in range(8):
    for p in range(2):
        src = vZR + 4 * p + t // 2
        a(f"v_lshlrev_b32 v{32+2*t+p}, 16, v{src}" if t % 2 == 0 else f"v_and_b32 v{32+2*t+p}, 0xffff0000, v{src}")
for t in range(8): a(f"v_pk_mul_f32 {v(32+2*t,2)}, {v(32+2*t,2)}, {v(16+2*t,2)}")
for t in range(8): a(f"v_cvt_pk_bf16_f32 v{56+t}, v{32+2*t}, v{33+2*t}")
def gate_st():
    for t in range(8):
        a(f"buffer_store_dword v{56+t}, v{vGO}, {srd(OUT)}, s{sT5} offen offset:{1792*(t&1)}{GS}")
        if t & 1 and t < 7: a(f"s_add_u32 s{sT5}, s{sT5}, 3584")
GO = OPT.get("go", 0)
a.c("waves 0-3 have read the partial sums and sent O"); a("s_barrier")
if OPT.get("gp"): a(f"s_setprio {OPT['gp']}")
if not OPT.get("gl") and not GO: gate_st()
if OPT.get("dl"): a(f"s_sleep {OPT['dl']}" if OPT["dl"] > 1 else "s_waitcnt vmcnt(0)")
stamp(11)
a.c("O fragments: every word differs from the all-ones mark once its producer's store has landed")
OL = 64
a(f"""
s_lshl_b32 s{sT0}, s{sRT}, 15
s_lshl_b32 s{sT1}, s{sG}, 11
s_add_u32 s{sT0}, s{sT0}, s{sT1}
s_add_u32 s{sT0}, s{sT0}, {OF}
s_add_u32 s{sT1}, s{sT0}, 8192
s_add_u32 s{sT2}, s{sT0}, 16384
s_add_u32 s{sT3}, s{sT0}, 24576
s_mov_b32 s{sSP}, {SPIN}
""")
def o_issue(k0):
    for k in range(k0, 4):
        for i in range(2): a(f"buffer_load_dwordx4 {v(OL+8*k+4*i,4)}, v1, {srd(WS)}, s{sT0+k} offen offset:{1024*i} sc1")
o_issue(0)
if GO: gate_st()
for k in range(4):
    r = OL + 8 * k
    a(f"""
s_waitcnt vmcnt({6-2*k+8*GO})
L_ochk{k}:
v_max3_u32 v96, v{r}, v{r+1}, v{r+2}
v_max3_u32 v97, v{r+3}, v{r+4}, v{r+5}
v_max3_u32 v96, v{r+6}, v{r+7}, v96
v_max_u32 v96, v96, v97
v_cmp_eq_u32 vcc, -1, v96
s_cbranch_vccnz L_oretry{k}
L_ogo{k}:
ds_write_b128 v{vQA}, {v(r,4)} offset:{8192*k}
ds_write_b128 v{vQA}, {v(r+4,4)} offset:{8192*k+1024}
""")
    a("s_waitcnt lgkmcnt(0)\ns_barrier" if k == 0 and OPT.get("fb", 1) else f"ds_write_b8 v{vFW}, v108 offset:{60+4*k}")
    if k == 0: stamp(12)
a("s_waitcnt lgkmcnt(0)")
stamp(13)
if DIAG and OPT.get("cyc"): a(f"s_sub_u32 s{sST+2}, {SPIN}, s{sSP}\ns_mul_i32 s{sST+2}, s{sST+2}, 100\ns_add_u32 s{sST+2}, s{sST+2}, s98\ns_add_u32 s{sST+2}, s{sST+2}, 1")
if 0 < OPT.get("wb", 0) < 4:
    a.c("start writing the gated half of the output back while the projection finishes")
    a(f"s_bfe_u32 s{sT0}, s2, {(0, 0, 0x30003, 0x50003)[OPT['wb']]}\ns_add_u32 s{sT0}, s{sT0}, s{sG}\ns_cmp_lg_u32 s{sT0}, 0\ns_cbranch_scc1 L_fin\nbuffer_wbl2 sc1\ns_waitcnt vmcnt(0)")
a.label("L_fin")
if DIAG:
    a(f"s_mov_b64 exec, -1\ns_mov_b32 s{sST+15}, s98")
    a(f"s_lshl_b32 s{sT0}, s2, 3\ns_add_u32 s{sT0}, s{sT0}, s{sW}\ns_lshl_b32 s{sT0}, s{sT0}, 6\ns_add_u32 s{sT0}, s{sT0}, {DG}\nv_lshlrev_b32 v96, 2, v0")
    for k in range(16): a(f"v_writelane_b32 v97, s{sST+k}, {k}")
    a(f"s_mov_b64 exec, 0xffff\nbuffer_store_dword v97, v96, {srd(WS)}, s{sT0} offen")
if DIAG and OPT.get("wbx"): a("s_waitcnt vmcnt(0)\nbuffer_wbl2 sc1\ns_waitcnt vmcnt(0)")
if "probe" in OPT:
    a(f"""
s_cmp_lg_u32 s2, {OPT.get("pwg", 100)}
s_cbranch_scc1 L_end
s_cmp_lg_u32 s{sW}, {OPT.get("pw", 0)}
s_cbranch_scc1 L_end
s_sub_u32 s{sT0}, s{sST+OPT["probe"]}, s{sST+OPT["pb"] if "pb" in OPT else 98}
s_lshl_b32 s{sT0}, s{sT0}, {3 if "pb" in OPT else 2}
s_add_u32 s{sT0}, s{sT0}, 4000
s_min_u32 s{sT0}, s{sT0}, 20000
L_probe:
s_memrealtime s[96:97]
s_waitcnt lgkmcnt(0)
s_sub_u32 s96, s96, s98
s_cmp_lt_u32 s96, s{sT0}
s_cbranch_scc1 L_probe
""")
a.label("L_end")
a("s_endpgm")

for k in range(4):
    a(f"L_oretry{k}:\ns_sub_u32 s{sSP}, s{sSP}, 1\ns_cbranch_scc1 L_ogo{k}".replace(f"s_cbranch_scc1 L_ogo{k}", f"s_cselect_b32 s{sSP}, 0, s{sSP}\ns_cbranch_scc1 L_ogo{k}"))
    o_issue(k)
    a(f"s_waitcnt vmcnt({0 if GO else 6-2*k})\ns_branch L_ochk{k}")

for i in range(1, 9):
    if i == 8 or not OPT.get("spi", 0): a(f"L_sp{i}:\n{fl_read(i)}\ns_waitcnt lgkmcnt(0)\nv_cmp_eq_u32 vcc, 0, v{vFT}\ns_cbranch_vccnz L_sp{i}\ns_branch L_spr{i}")
a(f"""
L_chkc3:
s_sub_u32 s{sSP}, s{sSP}, 1
s_cbranch_scc1 L_chkc2
buffer_load_dwordx4 {v(vFC,4)}, v1, {srd(WS)}, s{sT0} offen sc1
s_waitcnt vmcnt(0)
s_branch L_chkc1
L_epoch:
""")
a.c("workgroup 0 advances the epoch word: every workgroup is known to have read it")
signal("0")
a("s_branch L_chkc_r")

a.label("L_fallback")
a(f"""
s_mov_b32 s{sTRY}, -1
s_setprio 0
s_waitcnt lgkmcnt(0)
s_barrier
s_mov_b64 exec, 0xffff
ds_write_b64 v130, v[128:129]
s_mov_b64 exec, -1
s_waitcnt lgkmcnt(0)
""")
kv_stage(0); kv_stage(1)
a(f"""
s_mov_b32 exec_lo, 0
v_mov_b32 v{vQ+6}, 0
v_mov_b32 v{vQ+7}, 0
v_mov_b32 v{QQ[0]+6}, 0
v_mov_b32 v{QQ[0]+7}, 0
s_mov_b32 exec_lo, -1
v_mov_b32 v{vM}, 0xff800000
v_mov_b32 v{MM[0]}, 0xff800000
s_mov_b32 s{sT3}, s{sKVB}
s_mov_b32 s{sI}, 0
L_fb1:
buffer_load_dwordx4 {v(vK,4)}, v1, {srd(WS)}, s{sT3} offen sc1
buffer_load_dwordx4 {v(vK+4,4)}, v1, {srd(WS)}, s{sT3} offen offset:1024 sc1
s_waitcnt vmcnt(0)
{mfma32(vSb, vK, vQ, "0")}
{mfma32(vSb, vK+4, vQ+4, vSb)}
{mfma32(vSa, vK, QQ[0], "0")}
{mfma32(vSa, vK+4, QQ[0]+4, vSa)}
s_add_u32 s{sT3}, s{sT3}, 4096
s_add_u32 s{sI}, s{sI}, 1
""")
maxtree(vSb, vM, True)
maxtree(vSa, MM[0], True)
a(f"""
s_cmp_lt_u32 s{sI}, 64
s_cbranch_scc1 L_fb1
s_branch L_att
L_codeend:
""")

import subprocess
body0 = pad(a.l, verbose="v" in sys.argv)
def emit(pfs, fill):
    body = [l.replace("@@PFS@@", str(pfs)) for l in body0]
    hdr = open("cdna_kernels/" + NAME + ".s.ref").read().split("; Override launch")[0]
    return hdr + f"""; One persistent launch, one workgroup per CU; phases hand data over through d_ws with tagged flags.
; @launch grid=(256,1,1) block=(512,1,1) lds=163840
.amdgcn_target "amdgcn-amd-amdhsa--gfx950"
.text
.globl {NAME}_kernel
.p2align 8
.type {NAME}_kernel,@function
""" + "\n".join(body) + f"""
    .fill {fill}, 4, 0xbf810000
.section .rodata,"a"
.p2align 6
.amdhsa_kernel {NAME}_kernel
  .amdhsa_next_free_vgpr 256
  .amdhsa_next_free_sgpr 102
  .amdhsa_accum_offset 256
  .amdhsa_group_segment_fixed_size 0
  .amdhsa_kernarg_size 96
  .amdhsa_user_sgpr_count 2
  .amdhsa_user_sgpr_kernarg_segment_ptr 1
  .amdhsa_system_sgpr_workgroup_id_x 1
.end_amdhsa_kernel
"""
def size_of(txt):
    open("_sz.s", "w").write(txt)
    subprocess.run(["clang", "-x", "assembler", "-target", "amdgcn-amd-amdhsa", "-mcpu=gfx950", "-c", "_sz.s", "-o", "_sz.o"], check=True)
    o = subprocess.run(["llvm-objdump", "-t", "_sz.o"], capture_output=True, text=True).stdout
    return [int(l.split()[0], 16) for l in o.splitlines() if l.endswith("L_codeend")][0]
sz = size_of(emit(40, 1))
pfs = OPT.get("pfs", (sz + 2047) // 2048 * 4)
assert pfs <= 64
print("code bytes", sz, "prefetch stride", pfs)
open(sys.argv[1], "w").write(emit(pfs, max(1, (pfs * 512 - sz + 3) // 4)))
```

```python
import sys, struct, math
from asmlib import *

NAME = "concat_heads__softmax_full_mha__ssm_conv_h3__prompt"
DIAG = "diag" in sys.argv
SOPT = dict(a.split("=") for a in sys.argv[2:] if "=" in a)
OPT = {k: int(x) for k, x in SOPT.items() if x.isdigit()}
OPT.setdefault("rt", 40404040)
SPIN = 1 << 16

FA, FB, FC = 0x40000, 0x60000, 0x3000
FS = OPT.get('fs', 4)
QF, KV, UU, ZZ, OF, WSEND = 0x100000, 0x300000, 0x700000, 0x900000, 0xB00000, 0xD00000
DG = 0x10000
LX, LA, LB, LP, LR = 0, 32768, 65536, 98304, 131072
HP, UOFF = 4160, 16640
MERGE, BADF = LP + 16384, LP + 3968
ONES = 0x3f803f80
def fbits(x): return struct.unpack("<I", struct.pack("<f", x))[0]
QSCALE = fbits(28 ** -0.5 * math.log2(math.e))

X_, WQ, WO, Q_, K_, V_, SK, HK, OUT, WS = 4, 8, 12, 16, 20, 24, 28, 32, 36, 40
sDP, sNON, sW = 44, 46, 47
sJ, sTT, sRT, sCG, sC, sH, sQT, sG = 48, 49, 50, 51, 52, 53, 54, 55
sED, sT0, sT1, sT2, sT3, sT4, sT5, sT6, sT7 = 56, 57, 58, 59, 60, 61, 62, 63, 64
sI, sSO, sSO2, sLW, sLX, sTRY, sSP, sCB = 65, 66, 67, 68, 69, 70, 71, 72
sDV, sM1, sM2 = 73, 74, 76
sKVB, sWM = 78, 79
sFL, sE0, sE1, sE2, sKP, sZO, sOO, sKL, sUO, sQO, sUT, sKS = 20, 21, 22, 23, 24, 26, 27, 28, 29, 30, 31, 3
sUS, sCL, sK0 = 29, 44, 45
sQS = 34
sST = 80
def srd(b): return s(b, 4)

a = Asm()
def stamp(k, st=None):
    if not DIAG: return
    if st is None and k >= 9: st = 0
    if st is not None and st != OPT.get("set", 0): return
    a(f"{'s_memtime' if OPT.get('cyc') else 's_memrealtime'} s[96:97]\ns_waitcnt lgkmcnt(0)\ns_mov_b32 s{sST+k}, s96")

npoll = [0]
def poll(vaddr, vtmp):
    n = npoll[0]; npoll[0] += 1
    a(f"""
s_mov_b32 s{sSP}, {SPIN}
L_poll{n}:
buffer_load_dword v{vtmp}, v{vaddr}, {srd(WS)}, 0 offen sc1
s_waitcnt vmcnt(0)
v_cmp_ne_u32 vcc, s{sNON}, v{vtmp}
s_cbranch_vccz L_pollok{n}
s_sub_u32 s{sSP}, s{sSP}, 1
s_cbranch_scc0 L_poll{n}
L_pollok{n}:
""")
vNON = 15
def signal(soff):
    a(f"s_mov_b64 exec, 1\nbuffer_store_dword v{vNON}, v1, {srd(WS)}, {soff} offen sc1\ns_mov_b64 exec, -1")

def mfma32(d, A, B, C): return f"v_mfma_f32_32x32x16_bf16 {v(d,16)}, {v(A,4)}, {v(B,4)}, {C if isinstance(C,str) else v(C,16)}"
def mfma16(d, A, B, C): return f"v_mfma_f32_16x16x32_bf16 {v(d,4)}, {v(A,4)}, {v(B,4)}, {C if isinstance(C,str) else v(C,4)}"

class LQ:
    def __init__(self): self.q = []
    def __call__(self, txt):
        for t in txt.strip("\n").split("\n"):
            i = Ins(t)
            if not i.mn: a(t); continue
            last = max([k for k, w in enumerate(self.q) if w & (i.rd | (i.wr if not i.ds else set()))], default=-1)
            if last >= 0:
                n = min(15, len(self.q) - 1 - last)
                a(f"s_waitcnt lgkmcnt({n})"); self.q = self.q[len(self.q) - n:]
            a(t)
            if i.ds: self.q.append(vset(i.wr))
    def drain(self, n=0):
        if len(self.q) > n:
            a(f"s_waitcnt lgkmcnt({n})"); self.q = self.q[len(self.q) - n:]

vXD, vWD, vXR, vWR, vXB = 2, 6, 9, 13, 14
ACC, RS = 16, 64
vCA, vCB, vCW, vCR, vCU, vZ, vD = 192, 193, 194, 195, 196, 197, 198
vB0, vB1, vQA, vWOA, vMG, vBW, vBR = 199, 200, 201, 202, 203, 204, 205
vPA, vUD, vPB, vZL, vGO, vGA = 206, 207, 208, 209, 210, 211
vHO, vCP = 10, 129
KR, VR, SR, KF, WF, UA, VF, UP = 140, 152, 160, 164, 212, 220, 64, 236
H0, QR = 112, 240
def srdc(lst): return "\n".join(f"s_mov_b32 s{b+2}, {n}\ns_mov_b32 s{b+3}, 0x20000" for b, n in lst)
def karg(lst): return "\n".join(f"s_load_dwordx2 s[{b}:{b+1}], s[0:1], {o}" for b, o in lst)
a.label(NAME + "_kernel")
if DIAG: a(f"{'s_memtime' if OPT.get('cyc') else 's_memrealtime'} s[98:99]")
a(f"""
s_cmp_ge_u32 s2, 256
s_cbranch_scc1 L_end
{karg(((K_, 32), (X_, 0), (V_, 40), (SK, 48), (WQ, 8), (WS, 88), (sDP, 64)))}
s_getpc_b64 s[{sT5}:{sT6}]
L_pc:
v_lshrrev_b32 v1, 6, v0
v_and_b32 v0, 63, v0
s_bfe_u32 s{sT0}, s2, 0x30003
v_lshl_add_u32 v2, s{sT0}, 6, v0
s_sub_u32 s{sT5}, s{sT5}, L_pc-{NAME}_kernel
s_subb_u32 s{sT6}, s{sT6}, 0
v_mul_u32_u24 v2, @@PFS@@, v2
v_mov_b32 v3, s{sT6}
v_add_co_u32 v2, vcc, s{sT5}, v2
v_readfirstlane_b32 s{sW}, v1
v_lshrrev_b32 v130, 4, v0
v_addc_co_u32 v3, vcc, 0, v3, vcc
global_load_dword v255, v[2:3], off
s_and_b32 s{sG}, s{sW}, 3
s_cmp_lt_u32 s{sW}, 4
s_cbranch_scc1 L_uprep
""")
IDS_U = f"""
s_and_b32 s{sT2}, s2, 7
s_lshr_b32 s{sT3}, s2, 5
s_lshl3_add_u32 s{sRT}, s{sT2}, s{sT3}
s_bfe_u32 s{sCG}, s2, 0x20003
v_and_b32 v{vCP}, 15, v0
v_min_u32 v{vCP}, 13, v{vCP}
s_lshl2_add_u32 s{sT0}, s{sCG}, s{sG}
s_mul_i32 s{sT1}, s{sT0}, 56
s_mul_i32 s{sT2}, s{sRT}, {32*896}
s_add_u32 s{sT2}, s{sT2}, s{sT1}
v_mul_u32_u24 v{vGO}, {8*896}, v130
v_lshl_add_u32 v132, v{vCP}, 2, v{vGO}
v_add_u32 v{vGA}, s{sT2}, v132
"""
IDS_G = f"""
s_and_b32 s{sT2}, s2, 1
s_bfe_u32 s{sT3}, s2, 0x30003
s_lshl3_add_u32 s{sJ}, s{sT2}, s{sT3}
s_bfe_u32 s{sT2}, s2, 0x20001
s_lshr_b32 s{sT3}, s2, 6
s_lshl2_add_u32 s{sT2}, s{sT2}, s{sT3}
s_lshl2_add_u32 s{sTT}, s{sT2}, s{sG}
s_and_b32 s{sT2}, s{sG}, 1
s_lshr_b32 s{sT3}, s{sG}, 1
s_lshl2_add_u32 s{sT2}, s{sT3}, s{sT2}
s_add_u32 s{sT2}, s{sT2}, 4
s_lshl_b32 s{sLX}, s{sT2}, 14
"""
COMMON = f"""
v_lshlrev_b32 v1, 4, v0
s_sub_u32 s{sT2}, s2, 32
s_cmp_lt_u32 s2, 224 | s_cselect_b32 s{sC}, s2, s{sT2}
s_load_dword s{sED}, s[{WS}:{WS+1}], 0
s_lshl_b32 s{sT0}, s{sC}, 2
s_load_dword s{sDV}, s[{sDP}:{sDP+1}], s{sT0}
{karg(((HK, 56), (WO, 16), (Q_, 24), (OUT, 72)))}
{srdc(((WO, 401408), (Q_, 1835008), (OUT, 3670016), (WS, WSEND)))}
v_add_u32 v{vGO}, v{vGO}, v{vGA}
v_lshlrev_b32 v133, 7, v{vCP}
v_lshl_add_u32 v{vZL}, v130, 4, v133
s_lshl2_add_u32 s{sT4}, s{sCG}, s{sG}
s_mul_i32 s{sT1}, s{sT4}, 1792
s_mul_i32 s{sT3}, s{sRT}, 28672
s_add_u32 s{sUT}, s{sT1}, s{sT3}
s_add_u32 s{sUT}, s{sUT}, {ZZ}
s_and_b32 s{sT2}, s2, 7
s_lshr_b32 s{sT3}, s2, 7
s_lshl1_add_u32 s{sQT if OPT.get("xq", 0) else sH}, s{sT2}, s{sT3}
s_bfe_u32 s{sH if OPT.get("xq", 0) else sQT}, s2, 0x40003
s_mov_b32 s{sTRY}, 0
s_lshr_b32 s{sT7}, s{sW}, 2
s_mul_i32 s{sCB}, s{sT7}, {LP}
v_and_b32 v132, 3, v0
v_sub_u32 v133, 3, v132
v_mul_u32_u24 v133, {HP}, v133
v_and_b32 v134, 12, v0
v_lshl_add_u32 v133, v134, 1, v133
v_and_b32 v134, 0x30, v0
v_sub_u32 v133, v133, v134
s_lshl_b32 s{sT0}, s{sG}, 7
s_add_u32 s{sT1}, s{sT0}, s{sCB}
s_add_u32 s{sT1}, s{sT1}, 56
v_add_u32 v{vCA}, s{sT1}, v133
v_and_b32 v139, 15, v0
v_lshl_add_u32 v133, v139, 5, v134
s_sub_u32 s{sT1}, s{sCB}, s{sT0}
s_add_u32 s{sT1}, s{sT1}, {UOFF+512-96}
v_add_u32 v{vCB}, s{sT1}, v133
v_lshrrev_b32 v131, 5, v0
v_lshlrev_b32 v133, 7, v131
v_xor_b32 v133, v133, v1
s_lshl_b32 s{sT0}, s{sG}, 13
s_add_u32 s{sT0}, s{sT0}, s{sCB}
v_add_u32 v{vCW}, s{sT0}, v133
v_bfe_u32 v135, v0, 2, 1
v_mul_u32_u24 v136, {LP}, v135
v_lshrrev_b32 v137, 3, v0
v_lshl_add_u32 v138, v137, 2, v132
v_lshrrev_b32 v133, 1, v138
v_and_b32 v134, 1, v0
v_mul_u32_u24 v134, 40, v134
v_xor_b32 v133, v133, v134
v_lshl_add_u32 v133, v133, 4, v136
s_lshl_b32 s{sT0}, s{sW}, 10
v_add_u32 v{vCR}, s{sT0}, v133
v_lshl_add_u32 v133, v138, 4, v136
s_lshl_b32 s{sT0}, s{sW}, 9
s_add_u32 s{sT0}, s{sT0}, {UOFF+512}
v_add_u32 v{vCU}, s{sT0}, v133
v_mul_u32_u24 v133, 28672, v137
v_and_b32 v134, 7, v0
v_lshl_add_u32 v{vZ}, v134, 4, v133
v_lshlrev_b32 v134, 2, v134
v_add_u32 v{vBR}, {BADF}, v134
s_mul_i32 s{sT0}, s{sW}, {8*28672}
s_lshl_b32 s{sT1}, s{sC}, 7
s_add_u32 s{sT0}, s{sT0}, s{sT1}
s_add_u32 s{sZO}, s{sT0}, {ZZ}
s_lshl_b32 s{sKVB}, s{sH}, 18
s_add_u32 s{sKVB}, s{sKVB}, {KV}
s_lshl_b32 s{sKL}, s{sW}, 12
s_add_u32 s{sKS}, s{sKVB}, s{sKL}
s_min_u32 s{sT0}, s{sW}, 6
s_lshl_b32 s{sWM}, s{sT0}, 10
s_lshl_b32 s{sT1}, s{sT0}, 6
v_add_u32 v133, s{sT1}, v0
v_mul_u32_u24 v134, 4682, v133
v_lshrrev_b32 v134, 16, v134
v_mul_u32_u24 v136, 14, v134
v_sub_u32 v133, v133, v136
v_bfe_u32 v136, v134, 1, 2
v_and_b32 v138, 1, v134
v_lshl_add_u32 v136, v138, 2, v136
v_and_or_b32 v134, v134, 24, v136
v_mul_u32_u24 v134, 896, v134
v_lshl_add_u32 v133, v133, 4, v134
s_mul_i32 s{sT1}, s{sCG}, 224
v_add_u32 v{vWOA}, s{sT1}, v133
s_and_b32 s{sT0}, s{sW}, 1
s_lshl1_add_u32 s{sT0}, s{sT7}, s{sT0}
s_lshl_b32 s{sT0}, s{sT0}, 13
s_add_u32 s{sT0}, s{sT0}, {LA}
v_add_u32 v{vB0}, s{sT0}, v1
v_add_u32 v{vB1}, 0x10000, v{vB0}
s_lshl_b32 s{sT0}, s{sG}, 11
s_add_u32 s{sT0}, s{sT0}, {LR}
v_add_u32 v{vQA}, s{sT0}, v1
s_lshl_b32 s{sT0}, s{sG}, 12
s_add_u32 s{sT0}, s{sT0}, {MERGE}
v_add_u32 v{vMG}, s{sT0}, v1
s_lshl_b32 s{sT1}, s{sW}, 2
s_add_u32 s{sT1}, s{sT1}, {BADF}
v_mov_b32 v{vBW}, s{sT1}
s_lshl_b32 s{sT3}, s{sQT}, 2
s_add_u32 s{sT3}, s{sT3}, s{sG}
s_lshl_b32 s{sT0}, s{sT3}, 4
s_add_u32 s{sT0}, s{sT0}, s{sH}
s_lshl_b32 s{sT0}, s{sT0}, 11
s_add_u32 s{sOO}, s{sT0}, {OF}
s_lshl4_add_u32 s{sT0}, s{sH}, s{sQT}
s_lshl3_add_u32 s{sT0}, s{sT0}, s{sW}
s_lshl_b32 s{sT0}, s{sT0}, 10
s_add_u32 s{sQO}, s{sT0}, {QF}
v_cmp_eq_u32 vcc, 0, v135
s_waitcnt lgkmcnt(0)
s_mul_i32 s{sNON}, s{sED}, 1664525
s_add_u32 s{sNON}, s{sNON}, 1013904223
s_lshl_b32 s{sT0}, s{sDV}, 16
s_and_b32 s{sT1}, s{sDV}, 0xffff0000
v_mov_b32 v133, s{sT0}
v_mov_b32 v134, s{sT1}
v_cndmask_b32 v{vD}, v134, v133, vcc
v_mov_b32 v{vNON}, s{sNON}
s_lshl_b32 s{sT0}, s{sT7}, 10
s_add_u32 s{sCL}, s{sOO}, s{sT0}
s_and_b32 s{sT0}, s{sW}, 6
s_add_u32 s{sT0}, s{sT0}, s{sW}
s_lshl_b32 s{sK0}, s{sT0}, 11
"""
CNT = 65520

a(IDS_G + srdc(((X_, 1835008), (WQ, 1204224))) + f"""
v_lshrrev_b32 v128, 3, v0
s_lshl_b32 s{sT0}, s{sTT}, 5
v_add_u32 v128, s{sT0}, v128
v_mul_u32_u24 v128, 896, v128
v_and_b32 v129, 7, v0
v_xor_b32 v129, v129, v130
v_lshl_add_u32 v{vXD}, v129, 4, v128
v_xor_b32 v129, 4, v129
v_lshl_add_u32 v{vXD+1}, v129, 4, v128
v_add_u32 v{vXD+1}, {7168-1024}, v{vXD+1}
v_add_u32 v{vXD+2}, {14336-2048}, v{vXD}
v_add_u32 v{vXD+3}, {14336-2048}, v{vXD+1}
""")
if OPT.get("rt"): a(f"""
s_lshr_b32 s{sT3}, s2, 6
s_mul_i32 s{sT3}, s{sT3}, {OPT.get("rc", 1)}
s_add_u32 s{sT3}, s{sT3}, s{sJ}
s_and_b32 s{sT3}, s{sT3}, 7
s_lshl_b32 s{sT3}, s{sT3}, 2
s_lshr_b32 s{sI}, {int(str(OPT["rt"]), 16):#x}, s{sT3}
s_and_b32 s{sI}, s{sI}, 7
""")
a("s_waitcnt lgkmcnt(0)")
stamp(0)
def wbase(st): return LP + 12288 * st if st < 2 else 12288 * (st - 2)
RT = OPT["rt"]
def rot(dst, st, mul):
    if not RT: return f"s_mov_b32 s{dst}, {st*mul}\n"
    return f"s_add_u32 s{dst}, s{sI}, {st}\ns_cmp_ge_u32 s{dst}, 7\ns_cselect_b32 s{sSP}, 7, 0\ns_sub_u32 s{dst}, s{dst}, s{sSP}\ns_mul_i32 s{dst}, s{dst}, {mul}\n"
def dma_x(st):
    p = [f"buffer_load_dwordx4 v{vXD+i}, {srd(X_)}, s{sSO} offen offset:{1024*i} lds" for i in range(4)]
    p[0] = f"s_add_u32 m0, s{sLX}, {4096*(st&3)}\n" + rot(sSO, st, 128) + p[0]
    return p
def dma_w(st):
    p = [f"buffer_load_dwordx4 v{vWD+q}, {srd(WQ)}, s{sSO2} offen offset:{1024*q} lds" for q in range(3)]
    p[0] = f"s_add_u32 m0, s{sLW}, {wbase(st)}\n" + rot(sSO2, st, 64*2688) + p[0]
    return p
def sprinkle(pieces, text):
    L = [x.replace(" | ", "\n") for x in text.strip().split("\n") if x.strip()]
    n = len(pieces)
    for k, p in enumerate(pieces):
        a(p)
        for x in L[len(L) * k // n: len(L) * (k + 1) // n]: a(x)
WADDR = f"""
s_mul_i32 s{sT0}, s{sJ}, 168
s_and_b32 s{sT0}, s{sT0}, -16
s_mul_i32 s{sT2}, s{sG}, {16*2688}
s_add_u32 s{sT0}, s{sT0}, s{sT2}
s_mul_i32 s{sLW}, s{sG}, 3072
"""
for q in range(3):
    WADDR += f"""
v_add_u32 v128, {64*q}, v0
v_mul_u32_u24 v129, 43691, v128
v_lshrrev_b32 v129, 19, v129
v_mul_u32_u24 v131, 12, v129
v_sub_u32 v128, v128, v131
v_min_u32 v128, 10, v128
v_mul_u32_u24 v129, 2688, v129
v_lshl_add_u32 v128, v128, 4, v129
v_add_u32 v{vWD+q}, s{sT0}, v128
""" + (f"s_sub_u32 s{sT0}, s{sT0}, 1024" if q < 2 else "")
for p in dma_x(0): a(p)
a("s_branch L_loader\nL_uprep:")
a("s_setprio 3\n" + IDS_U + srdc(((K_, 1835008), (V_, 1835008), (SK, 3584))) + f"""
v_subrev_u32 v135, 2688, v{vGA}
s_lshl_b32 s{sT1}, s{sT1}, 2
v_lshl_add_u32 v137, v{vCP}, 4, s{sT1}
s_movk_i32 s{sT5}, 3584
s_waitcnt lgkmcnt(0)
""")
stamp(0)
a(f"buffer_load_dwordx4 {v(SR,4)}, v137, {srd(SK)}, 0 offen")
for i in range(3): a(f"buffer_load_dword v{KR+i}, v135, {srd(K_)}, 0 offen offset:{896*i}")
for i in range(8): a(f"buffer_load_dword v{KR+3+i}, v{vGA}, {srd(K_)}, {'0' if i<4 else s(sT5)} offen offset:{896*(i&3)}")
for i in range(8): a(f"buffer_load_dword v{VR+i}, v{vGA}, {srd(V_)}, {'0' if i<4 else s(sT5)} offen offset:{896*(i&3)}")
a("s_setprio 0\n" + IDS_G + COMMON.replace(" | ", "\n") + f"""
s_sub_u32 s{sUS}, s{sUT}, {ZZ-UU}
s_lshl_b32 s{sT4}, s{sG}, 11
s_add_u32 s{sT4}, s{sT4}, {LP+24576}
v_and_b32 v136, 7, v{vCP}
v_lshlrev_b32 v136, 4, v136
v_xor_b32 v136, v136, v{vZL}
v_add_u32 v136, s{sT4}, v136
v_xor_b32 v138, 64, v136
v_lshlrev_b32 v137, 4, v137
v_xor_b32 v137, v137, v1
v_add_u32 v137, s{sT4}, v137
s_and_b32 s{sT6}, s{sJ}, 1
s_lshl_b32 s{sT6}, s{sT6}, 3
""")
a.c("---- QKV projection: 32 tokens x 3 head blocks per wave")
a(f"""
v_and_b32 v128, 31, v0
v_bfe_u32 v129, v0, 1, 3
v_xor_b32 v129, v129, v131
v_lshlrev_b32 v128, 7, v128
v_lshl_add_u32 v128, v129, 4, v128
v_add_u32 v{vXB}, s{sLX}, v128
v_bfe_u32 v128, v0, 2, 2
v_lshl_add_u32 v128, v131, 3, v128
v_mul_u32_u24 v128, 192, v128
v_and_b32 v129, 1, v130
v_lshl_add_u32 v128, v129, 5, v128
v_lshl_add_u32 v128, v132, 3, v128
s_add_u32 s{sT6}, s{sT6}, {LP}
v_add_u32 v{vWR}, s{sT6}, v128
v_mov_b32 v{vXR}, v{vXB}
v_mov_b32 v{vPB}, 0
v_xor_b32 v{vXR+1}, 32, v{vXB}
v_xor_b32 v{vXR+2}, 64, v{vXB}
v_xor_b32 v{vXR+3}, 0x60, v{vXB}
""")
a(f"s_lshr_b32 s{sT0}, s{sTT}, 2\ns_lshl4_add_u32 s{sT0}, s{sJ}, s{sT0}\ns_lshl_b32 s{sT0}, s{sT0}, {FS}\ns_add_u32 s{sFL}, s{sT0}, {FB}")
a(f"s_mul_i32 s{sT7}, s{sJ}, 3")
for b in range(3):
    a(f"""
s_add_u32 s{sT3}, s{sT7}, {b}
s_and_b32 s{sT0}, s{sT3}, 15
s_lshl_b32 s{sT0}, s{sT0}, 6
s_add_u32 s{sT0}, s{sT0}, s{sTT}
s_cmp_lt_u32 s{sT3}, 16
s_cselect_b32 s{sT1}, 11, 12
s_mov_b32 s{sT2}, {KV}
s_cselect_b32 s{sT2}, {QF}, s{sT2}
s_lshl_b32 s{sT0}, s{sT0}, s{sT1}
s_add_u32 s{sE0+b}, s{sT0}, s{sT2}
""")
a(f"""
s_mov_b32 s{sKP}, {ONES}
s_movk_i32 s{sKP+1}, 0x3f80
s_mov_b32 s{sQS}, {QSCALE:#x}
s_mov_b32 s{sQS+1}, {QSCALE:#x}
s_mov_b32 s{sM1}, 0xf0000000
s_mov_b32 s{sM1+1}, 0xf0000000
s_mov_b32 s{sM2}, {ONES}
s_mov_b32 s{sM2+1}, {ONES}
""")
for r in list(range(ACC, ACC + 48, 2)) + list(range(RS + 16, RS + 64, 2)): a(f"v_mov_b64 {v(r,2)}, 0")
a(f"s_mov_b32 s{sI}, 0\ns_setprio 2\ns_waitcnt vmcnt(8)")
stamp(2)
for j in range(4):
    for p in range(2):
        src = SR + 2 * p + (j >> 1)
        a(f"v_lshlrev_b32 v{WF+2*j+p}, 16, v{src}" if j % 2 == 0 else f"v_and_b32 v{WF+2*j+p}, 0xffff0000, v{src}")
for i in range(11): a(f"v_lshlrev_b32 v{KF+2*i}, 16, v{KR+i}\nv_and_b32 v{KF+2*i+1}, 0xffff0000, v{KR+i}")
for t in range(8): a(f"v_pk_mul_f32 {v(UA+2*t,2)}, {v(KF+2*t,2)}, {v(WF+6,2)}")
for j in (2, 1, 0):
    for t in range(8): a(f"v_pk_fma_f32 {v(UA+2*t,2)}, {v(KF+2*(t+3-j),2)}, {v(WF+2*j,2)}, {v(UA+2*t,2)}")
a("s_waitcnt vmcnt(0)")
for i in range(8): a(f"v_lshlrev_b32 v{VF+2*i}, 16, v{VR+i}\nv_and_b32 v{VF+2*i+1}, 0xffff0000, v{VR+i}")
for t in range(8): a(f"v_pk_mul_f32 {v(UA+2*t,2)}, {v(UA+2*t,2)}, {v(VF+2*t,2)}")
for p in range(2):
    for m in range(4): a(f"v_cvt_pk_bf16_f32 v{UP+4*p+m}, v{UA+2*(7-2*m)+p}, v{UA+2*(6-2*m)+p}")
    a(f"ds_write_b128 v{136+2*p}, {v(UP+4*p,4)}")
a(f"""
s_waitcnt lgkmcnt(0)
ds_read_b128 {v(UP,4)}, v137
ds_read_b128 {v(UP+4,4)}, v137 offset:1024
s_waitcnt lgkmcnt(1)
buffer_store_dwordx4 {v(UP,4)}, v1, {srd(WS)}, s{sUS} offen sc1
s_mov_b32 exec_hi, 0xffff
s_waitcnt lgkmcnt(0)
buffer_store_dwordx4 {v(UP+4,4)}, v1, {srd(WS)}, s{sUS} offen offset:1024 sc1
s_mov_b32 exec_hi, -1
""")
stamp(3)
a(f"""
s_cmp_eq_u32 s{sJ}, 10
s_cbranch_scc1 L_gemm1
s_cmp_gt_u32 s{sJ}, 10
s_cbranch_scc1 L_gemm2
""")
def g_reads(ks):
    r = RS + 16 * ks
    out = [f"ds_read_b128 {v(r,4)}, v{vXR+ks}"]
    for b in range(3):
        for t in range(2):
            out.append(f"ds_read_b64_tr_b16 {v(r+4+4*b+2*t,2)}, v{vWR} offset:{(16*ks+4*t)*192+56*b}")
    return out
def g_mfma(ks, isv):
    r = RS + 16 * ks
    return [mfma32(ACC+16*b, r, r+4+4*b, ACC+16*b) if isv[b] else mfma32(ACC+16*b, r+4+4*b, r, ACC+16*b) for b in range(3)]
for var, isv in enumerate(((0,0,0), (0,0,1), (1,1,1))):
    m = [g_mfma(k, isv) for k in range(4)]
    rd = g_reads(0) + g_reads(1) + g_reads(2) + g_reads(3)
    a(f"L_gemm{var}:\n{m[1][2]}\ns_barrier")
    seq = m[2] + m[3] + m[0] + m[1][:1]
    for k, x in enumerate(seq):
        if k == 6: a("s_waitcnt lgkmcnt(11)")
        if k == 9: a("s_waitcnt lgkmcnt(13)")
        a("\n".join([x] + rd[3*k:3*k+3]))
    a(f"""
s_cmp_eq_u32 s{sI}, 1
s_movk_i32 s{sT1}, 12288
s_cselect_b32 s{sT1}, {(-LP-12288) & 0xffffffff}, s{sT1}
s_add_u32 s{sI}, s{sI}, 1
s_and_b32 s{sT0}, s{sI}, 3
s_lshl_b32 s{sT0}, s{sT0}, 12
{m[1][1]}
v_add_u32 v{vWR}, s{sT1}, v{vWR}
v_xor_b32 v{vXR}, s{sT0}, v{vXB}
v_xor_b32 v{vXR+1}, 32, v{vXR}
v_xor_b32 v{vXR+2}, 64, v{vXR}
v_xor_b32 v{vXR+3}, 0x60, v{vXR}
s_cmp_lt_u32 s{sI}, 7
s_waitcnt vmcnt(0) lgkmcnt(0)
s_cbranch_scc1 L_gemm{var}
""")
    a("\n".join([m[2][0], m[1][2], m[3][0], m[2][1], m[2][2], m[3][1], m[3][2]]))
    stamp(1)
    a.c("epilogue: scale Q, pack to bf16 fragments, patch the pad slots, publish")
    for b in range(3):
        pk = 128 + 8 * b
        padp = sKP
        if var == 0:
            padp = sM1
            a(f"s_cmp_lt_u32 s{sT7}, {16-b}\ns_cselect_b64 {s(sM1,2)}, 0, {s(sKP,2)}\ns_cbranch_scc0 L_nosc{b}")
            for r in range(0, 16, 2): a(f"v_pk_mul_f32 {v(ACC+16*b+r,2)}, {v(ACC+16*b+r,2)}, {s(sQS,2)}")
            a.label(f"L_nosc{b}")
        for r in range(8): a(f"v_cvt_pk_bf16_f32 v{pk+r}, v{ACC+16*b+2*r}, v{ACC+16*b+2*r+1}")
        if isv[b]:
            a(f"s_mov_b64 exec, {s(sM1,2)}")
            for r in range(0, 8, 2): a(f"v_mov_b64 {v(pk+r,2)}, {s(sM2,2)}")
        else: a(f"s_mov_b32 exec_lo, 0\nv_mov_b64 {v(pk+6,2)}, {s(padp,2)}")
        o = 2048 * isv[b]
        a(f"""
s_mov_b64 exec, -1
buffer_store_dwordx4 {v(pk,4)}, v1, {srd(WS)}, s{sE0+b} offen offset:{o} sc1
buffer_store_dwordx4 {v(pk+4,4)}, v1, {srd(WS)}, s{sE0+b} offen offset:{o+1024} sc1
""")
    a("s_branch L_conv")

a.label("L_loader")
HELP = f"""
v_mov_b32 v133, {CNT}
v_mov_b32 v134, 0
ds_write_b32 v133, v134
v_min_u32 v133, 2, v130
v_lshl_add_u32 v133, v133, 4, s{sH}
v_mul_u32_u24 v133, 21846, v133
v_lshrrev_b32 v133, 16, v133
v_mov_b32 v134, s{sQT}
v_cmp_gt_u32 vcc, 16, v0
s_lshl_b32 s{sT0}, s{sCG}, 6
s_add_u32 s{sT0}, s{sT0}, s{sRT}
s_lshl_b32 s{sT0}, s{sT0}, {FS}
s_add_u32 s{sFL}, s{sT0}, {FA}
v_cndmask_b32 v134, v139, v134, vcc
v_lshl_add_u32 v133, v133, 4, v134
v_lshlrev_b32 v133, {FS}, v133
v_add_u32 v{vPB}, {FB}, v133
s_mul_i32 s{sT0}, s{sC}, 1171
s_lshr_b32 s{sT0}, s{sT0}, 16
s_lshl2_add_u32 s{sT0}, s{sT0}, s{sG}
s_lshl_b32 s{sT0}, s{sT0}, {4+FS}
s_add_u32 s{sT0}, s{sT0}, {FA}
v_lshl_add_u32 v{vPA}, v139, {FS}, s{sT0}
v_lshrrev_b32 v133, 2, v0
v_mul_u32_u24 v133, 28672, v133
v_lshl_add_u32 v{vUD}, v132, 4, v133
s_mul_i32 s{sT0}, s{sG}, {16*28672}
s_lshl_b32 s{sT1}, s{sC}, 7
s_add_u32 s{sT0}, s{sT0}, s{sT1}
s_add_u32 s{sUO}, s{sT0}, {UU}
v_bfe_u32 v138, v0, 1, 2
v_mul_u32_u24 v138, {HP}, v138
v_and_b32 v139, 1, v0
v_lshl_add_u32 v138, v139, 4, v138
v_add_u32 v139, {UOFF}, v1
v_cmp_gt_u32 vcc, 32, v0
v_mov_b64 v[140:141], 0
v_mov_b64 v[142:143], 0
v_cndmask_b32 v138, v138, v139, vcc
v_add_u32 v139, {LP}, v138
{srdc(((HK, 1835008),))}
s_lshl_b32 s{sT3}, s{sC}, 13
s_lshl_b32 s{sT4}, s{sG}, 10
s_add_u32 s{sT3}, s{sT3}, s{sT4}
v_add_u32 v11, s{sT3}, v1
v_add_u32 v{vHO}, s{sT4}, v1
v_subrev_u32 v12, 8, v11
v_cmp_eq_u32 vcc, 0, v{vHO}
v_mov_b32 v136, 0xffffe000
s_movk_i32 s{sT7}, 4096
v_cndmask_b32 v12, v12, v136, vcc
"""
def hprep(p):
    R = H0 + 8 * p; T = 40 + 12 * p
    a(f"v_add_u32 v{134+p}, {(LP if p else LX)+32}, v{vHO}")
    for i in range(4): a(f"v_alignbit_b32 v{T+i}, v{R+2+i}, v{R+1+i}, 16")
    for i in range(4): a(f"v_mov_b32 v{T+4+i}, v{R+1+i}")
    for i in range(4): a(f"v_alignbit_b32 v{T+8+i}, v{R+1+i}, v{R+i}, 16")
def hwrite(p):
    R = H0 + 8 * p; T = 40 + 12 * p
    a(f"ds_write_b128 v{134+p}, {v(R+2,4)}")
    for c in range(1, 4): a(f"ds_write_b128 v{134+p}, {v(T+4*(c-1),4)} offset:{HP*c}")
    a.c("zero pads: lanes 0-31 the u pad, lanes 32-39 the h pads")
    a(f"ds_write_b128 v{138+p}, {v(140,4)}")
def u_dma():
    a(f"""
s_lshl_b32 s{sT2}, s{sG}, 10
s_add_u32 m0, s{sT2}, {LX+UOFF+512}
s_add_u32 s{sT1}, s{sUO}, 64
buffer_load_dwordx4 v{vUD}, {srd(WS)}, s{sUO} offen sc1 lds
s_add_u32 m0, s{sT2}, {LP+UOFF+512}
s_nop 0
buffer_load_dwordx4 v{vUD}, {srd(WS)}, s{sT1} offen sc1 lds
""")

a(WADDR)
HL = [f"buffer_load_dwordx{2+2*k} {v(H0+8*p+2*k,2+2*k)}, v{12-k}, {srd(HK)}, {s(sT7) if p else 0} offen" for p in range(2) for k in range(2)]
rest = [(0, p) for p in dma_w(0)] + [(st, p) for st in range(1, 7) for p in dma_w(st) + dma_x(st)]
HPOS = 3 + 7 * OPT.get("hst", 4)
rest[HPOS:HPOS] = [(9, x) for x in HL]
rest.append((8, f"buffer_load_dword v144, v{vPA}, {srd(WS)}, 0 offen sc1"))
calc = [x.replace(" | ", "\n") for x in (IDS_U + COMMON + HELP).strip().split("\n") if x.strip()]
NC = min(HPOS, 17); LAGS = [int(x, 36) for x in SOPT.get("lags", "eedc97")]
issued = [0] * 4; n = 0
def bar(n):
    young = len(issued) - 1 - max(k for k, st in enumerate(issued) if st == n)
    if n == 0: stamp(1)
    a(f"s_waitcnt vmcnt({young})\ns_barrier")
    if n < 6: stamp(9 + n, 2)
    if n == 1:
        assert len(issued) >= NC + 4
        a.c("waves 0-3 waited for their u stores before this barrier")
        a(f"s_cmp_lg_u32 s{sW}, 4\ns_cbranch_scc1 L_nsa")
        signal(f"s{sFL}")
        a.label("L_nsa")
for k, (st, p) in enumerate(rest):
    assert st > 7 or "s[8:11]" in p or st - 4 < n - 1
    a(p); issued.append(st)
    if k < NC:
        for x in calc[len(calc) * k // NC: len(calc) * (k + 1) // NC]: a(x)
    if n < 6 and issued.count(n) == 7 and len(issued) - 1 - max(q for q, s_ in enumerate(issued) if s_ == n) >= LAGS[n]:
        bar(n); n += 1
while n < 6: bar(n); n += 1
EARLYH = OPT.get("hst", 4) < 5
HW = OPT.get("hw", 0)
if EARLYH: hprep(1); hwrite(1)
if HW: hprep(0)
bar(6)
if HW: hwrite(0)
a(f"s_waitcnt vmcnt(0)\nv_cmp_ne_u32 vcc, s{sNON}, v144\ns_cbranch_vccz L_uok")
poll(vPA, 144)
a("L_uok:")
u_dma()
stamp(4)
if not EARLYH: hprep(1); hwrite(1)
if not HW: hprep(0); hwrite(0)
a("s_setprio 1\ns_waitcnt vmcnt(0) lgkmcnt(0)")
def ldq():
    for i in range(8): a(f"buffer_load_dword v{QR+i}, v{vGA}, {srd(Q_)}, {'0' if i<4 else s(sT5)} offen offset:{896*(i&3)}")

a.label("L_conv")
CAC, CU, FA_, FB_ = 16, 48, 64, 128
a.c("---- long causal conv as block-Toeplitz MFMA: channel = wave>>2, lag phases split over wave&3")
a("s_barrier")
stamp(5)
def c_readA(i, r): return [f"ds_read_b64 {v(FA_+32*i+4*r+2*t,2)}, v{vCA} offset:{512*r+64*i+8*t}" for t in range(2)]
def c_readB(i, x): return [f"ds_read_b128 {v(FB_+32*i+4*x,4)}, v{vCB} offset:{512*x+64*(1-i)}"]
def c_m(i, nt, r, first=False): return mfma16(CAC+4*nt, FA_+32*i+4*r, FB_+32*i+4*(nt-r), "0" if first else CAC+4*nt)
lq = LQ()
rds = [x for i in range(2) for k in range(8) for x in c_readA(i, k) + c_readB(i, k)] + [f"ds_read_b128 {v(CU,4)}, v{vCU}"]
for x in rds[:15]: lq(x)
rds = rds[15:]
seen = set(); prev = -1
for k in range(8):
    grp = [(r, x) for r in range(k + 1) for x in range(k + 1) if max(r, x) == k and r + x <= 7]
    while grp:
        r, x = next((p for p in grp if p[0] + p[1] != prev), grp[0]); grp.remove((r, x))
        lq(c_m(0, r + x, r, first=(r + x) not in seen)); seen.add(r + x); prev = r + x
        if rds: lq(rds.pop(0))
assert not rds
stamp(9, 3)
a(f"""
s_cmp_ge_u32 s{sW}, 4
s_cbranch_scc1 L_cm
s_setprio 0
v_mov_b32 v52, {CNT}
v_mov_b32 v53, 1
s_mov_b64 exec, 1
s_waitcnt vmcnt(0)
ds_add_rtn_u32 v53, v52, v53
s_waitcnt lgkmcnt(0)
v_cmp_eq_u32 vcc, 3, v53
s_cbranch_vccz L_cnl
buffer_store_dword v{vNON}, v1, {srd(WS)}, s{sFL} offen sc1
L_cnl:
s_mov_b64 exec, -1
""")
stamp(4)
a.label("L_cm")
lq.drain()
a("s_barrier")
stamp(10, 3)
pend = []; cnt = 0; PP = ((36,), (25, 36), (14, 25, 36))[OPT.get("pp", 3) - 1]
for n0 in range(0, 8, 2):
    ms = []
    for r in range(n0 + 2):
        ms.append(c_m(1, n0 + 1, r))
        if r <= n0: ms.append(c_m(1, n0, r))
    for m_ in ms:
        a(m_); cnt += 1
        pend = [(w, n + 1) for w, n in pend]
        if pend and pend[0][1] >= 8: a(pend.pop(0)[0])
    for nt in (n0, n0 + 1): pend.append((f"ds_write_b128 v{vCW}, {v(CAC+4*nt,4)} offset:{1024*nt}", 0))
for t in range(8):
    m = (7 - t) // 2
    a(f"v_lshlrev_b32 v{56+t}, 16, v{CU+m}" if t % 2 else f"v_and_b32 v{56+t}, 0xffff0000, v{CU+m}")
a("v_and_b32 v126, 7, v0\nv_lshlrev_b32 v130, 3, v0\nv_mov_b64 v[128:129], 0")
for w, n in pend: a(w)
stamp(6)
a(f"s_cmp_lg_u32 s{sW}, 4\ns_cbranch_scc1 L_cred")
poll(vPB, 52)
a.label("L_cred")
a("s_waitcnt lgkmcnt(0)\ns_barrier")
stamp(7)
S1 = [int(x) for x in SOPT.get("s1", "310")]
def kvp(i): return f"buffer_load_dwordx4 v1, {srd(WS)}, s{sSO} offen offset:{1024*i} sc1 lds"
def kv_stage(n, cnt=4):
    a(f"s_add_u32 m0, s{sKL}, {LA+32768*n}\ns_add_u32 s{sSO}, s{sKS}, {32768*n}")
    for i in range(cnt): a(kvp(i))
a.c("behind that barrier every wave knows the QKV flags matched: Q and the first tiles go first")
a(f"""
s_setprio 0
s_lshl_b32 s{sT5}, s{sW}, 10
s_add_u32 m0, s{sT5}, {LR}
s_add_u32 s{sSO}, s{sKVB}, s{sK0}
buffer_load_dwordx4 v1, {srd(WS)}, s{sQO} offen sc1 lds
s_add_u32 m0, s{sK0}, {LA}
s_add_u32 s{sSO2}, s{sSO}, 4096
buffer_load_dwordx4 v1, {srd(WS)}, s{sSO} offen sc1 lds
buffer_load_dwordx4 v1, {srd(WS)}, s{sSO} offen offset:1024 sc1 lds
s_add_u32 m0, s{sK0}, {LA+4096}
""")
for q in range(4):
    for i in range(2): a(f"ds_read_b128 {v(64+8*q+4*i,4)}, v{vCR} offset:{8192*q+256*i}")
a(f"""
buffer_load_dwordx4 v1, {srd(WS)}, s{sSO2} offen sc1 lds
buffer_load_dwordx4 v1, {srd(WS)}, s{sSO2} offen offset:1024 sc1 lds
""")
stamp(11, 3)
a("s_waitcnt lgkmcnt(4)")
for t in range(8): a(f"v_fma_f32 v{56+t}, v{56+t}, v{vD}, v{64+t}")
for t in range(0, 8, 2): a(f"v_pk_add_f32 {v(56+t,2)}, {v(56+t,2)}, {v(72+t,2)}")
a("s_waitcnt lgkmcnt(0)")
a.c("wave 0 alone reads the first 128 bytes: it clears the progress bytes of the key loop behind its reads")
a(f"""
s_cmp_lg_u32 s{sW}, 0
s_cbranch_scc1 L_nclr
s_mov_b64 exec, 0xffff
ds_write_b64 v130, v[128:129]
s_mov_b64 exec, -1
L_nclr:
""")
for t in range(0, 8, 2): a(f"v_pk_add_f32 {v(80+t,2)}, {v(80+t,2)}, {v(88+t,2)}")
for t in range(0, 8, 2): a(f"v_pk_add_f32 {v(56+t,2)}, {v(56+t,2)}, {v(80+t,2)}")
for m in range(4): a(f"v_cvt_pk_bf16_f32 v{104+m}, v{56+2*m}, v{57+2*m}")
a("v_mov_b64 v[108:109], -1\nv_mov_b64 v[110:111], -1")
stamp(12, 3)
kv_stage(1, S1[0])
a(f"""
v_mov_b32 v124, s{sW}
s_and_b32 s{sT0}, s{sW}, 4
v_and_or_b32 v125, v0, 3, s{sT0}
v_xor_b32 v180, 2048, v{vQA}
s_add_u32 s{sT0}, s{sKL}, {LR}
v_add_u32 v181, s{sT0}, v1
v_xor_b32 v182, 4096, v181
""")
stamp(13, 3)
a(f"s_waitcnt vmcnt({2+S1[0]})")
stamp(14, 3)

MODS = ("", " sc1", " nt", " sc0 sc1", " sc1 nt"); GS, OS = MODS[OPT.get("gs", 0)], MODS[OPT.get("os", 0)]
WS0 = 128
vFW, vFG, vF8, vFT = 124, 125, 126, 127
vQ, vK, vV, vP, vSa, vSb, vO, vM, vKC, vZR, vFC = 16, 24, 32, 40, 48, 64, 80, 14, 96, 248, 120
a.c("---- attention: S^T = K Q^T - m (m rides in the pad slots), P = exp2, O^T += V^T P^T (row 28 = sum)")
a(f"""
L_att:
s_cmp_lg_u32 s{sTRY}, 0
s_barrier
""")
stamp(8)
QQ, OO, MM, vVL, vQB, vW0, vR0 = (132, vQ), (148, vO), (183, vM), 164, 180, 181, 182
def kvaddr(T, f):
    o = 32768 * ((T >> 1) & 3) + 4096 * (T & 1) + 1024 * f
    return f"v{vB0 if o < 65536 else vB1} offset:{o & 65535}"
def rdK(T, f): return f"ds_read_b128 {v(vK+4*f,4)}, {kvaddr(T, f)}"
def rdV(T, f): return f"ds_read_b128 {v(vV+4*f,4)}, {kvaddr(T, 2+f)}"
def wo_piece(g): return [f"s_add_u32 m0, s{sWM}, {WS0+7168*g}", f"s_mov_b32 s{sSO2}, {28672*g}", f"buffer_load_dwordx4 v{vWOA}, {srd(WO)}, s{sSO2} offen lds"]
def pieces(n):
    out = []
    if n == 1:
        out += [[f"buffer_store_dwordx4 {v(104,4)}, v{vZ}, {srd(WS)}, s{sZO} offen sc1"], [f"buffer_store_dwordx4 {v(108,4)}, v1, {srd(WS)}, s{sCL} offen sc1"]]
    if n < 6:
        for i in range(4):
            p = [f"buffer_load_dwordx4 v1, {srd(WS)}, s{sSO} offen offset:{1024*i} sc1 lds"]
            if i == 0: p = [f"s_add_u32 m0, s{sKL}, {LA+32768*((n+2)&3)}", f"s_add_u32 s{sSO}, s{sKS}, {32768*(n+2)}"] + p
            out.append(p)
        if n >= 2: out.append(wo_piece(n - 2))
    elif n < 8: out = [wo_piece(4 + 5 * (n - 6) + i) for i in range(5)]
    return out
def maxtree(S, dst, have):
    a(f"v_max3_f32 v{dst}, v{S}, v{S+1}, v{dst}" if have else f"v_max_f32 v{dst}, v{S}, v{S+1}")
    for i in range(2, 16, 2): a(f"v_max3_f32 v{dst}, v{S+i}, v{S+i+1}, v{dst}")
p0 = pieces(0)
a(f"""
s_cbranch_scc1 L_haveq
ds_read_b128 {v(QQ[0],4)}, v{vQB}
ds_read_b128 {v(vKC,4)}, v1 offset:{LA}
ds_read_b128 {v(QQ[0]+4,4)}, v{vQB} offset:1024
ds_read_b128 {v(vKC+4,4)}, v1 offset:{LA+1024}
ds_read_b128 {v(vQ,4)}, v{vQA}
ds_read_b128 {v(vQ+4,4)}, v{vQA} offset:1024
L_haveq:
{rdK(0,0)}
{rdK(0,1)}
{rdV(0,0)}
{chr(10).join(kvp(i) for i in range(S1[0], S1[0]+S1[1]))}
s_cbranch_scc1 L_havem
s_waitcnt lgkmcnt(7)
{mfma32(vSb, vKC, QQ[0], "0")}
s_waitcnt lgkmcnt(5)
{mfma32(vSb, vKC+4, QQ[0]+4, vSb)}
s_waitcnt lgkmcnt(3)
{mfma32(vO, vKC, vQ, "0")}
{mfma32(vO, vKC+4, vQ+4, vO)}
L_havem:
s_waitcnt lgkmcnt(0)
{mfma32(vSa, vK, QQ[0], "0")}
{chr(10).join(kvp(i) for i in range(S1[0]+S1[1], 4))}
""")
NM = OPT.get("nm", 2)
a("s_cbranch_scc1 L_hm")
for i in range(NM):
    for S_, m in ((vSb, MM[0]), (vO, MM[1])): a(f"v_max3_f32 v{m}, v{S_+2*i+1}, v{S_+(2*i+2)%16}, v{m if i else S_}")
a.c("lanes 0-31 split the shift of tile 0, lanes 32-63 that of tile 1, into three bf16 parts")
a(f"""
L_hm:
v_permlane32_swap_b32 v{MM[0]}, v{MM[1]}
v_max_f32 v96, v{MM[0]}, v{MM[1]}
v_xor_b32 v96, 0x80000000, v96
v_and_b32 v97, 0xffff0000, v96
v_sub_f32 v96, v96, v97
v_and_b32 v98, 0xffff0000, v96
v_sub_f32 v96, v96, v98
v_lshrrev_b32 v97, 16, v97
v_lshrrev_b32 v99, 16, v96
v_or_b32 v98, v97, v98
s_mov_b32 exec_lo, 0
v_mov_b64 {v(vQ+6,2)}, v[98:99]
s_mov_b32 exec_lo, -1
v_permlane32_swap_b32 v{QQ[0]+6}, v98
v_permlane32_swap_b32 v{QQ[0]+7}, v99
{mfma32(vSa, vK+4, QQ[0]+4, vSa)}
""")
lq = LQ()
a("s_waitcnt vmcnt(4)\ns_barrier")
stamp(9)
stamp(1, 4)
PRIO = {int(x, 16): 3 - i for i, x in enumerate(SOPT.get("pr", "07cf"))}
DSL = [int(x, 16) for x in SOPT.get("dsl", "89abc")]; DSL6 = [int(x, 16) for x in SOPT.get("dsl6", "0189ab")]; DSL7 = [int(x, 16) for x in SOPT.get("dsl7", "01234")]; S7 = OPT.get("s7", 14); DSL0 = [int(x, 16) for x in SOPT.get("dsl0", "abcd")]
todo = dict(zip(DSL0, p0)); since = 0
def sub(T): return T & 1 if T < 28 else (T >> 1) & 1
def fr(T, f): return (vVL if T in (29, 31) else vK) + 4 * f
LAST = {(27, 0): 0, (27, 1): 1, (27, 2): 2, (28, 0): 3}
RS_ = OPT.get("rs", 13); QS = OPT.get("qs", 14); CW = OPT.get("cw", 2); BP = OPT.get("bp", 120)
def fl_read(i): return f"ds_read_u8 v{vFT}, v{vF8 if i in (3, 6, 7) else vFG} offset:{8*(i-1)}"
a.c("no barriers in the loop: a wave posts a byte once its DMA of the next stage landed and it left the stage before; readers check half a stage later")
for T in range(32):
    S, Sn = (vSa, vSb) if T % 2 == 0 else (vSb, vSa)
    n = (T + 2) >> 2
    if T & 3 == 2:
        if n == 8: pass
        elif OPT.get("spi", 0): a(f"s_cbranch_vccz L_spr{n}\nL_sp{n}:\n{fl_read(n)}\ns_waitcnt lgkmcnt(0)\nv_cmp_eq_u32 vcc, 0, v{vFT}\ns_cbranch_vccnz L_sp{n}\nL_spr{n}:")
        else: a(f"s_cbranch_vccnz L_sp{n}\nL_spr{n}:")
        if DIAG and OPT.get("set") == 4:
            if n > 1: a(f"s_mov_b32 s{sST+(7+n if n < 8 else 2)}, s96")
            if n < 8: a("s_memtime s[96:97]")
        pc = pieces(n); assert not todo
        todo = dict(zip(DSL7 if n == 7 else [x + 2 for x in DSL] if n == 6 else DSL if len(pc) < 6 else DSL6, pc)); since = 0
    for k in range(4):
        sl = (4 * T + k + 8) & 15
        if 4 * T + k == BP: a(f"s_setprio 0\ns_cmp_lt_u32 s{sW}, 4\ns_cbranch_scc1 L_np\ns_setprio 3\nL_np:")
        if 4 * T + k == OPT.get("s8", 115): assert 4 * T + k >= 115; lq(f"ds_write_b8 v{vFW}, v108 offset:56")
        if sl in PRIO and 4 * T + k < BP or (T, k) == (0, 0): a(f"s_setprio {PRIO.get(sl, 2 if PRIO else 0)}")
        j = T >> 1
        if T == 31:
            if k == 0: a("s_cbranch_vccnz L_sp8\nL_spr8:")
            lq(f"ds_write_b128 v{vW0}, {v(OO[0]+4*k,4)} offset:{1024*k}")
        if k < 2:
            if T < 31: lq(mfma32(Sn, fr(T+1, k), QQ[sub(T+1)]+4*k, Sn if k else "0"))
            if T % 2 == 0 and j < 14: lq(rdK(j + 1, k))
        elif k == 2:
            if T > 0: lq(mfma32(OO[sub(T-1)], fr(T-1, 3), vP+4, OO[sub(T-1)]))
            if T % 2 == 0 and j < 15: lq(rdV(j, 1))
        else:
            lq(mfma32(OO[sub(T)], fr(T, 2), vP, "0" if T < 2 else OO[sub(T)]))
            if T % 2 and j < 14: lq(rdV(j + 1, 0))
        if (T, k) in LAST: lq(f"ds_read_b128 {v(vVL+4*LAST[T, k],4)}, {kvaddr(15, LAST[T, k])}")
        if sl == {0: OPT.get("s0", 10), 6: 10, 7: -1}.get(n, 8):
            if n == 4: assert since == 0; a(f"s_cmp_ge_u32 s{sW}, 4\ns_cbranch_scc1 L_w4\ns_cmp_eq_u32 s{sW}, 3\ns_waitcnt vmcnt(1)\ns_cbranch_scc1 L_w4\ns_waitcnt vmcnt(0)\nL_w4:\ns_waitcnt vmcnt(8)")
            elif n < 7: a(f"s_waitcnt vmcnt({since})")
            if n == 6: a(f"""
s_cmp_lg_u32 s{sW}, {CW}
s_cbranch_scc1 L_chkc_r
s_mov_b32 s{sSP}, {SPIN}
L_chkc1:
v_cmp_ne_u32 vcc, s{sNON}, v{vFC}
v_cmp_ne_u32 s[{sM1}:{sM1+1}], s{sNON}, v{vFC+1}
s_or_b64 s[{sM1}:{sM1+1}], vcc, s[{sM1}:{sM1+1}]
v_cmp_ne_u32 vcc, s{sNON}, v{vFC+2}
s_or_b64 s[{sM1}:{sM1+1}], vcc, s[{sM1}:{sM1+1}]
v_cmp_ne_u32 vcc, s{sNON}, v{vFC+3}
s_or_b64 vcc, vcc, s[{sM1}:{sM1+1}]
s_cbranch_scc1 L_chkc3
L_chkc2:
s_cmp_eq_u32 s2, 0
s_cbranch_scc1 L_epoch
L_chkc_r:
""")
            lq(f"ds_write_b8 v{vFW}, v108 offset:{8*n}" if OPT.get("nox", 1) else f"s_mov_b64 exec, 1\nds_write_b8 v{vFW}, v108 offset:{8*n}\ns_mov_b64 exec, -1")
        if sl == {0: 14, 6: 14, 7: -1, 8: 2}.get(n, RS_): lq(fl_read(min(n + 1, 8)))
        ex = [f"v_exp_f32 v{S+r}, v{S+r}" for r in range(4 * k, 4 * k + 4)]
        cv = [f"v_cvt_pk_bf16_f32 v{vP+r}, v{S+2*r}, v{S+2*r+1}" for r in range(2 * k, 2 * k + 2)]
        p = todo.pop(sl, []); since += len(p) > 0
        body = []
        for e in range(4):
            body.append(ex[e])
            if e < len(p): body.append(p[e])
        a("\n".join(body))
        if sl == {7: -1, 8: 3}.get(n, 15): lq(f"v_cmp_eq_u32 vcc, 0, v{vFT}")
        a("\n".join(cv))
        if sl == QS and n == 3:
            a.c("z and the slot marks are out (all waves posted): wave 3 raises the flag; waves 4-7 fetch the gate inputs")
            a(f"s_movk_i32 s{sT5}, 3584\ns_cmp_ge_u32 s{sW}, 4\ns_cbranch_scc1 L_ldq\ns_cmp_lg_u32 s{sW}, 3\ns_cbranch_scc1 L_ldq_r\ns_lshl_b32 s{sT0}, s2, 2\ns_add_u32 s{sT0}, s{sT0}, {FC}")
            signal(f"s{sT0}")
            a("s_branch L_ldq_r\nL_ldq:")
            ldq()
            a("L_ldq_r:")
            assert not todo
        if sl == 8 and n == 5:
            a.c("flags of all workgroups' z and slot marks (one word each)")
            a(f"s_cmp_lg_u32 s{sW}, {CW}\ns_cbranch_scc1 L_nfc\ns_movk_i32 s{sT0}, {FC}\nbuffer_load_dwordx4 {v(vFC,4)}, v1, {srd(WS)}, s{sT0} offen sc1\nL_nfc:")
        if sl == OPT.get("zs", 5) and n == 7:
            a(f"""
s_cmp_lt_u32 s{sW}, 4
s_cbranch_scc1 L_nz
buffer_load_dwordx4 {v(vZR,4)}, v{vZL}, {srd(WS)}, s{sUT} offen sc1
buffer_load_dwordx4 {v(vZR+4,4)}, v{vZL}, {srd(WS)}, s{sUT} offen offset:64 sc1
L_nz:
""")
lq(mfma32(vO, fr(31, 3), vP+4, vO))
a("s_setprio 0")
stamp(10)
stamp(3, 4)
a(f"""
s_mov_b32 s{sT2}, 0x5f800000
v_mov_b64 v[100:101], 0
v_mov_b64 v[102:103], 0
s_and_b32 s{sT1}, s{sW}, 1
s_mul_i32 s{sT1}, s{sT1}, 768
s_add_u32 s{sT1}, s{sT1}, {WS0+448*224}
v_add_u32 v99, s{sT1}, v1
s_cmp_lt_u32 s{sW}, 4
s_cbranch_scc1 L_mA
ds_write_b128 v99, {v(100,4)}
""")
for i in range(4): a(f"ds_write_b128 v{vMG}, {v(vO+4*i,4)} offset:{1024*i}")
a(f"""
L_mA:
v_add_f32 v98, v{vO+12}, v{OO[0]+12}
v_cmp_nle_f32 vcc, v98, s{sT2}
v_mov_b32 v98, vcc_hi
ds_write_b32 v{vBW}, v98
s_waitcnt vmcnt(0) lgkmcnt(0)
s_barrier
ds_read_b32 v98, v{vBR}
s_cbranch_scc0 L_mB
""")
lq = LQ(); lq.q = [{("v", 98)}]
PB = (vSa, vSb, 164)
for i in (3, 0, 1, 2):
    for b, ad in zip(PB, (f"v{vMG} offset:{1024*i}", f"v{vR0} offset:{1024*i}", f"v{vR0} offset:{16384+1024*i}")): lq(f"ds_read_b128 {v(b+4*i,4)}, {ad}")
a(f"s_setprio 3\ns_waitcnt lgkmcnt(12)\nv_cmp_lt_u32 vcc, s{sTRY}, v98\ns_cbranch_vccnz L_fallback"); lq.q = lq.q[1:]
for i in (3, 0, 1, 2):
    for d, s_ in ((vO, PB[0]), (PB[1], PB[2]), (vO, PB[1])):
        for r in (4*i, 4*i+2): lq(f"v_pk_add_f32 {v(d+r,2)}, {v(d+r,2)}, {v(s_+r,2)}")
    if i == 3: a(f"v_mov_b32 v96, v{vO+12}\nv_mov_b32 v97, v{vO+12}")
    if i == 0: a(f"v_permlane32_swap_b32 v96, v97\nv_rcp_f32 v96, v97")
for hf in range(2):
    for r in range(8*hf, 8*hf+8, 2): a(f"v_pk_mul_f32 {v(vO+r,2)}, {v(vO+r,2)}, v[96:97] op_sel_hi:[1,0]")
    for r in range(4*hf, 4*hf+4): a(f"v_cvt_pk_bf16_f32 v{vP+r}, v{vO+2*r}, v{vO+2*r+1}")
    if hf: a(f"s_mov_b32 exec_lo, 0\nv_mov_b64 {v(vP+6,2)}, 0\ns_mov_b32 exec_lo, -1")
    a(f"buffer_store_dwordx4 {v(vP+4*hf,4)}, v1, {srd(WS)}, s{sOO} offen offset:{1024*hf} sc1")
a("s_setprio 0\ns_barrier")
stamp(11)
WFR, OB, OA = 112, 16, 48
a(f"""
v_bfe_u32 v96, v0, 2, 2
v_lshrrev_b32 v97, 5, v0
v_lshl_add_u32 v96, v96, 1, v97
v_mul_u32_u24 v96, 224, v96
v_bfe_u32 v98, v0, 4, 1
v_lshl_add_u32 v96, v98, 5, v96
v_and_b32 v98, 3, v0
v_lshl_add_u32 v96, v98, 3, v96
s_lshl_b32 s{sT2}, s{sG}, 6
v_add_u32 v2, s{sT2}, v96
v_mul_u32_u24 v99, {6*224}, v97
v_add_u32 v3, v99, v2
v_add_u32 v9, {8*28*224}, v2
v_add_u32 v10, {8*28*224}, v3
""")
for h in range(16):
    for s_ in range(2):
        for t in range(2):
            Qd = 7 * (h & 7) + 4 * s_ + 2 * t
            a(f"ds_read_b64_tr_b16 {v(WFR+8*h+4*s_+2*t,2)}, v{(2, 3, 9, 10)[(h&1) + 2*(h>>3)]} offset:{WS0+(8*(Qd>>1) + (Qd&1))*224}")
a(f"""
v_mov_b32 v4, 0
v_add_u32 v5, {LR}, v1
v_and_b32 v99, 31, v0
v_mul_u32_u24 v99, 1792, v99
v_lshl_add_u32 v8, v97, 4, v99
s_mul_i32 s{sT0}, s{sRT}, {32*1792}
s_mul_i32 s{sT1}, s{sCG}, 224
s_add_u32 s{sT0}, s{sT0}, s{sT1}
s_add_u32 s{sT0}, s{sT0}, s{sT2}
""")
if OPT.get("ep"): a(f"""
v_and_b32 v99, 31, v0
v_mul_u32_u24 v99, 80, v99
v_lshl_add_u32 v99, v97, 3, v99
s_mul_i32 s{sT1}, s{sG}, 4096
s_add_u32 s{sT1}, s{sT1}, {MERGE}
v_add_u32 v6, s{sT1}, v99
v_lshrrev_b32 v99, 2, v0
v_mul_u32_u24 v100, 80, v99
v_lshl_add_u32 v100, v98, 4, v100
v_add_u32 v7, s{sT1}, v100
v_mul_u32_u24 v100, 1792, v99
v_lshl_add_u32 v8, v98, 4, v100
s_add_u32 s{sT1}, s{sT0}, {16*1792}
s_cmp_eq_u32 s{sG}, 3
s_cselect_b32 s{sM1}, 0x33333333, -1
s_mov_b32 s{sM1+1}, s{sM1}
""")
a("s_waitcnt lgkmcnt(0)")
stamp(12)
a.c("waves 4-7 post one byte per staged head; chunk k+1 (4 heads) is checked and read while chunk k multiplies")
def ob(k): return OB if k % 2 == 0 else 64
def o_rd(k, f): return f"ds_read_b128 {v(ob(k)+4*f,4)}, v5 offset:{8192*k+1024*f}"
def o_fl(k): return f"ds_read_b32 v96, v4 offset:{64+4*k}"
def o_spin(k): return f"L_os{k}:\n{o_fl(k)}\ns_waitcnt lgkmcnt(0)\nv_cmp_ne_u32 vcc, -1, v96\ns_cbranch_vccnz L_os{k}"
def early_wb():
    a.c("start writing the gated half of the output back while the projection runs")
    a(f"s_lshr_b32 s{sT3}, s2, 3\ns_add_u32 s{sT3}, s{sT3}, s{sG}\ns_cmp_lg_u32 s{sT3}, 0\ns_cbranch_scc1 L_nwb\nbuffer_wbl2 sc1\nL_nwb:")
if OPT.get("wb") == 4: early_wb()
a("s_barrier" if OPT.get("fb", 1) else o_spin(0))
stamp(13)
lq = LQ()
for f in range(8): lq(o_rd(0, f))
if OPT.get("wb") == 5: early_wb()
CK = OPT.get("ck", 3)
for k in range(4):
    rd = [o_rd(k + 1, f) for f in range(8)] if k < 3 else []
    if rd: lq(o_fl(k + 1))
    for f in range(8):
        lq(mfma32(OA, WFR+32*k+4*f, ob(k)+4*f, "0" if k == 0 and f == 0 else OA))
        if rd and f == CK:
            lq(f"v_cmp_ne_u32 vcc, -1, v96\ns_cbranch_vccz L_or{k+1}")
            a(o_spin(k + 1) + f"\nL_or{k+1}:")
        if f >= CK:
            for x in rd[:2]: lq(x)
            rd = rd[2:]
if OPT.get("ep"):
    for r in range(8): a(f"v_cvt_pk_bf16_f32 v{16+r}, v{OA+2*r}, v{OA+2*r+1}")
    for m in range(4): a(f"ds_write_b64 v6, {v(16+2*m,2)} offset:{16*m}")
    a(f"""
s_waitcnt lgkmcnt(0)
ds_read_b128 {v(24,4)}, v7
ds_read_b128 {v(28,4)}, v7 offset:{16*80}
s_mov_b64 exec, s[{sM1}:{sM1+1}]
s_waitcnt lgkmcnt(1)
buffer_store_dwordx4 {v(24,4)}, v8, {srd(OUT)}, s{sT0} offen{OS}
s_waitcnt lgkmcnt(0)
buffer_store_dwordx4 {v(28,4)}, v8, {srd(OUT)}, s{sT1} offen{OS}
""")
for hf in range(0 if OPT.get("ep") else 2):
    if hf: a(f"s_cmp_eq_u32 s{sG}, 3\ns_cbranch_scc1 L_ost")
    for r in range(4*hf, 4*hf+4): a(f"v_cvt_pk_bf16_f32 v{16+r}, v{OA+2*r}, v{OA+2*r+1}")
    for d in range(2): a(f"v_permlane32_swap_b32 v{16+4*hf+d}, v{18+4*hf+d}")
    a(f"buffer_store_dwordx4 {v(16+4*hf,4)}, v8, {srd(OUT)}, s{sT0} offen offset:{32*hf}{OS}")
a("L_ost:")
stamp(14)
a("s_branch L_fin" if DIAG else "s_endpgm")

a(f"L_mB:\ns_waitcnt lgkmcnt(0)\nv_cmp_lt_u32 vcc, s{sTRY}, v98\ns_cbranch_vccnz L_fallback")
a(f"""
s_mul_i32 s{sT5}, s{sRT}, {32*896}
s_add_u32 s{sT5}, s{sT5}, 896
""")
for i in range(8): a(f"v_lshlrev_b32 v{16+2*i}, 16, v{QR+i}\nv_and_b32 v{17+2*i}, 0xffff0000, v{QR+i}")
for t in range(8):
    for p in range(2):
        src = vZR + 4 * p + t // 2
        a(f"v_lshlrev_b32 v{32+2*t+p}, 16, v{src}" if t % 2 == 0 else f"v_and_b32 v{32+2*t+p}, 0xffff0000, v{src}")
for t in range(8): a(f"v_pk_mul_f32 {v(32+2*t,2)}, {v(32+2*t,2)}, {v(16+2*t,2)}")
for t in range(8): a(f"v_cvt_pk_bf16_f32 v{56+t}, v{32+2*t}, v{33+2*t}")
def gate_st():
    for t in range(8):
        a(f"buffer_store_dword v{56+t}, v{vGO}, {srd(OUT)}, s{sT5} offen offset:{1792*(t&1)}{GS}")
        if t & 1 and t < 7: a(f"s_add_u32 s{sT5}, s{sT5}, 3584")
GO = OPT.get("go", 0)
a.c("waves 0-3 have read the partial sums and sent O"); a("s_barrier")
if OPT.get("gp"): a(f"s_setprio {OPT['gp']}")
if not OPT.get("gl") and not GO: gate_st()
if OPT.get("dl"): a(f"s_sleep {OPT['dl']}" if OPT["dl"] > 1 else "s_waitcnt vmcnt(0)")
stamp(11)
a.c("O fragments: every word differs from the all-ones mark once its producer's store has landed")
OL = 64
a(f"""
s_lshl_b32 s{sT0}, s{sRT}, 15
s_lshl_b32 s{sT1}, s{sG}, 11
s_add_u32 s{sT0}, s{sT0}, s{sT1}
s_add_u32 s{sT0}, s{sT0}, {OF}
s_add_u32 s{sT1}, s{sT0}, 8192
s_add_u32 s{sT2}, s{sT0}, 16384
s_add_u32 s{sT3}, s{sT0}, 24576
s_mov_b32 s{sSP}, {SPIN}
""")
def o_issue(k0):
    for k in range(k0, 4):
        for i in range(2): a(f"buffer_load_dwordx4 {v(OL+8*k+4*i,4)}, v1, {srd(WS)}, s{sT0+k} offen offset:{1024*i} sc1")
o_issue(0)
if GO: gate_st()
for k in range(4):
    r = OL + 8 * k
    a(f"""
s_waitcnt vmcnt({6-2*k+8*GO})
L_ochk{k}:
v_max3_u32 v96, v{r}, v{r+1}, v{r+2}
v_max3_u32 v97, v{r+3}, v{r+4}, v{r+5}
v_max3_u32 v96, v{r+6}, v{r+7}, v96
v_max_u32 v96, v96, v97
v_cmp_eq_u32 vcc, -1, v96
s_cbranch_vccnz L_oretry{k}
L_ogo{k}:
ds_write_b128 v{vQA}, {v(r,4)} offset:{8192*k}
ds_write_b128 v{vQA}, {v(r+4,4)} offset:{8192*k+1024}
""")
    a("s_waitcnt lgkmcnt(0)\ns_barrier" if k == 0 and OPT.get("fb", 1) else f"ds_write_b8 v{vFW}, v108 offset:{60+4*k}")
    if k == 0: stamp(12)
a("s_waitcnt lgkmcnt(0)")
stamp(13)
if DIAG and OPT.get("cyc"): a(f"s_sub_u32 s{sST+2}, {SPIN}, s{sSP}\ns_mul_i32 s{sST+2}, s{sST+2}, 100\ns_add_u32 s{sST+2}, s{sST+2}, s98\ns_add_u32 s{sST+2}, s{sST+2}, 1")
if 0 < OPT.get("wb", 0) < 4:
    a.c("start writing the gated half of the output back while the projection finishes")
    a(f"s_bfe_u32 s{sT0}, s2, {(0, 0, 0x30003, 0x50003)[OPT['wb']]}\ns_add_u32 s{sT0}, s{sT0}, s{sG}\ns_cmp_lg_u32 s{sT0}, 0\ns_cbranch_scc1 L_fin\nbuffer_wbl2 sc1\ns_waitcnt vmcnt(0)")
a.label("L_fin")
if DIAG:
    a(f"s_mov_b64 exec, -1\ns_mov_b32 s{sST+15}, s98")
    a(f"s_lshl_b32 s{sT0}, s2, 3\ns_add_u32 s{sT0}, s{sT0}, s{sW}\ns_lshl_b32 s{sT0}, s{sT0}, 6\ns_add_u32 s{sT0}, s{sT0}, {DG}\nv_lshlrev_b32 v96, 2, v0")
    for k in range(16): a(f"v_writelane_b32 v97, s{sST+k}, {k}")
    a(f"s_mov_b64 exec, 0xffff\nbuffer_store_dword v97, v96, {srd(WS)}, s{sT0} offen")
if DIAG and OPT.get("wbx"): a("s_waitcnt vmcnt(0)\nbuffer_wbl2 sc1\ns_waitcnt vmcnt(0)")
if "probe" in OPT:
    a(f"""
s_cmp_lg_u32 s2, {OPT.get("pwg", 100)}
s_cbranch_scc1 L_end
s_cmp_lg_u32 s{sW}, {OPT.get("pw", 0)}
s_cbranch_scc1 L_end
s_sub_u32 s{sT0}, s{sST+OPT["probe"]}, s{sST+OPT["pb"] if "pb" in OPT else 98}
s_lshl_b32 s{sT0}, s{sT0}, {3 if "pb" in OPT else 2}
s_add_u32 s{sT0}, s{sT0}, 4000
s_min_u32 s{sT0}, s{sT0}, 20000
L_probe:
s_memrealtime s[96:97]
s_waitcnt lgkmcnt(0)
s_sub_u32 s96, s96, s98
s_cmp_lt_u32 s96, s{sT0}
s_cbranch_scc1 L_probe
""")
a.label("L_end")
a("s_endpgm")

for k in range(4):
    a(f"L_oretry{k}:\ns_sub_u32 s{sSP}, s{sSP}, 1\ns_cbranch_scc1 L_ogo{k}".replace(f"s_cbranch_scc1 L_ogo{k}", f"s_cselect_b32 s{sSP}, 0, s{sSP}\ns_cbranch_scc1 L_ogo{k}"))
    o_issue(k)
    a(f"s_waitcnt vmcnt({0 if GO else 6-2*k})\ns_branch L_ochk{k}")

for i in range(1, 9):
    if i == 8 or not OPT.get("spi", 0): a(f"L_sp{i}:\n{fl_read(i)}\ns_waitcnt lgkmcnt(0)\nv_cmp_eq_u32 vcc, 0, v{vFT}\ns_cbranch_vccnz L_sp{i}\ns_branch L_spr{i}")
a(f"""
L_chkc3:
s_sub_u32 s{sSP}, s{sSP}, 1
s_cbranch_scc1 L_chkc2
buffer_load_dwordx4 {v(vFC,4)}, v1, {srd(WS)}, s{sT0} offen sc1
s_waitcnt vmcnt(0)
s_branch L_chkc1
L_epoch:
""")
a.c("workgroup 0 advances the epoch word: every workgroup is known to have read it")
signal("0")
a("s_branch L_chkc_r")

a.label("L_fallback")
a(f"""
s_mov_b32 s{sTRY}, -1
s_setprio 0
s_waitcnt lgkmcnt(0)
s_barrier
s_mov_b64 exec, 0xffff
ds_write_b64 v130, v[128:129]
s_mov_b64 exec, -1
s_waitcnt lgkmcnt(0)
""")
kv_stage(0); kv_stage(1)
a(f"""
s_mov_b32 exec_lo, 0
v_mov_b32 v{vQ+6}, 0
v_mov_b32 v{vQ+7}, 0
v_mov_b32 v{QQ[0]+6}, 0
v_mov_b32 v{QQ[0]+7}, 0
s_mov_b32 exec_lo, -1
v_mov_b32 v{vM}, 0xff800000
v_mov_b32 v{MM[0]}, 0xff800000
s_mov_b32 s{sT3}, s{sKVB}
s_mov_b32 s{sI}, 0
L_fb1:
buffer_load_dwordx4 {v(vK,4)}, v1, {srd(WS)}, s{sT3} offen sc1
buffer_load_dwordx4 {v(vK+4,4)}, v1, {srd(WS)}, s{sT3} offen offset:1024 sc1
s_waitcnt vmcnt(0)
{mfma32(vSb, vK, vQ, "0")}
{mfma32(vSb, vK+4, vQ+4, vSb)}
{mfma32(vSa, vK, QQ[0], "0")}
{mfma32(vSa, vK+4, QQ[0]+4, vSa)}
s_add_u32 s{sT3}, s{sT3}, 4096
s_add_u32 s{sI}, s{sI}, 1
""")
maxtree(vSb, vM, True)
maxtree(vSa, MM[0], True)
a(f"""
s_cmp_lt_u32 s{sI}, 64
s_cbranch_scc1 L_fb1
s_branch L_att
L_codeend:
""")

import subprocess
body0 = pad(a.l, verbose="v" in sys.argv)
def emit(pfs, fill):
    body = [l.replace("@@PFS@@", str(pfs)) for l in body0]
    hdr = open("cdna_kernels/" + NAME + ".s.ref").read().split("; Override launch")[0]
    return hdr + f"""; One persistent launch, one workgroup per CU; phases hand data over through d_ws with tagged flags.
; @launch grid=(256,1,1) block=(512,1,1) lds=163840
.amdgcn_target "amdgcn-amd-amdhsa--gfx950"
.text
.globl {NAME}_kernel
.p2align 8
.type {NAME}_kernel,@function
""" + "\n".join(body) + f"""
    .fill {fill}, 4, 0xbf810000
.section .rodata,"a"
.p2align 6
.amdhsa_kernel {NAME}_kernel
  .amdhsa_next_free_vgpr 256
  .amdhsa_next_free_sgpr 102
  .amdhsa_accum_offset 256
  .amdhsa_group_segment_fixed_size 0
  .amdhsa_kernarg_size 96
  .amdhsa_user_sgpr_count 2
  .amdhsa_user_sgpr_kernarg_segment_ptr 1
  .amdhsa_system_sgpr_workgroup_id_x 1
.end_amdhsa_kernel
"""
def size_of(txt):
    open("_sz.s", "w").write(txt)
    subprocess.run(["clang", "-x", "assembler", "-target", "amdgcn-amd-amdhsa", "-mcpu=gfx950", "-c", "_sz.s", "-o", "_sz.o"], check=True)
    o = subprocess.run(["llvm-objdump", "-t", "_sz.o"], capture_output=True, text=True).stdout
    return [int(l.split()[0], 16) for l in o.splitlines() if l.endswith("L_codeend")][0]
sz = size_of(emit(40, 1))
pfs = OPT.get("pfs", (sz + 2047) // 2048 * 4)
assert pfs <= 64
print("code bytes", sz, "prefetch stride", pfs)
open(sys.argv[1], "w").write(emit(pfs, max(1, (pfs * 512 - sz + 3) // 4)))
```

```python
import sys, struct, math
from asmlib import *

NAME = "concat_heads__softmax_full_mha__ssm_conv_h3__prompt"
DIAG = "diag" in sys.argv
SOPT = dict(a.split("=") for a in sys.argv[2:] if "=" in a)
OPT = {k: int(x) for k, x in SOPT.items() if x.isdigit()}
OPT.setdefault("rt", 40404040)
SPIN = 1 << 16

FA, FB, FC = 0x40000, 0x60000, 0x3000
FS = OPT.get('fs', 4)
QF, KV, UU, ZZ, OF, WSEND = 0x100000, 0x300000, 0x700000, 0x900000, 0xB00000, 0xD00000
DG = 0x10000
LX, LA, LB, LP, LR = 0, 32768, 65536, 98304, 131072
HP, UOFF = 4160, 16640
MERGE, BADF = LP + 16384, LP + 3968
ONES = 0x3f803f80
def fbits(x): return struct.unpack("<I", struct.pack("<f", x))[0]
QSCALE = fbits(28 ** -0.5 * math.log2(math.e))

X_, WQ, WO, Q_, K_, V_, SK, HK, OUT, WS = 4, 8, 12, 16, 20, 24, 28, 32, 36, 40
sDP, sNON, sW = 44, 46, 47
sJ, sTT, sRT, sCG, sC, sH, sQT, sG = 48, 49, 50, 51, 52, 53, 54, 55
sED, sT0, sT1, sT2, sT3, sT4, sT5, sT6, sT7 = 56, 57, 58, 59, 60, 61, 62, 63, 64
sI, sSO, sSO2, sLW, sLX, sTRY, sSP, sCB = 65, 66, 67, 68, 69, 70, 71, 72
sDV, sM1, sM2 = 73, 74, 76
sKVB, sWM = 78, 79
sFL, sE0, sE1, sE2, sKP, sZO, sOO, sKL, sUO, sQO, sUT, sKS = 20, 21, 22, 23, 24, 26, 27, 28, 29, 30, 31, 3
sUS, sCL, sK0 = 29, 44, 45
sQS = 34
sST = 80
def srd(b): return s(b, 4)

a = Asm()
def stamp(k, st=None):
    if not DIAG: return
    if st is None and k >= 9: st = 0
    if st is not None and st != OPT.get("set", 0): return
    a(f"{'s_memtime' if OPT.get('cyc') else 's_memrealtime'} s[96:97]\ns_waitcnt lgkmcnt(0)\ns_mov_b32 s{sST+k}, s96")

npoll = [0]
def poll(vaddr, vtmp):
    n = npoll[0]; npoll[0] += 1
    a(f"""
s_mov_b32 s{sSP}, {SPIN}
L_poll{n}:
buffer_load_dword v{vtmp}, v{vaddr}, {srd(WS)}, 0 offen sc1
s_waitcnt vmcnt(0)
v_cmp_ne_u32 vcc, s{sNON}, v{vtmp}
s_cbranch_vccz L_pollok{n}
s_sub_u32 s{sSP}, s{sSP}, 1
s_cbranch_scc0 L_poll{n}
L_pollok{n}:
""")
vNON = 15
def signal(soff):
    a(f"s_mov_b64 exec, 1\nbuffer_store_dword v{vNON}, v1, {srd(WS)}, {soff} offen sc1\ns_mov_b64 exec, -1")

def mfma32(d, A, B, C): return f"v_mfma_f32_32x32x16_bf16 {v(d,16)}, {v(A,4)}, {v(B,4)}, {C if isinstance(C,str) else v(C,16)}"
def mfma16(d, A, B, C): return f"v_mfma_f32_16x16x32_bf16 {v(d,4)}, {v(A,4)}, {v(B,4)}, {C if isinstance(C,str) else v(C,4)}"

class LQ:
    def __init__(self): self.q = []
    def __call__(self, txt):
        for t in txt.strip("\n").split("\n"):
            i = Ins(t)
            if not i.mn: a(t); continue
            last = max([k for k, w in enumerate(self.q) if w & (i.rd | (i.wr if not i.ds else set()))], default=-1)
            if last >= 0:
                n = min(15, len(self.q) - 1 - last)
                a(f"s_waitcnt lgkmcnt({n})"); self.q = self.q[len(self.q) - n:]
            a(t)
            if i.ds: self.q.append(vset(i.wr))
    def drain(self, n=0):
        if len(self.q) > n:
            a(f"s_waitcnt lgkmcnt({n})"); self.q = self.q[len(self.q) - n:]

vXD, vWD, vXR, vWR, vXB = 2, 6, 9, 13, 14
ACC, RS = 16, 64
vCA, vCB, vCW, vCR, vCU, vZ, vD = 192, 193, 194, 195, 196, 197, 198
vB0, vB1, vQA, vWOA, vMG, vBW, vBR = 199, 200, 201, 202, 203, 204, 205
vPA, vUD, vPB, vZL, vGO, vGA = 206, 207, 208, 209, 210, 211
vHO, vCP = 10, 129
KR, VR, SR, KF, WF, UA, VF, UP = 140, 152, 160, 164, 212, 220, 64, 236
H0, QR = 112, 240
def srdc(lst): return "\n".join(f"s_mov_b32 s{b+2}, {n}\ns_mov_b32 s{b+3}, 0x20000" for b, n in lst)
def karg(lst): return "\n".join(f"s_load_dwordx2 s[{b}:{b+1}], s[0:1], {o}" for b, o in lst)
a.label(NAME + "_kernel")
if DIAG: a(f"{'s_memtime' if OPT.get('cyc') else 's_memrealtime'} s[98:99]")
a(f"""
s_cmp_ge_u32 s2, 256
s_cbranch_scc1 L_end
{karg(((K_, 32), (X_, 0), (V_, 40), (SK, 48), (WQ, 8), (WS, 88), (sDP, 64)))}
s_getpc_b64 s[{sT5}:{sT6}]
L_pc:
v_lshrrev_b32 v1, 6, v0
v_and_b32 v0, 63, v0
s_bfe_u32 s{sT0}, s2, 0x30003
v_lshl_add_u32 v2, s{sT0}, 6, v0
s_sub_u32 s{sT5}, s{sT5}, L_pc-{NAME}_kernel
s_subb_u32 s{sT6}, s{sT6}, 0
v_mul_u32_u24 v2, @@PFS@@, v2
v_mov_b32 v3, s{sT6}
v_add_co_u32 v2, vcc, s{sT5}, v2
v_readfirstlane_b32 s{sW}, v1
v_lshrrev_b32 v130, 4, v0
v_addc_co_u32 v3, vcc, 0, v3, vcc
global_load_dword v255, v[2:3], off
s_and_b32 s{sG}, s{sW}, 3
s_cmp_lt_u32 s{sW}, 4
s_cbranch_scc1 L_uprep
""")
IDS_U = f"""
s_and_b32 s{sT2}, s2, 7
s_lshr_b32 s{sT3}, s2, 5
s_lshl3_add_u32 s{sRT}, s{sT2}, s{sT3}
s_bfe_u32 s{sCG}, s2, 0x20003
v_and_b32 v{vCP}, 15, v0
v_min_u32 v{vCP}, 13, v{vCP}
s_lshl2_add_u32 s{sT0}, s{sCG}, s{sG}
s_mul_i32 s{sT1}, s{sT0}, 56
s_mul_i32 s{sT2}, s{sRT}, {32*896}
s_add_u32 s{sT2}, s{sT2}, s{sT1}
v_mul_u32_u24 v{vGO}, {8*896}, v130
v_lshl_add_u32 v132, v{vCP}, 2, v{vGO}
v_add_u32 v{vGA}, s{sT2}, v132
"""
IDS_G = f"""
s_and_b32 s{sT2}, s2, 1
s_bfe_u32 s{sT3}, s2, 0x30003
s_lshl3_add_u32 s{sJ}, s{sT2}, s{sT3}
s_bfe_u32 s{sT2}, s2, 0x20001
s_lshr_b32 s{sT3}, s2, 6
s_lshl2_add_u32 s{sT2}, s{sT2}, s{sT3}
s_lshl2_add_u32 s{sTT}, s{sT2}, s{sG}
s_and_b32 s{sT2}, s{sG}, 1
s_lshr_b32 s{sT3}, s{sG}, 1
s_lshl2_add_u32 s{sT2}, s{sT3}, s{sT2}
s_add_u32 s{sT2}, s{sT2}, 4
s_lshl_b32 s{sLX}, s{sT2}, 14
"""
COMMON = f"""
v_lshlrev_b32 v1, 4, v0
s_sub_u32 s{sT2}, s2, 32
s_cmp_lt_u32 s2, 224 | s_cselect_b32 s{sC}, s2, s{sT2}
s_load_dword s{sED}, s[{WS}:{WS+1}], 0
s_lshl_b32 s{sT0}, s{sC}, 2
s_load_dword s{sDV}, s[{sDP}:{sDP+1}], s{sT0}
{karg(((HK, 56), (WO, 16), (Q_, 24), (OUT, 72)))}
{srdc(((WO, 401408), (Q_, 1835008), (OUT, 3670016), (WS, WSEND)))}
v_add_u32 v{vGO}, v{vGO}, v{vGA}
v_lshlrev_b32 v133, 7, v{vCP}
v_lshl_add_u32 v{vZL}, v130, 4, v133
s_lshl2_add_u32 s{sT4}, s{sCG}, s{sG}
s_mul_i32 s{sT1}, s{sT4}, 1792
s_mul_i32 s{sT3}, s{sRT}, 28672
s_add_u32 s{sUT}, s{sT1}, s{sT3}
s_add_u32 s{sUT}, s{sUT}, {ZZ}
s_and_b32 s{sT2}, s2, 7
s_lshr_b32 s{sT3}, s2, 7
s_lshl1_add_u32 s{sQT if OPT.get("xq", 0) else sH}, s{sT2}, s{sT3}
s_bfe_u32 s{sH if OPT.get("xq", 0) else sQT}, s2, 0x40003
s_mov_b32 s{sTRY}, 0
s_lshr_b32 s{sT7}, s{sW}, 2
s_mul_i32 s{sCB}, s{sT7}, {LP}
v_and_b32 v132, 3, v0
v_sub_u32 v133, 3, v132
v_mul_u32_u24 v133, {HP}, v133
v_and_b32 v134, 12, v0
v_lshl_add_u32 v133, v134, 1, v133
v_and_b32 v134, 0x30, v0
v_sub_u32 v133, v133, v134
s_lshl_b32 s{sT0}, s{sG}, 7
s_add_u32 s{sT1}, s{sT0}, s{sCB}
s_add_u32 s{sT1}, s{sT1}, 56
v_add_u32 v{vCA}, s{sT1}, v133
v_and_b32 v139, 15, v0
v_lshl_add_u32 v133, v139, 5, v134
s_sub_u32 s{sT1}, s{sCB}, s{sT0}
s_add_u32 s{sT1}, s{sT1}, {UOFF+512-96}
v_add_u32 v{vCB}, s{sT1}, v133
v_lshrrev_b32 v131, 5, v0
v_lshlrev_b32 v133, 7, v131
v_xor_b32 v133, v133, v1
s_lshl_b32 s{sT0}, s{sG}, 13
s_add_u32 s{sT0}, s{sT0}, s{sCB}
v_add_u32 v{vCW}, s{sT0}, v133
v_bfe_u32 v135, v0, 2, 1
v_mul_u32_u24 v136, {LP}, v135
v_lshrrev_b32 v137, 3, v0
v_lshl_add_u32 v138, v137, 2, v132
v_lshrrev_b32 v133, 1, v138
v_and_b32 v134, 1, v0
v_mul_u32_u24 v134, 40, v134
v_xor_b32 v133, v133, v134
v_lshl_add_u32 v133, v133, 4, v136
s_lshl_b32 s{sT0}, s{sW}, 10
v_add_u32 v{vCR}, s{sT0}, v133
v_lshl_add_u32 v133, v138, 4, v136
s_lshl_b32 s{sT0}, s{sW}, 9
s_add_u32 s{sT0}, s{sT0}, {UOFF+512}
v_add_u32 v{vCU}, s{sT0}, v133
v_mul_u32_u24 v133, 28672, v137
v_and_b32 v134, 7, v0
v_lshl_add_u32 v{vZ}, v134, 4, v133
v_lshlrev_b32 v134, 2, v134
v_add_u32 v{vBR}, {BADF}, v134
s_mul_i32 s{sT0}, s{sW}, {8*28672}
s_lshl_b32 s{sT1}, s{sC}, 7
s_add_u32 s{sT0}, s{sT0}, s{sT1}
s_add_u32 s{sZO}, s{sT0}, {ZZ}
s_lshl_b32 s{sKVB}, s{sH}, 18
s_add_u32 s{sKVB}, s{sKVB}, {KV}
s_lshl_b32 s{sKL}, s{sW}, 12
s_add_u32 s{sKS}, s{sKVB}, s{sKL}
s_min_u32 s{sT0}, s{sW}, 6
s_lshl_b32 s{sWM}, s{sT0}, 10
s_lshl_b32 s{sT1}, s{sT0}, 6
v_add_u32 v133, s{sT1}, v0
v_mul_u32_u24 v134, 4682, v133
v_lshrrev_b32 v134, 16, v134
v_mul_u32_u24 v136, 14, v134
v_sub_u32 v133, v133, v136
v_bfe_u32 v136, v134, 1, 2
v_and_b32 v138, 1, v134
v_lshl_add_u32 v136, v138, 2, v136
v_and_or_b32 v134, v134, 24, v136
v_mul_u32_u24 v134, 896, v134
v_lshl_add_u32 v133, v133, 4, v134
s_mul_i32 s{sT1}, s{sCG}, 224
v_add_u32 v{vWOA}, s{sT1}, v133
s_and_b32 s{sT0}, s{sW}, 1
s_lshl1_add_u32 s{sT0}, s{sT7}, s{sT0}
s_lshl_b32 s{sT0}, s{sT0}, 13
s_add_u32 s{sT0}, s{sT0}, {LA}
v_add_u32 v{vB0}, s{sT0}, v1
v_add_u32 v{vB1}, 0x10000, v{vB0}
s_lshl_b32 s{sT0}, s{sG}, 11
s_add_u32 s{sT0}, s{sT0}, {LR}
v_add_u32 v{vQA}, s{sT0}, v1
s_lshl_b32 s{sT0}, s{sG}, 12
s_add_u32 s{sT0}, s{sT0}, {MERGE}
v_add_u32 v{vMG}, s{sT0}, v1
s_lshl_b32 s{sT1}, s{sW}, 2
s_add_u32 s{sT1}, s{sT1}, {BADF}
v_mov_b32 v{vBW}, s{sT1}
s_lshl_b32 s{sT3}, s{sQT}, 2
s_add_u32 s{sT3}, s{sT3}, s{sG}
s_lshl_b32 s{sT0}, s{sT3}, 4
s_add_u32 s{sT0}, s{sT0}, s{sH}
s_lshl_b32 s{sT0}, s{sT0}, 11
s_add_u32 s{sOO}, s{sT0}, {OF}
s_lshl4_add_u32 s{sT0}, s{sH}, s{sQT}
s_lshl3_add_u32 s{sT0}, s{sT0}, s{sW}
s_lshl_b32 s{sT0}, s{sT0}, 10
s_add_u32 s{sQO}, s{sT0}, {QF}
v_cmp_eq_u32 vcc, 0, v135
s_waitcnt lgkmcnt(0)
s_mul_i32 s{sNON}, s{sED}, 1664525
s_add_u32 s{sNON}, s{sNON}, 1013904223
s_lshl_b32 s{sT0}, s{sDV}, 16
s_and_b32 s{sT1}, s{sDV}, 0xffff0000
v_mov_b32 v133, s{sT0}
v_mov_b32 v134, s{sT1}
v_cndmask_b32 v{vD}, v134, v133, vcc
v_mov_b32 v{vNON}, s{sNON}
s_lshl_b32 s{sT0}, s{sT7}, 10
s_add_u32 s{sCL}, s{sOO}, s{sT0}
s_and_b32 s{sT0}, s{sW}, 6
s_add_u32 s{sT0}, s{sT0}, s{sW}
s_lshl_b32 s{sK0}, s{sT0}, 11
"""
CNT = 65520

a(IDS_G + srdc(((X_, 1835008), (WQ, 1204224))) + f"""
v_lshrrev_b32 v128, 3, v0
s_lshl_b32 s{sT0}, s{sTT}, 5
v_add_u32 v128, s{sT0}, v128
v_mul_u32_u24 v128, 896, v128
v_and_b32 v129, 7, v0
v_xor_b32 v129, v129, v130
v_lshl_add_u32 v{vXD}, v129, 4, v128
v_xor_b32 v129, 4, v129
v_lshl_add_u32 v{vXD+1}, v129, 4, v128
v_add_u32 v{vXD+1}, {7168-1024}, v{vXD+1}
v_add_u32 v{vXD+2}, {14336-2048}, v{vXD}
v_add_u32 v{vXD+3}, {14336-2048}, v{vXD+1}
""")
if OPT.get("rt"): a(f"""
s_lshr_b32 s{sT3}, s2, 6
s_mul_i32 s{sT3}, s{sT3}, {OPT.get("rc", 1)}
s_add_u32 s{sT3}, s{sT3}, s{sJ}
s_and_b32 s{sT3}, s{sT3}, 7
s_lshl_b32 s{sT3}, s{sT3}, 2
s_lshr_b32 s{sI}, {int(str(OPT["rt"]), 16):#x}, s{sT3}
s_and_b32 s{sI}, s{sI}, 7
""")
a("s_waitcnt lgkmcnt(0)")
stamp(0)
def wbase(st): return LP + 12288 * st if st < 2 else 12288 * (st - 2)
RT = OPT["rt"]
def rot(dst, st, mul):
    if not RT: return f"s_mov_b32 s{dst}, {st*mul}\n"
    return f"s_add_u32 s{dst}, s{sI}, {st}\ns_cmp_ge_u32 s{dst}, 7\ns_cselect_b32 s{sSP}, 7, 0\ns_sub_u32 s{dst}, s{dst}, s{sSP}\ns_mul_i32 s{dst}, s{dst}, {mul}\n"
def dma_x(st):
    p = [f"buffer_load_dwordx4 v{vXD+i}, {srd(X_)}, s{sSO} offen offset:{1024*i} lds" for i in range(4)]
    p[0] = f"s_add_u32 m0, s{sLX}, {4096*(st&3)}\n" + rot(sSO, st, 128) + p[0]
    return p
def dma_w(st):
    p = [f"buffer_load_dwordx4 v{vWD+q}, {srd(WQ)}, s{sSO2} offen offset:{1024*q} lds" for q in range(3)]
    p[0] = f"s_add_u32 m0, s{sLW}, {wbase(st)}\n" + rot(sSO2, st, 64*2688) + p[0]
    return p
def sprinkle(pieces, text):
    L = [x.replace(" | ", "\n") for x in text.strip().split("\n") if x.strip()]
    n = len(pieces)
    for k, p in enumerate(pieces):
        a(p)
        for x in L[len(L) * k // n: len(L) * (k + 1) // n]: a(x)
WADDR = f"""
s_mul_i32 s{sT0}, s{sJ}, 168
s_and_b32 s{sT0}, s{sT0}, -16
s_mul_i32 s{sT2}, s{sG}, {16*2688}
s_add_u32 s{sT0}, s{sT0}, s{sT2}
s_mul_i32 s{sLW}, s{sG}, 3072
"""
for q in range(3):
    WADDR += f"""
v_add_u32 v128, {64*q}, v0
v_mul_u32_u24 v129, 43691, v128
v_lshrrev_b32 v129, 19, v129
v_mul_u32_u24 v131, 12, v129
v_sub_u32 v128, v128, v131
v_min_u32 v128, 10, v128
v_mul_u32_u24 v129, 2688, v129
v_lshl_add_u32 v128, v128, 4, v129
v_add_u32 v{vWD+q}, s{sT0}, v128
""" + (f"s_sub_u32 s{sT0}, s{sT0}, 1024" if q < 2 else "")
for p in dma_x(0): a(p)
a("s_branch L_loader\nL_uprep:")
a("s_setprio 3\n" + IDS_U + srdc(((K_, 1835008), (V_, 1835008), (SK, 3584))) + f"""
v_subrev_u32 v135, 2688, v{vGA}
s_lshl_b32 s{sT1}, s{sT1}, 2
v_lshl_add_u32 v137, v{vCP}, 4, s{sT1}
s_movk_i32 s{sT5}, 3584
s_waitcnt lgkmcnt(0)
""")
stamp(0)
a(f"buffer_load_dwordx4 {v(SR,4)}, v137, {srd(SK)}, 0 offen")
for i in range(3): a(f"buffer_load_dword v{KR+i}, v135, {srd(K_)}, 0 offen offset:{896*i}")
for i in range(8): a(f"buffer_load_dword v{KR+3+i}, v{vGA}, {srd(K_)}, {'0' if i<4 else s(sT5)} offen offset:{896*(i&3)}")
for i in range(8): a(f"buffer_load_dword v{VR+i}, v{vGA}, {srd(V_)}, {'0' if i<4 else s(sT5)} offen offset:{896*(i&3)}")
a("s_setprio 0\n" + IDS_G + COMMON.replace(" | ", "\n") + f"""
s_sub_u32 s{sUS}, s{sUT}, {ZZ-UU}
s_lshl_b32 s{sT4}, s{sG}, 11
s_add_u32 s{sT4}, s{sT4}, {LP+24576}
v_and_b32 v136, 7, v{vCP}
v_lshlrev_b32 v136, 4, v136
v_xor_b32 v136, v136, v{vZL}
v_add_u32 v136, s{sT4}, v136
v_xor_b32 v138, 64, v136
v_lshlrev_b32 v137, 4, v137
v_xor_b32 v137, v137, v1
v_add_u32 v137, s{sT4}, v137
s_and_b32 s{sT6}, s{sJ}, 1
s_lshl_b32 s{sT6}, s{sT6}, 3
""")
a.c("---- QKV projection: 32 tokens x 3 head blocks per wave")
a(f"""
v_and_b32 v128, 31, v0
v_bfe_u32 v129, v0, 1, 3
v_xor_b32 v129, v129, v131
v_lshlrev_b32 v128, 7, v128
v_lshl_add_u32 v128, v129, 4, v128
v_add_u32 v{vXB}, s{sLX}, v128
v_bfe_u32 v128, v0, 2, 2
v_lshl_add_u32 v128, v131, 3, v128
v_mul_u32_u24 v128, 192, v128
v_and_b32 v129, 1, v130
v_lshl_add_u32 v128, v129, 5, v128
v_lshl_add_u32 v128, v132, 3, v128
s_add_u32 s{sT6}, s{sT6}, {LP}
v_add_u32 v{vWR}, s{sT6}, v128
v_mov_b32 v{vXR}, v{vXB}
v_mov_b32 v{vPB}, 0
v_xor_b32 v{vXR+1}, 32, v{vXB}
v_xor_b32 v{vXR+2}, 64, v{vXB}
v_xor_b32 v{vXR+3}, 0x60, v{vXB}
""")
a(f"s_lshr_b32 s{sT0}, s{sTT}, 2\ns_lshl4_add_u32 s{sT0}, s{sJ}, s{sT0}\ns_lshl_b32 s{sT0}, s{sT0}, {FS}\ns_add_u32 s{sFL}, s{sT0}, {FB}")
a(f"s_mul_i32 s{sT7}, s{sJ}, 3")
for b in range(3):
    a(f"""
s_add_u32 s{sT3}, s{sT7}, {b}
s_and_b32 s{sT0}, s{sT3}, 15
s_lshl_b32 s{sT0}, s{sT0}, 6
s_add_u32 s{sT0}, s{sT0}, s{sTT}
s_cmp_lt_u32 s{sT3}, 16
s_cselect_b32 s{sT1}, 11, 12
s_mov_b32 s{sT2}, {KV}
s_cselect_b32 s{sT2}, {QF}, s{sT2}
s_lshl_b32 s{sT0}, s{sT0}, s{sT1}
s_add_u32 s{sE0+b}, s{sT0}, s{sT2}
""")
a(f"""
s_mov_b32 s{sKP}, {ONES}
s_movk_i32 s{sKP+1}, 0x3f80
s_mov_b32 s{sQS}, {QSCALE:#x}
s_mov_b32 s{sQS+1}, {QSCALE:#x}
s_mov_b32 s{sM1}, 0xf0000000
s_mov_b32 s{sM1+1}, 0xf0000000
s_mov_b32 s{sM2}, {ONES}
s_mov_b32 s{sM2+1}, {ONES}
""")
for r in list(range(ACC, ACC + 48, 2)) + list(range(RS + 16, RS + 64, 2)): a(f"v_mov_b64 {v(r,2)}, 0")
a(f"s_mov_b32 s{sI}, 0\ns_setprio 2\ns_waitcnt vmcnt(8)")
stamp(2)
for j in range(4):
    for p in range(2):
        src = SR + 2 * p + (j >> 1)
        a(f"v_lshlrev_b32 v{WF+2*j+p}, 16, v{src}" if j % 2 == 0 else f"v_and_b32 v{WF+2*j+p}, 0xffff0000, v{src}")
for i in range(11): a(f"v_lshlrev_b32 v{KF+2*i}, 16, v{KR+i}\nv_and_b32 v{KF+2*i+1}, 0xffff0000, v{KR+i}")
for t in range(8): a(f"v_pk_mul_f32 {v(UA+2*t,2)}, {v(KF+2*t,2)}, {v(WF+6,2)}")
for j in (2, 1, 0):
    for t in range(8): a(f"v_pk_fma_f32 {v(UA+2*t,2)}, {v(KF+2*(t+3-j),2)}, {v(WF+2*j,2)}, {v(UA+2*t,2)}")
a("s_waitcnt vmcnt(0)")
for i in range(8): a(f"v_lshlrev_b32 v{VF+2*i}, 16, v{VR+i}\nv_and_b32 v{VF+2*i+1}, 0xffff0000, v{VR+i}")
for t in range(8): a(f"v_pk_mul_f32 {v(UA+2*t,2)}, {v(UA+2*t,2)}, {v(VF+2*t,2)}")
for p in range(2):
    for m in range(4): a(f"v_cvt_pk_bf16_f32 v{UP+4*p+m}, v{UA+2*(7-2*m)+p}, v{UA+2*(6-2*m)+p}")
    a(f"ds_write_b128 v{136+2*p}, {v(UP+4*p,4)}")
a(f"""
s_waitcnt lgkmcnt(0)
ds_read_b128 {v(UP,4)}, v137
ds_read_b128 {v(UP+4,4)}, v137 offset:1024
s_waitcnt lgkmcnt(1)
buffer_store_dwordx4 {v(UP,4)}, v1, {srd(WS)}, s{sUS} offen sc1
s_mov_b32 exec_hi, 0xffff
s_waitcnt lgkmcnt(0)
buffer_store_dwordx4 {v(UP+4,4)}, v1, {srd(WS)}, s{sUS} offen offset:1024 sc1
s_mov_b32 exec_hi, -1
""")
stamp(3)
a(f"""
s_cmp_eq_u32 s{sJ}, 10
s_cbranch_scc1 L_gemm1
s_cmp_gt_u32 s{sJ}, 10
s_cbranch_scc1 L_gemm2
""")
def g_reads(ks):
    r = RS + 16 * ks
    out = [f"ds_read_b128 {v(r,4)}, v{vXR+ks}"]
    for b in range(3):
        for t in range(2):
            out.append(f"ds_read_b64_tr_b16 {v(r+4+4*b+2*t,2)}, v{vWR} offset:{(16*ks+4*t)*192+56*b}")
    return out
def g_mfma(ks, isv):
    r = RS + 16 * ks
    return [mfma32(ACC+16*b, r, r+4+4*b, ACC+16*b) if isv[b] else mfma32(ACC+16*b, r+4+4*b, r, ACC+16*b) for b in range(3)]
for var, isv in enumerate(((0,0,0), (0,0,1), (1,1,1))):
    m = [g_mfma(k, isv) for k in range(4)]
    rd = g_reads(0) + g_reads(1) + g_reads(2) + g_reads(3)
    a(f"L_gemm{var}:\n{m[1][2]}\ns_barrier")
    seq = m[2] + m[3] + m[0] + m[1][:1]
    for k, x in enumerate(seq):
        if k == 6: a("s_waitcnt lgkmcnt(11)")
        if k == 9: a("s_waitcnt lgkmcnt(13)")
        a("\n".join([x] + rd[3*k:3*k+3]))
    a(f"""
s_cmp_eq_u32 s{sI}, 1
s_movk_i32 s{sT1}, 12288
s_cselect_b32 s{sT1}, {(-LP-12288) & 0xffffffff}, s{sT1}
s_add_u32 s{sI}, s{sI}, 1
s_and_b32 s{sT0}, s{sI}, 3
s_lshl_b32 s{sT0}, s{sT0}, 12
{m[1][1]}
v_add_u32 v{vWR}, s{sT1}, v{vWR}
v_xor_b32 v{vXR}, s{sT0}, v{vXB}
v_xor_b32 v{vXR+1}, 32, v{vXR}
v_xor_b32 v{vXR+2}, 64, v{vXR}
v_xor_b32 v{vXR+3}, 0x60, v{vXR}
s_cmp_lt_u32 s{sI}, 7
s_waitcnt vmcnt(0) lgkmcnt(0)
s_cbranch_scc1 L_gemm{var}
""")
    a("\n".join([m[2][0], m[1][2], m[3][0], m[2][1], m[2][2], m[3][1], m[3][2]]))
    stamp(1)
    a.c("epilogue: scale Q, pack to bf16 fragments, patch the pad slots, publish")
    for b in range(3):
        pk = 128 + 8 * b
        padp = sKP
        if var == 0:
            padp = sM1
            a(f"s_cmp_lt_u32 s{sT7}, {16-b}\ns_cselect_b64 {s(sM1,2)}, 0, {s(sKP,2)}\ns_cbranch_scc0 L_nosc{b}")
            for r in range(0, 16, 2): a(f"v_pk_mul_f32 {v(ACC+16*b+r,2)}, {v(ACC+16*b+r,2)}, {s(sQS,2)}")
            a.label(f"L_nosc{b}")
        for r in range(8): a(f"v_cvt_pk_bf16_f32 v{pk+r}, v{ACC+16*b+2*r}, v{ACC+16*b+2*r+1}")
        if isv[b]:
            a(f"s_mov_b64 exec, {s(sM1,2)}")
            for r in range(0, 8, 2): a(f"v_mov_b64 {v(pk+r,2)}, {s(sM2,2)}")
        else: a(f"s_mov_b32 exec_lo, 0\nv_mov_b64 {v(pk+6,2)}, {s(padp,2)}")
        o = 2048 * isv[b]
        a(f"""
s_mov_b64 exec, -1
buffer_store_dwordx4 {v(pk,4)}, v1, {srd(WS)}, s{sE0+b} offen offset:{o} sc1
buffer_store_dwordx4 {v(pk+4,4)}, v1, {srd(WS)}, s{sE0+b} offen offset:{o+1024} sc1
""")
    a("s_branch L_conv")

a.label("L_loader")
HELP = f"""
v_mov_b32 v133, {CNT}
v_mov_b32 v134, 0
ds_write_b32 v133, v134
v_min_u32 v133, 2, v130
v_lshl_add_u32 v133, v133, 4, s{sH}
v_mul_u32_u24 v133, 21846, v133
v_lshrrev_b32 v133, 16, v133
v_mov_b32 v134, s{sQT}
v_cmp_gt_u32 vcc, 16, v0
s_lshl_b32 s{sT0}, s{sCG}, 6
s_add_u32 s{sT0}, s{sT0}, s{sRT}
s_lshl_b32 s{sT0}, s{sT0}, {FS}
s_add_u32 s{sFL}, s{sT0}, {FA}
v_cndmask_b32 v134, v139, v134, vcc
v_lshl_add_u32 v133, v133, 4, v134
v_lshlrev_b32 v133, {FS}, v133
v_add_u32 v{vPB}, {FB}, v133
s_mul_i32 s{sT0}, s{sC}, 1171
s_lshr_b32 s{sT0}, s{sT0}, 16
s_lshl2_add_u32 s{sT0}, s{sT0}, s{sG}
s_lshl_b32 s{sT0}, s{sT0}, {4+FS}
s_add_u32 s{sT0}, s{sT0}, {FA}
v_lshl_add_u32 v{vPA}, v139, {FS}, s{sT0}
v_lshrrev_b32 v133, 2, v0
v_mul_u32_u24 v133, 28672, v133
v_lshl_add_u32 v{vUD}, v132, 4, v133
s_mul_i32 s{sT0}, s{sG}, {16*28672}
s_lshl_b32 s{sT1}, s{sC}, 7
s_add_u32 s{sT0}, s{sT0}, s{sT1}
s_add_u32 s{sUO}, s{sT0}, {UU}
v_bfe_u32 v138, v0, 1, 2
v_mul_u32_u24 v138, {HP}, v138
v_and_b32 v139, 1, v0
v_lshl_add_u32 v138, v139, 4, v138
v_add_u32 v139, {UOFF}, v1
v_cmp_gt_u32 vcc, 32, v0
v_mov_b64 v[140:141], 0
v_mov_b64 v[142:143], 0
v_cndmask_b32 v138, v138, v139, vcc
v_add_u32 v139, {LP}, v138
{srdc(((HK, 1835008),))}
s_lshl_b32 s{sT3}, s{sC}, 13
s_lshl_b32 s{sT4}, s{sG}, 10
s_add_u32 s{sT3}, s{sT3}, s{sT4}
v_add_u32 v11, s{sT3}, v1
v_add_u32 v{vHO}, s{sT4}, v1
v_subrev_u32 v12, 8, v11
v_cmp_eq_u32 vcc, 0, v{vHO}
v_mov_b32 v136, 0xffffe000
s_movk_i32 s{sT7}, 4096
v_cndmask_b32 v12, v12, v136, vcc
"""
def hprep(p):
    R = H0 + 8 * p; T = 40 + 12 * p
    a(f"v_add_u32 v{134+p}, {(LP if p else LX)+32}, v{vHO}")
    for i in range(4): a(f"v_alignbit_b32 v{T+i}, v{R+2+i}, v{R+1+i}, 16")
    for i in range(4): a(f"v_mov_b32 v{T+4+i}, v{R+1+i}")
    for i in range(4): a(f"v_alignbit_b32 v{T+8+i}, v{R+1+i}, v{R+i}, 16")
def hwrite(p):
    R = H0 + 8 * p; T = 40 + 12 * p
    a(f"ds_write_b128 v{134+p}, {v(R+2,4)}")
    for c in range(1, 4): a(f"ds_write_b128 v{134+p}, {v(T+4*(c-1),4)} offset:{HP*c}")
    a.c("zero pads: lanes 0-31 the u pad, lanes 32-39 the h pads")
    a(f"ds_write_b128 v{138+p}, {v(140,4)}")
def u_dma():
    a(f"""
s_lshl_b32 s{sT2}, s{sG}, 10
s_add_u32 m0, s{sT2}, {LX+UOFF+512}
s_add_u32 s{sT1}, s{sUO}, 64
buffer_load_dwordx4 v{vUD}, {srd(WS)}, s{sUO} offen sc1 lds
s_add_u32 m0, s{sT2}, {LP+UOFF+512}
s_nop 0
buffer_load_dwordx4 v{vUD}, {srd(WS)}, s{sT1} offen sc1 lds
""")

a(WADDR)
HL = [f"buffer_load_dwordx{2+2*k} {v(H0+8*p+2*k,2+2*k)}, v{12-k}, {srd(HK)}, {s(sT7) if p else 0} offen" for p in range(2) for k in range(2)]
rest = [(0, p) for p in dma_w(0)] + [(st, p) for st in range(1, 7) for p in dma_w(st) + dma_x(st)]
HPOS = 3 + 7 * OPT.get("hst", 3)
rest[HPOS:HPOS] = [(9, x) for x in HL]
rest.append((8, f"buffer_load_dword v144, v{vPA}, {srd(WS)}, 0 offen sc1"))
calc = [x.replace(" | ", "\n") for x in (IDS_U + COMMON + HELP).strip().split("\n") if x.strip()]
NC = min(HPOS, 17); LAGS = [int(x, 36) for x in SOPT.get("lags", "eedc97")]
issued = [0] * 4; n = 0
def bar(n):
    young = len(issued) - 1 - max(k for k, st in enumerate(issued) if st == n)
    if n == 0: stamp(1)
    a(f"s_waitcnt vmcnt({young})\ns_barrier")
    if n < 6: stamp(9 + n, 2)
    if n == 1:
        assert len(issued) >= NC + 4
        a.c("waves 0-3 waited for their u stores before this barrier")
        a(f"s_cmp_lg_u32 s{sW}, 4\ns_cbranch_scc1 L_nsa")
        signal(f"s{sFL}")
        a.label("L_nsa")
for k, (st, p) in enumerate(rest):
    assert st > 7 or "s[8:11]" in p or st - 4 < n - 1
    a(p); issued.append(st)
    if k < NC:
        for x in calc[len(calc) * k // NC: len(calc) * (k + 1) // NC]: a(x)
    if n < 6 and issued.count(n) == 7 and len(issued) - 1 - max(q for q, s_ in enumerate(issued) if s_ == n) >= LAGS[n]:
        bar(n); n += 1
while n < 6: bar(n); n += 1
EARLYH = OPT.get("hst", 3) < 5
HW = OPT.get("hw", 0)
if EARLYH: hprep(1); hwrite(1)
if HW: hprep(0)
bar(6)
if HW: hwrite(0)
a(f"s_waitcnt vmcnt(0)\nv_cmp_ne_u32 vcc, s{sNON}, v144\ns_cbranch_vccz L_uok")
poll(vPA, 144)
a("L_uok:")
u_dma()
stamp(4)
if not EARLYH: hprep(1); hwrite(1)
if not HW: hprep(0); hwrite(0)
a("s_setprio 1\ns_waitcnt vmcnt(0) lgkmcnt(0)")
def ldq():
    for i in range(8): a(f"buffer_load_dword v{QR+i}, v{vGA}, {srd(Q_)}, {'0' if i<4 else s(sT5)} offen offset:{896*(i&3)}")

a.label("L_conv")
CAC, CU, FA_, FB_ = 16, 48, 64, 128
a.c("---- long causal conv as block-Toeplitz MFMA: channel = wave>>2, lag phases split over wave&3")
a("s_barrier")
stamp(5)
def c_readA(i, r): return [f"ds_read_b64 {v(FA_+32*i+4*r+2*t,2)}, v{vCA} offset:{512*r+64*i+8*t}" for t in range(2)]
def c_readB(i, x): return [f"ds_read_b128 {v(FB_+32*i+4*x,4)}, v{vCB} offset:{512*x+64*(1-i)}"]
def c_m(i, nt, r, first=False): return mfma16(CAC+4*nt, FA_+32*i+4*r, FB_+32*i+4*(nt-r), "0" if first else CAC+4*nt)
lq = LQ()
rds = [x for i in range(2) for k in range(8) for x in c_readA(i, k) + c_readB(i, k)] + [f"ds_read_b128 {v(CU,4)}, v{vCU}"]
for x in rds[:15]: lq(x)
rds = rds[15:]
seen = set(); prev = -1
for k in range(8):
    grp = [(r, x) for r in range(k + 1) for x in range(k + 1) if max(r, x) == k and r + x <= 7]
    while grp:
        r, x = next((p for p in grp if p[0] + p[1] != prev), grp[0]); grp.remove((r, x))
        lq(c_m(0, r + x, r, first=(r + x) not in seen)); seen.add(r + x); prev = r + x
        if rds: lq(rds.pop(0))
assert not rds
stamp(9, 3)
a(f"""
s_cmp_ge_u32 s{sW}, 4
s_cbranch_scc1 L_cm
s_setprio 0
v_mov_b32 v52, {CNT}
v_mov_b32 v53, 1
s_mov_b64 exec, 1
s_waitcnt vmcnt(0)
ds_add_rtn_u32 v53, v52, v53
s_waitcnt lgkmcnt(0)
v_cmp_eq_u32 vcc, 3, v53
s_cbranch_vccz L_cnl
buffer_store_dword v{vNON}, v1, {srd(WS)}, s{sFL} offen sc1
L_cnl:
s_mov_b64 exec, -1
""")
stamp(4)
a.label("L_cm")
lq.drain()
a("s_barrier")
stamp(10, 3)
pend = []; cnt = 0; PP = ((36,), (25, 36), (14, 25, 36))[OPT.get("pp", 3) - 1]
for n0 in range(0, 8, 2):
    ms = []
    for r in range(n0 + 2):
        ms.append(c_m(1, n0 + 1, r))
        if r <= n0: ms.append(c_m(1, n0, r))
    for m_ in ms:
        a(m_); cnt += 1
        pend = [(w, n + 1) for w, n in pend]
        if pend and pend[0][1] >= 8: a(pend.pop(0)[0])
    for nt in (n0, n0 + 1): pend.append((f"ds_write_b128 v{vCW}, {v(CAC+4*nt,4)} offset:{1024*nt}", 0))
for t in range(8):
    m = (7 - t) // 2
    a(f"v_lshlrev_b32 v{56+t}, 16, v{CU+m}" if t % 2 else f"v_and_b32 v{56+t}, 0xffff0000, v{CU+m}")
a("v_and_b32 v126, 7, v0\nv_lshlrev_b32 v130, 3, v0\nv_mov_b64 v[128:129], 0")
for w, n in pend: a(w)
stamp(6)
a(f"s_cmp_lg_u32 s{sW}, 4\ns_cbranch_scc1 L_cred")
poll(vPB, 52)
a.label("L_cred")
a("s_waitcnt lgkmcnt(0)\ns_barrier")
stamp(7)
S1 = [int(x) for x in SOPT.get("s1", "310")]
def kvp(i): return f"buffer_load_dwordx4 v1, {srd(WS)}, s{sSO} offen offset:{1024*i} sc1 lds"
def kv_stage(n, cnt=4):
    a(f"s_add_u32 m0, s{sKL}, {LA+32768*n}\ns_add_u32 s{sSO}, s{sKS}, {32768*n}")
    for i in range(cnt): a(kvp(i))
a.c("behind that barrier every wave knows the QKV flags matched: Q and the first tiles go first")
a(f"""
s_setprio 0
s_lshl_b32 s{sT5}, s{sW}, 10
s_add_u32 m0, s{sT5}, {LR}
s_add_u32 s{sSO}, s{sKVB}, s{sK0}
buffer_load_dwordx4 v1, {srd(WS)}, s{sQO} offen sc1 lds
s_add_u32 m0, s{sK0}, {LA}
s_add_u32 s{sSO2}, s{sSO}, 4096
buffer_load_dwordx4 v1, {srd(WS)}, s{sSO} offen sc1 lds
buffer_load_dwordx4 v1, {srd(WS)}, s{sSO} offen offset:1024 sc1 lds
s_add_u32 m0, s{sK0}, {LA+4096}
""")
for q in range(4):
    for i in range(2): a(f"ds_read_b128 {v(64+8*q+4*i,4)}, v{vCR} offset:{8192*q+256*i}")
a(f"""
buffer_load_dwordx4 v1, {srd(WS)}, s{sSO2} offen sc1 lds
buffer_load_dwordx4 v1, {srd(WS)}, s{sSO2} offen offset:1024 sc1 lds
""")
stamp(11, 3)
a("s_waitcnt lgkmcnt(4)")
for t in range(8): a(f"v_fma_f32 v{56+t}, v{56+t}, v{vD}, v{64+t}")
for t in range(0, 8, 2): a(f"v_pk_add_f32 {v(56+t,2)}, {v(56+t,2)}, {v(72+t,2)}")
a("s_waitcnt lgkmcnt(0)")
a.c("wave 0 alone reads the first 128 bytes: it clears the progress bytes of the key loop behind its reads")
a(f"""
s_cmp_lg_u32 s{sW}, 0
s_cbranch_scc1 L_nclr
s_mov_b64 exec, 0xffff
ds_write_b64 v130, v[128:129]
s_mov_b64 exec, -1
L_nclr:
""")
for t in range(0, 8, 2): a(f"v_pk_add_f32 {v(80+t,2)}, {v(80+t,2)}, {v(88+t,2)}")
for t in range(0, 8, 2): a(f"v_pk_add_f32 {v(56+t,2)}, {v(56+t,2)}, {v(80+t,2)}")
for m in range(4): a(f"v_cvt_pk_bf16_f32 v{104+m}, v{56+2*m}, v{57+2*m}")
a("v_mov_b64 v[108:109], -1\nv_mov_b64 v[110:111], -1")
stamp(12, 3)
kv_stage(1, S1[0])
a(f"""
v_mov_b32 v124, s{sW}
s_and_b32 s{sT0}, s{sW}, 4
v_and_or_b32 v125, v0, 3, s{sT0}
v_xor_b32 v180, 2048, v{vQA}
s_add_u32 s{sT0}, s{sKL}, {LR}
v_add_u32 v181, s{sT0}, v1
v_xor_b32 v182, 4096, v181
""")
stamp(13, 3)
a(f"s_waitcnt vmcnt({2+S1[0]})")
stamp(14, 3)

MODS = ("", " sc1", " nt", " sc0 sc1", " sc1 nt"); GS, OS = MODS[OPT.get("gs", 0)], MODS[OPT.get("os", 0)]
WS0 = 128
vFW, vFG, vF8, vFT = 124, 125, 126, 127
vQ, vK, vV, vP, vSa, vSb, vO, vM, vKC, vZR, vFC = 16, 24, 32, 40, 48, 64, 80, 14, 96, 248, 120
a.c("---- attention: S^T = K Q^T - m (m rides in the pad slots), P = exp2, O^T += V^T P^T (row 28 = sum)")
a(f"""
L_att:
s_cmp_lg_u32 s{sTRY}, 0
s_barrier
""")
stamp(8)
QQ, OO, MM, vVL, vQB, vW0, vR0 = (132, vQ), (148, vO), (183, vM), 164, 180, 181, 182
def kvaddr(T, f):
    o = 32768 * ((T >> 1) & 3) + 4096 * (T & 1) + 1024 * f
    return f"v{vB0 if o < 65536 else vB1} offset:{o & 65535}"
def rdK(T, f): return f"ds_read_b128 {v(vK+4*f,4)}, {kvaddr(T, f)}"
def rdV(T, f): return f"ds_read_b128 {v(vV+4*f,4)}, {kvaddr(T, 2+f)}"
def wo_piece(g): return [f"s_add_u32 m0, s{sWM}, {WS0+7168*g}", f"s_mov_b32 s{sSO2}, {28672*g}", f"buffer_load_dwordx4 v{vWOA}, {srd(WO)}, s{sSO2} offen lds"]
def pieces(n):
    out = []
    if n == 1:
        out += [[f"buffer_store_dwordx4 {v(104,4)}, v{vZ}, {srd(WS)}, s{sZO} offen sc1"], [f"buffer_store_dwordx4 {v(108,4)}, v1, {srd(WS)}, s{sCL} offen sc1"]]
    if n < 6:
        for i in range(4):
            p = [f"buffer_load_dwordx4 v1, {srd(WS)}, s{sSO} offen offset:{1024*i} sc1 lds"]
            if i == 0: p = [f"s_add_u32 m0, s{sKL}, {LA+32768*((n+2)&3)}", f"s_add_u32 s{sSO}, s{sKS}, {32768*(n+2)}"] + p
            out.append(p)
        if n >= 2: out.append(wo_piece(n - 2))
    elif n < 8: out = [wo_piece(4 + 5 * (n - 6) + i) for i in range(5)]
    return out
def maxtree(S, dst, have):
    a(f"v_max3_f32 v{dst}, v{S}, v{S+1}, v{dst}" if have else f"v_max_f32 v{dst}, v{S}, v{S+1}")
    for i in range(2, 16, 2): a(f"v_max3_f32 v{dst}, v{S+i}, v{S+i+1}, v{dst}")
p0 = pieces(0)
a(f"""
s_cbranch_scc1 L_haveq
ds_read_b128 {v(QQ[0],4)}, v{vQB}
ds_read_b128 {v(vKC,4)}, v1 offset:{LA}
ds_read_b128 {v(QQ[0]+4,4)}, v{vQB} offset:1024
ds_read_b128 {v(vKC+4,4)}, v1 offset:{LA+1024}
ds_read_b128 {v(vQ,4)}, v{vQA}
ds_read_b128 {v(vQ+4,4)}, v{vQA} offset:1024
L_haveq:
{rdK(0,0)}
{rdK(0,1)}
{rdV(0,0)}
{chr(10).join(kvp(i) for i in range(S1[0], S1[0]+S1[1]))}
s_cbranch_scc1 L_havem
s_waitcnt lgkmcnt(7)
{mfma32(vSb, vKC, QQ[0], "0")}
s_waitcnt lgkmcnt(5)
{mfma32(vSb, vKC+4, QQ[0]+4, vSb)}
s_waitcnt lgkmcnt(3)
{mfma32(vO, vKC, vQ, "0")}
{mfma32(vO, vKC+4, vQ+4, vO)}
L_havem:
s_waitcnt lgkmcnt(0)
{mfma32(vSa, vK, QQ[0], "0")}
{chr(10).join(kvp(i) for i in range(S1[0]+S1[1], 4))}
""")
NM = OPT.get("nm", 2)
a.c("first pass: shift = running maximum of the row's first scores (never above the true maximum); checked after the loop, see L_fallback")
a("s_cbranch_scc1 L_hm")
for i in range(NM):
    for S_, m in ((vSb, MM[0]), (vO, MM[1])): a(f"v_max3_f32 v{m}, v{S_+2*i+1}, v{S_+(2*i+2)%16}, v{m if i else S_}")
a.c("lanes 0-31 split the shift of tile 0, lanes 32-63 that of tile 1, into three bf16 parts")
a(f"""
L_hm:
v_permlane32_swap_b32 v{MM[0]}, v{MM[1]}
v_max_f32 v96, v{MM[0]}, v{MM[1]}
v_xor_b32 v96, 0x80000000, v96
v_and_b32 v97, 0xffff0000, v96
v_sub_f32 v96, v96, v97
v_and_b32 v98, 0xffff0000, v96
v_sub_f32 v96, v96, v98
v_lshrrev_b32 v97, 16, v97
v_lshrrev_b32 v99, 16, v96
v_or_b32 v98, v97, v98
s_mov_b32 exec_lo, 0
v_mov_b64 {v(vQ+6,2)}, v[98:99]
s_mov_b32 exec_lo, -1
v_permlane32_swap_b32 v{QQ[0]+6}, v98
v_permlane32_swap_b32 v{QQ[0]+7}, v99
{mfma32(vSa, vK+4, QQ[0]+4, vSa)}
""")
lq = LQ()
a("s_waitcnt vmcnt(4)\ns_barrier")
stamp(9)
stamp(1, 4)
PRIO = {int(x, 16): 3 - i for i, x in enumerate(SOPT.get("pr", "07cf"))}
DSL = [int(x, 16) for x in SOPT.get("dsl", "89abc")]; DSL6 = [int(x, 16) for x in SOPT.get("dsl6", "0189ab")]; DSL7 = [int(x, 16) for x in SOPT.get("dsl7", "01234")]; S7 = OPT.get("s7", 14); DSL0 = [int(x, 16) for x in SOPT.get("dsl0", "abcd")]
todo = dict(zip(DSL0, p0)); since = 0
def sub(T): return T & 1 if T < 28 else (T >> 1) & 1
def fr(T, f): return (vVL if T in (29, 31) else vK) + 4 * f
LAST = {(27, 0): 0, (27, 1): 1, (27, 2): 2, (28, 0): 3}
RS_ = OPT.get("rs", 13); QS = OPT.get("qs", 14); CW = OPT.get("cw", 2); BP = OPT.get("bp", 120)
def fl_read(i): return f"ds_read_u8 v{vFT}, v{vF8 if i in (3, 6, 7) else vFG} offset:{8*(i-1)}"
a.c("no barriers in the loop: a wave posts a byte once its DMA of the next stage landed and it left the stage before; readers check half a stage later")
for T in range(32):
    S, Sn = (vSa, vSb) if T % 2 == 0 else (vSb, vSa)
    n = (T + 2) >> 2
    if T & 3 == 2:
        if n == 8: pass
        elif OPT.get("spi", 0): a(f"s_cbranch_vccz L_spr{n}\nL_sp{n}:\n{fl_read(n)}\ns_waitcnt lgkmcnt(0)\nv_cmp_eq_u32 vcc, 0, v{vFT}\ns_cbranch_vccnz L_sp{n}\nL_spr{n}:")
        else: a(f"s_cbranch_vccnz L_sp{n}\nL_spr{n}:")
        if DIAG and OPT.get("set") == 4:
            if n > 1: a(f"s_mov_b32 s{sST+(7+n if n < 8 else 2)}, s96")
            if n < 8: a("s_memtime s[96:97]")
        pc = pieces(n); assert not todo
        todo = dict(zip(DSL7 if n == 7 else [x + 2 for x in DSL] if n == 6 else DSL if len(pc) < 6 else DSL6, pc)); since = 0
    for k in range(4):
        sl = (4 * T + k + 8) & 15
        if 4 * T + k == BP: a(f"s_setprio 0\ns_cmp_lt_u32 s{sW}, 4\ns_cbranch_scc1 L_np\ns_setprio 3\nL_np:")
        if 4 * T + k == OPT.get("s8", 115): assert 4 * T + k >= 115; lq(f"ds_write_b8 v{vFW}, v108 offset:56")
        if sl in PRIO and 4 * T + k < BP or (T, k) == (0, 0): a(f"s_setprio {PRIO.get(sl, 2 if PRIO else 0)}")
        j = T >> 1
        if T == 31:
            if k == 0: a("s_cbranch_vccnz L_sp8\nL_spr8:")
            lq(f"ds_write_b128 v{vW0}, {v(OO[0]+4*k,4)} offset:{1024*k}")
        if k < 2:
            if T < 31: lq(mfma32(Sn, fr(T+1, k), QQ[sub(T+1)]+4*k, Sn if k else "0"))
            if T % 2 == 0 and j < 14: lq(rdK(j + 1, k))
        elif k == 2:
            if T > 0: lq(mfma32(OO[sub(T-1)], fr(T-1, 3), vP+4, OO[sub(T-1)]))
            if T % 2 == 0 and j < 15: lq(rdV(j, 1))
        else:
            lq(mfma32(OO[sub(T)], fr(T, 2), vP, "0" if T < 2 else OO[sub(T)]))
            if T % 2 and j < 14: lq(rdV(j + 1, 0))
        if (T, k) in LAST: lq(f"ds_read_b128 {v(vVL+4*LAST[T, k],4)}, {kvaddr(15, LAST[T, k])}")
        if sl == {0: OPT.get("s0", 10), 6: 10, 7: -1}.get(n, 8):
            if n == 4: assert since == 0; a(f"s_cmp_ge_u32 s{sW}, 4\ns_cbranch_scc1 L_w4\ns_cmp_eq_u32 s{sW}, 3\ns_waitcnt vmcnt(1)\ns_cbranch_scc1 L_w4\ns_waitcnt vmcnt(0)\nL_w4:\ns_waitcnt vmcnt(8)")
            elif n < 7: a(f"s_waitcnt vmcnt({since})")
            if n == 6: a(f"""
s_cmp_lg_u32 s{sW}, {CW}
s_cbranch_scc1 L_chkc_r
s_mov_b32 s{sSP}, {SPIN}
L_chkc1:
v_cmp_ne_u32 vcc, s{sNON}, v{vFC}
v_cmp_ne_u32 s[{sM1}:{sM1+1}], s{sNON}, v{vFC+1}
s_or_b64 s[{sM1}:{sM1+1}], vcc, s[{sM1}:{sM1+1}]
v_cmp_ne_u32 vcc, s{sNON}, v{vFC+2}
s_or_b64 s[{sM1}:{sM1+1}], vcc, s[{sM1}:{sM1+1}]
v_cmp_ne_u32 vcc, s{sNON}, v{vFC+3}
s_or_b64 vcc, vcc, s[{sM1}:{sM1+1}]
s_cbranch_scc1 L_chkc3
L_chkc2:
s_cmp_eq_u32 s2, 0
s_cbranch_scc1 L_epoch
L_chkc_r:
""")
            lq(f"ds_write_b8 v{vFW}, v108 offset:{8*n}" if OPT.get("nox", 1) else f"s_mov_b64 exec, 1\nds_write_b8 v{vFW}, v108 offset:{8*n}\ns_mov_b64 exec, -1")
        if sl == {0: 14, 6: 14, 7: -1, 8: 2}.get(n, RS_): lq(fl_read(min(n + 1, 8)))
        ex = [f"v_exp_f32 v{S+r}, v{S+r}" for r in range(4 * k, 4 * k + 4)]
        cv = [f"v_cvt_pk_bf16_f32 v{vP+r}, v{S+2*r}, v{S+2*r+1}" for r in range(2 * k, 2 * k + 2)]
        p = todo.pop(sl, []); since += len(p) > 0
        body = []
        for e in range(4):
            body.append(ex[e])
            if e < len(p): body.append(p[e])
        a("\n".join(body))
        if sl == {7: -1, 8: 3}.get(n, 15): lq(f"v_cmp_eq_u32 vcc, 0, v{vFT}")
        a("\n".join(cv))
        if sl == QS and n == 3:
            a.c("z and the slot marks are out (all waves posted): wave 3 raises the flag; waves 4-7 fetch the gate inputs")
            a(f"s_movk_i32 s{sT5}, 3584\ns_cmp_ge_u32 s{sW}, 4\ns_cbranch_scc1 L_ldq\ns_cmp_lg_u32 s{sW}, 3\ns_cbranch_scc1 L_ldq_r\ns_lshl_b32 s{sT0}, s2, 2\ns_add_u32 s{sT0}, s{sT0}, {FC}")
            signal(f"s{sT0}")
            a("s_branch L_ldq_r\nL_ldq:")
            ldq()
            a("L_ldq_r:")
            assert not todo
        if sl == 8 and n == 5:
            a.c("flags of all workgroups' z and slot marks (one word each)")
            a(f"s_cmp_lg_u32 s{sW}, {CW}\ns_cbranch_scc1 L_nfc\ns_movk_i32 s{sT0}, {FC}\nbuffer_load_dwordx4 {v(vFC,4)}, v1, {srd(WS)}, s{sT0} offen sc1\nL_nfc:")
        if sl == OPT.get("zs", 5) and n == 7:
            a(f"""
s_cmp_lt_u32 s{sW}, 4
s_cbranch_scc1 L_nz
buffer_load_dwordx4 {v(vZR,4)}, v{vZL}, {srd(WS)}, s{sUT} offen sc1
buffer_load_dwordx4 {v(vZR+4,4)}, v{vZL}, {srd(WS)}, s{sUT} offen offset:64 sc1
L_nz:
""")
lq(mfma32(vO, fr(31, 3), vP+4, vO))
a("s_setprio 0")
stamp(10)
stamp(3, 4)
a.c("guard: any row sum above 2^64 (or NaN) in any wave sends the whole workgroup to the true-maximum pass")
a(f"""
s_mov_b32 s{sT2}, 0x5f800000
v_mov_b64 v[100:101], 0
v_mov_b64 v[102:103], 0
s_and_b32 s{sT1}, s{sW}, 1
s_mul_i32 s{sT1}, s{sT1}, 768
s_add_u32 s{sT1}, s{sT1}, {WS0+448*224}
v_add_u32 v99, s{sT1}, v1
s_cmp_lt_u32 s{sW}, 4
s_cbranch_scc1 L_mA
ds_write_b128 v99, {v(100,4)}
""")
for i in range(4): a(f"ds_write_b128 v{vMG}, {v(vO+4*i,4)} offset:{1024*i}")
a(f"""
L_mA:
v_add_f32 v98, v{vO+12}, v{OO[0]+12}
v_cmp_nle_f32 vcc, v98, s{sT2}
v_mov_b32 v98, vcc_hi
ds_write_b32 v{vBW}, v98
s_waitcnt vmcnt(0) lgkmcnt(0)
s_barrier
ds_read_b32 v98, v{vBR}
s_cbranch_scc0 L_mB
""")
lq = LQ(); lq.q = [{("v", 98)}]
PB = (vSa, vSb, 164)
for i in (3, 0, 1, 2):
    for b, ad in zip(PB, (f"v{vMG} offset:{1024*i}", f"v{vR0} offset:{1024*i}", f"v{vR0} offset:{16384+1024*i}")): lq(f"ds_read_b128 {v(b+4*i,4)}, {ad}")
a(f"s_setprio 3\ns_waitcnt lgkmcnt(12)\nv_cmp_lt_u32 vcc, s{sTRY}, v98\ns_cbranch_vccnz L_fallback"); lq.q = lq.q[1:]
for i in (3, 0, 1, 2):
    for d, s_ in ((vO, PB[0]), (PB[1], PB[2]), (vO, PB[1])):
        for r in (4*i, 4*i+2): lq(f"v_pk_add_f32 {v(d+r,2)}, {v(d+r,2)}, {v(s_+r,2)}")
    if i == 3: a(f"v_mov_b32 v96, v{vO+12}\nv_mov_b32 v97, v{vO+12}")
    if i == 0: a(f"v_permlane32_swap_b32 v96, v97\nv_rcp_f32 v96, v97")
for hf in range(2):
    for r in range(8*hf, 8*hf+8, 2): a(f"v_pk_mul_f32 {v(vO+r,2)}, {v(vO+r,2)}, v[96:97] op_sel_hi:[1,0]")
    for r in range(4*hf, 4*hf+4): a(f"v_cvt_pk_bf16_f32 v{vP+r}, v{vO+2*r}, v{vO+2*r+1}")
    if hf: a(f"s_mov_b32 exec_lo, 0\nv_mov_b64 {v(vP+6,2)}, 0\ns_mov_b32 exec_lo, -1")
    a(f"buffer_store_dwordx4 {v(vP+4*hf,4)}, v1, {srd(WS)}, s{sOO} offen offset:{1024*hf} sc1")
a("s_setprio 0\ns_barrier")
stamp(11)
WFR, OB, OA = 112, 16, 48
a(f"""
v_bfe_u32 v96, v0, 2, 2
v_lshrrev_b32 v97, 5, v0
v_lshl_add_u32 v96, v96, 1, v97
v_mul_u32_u24 v96, 224, v96
v_bfe_u32 v98, v0, 4, 1
v_lshl_add_u32 v96, v98, 5, v96
v_and_b32 v98, 3, v0
v_lshl_add_u32 v96, v98, 3, v96
s_lshl_b32 s{sT2}, s{sG}, 6
v_add_u32 v2, s{sT2}, v96
v_mul_u32_u24 v99, {6*224}, v97
v_add_u32 v3, v99, v2
v_add_u32 v9, {8*28*224}, v2
v_add_u32 v10, {8*28*224}, v3
""")
for h in range(16):
    for s_ in range(2):
        for t in range(2):
            Qd = 7 * (h & 7) + 4 * s_ + 2 * t
            a(f"ds_read_b64_tr_b16 {v(WFR+8*h+4*s_+2*t,2)}, v{(2, 3, 9, 10)[(h&1) + 2*(h>>3)]} offset:{WS0+(8*(Qd>>1) + (Qd&1))*224}")
a(f"""
v_mov_b32 v4, 0
v_add_u32 v5, {LR}, v1
v_and_b32 v99, 31, v0
v_mul_u32_u24 v99, 1792, v99
v_lshl_add_u32 v8, v97, 4, v99
s_mul_i32 s{sT0}, s{sRT}, {32*1792}
s_mul_i32 s{sT1}, s{sCG}, 224
s_add_u32 s{sT0}, s{sT0}, s{sT1}
s_add_u32 s{sT0}, s{sT0}, s{sT2}
""")
if OPT.get("ep"): a(f"""
v_and_b32 v99, 31, v0
v_mul_u32_u24 v99, 80, v99
v_lshl_add_u32 v99, v97, 3, v99
s_mul_i32 s{sT1}, s{sG}, 4096
s_add_u32 s{sT1}, s{sT1}, {MERGE}
v_add_u32 v6, s{sT1}, v99
v_lshrrev_b32 v99, 2, v0
v_mul_u32_u24 v100, 80, v99
v_lshl_add_u32 v100, v98, 4, v100
v_add_u32 v7, s{sT1}, v100
v_mul_u32_u24 v100, 1792, v99
v_lshl_add_u32 v8, v98, 4, v100
s_add_u32 s{sT1}, s{sT0}, {16*1792}
s_cmp_eq_u32 s{sG}, 3
s_cselect_b32 s{sM1}, 0x33333333, -1
s_mov_b32 s{sM1+1}, s{sM1}
""")
a("s_waitcnt lgkmcnt(0)")
stamp(12)
a.c("waves 4-7 post one byte per staged head; chunk k+1 (4 heads) is checked and read while chunk k multiplies")
def ob(k): return OB if k % 2 == 0 else 64
def o_rd(k, f): return f"ds_read_b128 {v(ob(k)+4*f,4)}, v5 offset:{8192*k+1024*f}"
def o_fl(k): return f"ds_read_b32 v96, v4 offset:{64+4*k}"
def o_spin(k): return f"L_os{k}:\n{o_fl(k)}\ns_waitcnt lgkmcnt(0)\nv_cmp_ne_u32 vcc, -1, v96\ns_cbranch_vccnz L_os{k}"
def early_wb():
    a.c("start writing the gated half of the output back while the projection runs")
    a(f"s_lshr_b32 s{sT3}, s2, 3\ns_add_u32 s{sT3}, s{sT3}, s{sG}\ns_cmp_lg_u32 s{sT3}, 0\ns_cbranch_scc1 L_nwb\nbuffer_wbl2 sc1\nL_nwb:")
if OPT.get("wb") == 4: early_wb()
a("s_barrier" if OPT.get("fb", 1) else o_spin(0))
stamp(13)
lq = LQ()
for f in range(8): lq(o_rd(0, f))
if OPT.get("wb") == 5: early_wb()
CK = OPT.get("ck", 3)
for k in range(4):
    rd = [o_rd(k + 1, f) for f in range(8)] if k < 3 else []
    if rd: lq(o_fl(k + 1))
    for f in range(8):
        lq(mfma32(OA, WFR+32*k+4*f, ob(k)+4*f, "0" if k == 0 and f == 0 else OA))
        if rd and f == CK:
            lq(f"v_cmp_ne_u32 vcc, -1, v96\ns_cbranch_vccz L_or{k+1}")
            a(o_spin(k + 1) + f"\nL_or{k+1}:")
        if f >= CK:
            for x in rd[:2]: lq(x)
            rd = rd[2:]
if OPT.get("ep"):
    for r in range(8): a(f"v_cvt_pk_bf16_f32 v{16+r}, v{OA+2*r}, v{OA+2*r+1}")
    for m in range(4): a(f"ds_write_b64 v6, {v(16+2*m,2)} offset:{16*m}")
    a(f"""
s_waitcnt lgkmcnt(0)
ds_read_b128 {v(24,4)}, v7
ds_read_b128 {v(28,4)}, v7 offset:{16*80}
s_mov_b64 exec, s[{sM1}:{sM1+1}]
s_waitcnt lgkmcnt(1)
buffer_store_dwordx4 {v(24,4)}, v8, {srd(OUT)}, s{sT0} offen{OS}
s_waitcnt lgkmcnt(0)
buffer_store_dwordx4 {v(28,4)}, v8, {srd(OUT)}, s{sT1} offen{OS}
""")
for hf in range(0 if OPT.get("ep") else 2):
    if hf: a(f"s_cmp_eq_u32 s{sG}, 3\ns_cbranch_scc1 L_ost")
    for r in range(4*hf, 4*hf+4): a(f"v_cvt_pk_bf16_f32 v{16+r}, v{OA+2*r}, v{OA+2*r+1}")
    for d in range(2): a(f"v_permlane32_swap_b32 v{16+4*hf+d}, v{18+4*hf+d}")
    a(f"buffer_store_dwordx4 {v(16+4*hf,4)}, v8, {srd(OUT)}, s{sT0} offen offset:{32*hf}{OS}")
a("L_ost:")
stamp(14)
a("s_branch L_fin" if DIAG else "s_endpgm")

a(f"L_mB:\ns_waitcnt lgkmcnt(0)\nv_cmp_lt_u32 vcc, s{sTRY}, v98\ns_cbranch_vccnz L_fallback")
a(f"""
s_mul_i32 s{sT5}, s{sRT}, {32*896}
s_add_u32 s{sT5}, s{sT5}, 896
""")
for i in range(8): a(f"v_lshlrev_b32 v{16+2*i}, 16, v{QR+i}\nv_and_b32 v{17+2*i}, 0xffff0000, v{QR+i}")
for t in range(8):
    for p in range(2):
        src = vZR + 4 * p + t // 2
        a(f"v_lshlrev_b32 v{32+2*t+p}, 16, v{src}" if t % 2 == 0 else f"v_and_b32 v{32+2*t+p}, 0xffff0000, v{src}")
for t in range(8): a(f"v_pk_mul_f32 {v(32+2*t,2)}, {v(32+2*t,2)}, {v(16+2*t,2)}")
for t in range(8): a(f"v_cvt_pk_bf16_f32 v{56+t}, v{32+2*t}, v{33+2*t}")
def gate_st():
    for t in range(8):
        a(f"buffer_store_dword v{56+t}, v{vGO}, {srd(OUT)}, s{sT5} offen offset:{1792*(t&1)}{GS}")
        if t & 1 and t < 7: a(f"s_add_u32 s{sT5}, s{sT5}, 3584")
GO = OPT.get("go", 0)
a.c("waves 0-3 have read the partial sums and sent O"); a("s_barrier")
if OPT.get("gp"): a(f"s_setprio {OPT['gp']}")
if not OPT.get("gl") and not GO: gate_st()
if OPT.get("dl"): a(f"s_sleep {OPT['dl']}" if OPT["dl"] > 1 else "s_waitcnt vmcnt(0)")
stamp(11)
a.c("O fragments: every word differs from the all-ones mark once its producer's store has landed")
OL = 64
a(f"""
s_lshl_b32 s{sT0}, s{sRT}, 15
s_lshl_b32 s{sT1}, s{sG}, 11
s_add_u32 s{sT0}, s{sT0}, s{sT1}
s_add_u32 s{sT0}, s{sT0}, {OF}
s_add_u32 s{sT1}, s{sT0}, 8192
s_add_u32 s{sT2}, s{sT0}, 16384
s_add_u32 s{sT3}, s{sT0}, 24576
s_mov_b32 s{sSP}, {SPIN}
""")
def o_issue(k0):
    for k in range(k0, 4):
        for i in range(2): a(f"buffer_load_dwordx4 {v(OL+8*k+4*i,4)}, v1, {srd(WS)}, s{sT0+k} offen offset:{1024*i} sc1")
o_issue(0)
if GO: gate_st()
for k in range(4):
    r = OL + 8 * k
    a(f"""
s_waitcnt vmcnt({6-2*k+8*GO})
L_ochk{k}:
v_max3_u32 v96, v{r}, v{r+1}, v{r+2}
v_max3_u32 v97, v{r+3}, v{r+4}, v{r+5}
v_max3_u32 v96, v{r+6}, v{r+7}, v96
v_max_u32 v96, v96, v97
v_cmp_eq_u32 vcc, -1, v96
s_cbranch_vccnz L_oretry{k}
L_ogo{k}:
ds_write_b128 v{vQA}, {v(r,4)} offset:{8192*k}
ds_write_b128 v{vQA}, {v(r+4,4)} offset:{8192*k+1024}
""")
    a("s_waitcnt lgkmcnt(0)\ns_barrier" if k == 0 and OPT.get("fb", 1) else f"ds_write_b8 v{vFW}, v108 offset:{60+4*k}")
    if k == 0: stamp(12)
a("s_waitcnt lgkmcnt(0)")
stamp(13)
if DIAG and OPT.get("cyc"): a(f"s_sub_u32 s{sST+2}, {SPIN}, s{sSP}\ns_mul_i32 s{sST+2}, s{sST+2}, 100\ns_add_u32 s{sST+2}, s{sST+2}, s98\ns_add_u32 s{sST+2}, s{sST+2}, 1")
if 0 < OPT.get("wb", 0) < 4:
    a.c("start writing the gated half of the output back while the projection finishes")
    a(f"s_bfe_u32 s{sT0}, s2, {(0, 0, 0x30003, 0x50003)[OPT['wb']]}\ns_add_u32 s{sT0}, s{sT0}, s{sG}\ns_cmp_lg_u32 s{sT0}, 0\ns_cbranch_scc1 L_fin\nbuffer_wbl2 sc1\ns_waitcnt vmcnt(0)")
a.label("L_fin")
if DIAG:
    a(f"s_mov_b64 exec, -1\ns_mov_b32 s{sST+15}, s98")
    a(f"s_lshl_b32 s{sT0}, s2, 3\ns_add_u32 s{sT0}, s{sT0}, s{sW}\ns_lshl_b32 s{sT0}, s{sT0}, 6\ns_add_u32 s{sT0}, s{sT0}, {DG}\nv_lshlrev_b32 v96, 2, v0")
    for k in range(16): a(f"v_writelane_b32 v97, s{sST+k}, {k}")
    a(f"s_mov_b64 exec, 0xffff\nbuffer_store_dword v97, v96, {srd(WS)}, s{sT0} offen")
if DIAG and OPT.get("wbx"): a("s_waitcnt vmcnt(0)\nbuffer_wbl2 sc1\ns_waitcnt vmcnt(0)")
if "probe" in OPT:
    a(f"""
s_cmp_lg_u32 s2, {OPT.get("pwg", 100)}
s_cbranch_scc1 L_end
s_cmp_lg_u32 s{sW}, {OPT.get("pw", 0)}
s_cbranch_scc1 L_end
s_sub_u32 s{sT0}, s{sST+OPT["probe"]}, s{sST+OPT["pb"] if "pb" in OPT else 98}
s_lshl_b32 s{sT0}, s{sT0}, {3 if "pb" in OPT else 2}
s_add_u32 s{sT0}, s{sT0}, 4000
s_min_u32 s{sT0}, s{sT0}, 20000
L_probe:
s_memrealtime s[96:97]
s_waitcnt lgkmcnt(0)
s_sub_u32 s96, s96, s98
s_cmp_lt_u32 s96, s{sT0}
s_cbranch_scc1 L_probe
""")
a.label("L_end")
a("s_endpgm")

for k in range(4):
    a(f"L_oretry{k}:\ns_sub_u32 s{sSP}, s{sSP}, 1\ns_cbranch_scc1 L_ogo{k}".replace(f"s_cbranch_scc1 L_ogo{k}", f"s_cselect_b32 s{sSP}, 0, s{sSP}\ns_cbranch_scc1 L_ogo{k}"))
    o_issue(k)
    a(f"s_waitcnt vmcnt({0 if GO else 6-2*k})\ns_branch L_ochk{k}")

for i in range(1, 9):
    if i == 8 or not OPT.get("spi", 0): a(f"L_sp{i}:\n{fl_read(i)}\ns_waitcnt lgkmcnt(0)\nv_cmp_eq_u32 vcc, 0, v{vFT}\ns_cbranch_vccnz L_sp{i}\ns_branch L_spr{i}")
a(f"""
L_chkc3:
s_sub_u32 s{sSP}, s{sSP}, 1
s_cbranch_scc1 L_chkc2
buffer_load_dwordx4 {v(vFC,4)}, v1, {srd(WS)}, s{sT0} offen sc1
s_waitcnt vmcnt(0)
s_branch L_chkc1
L_epoch:
""")
a.c("workgroup 0 advances the epoch word: every workgroup is known to have read it")
signal("0")
a("s_branch L_chkc_r")

a.c("---- softmax guard tripped (a row sum left the safe range): take every row's true maximum over all keys and redo the key loop")
a.label("L_fallback")
a(f"""
s_mov_b32 s{sTRY}, -1
s_setprio 0
s_waitcnt lgkmcnt(0)
s_barrier
s_mov_b64 exec, 0xffff
ds_write_b64 v130, v[128:129]
s_mov_b64 exec, -1
s_waitcnt lgkmcnt(0)
""")
kv_stage(0); kv_stage(1)
a(f"""
s_mov_b32 exec_lo, 0
v_mov_b32 v{vQ+6}, 0
v_mov_b32 v{vQ+7}, 0
v_mov_b32 v{QQ[0]+6}, 0
v_mov_b32 v{QQ[0]+7}, 0
s_mov_b32 exec_lo, -1
v_mov_b32 v{vM}, 0xff800000
v_mov_b32 v{MM[0]}, 0xff800000
s_mov_b32 s{sT3}, s{sKVB}
s_mov_b32 s{sI}, 0
L_fb1:
buffer_load_dwordx4 {v(vK,4)}, v1, {srd(WS)}, s{sT3} offen sc1
buffer_load_dwordx4 {v(vK+4,4)}, v1, {srd(WS)}, s{sT3} offen offset:1024 sc1
s_waitcnt vmcnt(0)
{mfma32(vSb, vK, vQ, "0")}
{mfma32(vSb, vK+4, vQ+4, vSb)}
{mfma32(vSa, vK, QQ[0], "0")}
{mfma32(vSa, vK+4, QQ[0]+4, vSa)}
s_add_u32 s{sT3}, s{sT3}, 4096
s_add_u32 s{sI}, s{sI}, 1
""")
maxtree(vSb, vM, True)
maxtree(vSa, MM[0], True)
a(f"""
s_cmp_lt_u32 s{sI}, 64
s_cbranch_scc1 L_fb1
s_branch L_att
L_codeend:
""")

import subprocess
body0 = pad(a.l, verbose="v" in sys.argv)
def emit(pfs, fill):
    body = [l.replace("@@PFS@@", str(pfs)) for l in body0]
    hdr = open("cdna_kernels/" + NAME + ".s.ref").read().split("; Override launch")[0]
    return hdr + f"""; One persistent launch, one workgroup per CU; phases hand data over through d_ws with tagged flags.
; @launch grid=(256,1,1) block=(512,1,1) lds=163840
.amdgcn_target "amdgcn-amd-amdhsa--gfx950"
.text
.globl {NAME}_kernel
.p2align 8
.type {NAME}_kernel,@function
""" + "\n".join(body) + f"""
    .fill {fill}, 4, 0xbf810000
.section .rodata,"a"
.p2align 6
.amdhsa_kernel {NAME}_kernel
  .amdhsa_next_free_vgpr 256
  .amdhsa_next_free_sgpr 102
  .amdhsa_accum_offset 256
  .amdhsa_group_segment_fixed_size 0
  .amdhsa_kernarg_size 96
  .amdhsa_user_sgpr_count 2
  .amdhsa_user_sgpr_kernarg_segment_ptr 1
  .amdhsa_system_sgpr_workgroup_id_x 1
.end_amdhsa_kernel
"""
def size_of(txt):
    open("_sz.s", "w").write(txt)
    subprocess.run(["clang", "-x", "assembler", "-target", "amdgcn-amd-amdhsa", "-mcpu=gfx950", "-c", "_sz.s", "-o", "_sz.o"], check=True)
    o = subprocess.run(["llvm-objdump", "-t", "_sz.o"], capture_output=True, text=True).stdout
    return [int(l.split()[0], 16) for l in o.splitlines() if l.endswith("L_codeend")][0]
sz = size_of(emit(40, 1))
pfs = OPT.get("pfs", (sz + 2047) // 2048 * 4)
assert pfs <= 64
print("code bytes", sz, "prefetch stride", pfs)
open(sys.argv[1], "w").write(emit(pfs, max(1, (pfs * 512 - sz + 3) // 4)))
```
